```python
import torch

def _softmax(x, axis=-1):
    return torch.softmax(x, dim=axis)

def _gelu(x):
    return torch.nn.functional.gelu(x, approximate='tanh')

def _silu(x):
    return torch.nn.functional.silu(x)

def _sigmoid(x):
    return torch.sigmoid(x)

def _layernorm(x, axis=-1, eps=1e-05):
    m = x.mean(dim=axis, keepdim=True)
    v = x.var(dim=axis, keepdim=True, unbiased=False)
    return (x - m) / torch.sqrt(v + eps)

def _scatter_add(tgt, idx, src, axis=0):
    return tgt.clone().index_add_(axis, idx, src)

def _segment_sum(src, seg, n):
    out = torch.zeros((n,) + src.shape[1:], dtype=src.dtype)
    return out.index_add_(0, seg, src)

def _pad(x, pw):
    flat = tuple((v for pair in reversed(pw) for v in pair))
    return torch.nn.functional.pad(x, flat)
kernel_name = 'adaLN_cond__mha_block_cached__dense_activation_silu__prompt'

def setup_inputs():

    _w = lambda a: (lambda t: t.to(torch.bfloat16) if t.is_floating_point() else t)(torch.as_tensor(a))

    def _A_setup():
        B, Sq, D = (1, 2048, 448)
        H, Sk, Dh = (16, 2048, 256)
        return {'x': _w((lambda *s: torch.randn(*s, dtype=torch.bfloat16) * 0.1)(B, Sq, D)), 'k_cache': _w((lambda *s: torch.randn(*s, dtype=torch.bfloat16) * 0.8)(B, H, Sk, Dh)), 'v_cache': _w((lambda *s: torch.randn(*s, dtype=torch.bfloat16) * 3.2)(B, H, Sk, Dh)), 'wq': _w((lambda *s: torch.randn(*s, dtype=torch.bfloat16) * 0.8)(D, H * Dh) * D ** (-0.5)), 'wo': _w((lambda *s: torch.randn(*s, dtype=torch.bfloat16) * 3.2)(H * Dh, D) * (H * Dh) ** (-0.5))}
    _A_in = _A_setup()

    def _B_setup():
        B, S, D, F = (1, 2048, 448, 1792)
        return {'x': _w((lambda *s: torch.randn(*s, dtype=torch.bfloat16) * 0.1)(B, S, D)), 'w1': _w((lambda *s: torch.randn(*s, dtype=torch.bfloat16) * 3.2)(D, F) * D ** (-0.5)), 'w2': _w((lambda *s: torch.randn(*s, dtype=torch.bfloat16) * 3.2)(F, D) * F ** (-0.5))}
    _B_in = _B_setup()
    return {'A_x': _A_in['x'], 'A_k_cache': _A_in['k_cache'], 'A_v_cache': _A_in['v_cache'], 'A_wq': _A_in['wq'], 'A_wo': _A_in['wo'], 'B_x': _B_in['x'], 'B_w1': _B_in['w1'], 'B_w2': _B_in['w2'], 'c': _w((lambda *s: torch.randn(*s, dtype=torch.bfloat16) * 0.1)(1, 448) * 8.0), 'w_mod': _w((lambda *s: torch.randn(*s, dtype=torch.bfloat16) * 0.1)(448, 6 * 448) * 448 ** (-0.5) * 8.0)}

def reference(A_x, A_k_cache, A_v_cache, A_wq, A_wo, B_x, B_w1, B_w2, c, w_mod):

    def _A_ref(x, k_cache, v_cache, wq, wo):
        B, Sq, D = x.shape
        H, Dh = (16, 256)
        q = (lambda x, *d: x.permute(*d))((x @ wq).reshape(B, Sq, H, Dh), 0, 2, 1, 3)
        scores = torch.einsum('bhqd,bhkd->bhqk', q, k_cache) * Dh ** (-0.5)
        p = _softmax(scores, axis=-1)
        o = torch.einsum('bhqk,bhkd->bhqd', p, v_cache)
        return (lambda x, *d: x.permute(*d))(o, 0, 2, 1, 3).reshape(B, Sq, H * Dh) @ wo

    def _B_ref(x, w1, w2):
        h = torch.einsum('bsd,df->bsf', x, w1)
        h = _silu(h)
        out = torch.einsum('bsf,fd->bsd', h, w2)
        return out
    x = A_x
    mod = (_silu(c) @ w_mod).reshape(c.shape[0], 6, 1, -1)
    sa, ca, ga, sb, cb, gb = (mod[:, 0].clone(), mod[:, 1].clone(), mod[:, 2].clone(), mod[:, 3].clone(), mod[:, 4].clone(), mod[:, 5].clone())
    h = _layernorm(x, axis=-1) * (1 + ca) + sa
    x = x + ga * _A_ref(h, A_k_cache, A_v_cache, A_wq, A_wo)
    h = _layernorm(x, axis=-1) * (1 + cb) + sb
    x = x + gb * _B_ref(h, B_w1, B_w2)
    return x
```

```python
import re

class Asm:
    def __init__(self):
        self.L = []
        self.vm = 0
        self.lg = 0
    def __call__(self, s):
        for ln in s.split('\n'):
            ln = ln.strip()
            if ln: self.L.append(ln)
    def label(self, n): self.L.append(n + ':')
    def comment(self, s): self.L.append('; ' + s)
    def vmem(self, s):
        self(s); self.vm += 1; return self.vm
    def lds(self, s):
        self(s); self.lg += 1; return self.lg
    def wait_vm(self, tok, extra=''):
        n = self.vm - tok
        assert n >= 0
        if n > 63: n = 63
        self(f's_waitcnt vmcnt({n}){extra}')
    def wait_lg(self, tok):
        n = self.lg - tok
        assert n >= 0
        if n > 15: n = 15
        self(f's_waitcnt lgkmcnt({n})')
    def nop(self, n):
        while n > 0:
            k = min(n, 16); self(f's_nop {k-1}'); n -= k
    def text(self):
        out = []
        for l in self.L:
            if l.endswith(':') or l.startswith('.') or l.startswith(';'): out.append(l)
            else: out.append('  ' + l)
        return '\n'.join(out) + '\n'

def vr(b, n=1, p='v'):
    return f'{p}{b}' if n == 1 else f'{p}[{b}:{b+n-1}]'
def ar(b, n=1): return vr(b, n, 'a')
def sr(b, n=1): return vr(b, n, 's')

_REG = re.compile(r'\b([vas])(?:(\d+)|\[(\d+):(\d+)\])')
TRANS = ('v_exp_f32', 'v_log_f32', 'v_rcp_f32', 'v_rsq_f32', 'v_sqrt_f32', 'v_sin_f32', 'v_cos_f32')
def regs(tok):
    out = set()
    for m in _REG.finditer(tok):
        p = m.group(1)
        if m.group(2) is not None: out.add((p, int(m.group(2))))
        else:
            for i in range(int(m.group(3)), int(m.group(4)) + 1): out.add((p, i))
    if re.search(r'\bvcc\b', tok): out.add(('s', 'vcc'))
    if re.search(r'\bm0\b', tok): out.add(('s', 'm0'))
    if re.search(r'\bexec\b', tok): out.add(('s', 'exec'))
    return out

class Ins:
    def __init__(self, text):
        self.text = text
        t = text.split(';')[0].strip()
        sp = t.split(None, 1)
        self.op = sp[0]
        ops = [x.strip() for x in sp[1].split(',')] if len(sp) > 1 else []
        self.ops = ops
        op = self.op
        self.kind = ('mfma' if op.startswith('v_mfma') else 'valu' if op.startswith('v_') else
                     'ds' if op.startswith('ds_') else 'vmem' if op.startswith(('buffer_', 'global_')) else 'salu')
        self.ws = 1
        if op == 's_nop': self.ws = int(ops[0], 0) + 1
        self.dst = set(); self.src = set(); self.srcC = set(); self.srcAB = set(); self.stdata = set()
        if self.kind == 'mfma':
            self.dst = regs(ops[0]); self.srcAB = regs(ops[1]) | regs(ops[2]); self.srcC = regs(ops[3])
            self.src = self.srcAB | self.srcC
            self.passes = 8 if '32x32' in op else 4
        elif self.kind == 'valu':
            if op.startswith('v_cmp'):
                self.dst = regs(ops[0]); self.src = set().union(*[regs(x) for x in ops[1:]])
            elif 'permlane' in op and 'swap' in op:
                self.dst = regs(ops[0]) | regs(ops[1]); self.src = set(self.dst)
            elif op.startswith(('v_add_co', 'v_sub_co', 'v_addc_co')):
                self.dst = regs(ops[0]) | regs(ops[1]); self.src = set().union(*[regs(x) for x in ops[2:]])
            else:
                self.dst = regs(ops[0]); self.src = set().union(*[regs(x) for x in ops[1:]]) if len(ops) > 1 else set()
                if op.startswith(('v_fmac', 'v_dot2c')): self.src |= self.dst
                if op.startswith('v_cndmask') and len(ops) == 3: self.src.add(('s', 'vcc'))
        elif self.kind == 'ds':
            if op.startswith(('ds_read', 'ds_bpermute', 'ds_permute', 'ds_swizzle')):
                self.dst = regs(ops[0]); self.src = set().union(*[regs(x) for x in ops[1:]])
            else:
                self.src = set().union(*[regs(x) for x in ops])
        elif self.kind == 'vmem':
            isl = ' lds' in t
            if 'load' in op and not isl:
                self.dst = regs(ops[0]); self.src = set().union(*[regs(x) for x in ops[1:]])
            else:
                self.src = set().union(*[regs(x) for x in ops]) if ops else set()
                if isl: self.src.add(('s', 'm0'))
                if 'store' in op and ('x4' in op or 'x3' in op):
                    self.stdata = regs(ops[0]) if op.startswith('buffer') else regs(ops[1])
        else:
            if op.startswith(('s_cmp', 's_cbranch', 's_branch', 's_waitcnt', 's_nop', 's_barrier', 's_endpgm', 's_setprio', 's_sleep')):
                self.src = set().union(*[regs(x) for x in ops]) if ops else set()
            elif ops:
                self.dst = regs(ops[0]); self.src = set().union(*[regs(x) for x in ops[1:]]) if len(ops) > 1 else set()

def check_seq(ins, name=''):
    probs = []
    n = len(ins)
    for j in range(n):
        c = ins[j]
        dist = 0
        for i in range(j - 1, max(-1, j - 40), -1):
            p = ins[i]
            need = 0; why = ''
            vg = lambda s: {r for r in s if r[0] in 'va'}
            sg = lambda s: {r for r in s if r[0] == 's'}
            if p.kind == 'valu':
                if c.kind == 'mfma' and vg(p.dst) & c.src: need, why = 2, 'valu->mfma'
                if p.op.startswith(TRANS) and c.kind == 'valu' and not c.op.startswith(TRANS) and vg(p.dst) & c.src: need, why = max(need, 1), 'trans->valu'
                if p.op.startswith(TRANS) and c.kind in ('ds', 'vmem') and vg(p.dst) & c.src: need, why = max(need, 1), 'trans->mem'
                if 'permlane' in c.op and vg(p.dst) & c.src: need, why = max(need, 2), 'valu->permlane'
                if c.kind == 'valu' and ('dpp' in c.text or 'row_' in c.text or 'quad_perm' in c.text) and vg(p.dst) & c.src: need, why = max(need, 2), 'valu->dpp'
                if c.op.startswith(('v_readfirstlane', 'v_readlane')) and vg(p.dst) & c.src: need, why = max(need, 1), 'valu->readlane'
                if sg(p.dst) & c.src:
                    if c.kind == 'vmem': need, why = max(need, 5), 'valu sgpr->vmem'
                    elif c.kind == 'valu': need, why = max(need, 2), 'valu sgpr->valu'
                if 'sdwa' in p.text and c.kind == 'valu' and vg(p.dst) & c.src: need, why = max(need, 1), 'sdwa'
            if p.kind == 'mfma':
                big = 12 if p.passes == 8 else 8
                if c.kind == 'mfma':
                    if p.dst & c.srcAB: need, why = big, 'mfma D->AB'
                    elif p.dst & c.srcC and not (p.dst == c.srcC and p.passes == c.passes): need, why = big - 2, 'mfma D->C partial'
                    elif p.dst & c.dst and not (p.dst == c.srcC): need, why = big - 2, 'mfma D->D WAW(conservative)'
                elif c.kind == 'valu':
                    if p.dst & (c.src | c.dst): need, why = big, 'mfma D->valu'
                    elif p.srcC & c.dst: need, why = (7 if p.passes == 8 else 3), 'mfma C WAR valu'
                elif c.kind in ('ds', 'vmem'):
                    if p.dst & (c.src | c.dst): need, why = big, 'mfma D->mem'
            if p.kind == 'salu' and ('s', 'm0') in p.dst and c.kind == 'vmem' and ('s', 'm0') in c.src: need, why = 1, 'm0->dma'
            if p.stdata and (p.stdata & c.dst) and c.kind in ('valu', 'mfma'): need, why = max(need, 2), 'store data WAR'
            if dist < need:
                probs.append(f'{name}: [{why}] need {need} have {dist}: "{p.text}" -> "{c.text}"')
            dist += p.ws
            if dist >= 12: break
    return probs

def check_text(lines, name=''):
    ins = [Ins(l) for l in lines if not (l.endswith(':') or l.startswith('.') or l.startswith(';'))]
    return check_seq(ins, name)

def kd(name, vgpr, agpr=0, sgpr=96, accum=None):
    if accum is None: accum = (vgpr + 3) // 4 * 4
    nf = accum + agpr if agpr else vgpr
    return f""".section .rodata,"a"
.p2align 6
.amdhsa_kernel {name}
  .amdhsa_next_free_vgpr {nf}
  .amdhsa_next_free_sgpr {sgpr}
  .amdhsa_accum_offset {accum}
  .amdhsa_group_segment_fixed_size 0
  .amdhsa_kernarg_size 104
  .amdhsa_user_sgpr_count 2
  .amdhsa_user_sgpr_kernarg_segment_ptr 1
  .amdhsa_system_sgpr_workgroup_id_x 1
  .amdhsa_float_denorm_mode_32 3
  .amdhsa_float_denorm_mode_16_64 3
.end_amdhsa_kernel
.text
"""
```

```python
from asmlib import *
WS_MOD  = 0x0
WS_U    = 0x4000
WS_W    = 0x6000
WS_STAT = 0x8000
WS_N    = 0x40000
WS_X1   = 0x200000
WS_Y    = 0x400000
WS_H    = 0x600000
WS_O    = 0x1000000
KA = dict(x=0, k=8, v=16, wq=24, wo=32, bx=40, w1=48, w2=56, c=64, wmod=72, out=80, dbg=88, ws=96)
LOG2E = 1.4426950408889634
import struct
def f32(x): return '0x%08x' % struct.unpack('<I', struct.pack('<f', x))[0]

def head(a, name):
    a(f'.globl {name}'); a('.p2align 8'); a(f'.type {name},@function'); a.label(name)

def srd(a, d, base, off, size, offreg=None):
    if off:
        a(f's_add_u32 s{d}, s{base}, {hex(off)}'); a(f's_addc_u32 s{d+1}, s{base+1}, 0')
    else:
        a(f's_mov_b32 s{d}, s{base}'); a(f's_mov_b32 s{d+1}, s{base+1}')
    if offreg is not None:
        a(f's_add_u32 s{d}, s{d}, s{offreg}'); a(f's_addc_u32 s{d+1}, s{d+1}, 0')
    a(f's_and_b32 s{d+1}, s{d+1}, 0xffff')
    a(f's_mov_b32 s{d+2}, {hex(size)}'); a(f's_mov_b32 s{d+3}, 0x20000')

def rbf(a, d, s):
    a(f'v_cvt_pk_bf16_f32 v{d}, v{s}, v{s}'); a(f'v_and_b32 v{d}, 0xffff0000, v{d}')
def unpack(a, lo, hi, s):
    a(f'v_lshlrev_b32 v{lo}, 16, v{s}'); a(f'v_and_b32 v{hi}, 0xffff0000, v{s}')

import os
STAMP = bool(os.environ.get('STAMP'))
WS_STAMP = 0x3000000
class Stamper:
    def __init__(self, a, base=64, kid=0):
        self.a = a; self.base = base; self.n = 0; self.kid = kid
    def stamp(self, real=False):
        if not STAMP: return
        a = self.a
        r = self.base + 2*self.n
        a('s_waitcnt lgkmcnt(0)')
        a(f'{"s_memrealtime" if real else "s_memtime"} s[{r}:{r+1}]'); a('s_waitcnt lgkmcnt(0)')
        self.n += 1
    def dump(self, wsbase, wavereg, v0, nw=4):
        if not STAMP: return
        a = self.a
        srd(a, 96, wsbase, WS_STAMP + self.kid*0x100000, 0x100000)
        a(f's_mul_i32 s100, s2, {nw}'); a(f's_add_u32 s100, s100, s{wavereg}'); a('s_lshl_b32 s100, s100, 6')
        a(f'v_mov_b32 v{v0}, 0')
        for i in range(self.n):
            a(f'v_mov_b32 v{v0+1}, s{self.base+2*i}')
            a(f'buffer_store_dword v{v0+1}, v{v0}, s[96:99], s100 offen offset:{4*i}')
```

```python
from gen_common import *

def gemv_body(a, tag, wsrd, rowbytes, nvec, vec_setup, finish):
    pass

def gen_k1():
    a = Asm()
    N = 'k1_kernel'
    head(a, N)
    a('s_cmp_ge_u32 s2, 170'); a('s_cbranch_scc1 K1_end')
    a(f's_load_dwordx2 s[4:5], s[0:1], {KA["x"]}')
    a(f's_load_dwordx4 s[8:11], s[0:1], {KA["c"]}')
    a(f's_load_dwordx2 s[6:7], s[0:1], {KA["ws"]}')
    a('s_cmp_lt_u32 s2, 42'); a('s_cbranch_scc1 K1_mod')
    a('s_sub_u32 s3, s2, 42')
    a('v_and_b32 v1, 63, v0')
    a('v_lshrrev_b32 v2, 6, v0')
    a('v_and_b32 v3, 15, v0')
    a('v_bfe_u32 v4, v0, 4, 2')
    a('v_mul_u32_u24 v5, 896, v3')
    a('v_lshl_add_u32 v5, v2, 7, v5')
    a('v_lshl_add_u32 v5, v4, 3, v5')
    a(f's_mul_i32 s12, s3, {16*896}')
    a(f's_mul_i32 s13, s3, {14*1024}')
    a('s_waitcnt lgkmcnt(0)')
    srd(a, 16, 4, 0, 16*896, 12)
    srd(a, 20, 6, WS_N, 14*1024, 13)
    X = 8
    for i in range(4):
        a(f'buffer_load_dwordx2 v[{X+2*i}:{X+2*i+1}], v5, s[16:19], 0 offen offset:{32*i}')
    a('v_lshl_add_u32 v6, v2, 2, v4')
    a('v_mul_u32_u24 v7, 112, v3')
    a('v_lshl_add_u32 v6, v6, 2, v7')
    a('v_lshlrev_b32 v1, 4, v1')
    a('v_lshl_add_u32 v1, v2, 11, v1')
    a('s_waitcnt vmcnt(0)')
    F = 16
    for i in range(8): unpack(a, F+2*i, F+2*i+1, X+i)
    T = 32
    def tree(base, n, dst):
        cur = list(range(base, base+n)); t = T
        while len(cur) > 1:
            nx = []
            for i in range(0, len(cur)-1, 2):
                d = dst if len(cur) == 2 else t
                a(f'v_add_f32 v{d}, v{cur[i]}, v{cur[i+1]}'); nx.append(d); t += 1
            if len(cur) % 2: nx.append(cur[-1])
            cur = nx
    def exchange(src, lo, dst):
        a(f'ds_write_b32 v6, v{src} offset:{lo}')
        a('s_waitcnt lgkmcnt(0)'); a('s_barrier')
        for i in range(7): a(f'ds_read_b128 v[{64+4*i}:{64+4*i+3}], v7 offset:{lo+16*i}')
        a('s_waitcnt lgkmcnt(0)')
        tree(64, 28, dst)
    tree(F, 16, 60)
    exchange(60, 0, 61)
    a(f'v_mul_f32 v61, {f32(1/448)}, v61')
    for i in range(16): a(f'v_sub_f32 v{96+i}, v{F+i}, v61')
    for i in range(16): a(f'v_mul_f32 v{96+i}, v{96+i}, v{96+i}')
    tree(96, 16, 60)
    exchange(60, 2048, 62)
    a(f'v_mul_f32 v62, {f32(1/448)}, v62')
    rbf(a, 62, 62)
    a(f'v_add_f32 v62, {f32(1e-5)}, v62')
    rbf(a, 62, 62)
    a('v_sqrt_f32 v62, v62'); a('s_nop 0')
    rbf(a, 62, 62)
    a('v_rcp_f32 v62, v62')
    rbf(a, 61, 61)
    for i in range(16): a(f'v_sub_f32 v{F+i}, v{F+i}, v61')
    for i in range(8): a(f'v_cvt_pk_bf16_f32 v{X+i}, v{F+2*i}, v{F+2*i+1}')
    for i in range(8): unpack(a, F+2*i, F+2*i+1, X+i)
    for i in range(16): a(f'v_mul_f32 v{F+i}, v{F+i}, v62')
    for i in range(8): a(f'v_cvt_pk_bf16_f32 v{X+i}, v{F+2*i}, v{F+2*i+1}')
    a(f'buffer_store_dwordx4 v[{X}:{X+3}], v1, s[20:23], 0 offen')
    a(f'buffer_store_dwordx4 v[{X+4}:{X+7}], v1, s[20:23], 0 offen offset:1024')
    a('s_endpgm')
    a.label('K1_mod')
    a('v_and_b32 v1, 7, v0')
    a('v_lshrrev_b32 v2, 3, v0')
    a('v_mul_u32_u24 v3, 5376, v2')
    a('v_lshl_add_u32 v3, v1, 4, v3')
    a('v_lshlrev_b32 v4, 1, v2')
    a('s_lshl_b32 s12, s2, 7')
    a('s_lshl_b32 s13, s2, 8')
    a('s_waitcnt lgkmcnt(0)')
    srd(a, 16, 8, 0, 896)
    srd(a, 20, 10, 0, 448*5376)
    srd(a, 24, 6, WS_MOD, 6*448*4)
    C = 8; W = 16
    for i in range(8):
        a(f'buffer_load_ushort v{C+i}, v4, s[16:19], 0 offen offset:{112*i}')
    for i in range(8):
        a(f's_add_u32 s14, s12, {56*5376*i}')
        a(f'buffer_load_dwordx4 v[{W+4*i}:{W+4*i+3}], v3, s[20:23], s14 offen')
    a('s_waitcnt vmcnt(8)')
    for i in range(8): a(f'v_lshlrev_b32 v{C+i}, 16, v{C+i}')
    for i in range(8): a(f'v_mul_f32 v{48+i}, {f32(-LOG2E)}, v{C+i}')
    for i in range(8): a(f'v_exp_f32 v{48+i}, v{48+i}')
    for i in range(8): a(f'v_add_f32 v{48+i}, 1.0, v{48+i}')
    for i in range(8): a(f'v_rcp_f32 v{48+i}, v{48+i}')
    for i in range(8): a(f'v_mul_f32 v{C+i}, v{C+i}, v{48+i}')
    for i in range(8): rbf(a, C+i, C+i)
    ACC = 56
    for i in range(8):
        a(f's_waitcnt vmcnt({7-i})')
        for j in range(4):
            unpack(a, 64, 65, W+4*i+j)
            if i == 0:
                a(f'v_mul_f32 v{ACC+2*j}, v64, v{C+i}'); a(f'v_mul_f32 v{ACC+2*j+1}, v65, v{C+i}')
            else:
                a(f'v_fmac_f32 v{ACC+2*j}, v64, v{C+i}'); a(f'v_fmac_f32 v{ACC+2*j+1}, v65, v{C+i}')
    a('v_lshlrev_b32 v5, 8, v2'); a('v_lshl_add_u32 v5, v1, 5, v5')
    a(f'ds_write_b128 v5, v[{ACC}:{ACC+3}]'); a(f'ds_write_b128 v5, v[{ACC+4}:{ACC+7}] offset:16')
    a('v_and_b32 v6, 63, v0'); a('v_lshrrev_b32 v7, 6, v0')
    a('v_lshlrev_b32 v6, 2, v6')
    a('v_lshl_add_u32 v8, v7, 11, v6')
    a('s_waitcnt lgkmcnt(0)'); a('s_barrier')
    for i in range(8): a(f'ds_read_b32 v{16+i}, v8 offset:{256*i}')
    a('v_lshl_add_u32 v9, v7, 8, v6')
    a('s_waitcnt lgkmcnt(0)')
    tree(16, 8, 24)
    a('ds_write_b32 v9, v24 offset:16384')
    a('s_waitcnt lgkmcnt(0)'); a('s_barrier')
    a('v_cmp_gt_u32 vcc, 64, v0')
    a('s_and_saveexec_b64 s[28:29], vcc')
    a('s_cbranch_execz K1_end')
    for i in range(7): a(f'ds_read_b32 v{16+i}, v6 offset:{16384+256*i}')
    a('s_waitcnt lgkmcnt(0)')
    tree(16, 7, 24)
    rbf(a, 24, 24)
    a('s_sub_u32 s14, s2, 7'); a('s_cmp_lt_u32 s14, 7'); a('s_cbranch_scc1 K1_p1')
    a('s_sub_u32 s14, s2, 28'); a('s_cmp_lt_u32 s14, 7'); a('s_cbranch_scc0 K1_p2')
    a.label('K1_p1')
    a('v_add_f32 v24, 1.0, v24')
    rbf(a, 24, 24)
    a.label('K1_p2')
    a('s_cmp_lt_u32 s2, 14'); a('s_cbranch_scc0 K1_st')
    a(f'v_mul_f32 v24, {f32(LOG2E/16)}, v24')
    a.label('K1_st')
    a('buffer_store_dword v24, v6, s[24:27], s13 offen')
    a.label('K1_end')
    a('s_endpgm')
    return a, f'; @launch kernel={N} grid=(170,1,1) block=(448,1,1) lds=18432', kd(N, 112, sgpr=40)
```

```python
import sys, importlib
from gen_common import *
import gen_k1
HDR = open('adaLN_cond__mha_block_cached__dense_activation_silu__prompt.s.ref').read().split('; Override launch')[0]
def build(parts):
    launches = []; body = []
    for a, l, k in parts:
        pr = check_text(a.L, l[:40])
        for p in pr: print('HAZARD', p, file=sys.stderr)
        launches.append(l); body.append(a.text() + k)
    return HDR + '\n'.join(launches) + '\n.amdgcn_target "amdgcn-amd-amdhsa--gfx950"\n.text\n' + ''.join(body) + 'CODE_END:\n'
if __name__ == '__main__':
    which = sys.argv[2] if len(sys.argv) > 2 else '12345'
    parts = []
    if which == 'one':
        import gen_one; parts = [gen_one.gen_one()]; which = ''
    for c in which:
        m = importlib.import_module('gen_k' + c)
        parts.append(getattr(m, 'gen_k' + c)())
    open(sys.argv[1], 'w').write(build(parts))
```

```python
from asmlib import *
WS_MOD  = 0x0
WS_U    = 0x4000
WS_W    = 0x6000
WS_STAT = 0x8000
WS_FLAG = 0x30000
WS_N    = 0x40000
WS_X1   = 0x200000
WS_Y    = 0x400000
WS_H    = 0x600000
WS_O    = 0x1000000
KA = dict(x=0, k=8, v=16, wq=24, wo=32, bx=40, w1=48, w2=56, c=64, wmod=72, out=80, dbg=88, ws=96)
LOG2E = 1.4426950408889634
import struct
def f32(x): return '0x%08x' % struct.unpack('<I', struct.pack('<f', x))[0]

def head(a, name):
    a(f'.globl {name}'); a('.p2align 8'); a(f'.type {name},@function'); a.label(name)

def srd(a, d, base, off, size, offreg=None):
    if off:
        a(f's_add_u32 s{d}, s{base}, {hex(off)}'); a(f's_addc_u32 s{d+1}, s{base+1}, 0')
    else:
        a(f's_mov_b32 s{d}, s{base}'); a(f's_mov_b32 s{d+1}, s{base+1}')
    if offreg is not None:
        a(f's_add_u32 s{d}, s{d}, s{offreg}'); a(f's_addc_u32 s{d+1}, s{d+1}, 0')
    a(f's_and_b32 s{d+1}, s{d+1}, 0xffff')
    a(f's_mov_b32 s{d+2}, {hex(size)}'); a(f's_mov_b32 s{d+3}, 0x20000')

def rbf(a, d, s):
    a(f'v_cvt_pk_bf16_f32 v{d}, v{s}, v{s}'); a(f'v_and_b32 v{d}, 0xffff0000, v{d}')
def unpack(a, lo, hi, s):
    a(f'v_lshlrev_b32 v{lo}, 16, v{s}'); a(f'v_and_b32 v{hi}, 0xffff0000, v{s}')

import os
STAMP = bool(os.environ.get('STAMP'))
WS_STAMP = 0x3000000
class Stamper:
    def __init__(self, a, base=64, kid=0):
        self.a = a; self.base = base; self.n = 0; self.kid = kid
    def stamp(self, real=False):
        if not STAMP: return
        a = self.a
        r = self.base + 2*self.n
        a('s_waitcnt lgkmcnt(0)')
        a(f'{"s_memrealtime" if real else "s_memtime"} s[{r}:{r+1}]'); a('s_waitcnt lgkmcnt(0)')
        self.n += 1
    def dump(self, wsbase, wavereg, v0, nw=4):
        if not STAMP: return
        a = self.a
        srd(a, 96, wsbase, WS_STAMP + self.kid*0x100000, 0x100000)
        a(f's_mul_i32 s100, s2, {nw}'); a(f's_add_u32 s100, s100, s{wavereg}'); a('s_lshl_b32 s100, s100, 6')
        a(f'v_mov_b32 v{v0}, 0')
        for i in range(self.n):
            a(f'v_mov_b32 v{v0+1}, s{self.base+2*i}')
            a(f'buffer_store_dword v{v0+1}, v{v0}, s[96:99], s100 offen offset:{4*i}')

CT = int(os.environ.get('CT', 1))
def code_touch(a, T, vt, dst, sb, nw, endlabel, ninstr=1):
    if not CT: return
    a(f's_getpc_b64 s[{sb}:{sb+1}]'); a.label(f'{T}_pc')
    a(f's_and_b32 s{sb+1}, s{sb+1}, 0xffff'); a(f's_mov_b32 s{sb+2}, {endlabel}-{T}_pc'); a(f's_mov_b32 s{sb+3}, 0x20000')
    a(f'v_lshlrev_b32 v{vt}, 7, v0')
    for i in range(ninstr):
        if i: a(f'v_add_u32 v{vt}, {nw*64*128}, v{vt}')
        a.vmem(f'buffer_load_dword {dst}, v{vt}, s[{sb}:{sb+3}], 0 offen')
```

```python
from gen_common import *

def gemv_body(a, tag, wsrd, rowbytes, nvec, vec_setup, finish):
    pass

CH = 1344*128
PFR = []
if int(os.environ.get('PFWQ', 0)): PFR += [(8, 448*8192, -(-448*8192 // CH), 16, CH)]
if int(os.environ.get('PFKV', 0)): PFR += [(4, 16 << 20, 8, 20, 2 << 20), (6, 16 << 20, 8, 20, 2 << 20)]
if int(os.environ.get('PFCODE', 0)): PFR.append((10, 'CODE_END-K1_pc', 1, 16, CH))
PFN = sum(r[2] for r in PFR)
TLBN = int(os.environ.get('TLBN', 0))
def gen_k1():
    a = Asm()
    N = 'k1_kernel'
    head(a, N)
    a('s_cmp_ge_u32 s2, 170'); a('s_cbranch_scc1 K1_pf')
    a(f's_load_dwordx2 s[4:5], s[0:1], {KA["x"]}')
    a(f's_load_dwordx4 s[8:11], s[0:1], {KA["c"]}')
    a(f's_load_dwordx2 s[6:7], s[0:1], {KA["ws"]}')
    a('s_cmp_lt_u32 s2, 42'); a('s_cbranch_scc1 K1_mod')
    a('s_sub_u32 s3, s2, 42')
    a('v_and_b32 v1, 63, v0')
    a('v_lshrrev_b32 v2, 6, v0')
    a('v_and_b32 v3, 15, v0')
    a('v_bfe_u32 v4, v0, 4, 2')
    a('v_mul_u32_u24 v5, 896, v3')
    a('v_lshl_add_u32 v5, v2, 7, v5')
    a('v_lshl_add_u32 v5, v4, 3, v5')
    a(f's_mul_i32 s12, s3, {16*896}')
    a(f's_mul_i32 s13, s3, {14*1024}')
    a('s_waitcnt lgkmcnt(0)')
    srd(a, 16, 4, 0, 16*896, 12)
    srd(a, 20, 6, WS_N, 14*1024, 13)
    X = 8
    for i in range(4):
        a(f'buffer_load_dwordx2 v[{X+2*i}:{X+2*i+1}], v5, s[16:19], 0 offen offset:{32*i}')
    a('v_lshl_add_u32 v6, v2, 2, v4')
    a('v_mul_u32_u24 v7, 112, v3')
    a('v_lshl_add_u32 v6, v6, 2, v7')
    a('v_lshlrev_b32 v1, 4, v1')
    a('v_lshl_add_u32 v1, v2, 11, v1')
    a('s_waitcnt vmcnt(0)')
    F = 16
    for i in range(8): unpack(a, F+2*i, F+2*i+1, X+i)
    T = 32
    def tree(base, n, dst):
        cur = list(range(base, base+n)); t = T
        while len(cur) > 1:
            nx = []
            for i in range(0, len(cur)-1, 2):
                d = dst if len(cur) == 2 else t
                a(f'v_add_f32 v{d}, v{cur[i]}, v{cur[i+1]}'); nx.append(d); t += 1
            if len(cur) % 2: nx.append(cur[-1])
            cur = nx
    def exchange(src, lo, dst):
        a(f'ds_write_b32 v6, v{src} offset:{lo}')
        a('s_waitcnt lgkmcnt(0)'); a('s_barrier')
        for i in range(7): a(f'ds_read_b128 v[{64+4*i}:{64+4*i+3}], v7 offset:{lo+16*i}')
        a('s_waitcnt lgkmcnt(0)')
        tree(64, 28, dst)
    tree(F, 16, 60)
    exchange(60, 0, 61)
    a(f'v_mul_f32 v61, {f32(1/448)}, v61')
    for i in range(16): a(f'v_sub_f32 v{96+i}, v{F+i}, v61')
    for i in range(16): a(f'v_mul_f32 v{96+i}, v{96+i}, v{96+i}')
    tree(96, 16, 60)
    exchange(60, 2048, 62)
    a(f'v_mul_f32 v62, {f32(1/448)}, v62')
    rbf(a, 62, 62)
    a(f'v_add_f32 v62, {f32(1e-5)}, v62')
    rbf(a, 62, 62)
    a('v_sqrt_f32 v62, v62'); a('s_nop 0')
    rbf(a, 62, 62)
    a('v_rcp_f32 v62, v62')
    rbf(a, 61, 61)
    for i in range(16): a(f'v_sub_f32 v{F+i}, v{F+i}, v61')
    for i in range(8): a(f'v_cvt_pk_bf16_f32 v{X+i}, v{F+2*i}, v{F+2*i+1}')
    for i in range(8): unpack(a, F+2*i, F+2*i+1, X+i)
    for i in range(16): a(f'v_mul_f32 v{F+i}, v{F+i}, v62')
    for i in range(8): a(f'v_cvt_pk_bf16_f32 v{X+i}, v{F+2*i}, v{F+2*i+1}')
    a(f'buffer_store_dwordx4 v[{X}:{X+3}], v1, s[20:23], 0 offen')
    a(f'buffer_store_dwordx4 v[{X+4}:{X+7}], v1, s[20:23], 0 offen offset:1024')
    a('s_endpgm')
    a.label('K1_mod')
    a('v_and_b32 v1, 7, v0')
    a('v_lshrrev_b32 v2, 3, v0')
    a('v_mul_u32_u24 v3, 5376, v2')
    a('v_lshl_add_u32 v3, v1, 4, v3')
    a('v_lshlrev_b32 v4, 1, v2')
    a('s_lshl_b32 s12, s2, 7')
    a('s_lshl_b32 s13, s2, 8')
    a('s_waitcnt lgkmcnt(0)')
    srd(a, 16, 8, 0, 896)
    srd(a, 20, 10, 0, 448*5376)
    srd(a, 24, 6, WS_MOD, 6*448*4)
    C = 8; W = 16
    for i in range(8):
        a(f'buffer_load_ushort v{C+i}, v4, s[16:19], 0 offen offset:{112*i}')
    for i in range(8):
        a(f's_add_u32 s14, s12, {56*5376*i}')
        a(f'buffer_load_dwordx4 v[{W+4*i}:{W+4*i+3}], v3, s[20:23], s14 offen')
    a('s_waitcnt vmcnt(8)')
    for i in range(8): a(f'v_lshlrev_b32 v{C+i}, 16, v{C+i}')
    for i in range(8): a(f'v_mul_f32 v{48+i}, {f32(-LOG2E)}, v{C+i}')
    for i in range(8): a(f'v_exp_f32 v{48+i}, v{48+i}')
    for i in range(8): a(f'v_add_f32 v{48+i}, 1.0, v{48+i}')
    for i in range(8): a(f'v_rcp_f32 v{48+i}, v{48+i}')
    for i in range(8): a(f'v_mul_f32 v{C+i}, v{C+i}, v{48+i}')
    for i in range(8): rbf(a, C+i, C+i)
    ACC = 56
    for i in range(8):
        a(f's_waitcnt vmcnt({7-i})')
        for j in range(4):
            unpack(a, 64, 65, W+4*i+j)
            if i == 0:
                a(f'v_mul_f32 v{ACC+2*j}, v64, v{C+i}'); a(f'v_mul_f32 v{ACC+2*j+1}, v65, v{C+i}')
            else:
                a(f'v_fmac_f32 v{ACC+2*j}, v64, v{C+i}'); a(f'v_fmac_f32 v{ACC+2*j+1}, v65, v{C+i}')
    a('v_lshlrev_b32 v5, 8, v2'); a('v_lshl_add_u32 v5, v1, 5, v5')
    a(f'ds_write_b128 v5, v[{ACC}:{ACC+3}]'); a(f'ds_write_b128 v5, v[{ACC+4}:{ACC+7}] offset:16')
    a('v_and_b32 v6, 63, v0'); a('v_lshrrev_b32 v7, 6, v0')
    a('v_lshlrev_b32 v6, 2, v6')
    a('v_lshl_add_u32 v8, v7, 11, v6')
    a('s_waitcnt lgkmcnt(0)'); a('s_barrier')
    for i in range(8): a(f'ds_read_b32 v{16+i}, v8 offset:{256*i}')
    a('v_lshl_add_u32 v9, v7, 8, v6')
    a('s_waitcnt lgkmcnt(0)')
    tree(16, 8, 24)
    a('ds_write_b32 v9, v24 offset:16384')
    a('s_waitcnt lgkmcnt(0)'); a('s_barrier')
    a('v_cmp_gt_u32 vcc, 64, v0')
    a('s_and_saveexec_b64 s[28:29], vcc')
    a('s_cbranch_execz K1_end')
    for i in range(7): a(f'ds_read_b32 v{16+i}, v6 offset:{16384+256*i}')
    a('s_waitcnt lgkmcnt(0)')
    tree(16, 7, 24)
    rbf(a, 24, 24)
    a('s_sub_u32 s14, s2, 7'); a('s_cmp_lt_u32 s14, 7'); a('s_cbranch_scc1 K1_p1')
    a('s_sub_u32 s14, s2, 28'); a('s_cmp_lt_u32 s14, 7'); a('s_cbranch_scc0 K1_p2')
    a.label('K1_p1')
    a('v_add_f32 v24, 1.0, v24')
    rbf(a, 24, 24)
    a.label('K1_p2')
    a('s_cmp_lt_u32 s2, 14'); a('s_cbranch_scc0 K1_st')
    a(f'v_mul_f32 v24, {f32(LOG2E/16)}, v24')
    a.label('K1_st')
    a('buffer_store_dword v24, v6, s[24:27], s13 offen')
    a.label('K1_end')
    a('s_endpgm')
    a.label('K1_pf')
    a(f's_cmp_ge_u32 s2, {170+PFN}'); a('s_cbranch_scc1 K1_tlb')
    a(f's_load_dwordx4 s[4:7], s[0:1], {KA["k"]}')
    a(f's_load_dwordx2 s[8:9], s[0:1], {KA["wq"]}')
    a('s_getpc_b64 s[10:11]'); a.label('K1_pc')
    a('s_sub_u32 s3, s2, 170')
    a('s_waitcnt lgkmcnt(0)')
    lim = 0
    for (base, size, n, sh, step) in PFR:
        a(f's_mov_b32 s16, s{base}'); a(f's_mov_b32 s17, s{base+1}'); a(f's_mov_b32 s18, {size}'); a(f's_sub_u32 s12, s3, {lim}')
        a(f's_mul_i32 s12, s12, {step}'); a(f's_mov_b32 s13, {sh}')
        lim += n
        a(f's_cmp_lt_u32 s3, {lim}'); a('s_cbranch_scc1 K1_pf2')
    a.label('K1_pf2')
    a('s_and_b32 s17, s17, 0xffff'); a('s_mov_b32 s19, 0x20000')
    for i in range(3):
        a(f'v_add_u32 v1, {448*i}, v0'); a('v_lshrrev_b32 v2, 9, v1'); a('v_lshlrev_b32 v2, s13, v2')
        a('v_and_b32 v1, 511, v1'); a('v_lshl_add_u32 v1, v1, 7, v2')
        a(f'buffer_load_dword v{4+i}, v1, s[16:19], s12 offen')
    a('s_endpgm')
    a.label('K1_tlb')
    a(f's_cmp_ge_u32 s2, {170+PFN+TLBN}'); a('s_cbranch_scc1 K1_end')
    a('v_lshrrev_b32 v1, 6, v0'); a('s_nop 0'); a('v_readfirstlane_b32 s3, v1')
    a('v_and_b32 v1, 63, v0'); a('v_lshlrev_b32 v1, 20, v1')
    bufs = [('k', 16 << 20), ('v', 16 << 20), ('ws', 32 << 20), ('wo', 4096*896), ('wq', 448*8192), ('w1', 448*3584), ('w2', 1792*896), ('out', 2048*896)]
    for i, (nm, sz) in enumerate(bufs[:7]):
        a(f's_mov_b32 s12, {KA[nm]}'); a(f's_mov_b32 s18, {sz}')
        a(f's_cmp_eq_u32 s3, {i}'); a('s_cbranch_scc1 K1_tlb2')
    a.label('K1_tlb2')
    a('s_load_dwordx2 s[16:17], s[0:1], s12')
    a(f's_load_dwordx2 s[20:21], s[0:1], {KA["out"]}')
    a('s_waitcnt lgkmcnt(0)')
    a('s_and_b32 s17, s17, 0xffff'); a('s_mov_b32 s19, 0x20000')
    a('s_and_b32 s21, s21, 0xffff'); a(f's_mov_b32 s22, {2048*896}'); a('s_mov_b32 s23, 0x20000')
    a('buffer_load_dword v2, v1, s[16:19], 0 offen')
    a('buffer_load_dword v3, v1, s[20:23], 0 offen')
    a('s_endpgm')
    return a, f'; @launch kernel={N} grid=({170+PFN+TLBN},1,1) block=(448,1,1) lds=18432', kd(N, 112, sgpr=40)
```

```python
from gen_common import *

def gemv_body(a, tag, wsrd, rowbytes, nvec, vec_setup, finish):
    pass

CH = 1344*128
PFR = []
if int(os.environ.get('PFWQ', 0)): PFR += [(8, 448*8192, -(-448*8192 // CH), 16, CH)]
if int(os.environ.get('PFKV', 0)): PFR += [(4, 16 << 20, 8, 20, 2 << 20), (6, 16 << 20, 8, 20, 2 << 20)]
if int(os.environ.get('PFCODE', 0)): PFR.append((10, 'CODE_END-K1_pc', 1, 16, CH))
PFN = sum(r[2] for r in PFR)
TLBN = int(os.environ.get('TLBN', 0))
def gen_k1():
    a = Asm()
    N = 'k1_kernel'
    head(a, N)
    a('s_cmp_ge_u32 s2, 170'); a('s_cbranch_scc1 K1_pf')
    a(f's_load_dwordx2 s[4:5], s[0:1], {KA["x"]}')
    a(f's_load_dwordx4 s[8:11], s[0:1], {KA["c"]}')
    a(f's_load_dwordx2 s[6:7], s[0:1], {KA["ws"]}')
    a('s_cmp_lt_u32 s2, 42'); a('s_cbranch_scc1 K1_mod')
    a('s_sub_u32 s3, s2, 42')
    a('v_and_b32 v1, 63, v0')
    a('v_lshrrev_b32 v2, 6, v0')
    a('v_and_b32 v3, 15, v0')
    a('v_bfe_u32 v4, v0, 4, 2')
    a('v_mul_u32_u24 v5, 896, v3')
    a('v_lshl_add_u32 v5, v2, 7, v5')
    a('v_lshl_add_u32 v5, v4, 3, v5')
    a(f's_mul_i32 s12, s3, {16*896}')
    a(f's_mul_i32 s13, s3, {14*1024}')
    a('s_waitcnt lgkmcnt(0)')
    srd(a, 16, 4, 0, 16*896, 12)
    srd(a, 20, 6, WS_N, 14*1024, 13)
    X = 8
    for i in range(4):
        a(f'buffer_load_dwordx2 v[{X+2*i}:{X+2*i+1}], v5, s[16:19], 0 offen offset:{32*i}')
    a('v_lshl_add_u32 v6, v2, 2, v4')
    a('v_mul_u32_u24 v7, 112, v3')
    a('v_lshl_add_u32 v6, v6, 2, v7')
    a('v_lshlrev_b32 v1, 4, v1')
    a('v_lshl_add_u32 v1, v2, 11, v1')
    a('s_waitcnt vmcnt(0)')
    F = 16
    for i in range(8): unpack(a, F+2*i, F+2*i+1, X+i)
    T = 32
    def tree(base, n, dst):
        cur = list(range(base, base+n)); t = T
        while len(cur) > 1:
            nx = []
            for i in range(0, len(cur)-1, 2):
                d = dst if len(cur) == 2 else t
                a(f'v_add_f32 v{d}, v{cur[i]}, v{cur[i+1]}'); nx.append(d); t += 1
            if len(cur) % 2: nx.append(cur[-1])
            cur = nx
    def exchange(src, lo, dst):
        a(f'ds_write_b32 v6, v{src} offset:{lo}')
        a('s_waitcnt lgkmcnt(0)'); a('s_barrier')
        for i in range(7): a(f'ds_read_b128 v[{64+4*i}:{64+4*i+3}], v7 offset:{lo+16*i}')
        a('s_waitcnt lgkmcnt(0)')
        tree(64, 28, dst)
    tree(F, 16, 60)
    exchange(60, 0, 61)
    a(f'v_mul_f32 v61, {f32(1/448)}, v61')
    for i in range(16): a(f'v_sub_f32 v{96+i}, v{F+i}, v61')
    for i in range(16): a(f'v_mul_f32 v{96+i}, v{96+i}, v{96+i}')
    tree(96, 16, 60)
    exchange(60, 2048, 62)
    a(f'v_mul_f32 v62, {f32(1/448)}, v62')
    rbf(a, 62, 62)
    a(f'v_add_f32 v62, {f32(1e-5)}, v62')
    rbf(a, 62, 62)
    a('v_sqrt_f32 v62, v62'); a('s_nop 0')
    rbf(a, 62, 62)
    a('v_rcp_f32 v62, v62')
    rbf(a, 61, 61)
    for i in range(16): a(f'v_sub_f32 v{F+i}, v{F+i}, v61')
    for i in range(8): a(f'v_cvt_pk_bf16_f32 v{X+i}, v{F+2*i}, v{F+2*i+1}')
    for i in range(8): unpack(a, F+2*i, F+2*i+1, X+i)
    for i in range(16): a(f'v_mul_f32 v{F+i}, v{F+i}, v62')
    for i in range(8): a(f'v_cvt_pk_bf16_f32 v{X+i}, v{F+2*i}, v{F+2*i+1}')
    a(f'buffer_store_dwordx4 v[{X}:{X+3}], v1, s[20:23], 0 offen')
    a(f'buffer_store_dwordx4 v[{X+4}:{X+7}], v1, s[20:23], 0 offen offset:1024')
    a('s_endpgm')
    a.label('K1_mod')
    a('v_and_b32 v1, 7, v0')
    a('v_lshrrev_b32 v2, 3, v0')
    a('v_mul_u32_u24 v3, 5376, v2')
    a('v_lshl_add_u32 v3, v1, 4, v3')
    a('v_lshlrev_b32 v4, 1, v2')
    a('s_lshl_b32 s12, s2, 7')
    a('s_lshl_b32 s13, s2, 8')
    a('s_waitcnt lgkmcnt(0)')
    srd(a, 16, 8, 0, 896)
    srd(a, 20, 10, 0, 448*5376)
    srd(a, 24, 6, WS_MOD, 6*448*4)
    a('s_cmp_lg_u32 s2, 0'); a('s_cbranch_scc1 K1_nz')
    srd(a, 32, 6, WS_FLAG, 7168)
    for i in range(4): a(f'v_mov_b32 v{8+i}, 0')
    a('v_lshlrev_b32 v5, 4, v0')
    a('buffer_store_dwordx4 v[8:11], v5, s[32:35], 0 offen')
    a('s_nop 1')
    a.label('K1_nz')
    C = 8; W = 16
    for i in range(8):
        a(f'buffer_load_ushort v{C+i}, v4, s[16:19], 0 offen offset:{112*i}')
    for i in range(8):
        a(f's_add_u32 s14, s12, {56*5376*i}')
        a(f'buffer_load_dwordx4 v[{W+4*i}:{W+4*i+3}], v3, s[20:23], s14 offen')
    a('s_waitcnt vmcnt(8)')
    for i in range(8): a(f'v_lshlrev_b32 v{C+i}, 16, v{C+i}')
    for i in range(8): a(f'v_mul_f32 v{48+i}, {f32(-LOG2E)}, v{C+i}')
    for i in range(8): a(f'v_exp_f32 v{48+i}, v{48+i}')
    for i in range(8): a(f'v_add_f32 v{48+i}, 1.0, v{48+i}')
    for i in range(8): a(f'v_rcp_f32 v{48+i}, v{48+i}')
    for i in range(8): a(f'v_mul_f32 v{C+i}, v{C+i}, v{48+i}')
    for i in range(8): rbf(a, C+i, C+i)
    ACC = 56
    for i in range(8):
        a(f's_waitcnt vmcnt({7-i})')
        for j in range(4):
            unpack(a, 64, 65, W+4*i+j)
            if i == 0:
                a(f'v_mul_f32 v{ACC+2*j}, v64, v{C+i}'); a(f'v_mul_f32 v{ACC+2*j+1}, v65, v{C+i}')
            else:
                a(f'v_fmac_f32 v{ACC+2*j}, v64, v{C+i}'); a(f'v_fmac_f32 v{ACC+2*j+1}, v65, v{C+i}')
    a('v_lshlrev_b32 v5, 8, v2'); a('v_lshl_add_u32 v5, v1, 5, v5')
    a(f'ds_write_b128 v5, v[{ACC}:{ACC+3}]'); a(f'ds_write_b128 v5, v[{ACC+4}:{ACC+7}] offset:16')
    a('v_and_b32 v6, 63, v0'); a('v_lshrrev_b32 v7, 6, v0')
    a('v_lshlrev_b32 v6, 2, v6')
    a('v_lshl_add_u32 v8, v7, 11, v6')
    a('s_waitcnt lgkmcnt(0)'); a('s_barrier')
    for i in range(8): a(f'ds_read_b32 v{16+i}, v8 offset:{256*i}')
    a('v_lshl_add_u32 v9, v7, 8, v6')
    a('s_waitcnt lgkmcnt(0)')
    tree(16, 8, 24)
    a('ds_write_b32 v9, v24 offset:16384')
    a('s_waitcnt lgkmcnt(0)'); a('s_barrier')
    a('v_cmp_gt_u32 vcc, 64, v0')
    a('s_and_saveexec_b64 s[28:29], vcc')
    a('s_cbranch_execz K1_end')
    for i in range(7): a(f'ds_read_b32 v{16+i}, v6 offset:{16384+256*i}')
    a('s_waitcnt lgkmcnt(0)')
    tree(16, 7, 24)
    rbf(a, 24, 24)
    a('s_sub_u32 s14, s2, 7'); a('s_cmp_lt_u32 s14, 7'); a('s_cbranch_scc1 K1_p1')
    a('s_sub_u32 s14, s2, 28'); a('s_cmp_lt_u32 s14, 7'); a('s_cbranch_scc0 K1_p2')
    a.label('K1_p1')
    a('v_add_f32 v24, 1.0, v24')
    rbf(a, 24, 24)
    a.label('K1_p2')
    a('s_cmp_lt_u32 s2, 14'); a('s_cbranch_scc0 K1_st')
    a(f'v_mul_f32 v24, {f32(LOG2E/16)}, v24')
    a.label('K1_st')
    a('buffer_store_dword v24, v6, s[24:27], s13 offen')
    a.label('K1_end')
    a('s_endpgm')
    a.label('K1_pf')
    a(f's_cmp_ge_u32 s2, {170+PFN}'); a('s_cbranch_scc1 K1_tlb')
    a(f's_load_dwordx4 s[4:7], s[0:1], {KA["k"]}')
    a(f's_load_dwordx2 s[8:9], s[0:1], {KA["wq"]}')
    a('s_getpc_b64 s[10:11]'); a.label('K1_pc')
    a('s_sub_u32 s3, s2, 170')
    a('s_waitcnt lgkmcnt(0)')
    lim = 0
    for (base, size, n, sh, step) in PFR:
        a(f's_mov_b32 s16, s{base}'); a(f's_mov_b32 s17, s{base+1}'); a(f's_mov_b32 s18, {size}'); a(f's_sub_u32 s12, s3, {lim}')
        a(f's_mul_i32 s12, s12, {step}'); a(f's_mov_b32 s13, {sh}')
        lim += n
        a(f's_cmp_lt_u32 s3, {lim}'); a('s_cbranch_scc1 K1_pf2')
    a.label('K1_pf2')
    a('s_and_b32 s17, s17, 0xffff'); a('s_mov_b32 s19, 0x20000')
    for i in range(3):
        a(f'v_add_u32 v1, {448*i}, v0'); a('v_lshrrev_b32 v2, 9, v1'); a('v_lshlrev_b32 v2, s13, v2')
        a('v_and_b32 v1, 511, v1'); a('v_lshl_add_u32 v1, v1, 7, v2')
        a(f'buffer_load_dword v{4+i}, v1, s[16:19], s12 offen')
    a('s_endpgm')
    a.label('K1_tlb')
    a(f's_cmp_ge_u32 s2, {170+PFN+TLBN}'); a('s_cbranch_scc1 K1_end')
    a('v_lshrrev_b32 v1, 6, v0'); a('s_nop 0'); a('v_readfirstlane_b32 s3, v1')
    a('v_and_b32 v1, 63, v0'); a('v_lshlrev_b32 v1, 20, v1')
    bufs = [('k', 16 << 20), ('v', 16 << 20), ('ws', 32 << 20), ('wo', 4096*896), ('wq', 448*8192), ('w1', 448*3584), ('w2', 1792*896), ('out', 2048*896)]
    for i, (nm, sz) in enumerate(bufs[:7]):
        a(f's_mov_b32 s12, {KA[nm]}'); a(f's_mov_b32 s18, {sz}')
        a(f's_cmp_eq_u32 s3, {i}'); a('s_cbranch_scc1 K1_tlb2')
    a.label('K1_tlb2')
    a('s_load_dwordx2 s[16:17], s[0:1], s12')
    a(f's_load_dwordx2 s[20:21], s[0:1], {KA["out"]}')
    a('s_waitcnt lgkmcnt(0)')
    a('s_and_b32 s17, s17, 0xffff'); a('s_mov_b32 s19, 0x20000')
    a('s_and_b32 s21, s21, 0xffff'); a(f's_mov_b32 s22, {2048*896}'); a('s_mov_b32 s23, 0x20000')
    a('buffer_load_dword v2, v1, s[16:19], 0 offen')
    a('buffer_load_dword v3, v1, s[20:23], 0 offen')
    a('s_endpgm')
    return a, f'; @launch kernel={N} grid=({170+PFN+TLBN},1,1) block=(448,1,1) lds=18432', kd(N, 112, sgpr=40)
```

```python
from gen_common import *
from sched import *
import os
import gen_post as GP
FUSE = int(os.environ.get('FUSE', 1))
WOS = int(os.environ.get('WOS', 32))
M16 = 'v_mfma_f32_16x16x32_bf16'
O_ = lambda db, qb: (db*2+qb)*4
S_ = lambda c: 128 + 4*c
P_ = lambda buf, qb: 144 + buf*8 + qb*4
NM_ = lambda qb: 160 + 4*qb
L_ = lambda qb: 168 + qb
KA_ = lambda i: 170 + i
VA_ = lambda i: 174 + i
KD_ = lambda i: 182 + i
VD_ = lambda i: 186 + i
ST_ = lambda qb: 190 + qb
Q_ = lambda st, qb: 192 + (st*2+qb)*4
WD_ = lambda i: 128 + i
VA2_ = lambda i: 132 + i
MA = 140
NV_ = lambda qb: 141 + qb
MC_ = lambda buf: (144 if buf == 0 else 240)
H_ = lambda buf, qb: (192 if buf == 0 else 160) + qb*4
TMP = 208
NR_ = lambda s, qb: 216 + ((s % 3)*2 + qb)*4
KF_ = lambda kb, st: (kb*8+st)*4
VF_ = lambda db: 64 + 4*db
SK, SV, SWQ, SN, SMOD, SO = 16, 20, 24, 28, 32, 36
sWB, sKO, sVO, sATT, sT0, sT1, s4K = 40, 41, 42, 43, 44, 45, 46
LK, LV, LMOD, LFLAG = 0, 65536, 131072, (0x18000 if FUSE else 135168)
VMW = 18 if FUSE else 16
TILE = 16384
THRESH = 2.0**80
OFLAG = os.environ.get('OFLAG', 'sc1' if FUSE else '')
PFW = int(os.environ.get('PFW', 1))

def kread(slot, kb, st):
    return f'ds_read_b128 {ar(KF_(kb,st),4)}, v{KA_(st&3)} offset:{slot*TILE + kb*8192 + (st>>2)*256}'
def vread(slot, db, half, alt=False):
    A = VA2_ if alt else VA_
    return f'ds_read_b64_tr_b16 {ar(VF_(db)+2*half,2)}, v{A(db&7)} offset:{slot*TILE + half*8192 + (db>>3)*256}'
def setm0(ldsbase): return f's_add_u32 m0, s{sWB}, {hex(ldsbase)}'
DFLAG = os.environ.get('DFLAG', 'nt')
def dma(vo, srdb, soff, n): return f'buffer_load_dwordx4 v{vo}, s[{srdb}:{srdb+3}], {soff} offen offset:{n*1024}{" "+DFLAG if DFLAG else ""} lds'
def qk_mfma(c, st, C=None):
    kb, qb = c >> 1, c & 1
    if st == 0: cc = C if C is not None else vr(NM_(qb), 4)
    else: cc = vr(S_(c), 4)
    return f'{M16} {vr(S_(c),4)}, {ar(KF_(kb,st),4)}, {vr(Q_(st,qb),4)}, {cc}'
def pv_mfma(db, qb, buf):
    return f'{M16} {vr(O_(db,qb),4)}, {ar(VF_(db),4)}, {vr(P_(buf,qb),4)}, {vr(O_(db,qb),4)}'

def xlane(a, op, r, t):
    for sw in ('v_permlane32_swap_b32', 'v_permlane16_swap_b32'):
        a(f'v_mov_b32 v{t}, v{r}'); a('s_nop 1'); a(f'{sw} v{r}, v{t}'); a('s_nop 1')
        a(f'{op} v{r}, v{r}, v{t}')

def load_tile(a, kind, t):
    base = (LK if kind == 'K' else LV) + (t & 3)*TILE
    a(setm0(base)); a(f's_mov_b32 s{sT0}, {hex(t*TILE)}')
    for n in range(4):
        tok = a.vmem(dma((KD_ if kind == 'K' else VD_)(n), SK if kind == 'K' else SV, f's{sT0}', n))
    return tok

def softmax0(a, first, nops=8):
    a.nop(nops)
    if first:
        for qb in range(2):
            c0, c1 = S_(qb), S_(2+qb)
            t = NM_(qb)
            a(f'v_max3_f32 v{t}, v{c0}, v{c0+1}, v{c0+2}')
            a(f'v_max3_f32 v{t+1}, v{c0+3}, v{c1}, v{c1+1}')
            a(f'v_max3_f32 v{t}, v{t}, v{c1+2}, v{c1+3}')
            a(f'v_max_f32 v{t}, v{t}, v{t+1}')
        for qb in range(2): xlane(a, 'v_max_f32', NM_(qb), NM_(qb)+1)
        for qb in range(2):
            t = NM_(qb)
            a(f'v_sub_f32 v{t}, 0, v{t}')
            for i in range(1, 4): a(f'v_mov_b32 v{t+i}, v{t}')
    for c in range(4):
        for r in range(4): a(f'v_add_f32 v{S_(c)+r}, v{S_(c)+r}, v{NM_(c&1)+((r+1)&3)}')
    for c in range(4):
        for r in range(4): a(f'v_exp_f32 v{S_(c)+r}, v{S_(c)+r}')
    for qb in range(2): a(f'v_add_f32 v{L_(qb)}, v{S_(qb)}, v{S_(qb)+1}')
    for c in range(4):
        for r in range(4):
            if c < 2 and r < 2: continue
            a(f'v_add_f32 v{L_(c&1)}, v{S_(c)+r}, v{L_(c&1)}')
    for c in range(4):
        kb, qb = c >> 1, c & 1
        for p in range(2): a(f'v_cvt_pk_bf16_f32 v{P_(0,qb)+kb*2+p}, v{S_(c)+2*p}, v{S_(c)+2*p+1}')

def preamble(a, first, tokK0, tokK1):
    a.wait_vm(tokK0); a('s_barrier')
    for kb in range(2):
        for st in range(8): a(kread(0, kb, st))
    a.wait_vm(tokK1, ' lgkmcnt(0)'); a('s_barrier')
    load_tile(a, 'K', 4)
    for c in range(4):
        for st in range(8):
            a(qk_mfma(c, st, '0'))
            if c & 1: a(kread(1, c >> 1, st))
    softmax0(a, first)

EG = [12,14,17,20, 23,26,29,32, 34,37,40,42, 45,48,50,53]
DG = [3,11,19,27, 35,43,51,59]
TG = [0,0,1,2,2,4,4,5,5,6,7,7,8,9,9,10,10, 15,15,21,21,25,25,31,31,38,38,44,44,49,49,52]
RG = [13,16,18,22,24,28,30,33, 36,39,41,46,47,54,55,56]
VG = [13,16,18,22,24,28,30,33,36,39,41,46,47,52,54,55,56, 57,57,58,60,61,61,62]
WOPF = f'buffer_load_dwordx4 a[128:131], v{ST_(0)}, s[76:79], s47 offen'
def loop_body(a, u, verbose=False):
    mf = [qk_mfma(c, st) for c in range(4) for st in range(8)]
    mf += [pv_mfma(db, qb, u & 1) for db in range(16) for qb in range(2)]
    it = []
    F = lambda text, typ, g: it.append(Item(text, typ, g, g)) or it[-1]
    vs = u; ks = (u + 2) & 3
    VR = {}
    for k in range(32):
        db, h = k >> 1, k & 1
        assert TG[k] <= 32 + 2*db - 8
        VR[db, h] = F(vread(vs, db, h), 't', TG[k])
    for (d0, d1, g) in ((0, 4, 26), (4, 8, 37), (8, 12, 45), (12, 14, 53), (14, 16, 58)):
        assert g < 32 + 2*d0
        F(('WAITLG', [VR[db, h] for db in range(d0, d1) for h in range(2)]), 's', g)
    for kb in range(2):
        for st in range(8):
            assert RG[kb*8+st] >= 8 + 16*kb + st
            F(kread(ks, kb, st), 'r', RG[kb*8+st])
    nb = (u + 1) & 1
    va = []
    for c in range(4):
        kb, qb = c >> 1, c & 1
        for r in range(4):
            g = EG[4*c+r]; assert g >= 8*c + 12
            F(f'v_exp_f32 v{S_(c)+r}, v{S_(c)+r}', 'e', g)
            va.append((g + 1, f'v_add_f32 v{L_(qb)}, v{S_(c)+r}, v{L_(qb)}'))
            if r & 1:
                p = r >> 1
                va.append((g + 1, f'v_cvt_pk_bf16_f32 v{P_(nb,qb)+kb*2+p}, v{S_(c)+2*p}, v{S_(c)+2*p+1}'))
    for g, (av, tx) in zip(VG, va):
        assert av <= g, (av, g)
        F(tx, 'v', g)
    for gi, (kind, slot, gm, ga) in enumerate((('V', (u + 3) & 3, 1, 34), ('K', (u + 1) & 3, 29, 60))):
        base = (LK if kind == 'K' else LV) + slot*TILE
        so = sKO if kind == 'K' else sVO
        F(setm0(base), 's', gm)
        for n in range(4):
            F(dma((KD_ if kind == 'K' else VD_)(n), SK if kind == 'K' else SV, f's{so}', n), 'd', DG[gi*4+n])
        F(f's_add_u32 s{so}, s{so}, {TILE}', 's', ga)
    if u == 3 and PFW:
        F(f'buffer_load_dwordx4 a[128:131], v{ST_(0)}, s[56:59], s53 offen', 'd', 62 if FUSE else 63); F('s_add_u32 s53, s53, 1024', 's', 62 if FUSE else 63)
    if FUSE:
        F(WOPF, 'd', 63); F('s_add_u32 s47, s47, 1024', 's', 48); F('s_and_b32 s47, s47, 0xffff', 's', 50)
    if u == 2: F(f's_cmp_eq_u32 s{sVO}, {hex(66*TILE)}', 's', 62)
    ABL = os.environ.get('ABL', '')
    if 'd' in ABL: it = [x for x in it if x.typ != 'd']
    if 'v' in ABL: it = [x for x in it if x.typ not in 'ev']
    if 'e' in ABL: it = [x for x in it if x.typ not in 'e']
    if 'l' in ABL: it = [x for x in it if x.typ not in 'tr' and not isinstance(x.text, tuple)]
    if 't' in ABL: it = [x for x in it if x.typ not in 't' and not isinstance(x.text, tuple)]
    gaps = schedule(64, it, novalu=range(0, 8), verbose=verbose)
    emit(a, mf, gaps)

def gen_k2():
    a = Asm()
    N = 'k2_kernel'
    head(a, N)
    a('s_cmp_ge_u32 s2, 256'); a('s_cbranch_scc1 K2_end')
    sp = Stamper(a, 80 if FUSE else 64, 1)
    if FUSE:
        _st = sp.stamp; scnt = [0]
        def lim(real=False):
            scnt[0] += 1
            if scnt[0] in (1, 2, 5, 7, 8, 10, 11, 12): _st(real)
        sp.stamp = lim
    QS = os.environ.get('QSTAMP')
    if QS:
        sq_ = sp; sp = Stamper(a, 64, 1); sp.stamp = lambda *x: None; sp.dump = lambda *x: sq_.dump(*x)
    sp.stamp(True); sp.stamp()
    a(f's_load_dwordx4 s[4:7], s[0:1], {KA["k"]}')
    a(f's_load_dwordx2 s[8:9], s[0:1], {KA["wq"]}')
    a(f's_load_dwordx2 s[10:11], s[0:1], {KA["ws"]}')
    if FUSE:
        a(f's_load_dwordx2 s[64:65], s[0:1], {KA["x"]}'); a(f's_load_dwordx2 s[66:67], s[0:1], {KA["out"]}'); GP.roles(a)
    if PFW:
        a(f's_load_dwordx2 s[60:61], s[0:1], {KA["wo"]}'); a(f's_load_dwordx2 s[62:63], s[0:1], {KA["w1"]}'); a(f's_load_dwordx2 s[54:55], s[0:1], {KA["w2"]}')
    code_touch(a, 'K2', 1, 'a1', 56, 4, 'K2_fb', 1)
    a('s_and_b32 s12, s2, 7'); a('s_lshl_b32 s12, s12, 1'); a('s_bfe_u32 s13, s2, 0x10003'); a('s_add_u32 s12, s12, s13')
    a('s_lshr_b32 s13, s2, 4')
    T = 208
    L, W, Qv, G, R, C4, Hh, Pp = T, T+1, T+2, T+3, T+4, T+5, T+6, T+7
    X, Y = 216, 217
    a(f'v_and_b32 v{L}, 63, v0'); a(f'v_lshrrev_b32 v{W}, 6, v0'); a(f'v_and_b32 v{Qv}, 15, v0'); a(f'v_bfe_u32 v{G}, v0, 4, 2')
    a(f'v_bfe_u32 v{R}, v0, 2, 2'); a(f'v_and_b32 v{C4}, 3, v0'); a(f'v_bfe_u32 v{Hh}, v0, 5, 1'); a(f'v_and_b32 v{Pp}, 31, v0')
    a(f'v_readfirstlane_b32 s14, v{W}'); a('v_mov_b32 v143, v0')
    for n in range(4):
        a(f'v_lshl_add_u32 v{X}, v{W}, 3, v{Hh}')
        a(f'v_add_u32 v{Y}, {2*n}, v{X}')
        a(f'v_and_b32 v{X+2}, 7, v{Y}'); a(f'v_lshlrev_b32 v{X+2}, 1, v{X+2}'); a(f'v_xor_b32 v{X+2}, v{X+2}, v{Pp}')
        a(f'v_lshlrev_b32 v{X+2}, 4, v{X+2}')
        a(f'v_lshl_add_u32 v{VD_(n)}, v{X}, 9, v{X+2}')
        a(f'v_lshl_add_u32 v{WD_(n)}, v{Y}, 13, v{X+2}')
        if n: a(f'v_subrev_u32 v{WD_(n)}, {n*1024}, v{WD_(n)}')
        a(f'v_and_b32 v{X+2}, 15, v{Y}'); a(f'v_xor_b32 v{X+2}, v{X+2}, v{Pp}'); a(f'v_lshlrev_b32 v{X+2}, 4, v{X+2}')
        a(f'v_lshl_add_u32 v{KD_(n)}, v{X}, 9, v{X+2}')
    a(f'v_mul_u32_u24 v{X}, {2*14336}, v{W}'); a(f'v_lshl_add_u32 v{NV_(0)}, v{L}, 4, v{X}'); a(f'v_add_u32 v{NV_(1)}, 14336, v{NV_(0)}')
    a(f'v_lshlrev_b32 v{X+3}, 4, v0')
    a('s_lshl_b32 s40, s14, 12')
    a('s_lshl_b32 s50, s12, 20')
    a('s_lshl_b32 s51, s12, 9')
    a(f's_mul_i32 s47, s13, {8*14336}')
    a('s_lshl_b32 s48, s13, 20'); a('s_lshl_b32 s49, s12, 13'); a('s_add_u32 s48, s48, s49')
    a('s_waitcnt lgkmcnt(0)')
    sp.stamp()
    srd(a, SMOD, 10, WS_MOD, 4096)
    srd(a, SN, 10, WS_N, 8*14336, 47)
    srd(a, SWQ, 8, 0, 0, 51); a(f's_sub_u32 s{SWQ+2}, {448*8192}, s51')
    a(f's_lshl_b32 s{sT0}, s14, 10'); a(f's_add_u32 m0, s{sT0}, {hex(LMOD)}'); a('s_nop 0')
    tMOD = a.vmem(f'buffer_load_dwordx4 v{X+3}, s[{SMOD}:{SMOD+3}], 0 offen lds')
    WSLOT = [LK+2*TILE, LV, LK+3*TILE, LV+TILE, LV+2*TILE, LV+3*TILE, LK, LK+TILE]
    wslot = lambda t: WSLOT[t % 8]
    tN = {}; tW = {}
    def nload(s):
        a(f's_mov_b32 s{sT1}, {s*1024}')
        for qb in range(2):
            tN[s] = a.vmem(f'buffer_load_dwordx4 {vr(NR_(s,qb),4)}, v{NV_(qb)}, s[{SN}:{SN+3}], s{sT1} offen')
    def wload(t):
        a(setm0(wslot(t))); a(f's_mov_b32 s{sT0}, {hex(t*32*8192)}')
        for n in range(4): tW[t] = a.vmem(dma(WD_(n), SWQ, f's{sT0}', n))
    nload(0); wload(0); nload(1); wload(1)
    srd(a, SK, 4, 0, 1 << 20, 50); srd(a, SV, 6, 0, 1 << 20, 50)
    srd(a, SO, 10, WS_O, 0, 48); a(f's_sub_u32 s{SO+2}, {1<<20}, s49')
    a(f's_mov_b32 s{sATT}, 0'); a(f's_mov_b32 s{s4K}, 4096')
    t0, t1, t2 = 1, 2, 3
    for i in range(4):
        a(f'v_add_u32 v{t0}, {4*i}, v{G}'); a(f'v_xor_b32 v{t0}, v{t0}, v{Qv}'); a(f'v_lshlrev_b32 v{t0}, 4, v{t0}')
        a(f'v_lshl_add_u32 v{KA_(i)}, v{Qv}, 9, v{t0}')
    a(f'v_lshl_add_u32 v{t1}, v{G}, 2, v{R}')
    a(f'v_lshlrev_b32 v{t2}, 3, v{C4}'); a(f'v_lshl_add_u32 v{t2}, v{t1}, 9, v{t2}')
    a(f'v_and_b32 v{t1}, 7, v{t1}')
    for i in range(8):
        a(f'v_xor_b32 v{t0}, {i}, v{t1}'); a(f'v_lshl_add_u32 v{VA2_(i)}, v{t0}, 5, v{t2}')
        a(f'v_add_u32 v{VA_(i)}, {LV}, v{VA2_(i)}')
    a(f'v_lshlrev_b32 v{MA}, 4, v{G}'); a(f'v_add_u32 v{MA}, {LMOD}, v{MA}')
    a(f'v_lshlrev_b32 v{t0}, 18, v{W}'); a(f'v_lshl_add_u32 v{ST_(0)}, v{L}, 4, v{t0}'); a(f'v_add_u32 v{ST_(1)}, {1<<17}, v{ST_(0)}')
    TN = int(os.environ.get('TN', 0))
    if TN:
        a(f'v_lshlrev_b32 v{t0}, 7, v143')
        for i in range(4):
            if i: a(f'v_add_u32 v{t0}, 32768, v{t0}')
            a.vmem(f'buffer_load_dword a{2+i}, v{t0}, s[{SN}:{SN+3}], 0 offen')
        a(f's_mul_i32 s52, s13, 112')
        a(f'v_add_u32 v{t0}, s52, v143'); a(f'v_lshrrev_b32 v{t1}, 2, v{t0}'); a(f'v_and_b32 v{t0}, 3, v{t0}')
        a(f'v_lshlrev_b32 v{t0}, 7, v{t0}'); a(f'v_lshl_add_u32 v{t0}, v{t1}, 13, v{t0}')
        a('s_cmp_ge_u32 s14, 2'); a('s_cbranch_scc1 K2_tq')
        a(f'buffer_load_dword a6, v{t0}, s[{SWQ}:{SWQ+3}], 0 offen')
        a.label('K2_tq')
    wload(2); nload(2); wload(3); wload(4)
    if PFW:
        a('s_lshl_b32 s52, s2, 2'); a('s_add_u32 s52, s52, s14')
        if not FUSE:
            a('s_mov_b32 s56, s60'); a('s_mov_b32 s57, s61'); a('s_mov_b32 s53, s52')
            a('s_cmp_lt_u32 s52, 448'); a('s_cbranch_scc1 K2_pf')
        else: a('s_add_u32 s52, s52, 448')
        a('s_mov_b32 s56, s54'); a('s_mov_b32 s57, s55'); a('s_sub_u32 s53, s52, 448')
        a('s_cmp_lt_u32 s52, 644'); a('s_cbranch_scc1 K2_pf')
        a('s_mov_b32 s56, s62'); a('s_mov_b32 s57, s63'); a('s_sub_u32 s53, s52, 644')
        a.label('K2_pf')
        a('s_lshl_b32 s53, s53, 13'); a('s_add_u32 s56, s56, s53'); a('s_addc_u32 s57, s57, 0')
        a('s_lshl_b32 s53, s14, 18'); a('s_sub_u32 s56, s56, s53'); a('s_subb_u32 s57, s57, 0')
        a('s_and_b32 s57, s57, 0xffff'); a('s_mov_b32 s59, 0x20000')
        a('s_add_u32 s53, s53, 8192'); a('s_cmp_lt_u32 s52, 840'); a('s_cselect_b32 s58, s53, 0')
        a('s_mov_b32 s53, 0xfffffc00')
    if FUSE:
        GP.roles2(a)
        a('s_lshr_b32 s47, s2, 3'); a('s_lshl_b32 s47, s47, 2'); a('s_add_u32 s47, s47, s14'); a('s_mul_i32 s47, s47, 28672')
        a('s_add_u32 s76, s60, s47'); a('s_addc_u32 s77, s61, 0'); a('s_lshl_b32 s47, s14, 18'); a('s_sub_u32 s76, s76, s47'); a('s_subb_u32 s77, s77, 0')
        a('s_and_b32 s77, s77, 0xffff'); a('s_add_u32 s78, s47, 28672'); a('s_mov_b32 s79, 0x20000')
        a(f's_mov_b32 s47, {(63-WOS)*1024}')
    def wread(t, db, h):
        b = wslot(t); alt = b < LV
        return vread(((b - (0 if alt else LV)) // TILE), db, h, alt)
    def modreads(s):
        m = MC_(s & 1)
        return [f'ds_read_b128 {vr(m,4)}, v{MA} offset:{1792+128*s}', f'ds_read_b128 {vr(m+4,4)}, v{MA} offset:{1792+128*s+64}',
                f'ds_read_b128 {vr(m+8,4)}, v{MA} offset:{128*s}', f'ds_read_b128 {vr(m+12,4)}, v{MA} offset:{128*s+64}']
    def modvalu(s):
        m = MC_(s & 1); out = []
        for qb in range(2):
            for i in range(4):
                k = (qb*4+i) % 4
                ta, tb = TMP + 2*k, TMP + 2*k + 1
                raw = NR_(s, qb) + i
                out.append([f'v_lshlrev_b32 v{ta}, 16, v{raw}', f'v_and_b32 v{tb}, 0xffff0000, v{raw}',
                            f'v_fma_f32 v{ta}, v{ta}, v{m+2*i}, v{m+8+2*i}', f'v_fma_f32 v{tb}, v{tb}, v{m+2*i+1}, v{m+8+2*i+1}',
                            f'v_cvt_pk_bf16_f32 v{H_(s&1,qb)+i}, v{ta}, v{tb}'])
        return out
    a.wait_vm(tW[0]); a('s_barrier')
    sp.stamp()
    for x in modreads(0): a(x)
    for db in range(16):
        for h in range(2): a(wread(0, db, h))
    a('s_waitcnt lgkmcnt(15)')
    for grp in modvalu(0):
        for x in grp: a(x)
    for x in modreads(1): a(x)
    a('s_waitcnt lgkmcnt(0)')
    sp.stamp()
    NS = 14
    tok = {}
    kv_at = {8: ('K', 0), 9: ('K', 1), 10: ('K', 2), 11: ('V', 0), 12: ('K', 3), 13: ('V', 1)}
    def tile_items(key):
        if key[0] == 'W':
            t = key[1]; base, so, vo, sd = wslot(t), t*32*8192, WD_, SWQ
        else:
            kind, tt = key
            base, so, vo, sd = (LK if kind == 'K' else LV) + tt*TILE, tt*TILE, (KD_ if kind == 'K' else VD_), (SK if kind == 'K' else SV)
        def mk(n):
            def f():
                tk = a.vmem(dma(vo(n), sd, f's{sT0}', n))
                if key[0] == 'W': tW[key[1]] = tk
                else: tok[key] = tk
            return f
        return [setm0(base), f's_mov_b32 s{sT0}, {hex(so)}'], [mk(n) for n in range(4)]
    def conv_ops(st, qb):
        Xb, Yb, q = O_(2*st, qb), O_(2*st+1, qb), Q_(st, qb)
        return ([f'v_cvt_pk_bf16_f32 v{q}, v{Xb}, v{Xb+1}', f'v_cvt_pk_bf16_f32 v{q+1}, v{Xb+2}, v{Xb+3}',
                 f'v_cvt_pk_bf16_f32 v{q+2}, v{Yb}, v{Yb+1}', f'v_cvt_pk_bf16_f32 v{q+3}, v{Yb+2}, v{Yb+3}'],
                [f'v_permlane32_swap_b32 v{q}, v{q+2}', f'v_permlane32_swap_b32 v{q+1}, v{q+3}'],
                [f'v_permlane16_swap_b32 v{q}, v{q+2}', f'v_permlane16_swap_b32 v{q+1}, v{q+3}'],
                [f'v_mov_b64 v[{Xb}:{Xb+1}], 0', f'v_mov_b64 v[{Xb+2}:{Xb+3}], 0', f'v_mov_b64 v[{Yb}:{Yb+1}], 0', f'v_mov_b64 v[{Yb+2}:{Yb+3}], 0'])
    for s in range(NS):
        if QS: sq_.stamp()
        G_ = [[] for _ in range(32)]
        Vv = [[] for _ in range(32)]
        cap = [1]*32
        bar = (s % 2 == 0)
        if s >= 1:
            G_[0].append(wread(s, 15, 0)); G_[1].append(wread(s, 15, 1))
        for k in (4, 12, 20, 28): G_[k].insert(0, 's_waitcnt lgkmcnt(8)'); cap[k] = 0
        tiles = []
        if s + 5 < NS: tiles.append(('W', s + 5))
        if s in kv_at: tiles.append(kv_at[s])
        if s + 1 < NS:
            def w(s=s, bar=bar):
                t = tN[s+1]
                if bar:
                    t = max(t, tW[s+1], tW[min(s+2, NS-1)])
                    if s == 12: t = max(t, tok['K', 1])
                a.wait_vm(t)
                if bar: a('s_barrier')
            G_[1].append(w)
            for k in range(30): G_[k+2].append(wread(s+1, k >> 1, k & 1))
            if s + 2 < NS:
                for i, x in enumerate(modreads(s+2)): G_[3+2*i].append(x); cap[3+2*i] = 0
            if s + 3 < NS:
                def nl(qb, s=s):
                    def f():
                        if qb == 0: a(f's_mov_b32 s{sT1}, {(s+3)*1024}')
                        tN[s+3] = a.vmem(f'buffer_load_dwordx4 {vr(NR_(s+3,qb),4)}, v{NV_(qb)}, s[{SN}:{SN+3}], s{sT1} offen')
                    return f
                G_[2].append(nl(0)); G_[6].append(nl(1)); cap[2] = cap[6] = 0
        else:
            ks = [kread(0, kb, st) for kb in range(2) for st in range(8)]
            for i, x in enumerate(ks): G_[2+i].append(x)
        pos = [10, 14, 18, 22] if len(tiles) == 1 else [8, 11, 14, 17, 21, 24, 27, 30]
        for ti, key in enumerate(tiles):
            su, ds = tile_items(key)
            pp = pos[4*ti:4*ti+4]
            G_[pp[0]-1] = su + G_[pp[0]-1]; cap[pp[0]-1] = 0
            for p, d in zip(pp, ds): G_[p].append(d); cap[p] = 0
        if s + 1 < NS:
            grps = modvalu(s+1); seq = []
            for gi in range(10):
                if gi < 8: seq += grps[gi][0:2]
                if 1 <= gi < 9: seq += grps[gi-1][2:4]
                if gi >= 2: seq.append(grps[gi-2][4])
            lo = 10 if bar else 2
            rng = list(range(lo, 30))
            tot = len(seq); base = sum(cap[k] for k in rng); extra = tot - base
            cnt = {k: cap[k] for k in rng}
            order = [k for k in rng if cap[k]] + [k for k in rng if not cap[k]]
            i = 0
            while extra > 0:
                cnt[order[i % len(order)]] += 1; extra -= 1; i += 1
            p = 0
            for k in rng:
                Vv[k] = seq[p:p+cnt[k]]; p += cnt[k]
        else:
            pend = []
            for st in range(8):
                for qb in range(2):
                    c4, p32, p16, z = conv_ops(st, qb)
                    g = 4*st + 2 + qb + 5
                    pend += [(g, x) for x in c4] + [(g + 3, x) for x in p32] + [(g + 5, x) for x in p16] + [(g + 40, x) for x in z]
            pend.sort(key=lambda x: x[0])
            for k in range(32):
                n = 1 if G_[k] else 2
                while n and pend and pend[0][0] <= k:
                    Vv[k].append(pend.pop(0)[1]); n -= 1
        for db in range(16):
            for qb in range(2):
                k = db*2 + qb
                c = vr(O_(db, qb), 4)
                a(f'{M16} {c}, {ar(VF_(db),4)}, {vr(H_(s&1,qb),4)}, {c if s else 0}')
                for x in G_[k] + Vv[k]:
                    x() if callable(x) else a(x)
    if QS: sq_.stamp()
    a('s_waitcnt lgkmcnt(0)'); a('s_barrier')
    sp.stamp()
    conv = [x for x in pend if 'v_mov_b64' not in x[1]]
    zero = [x[1] for x in pend if 'v_mov_b64' in x[1]]
    mem = []
    for key in (('V', 2), ('K', 4)):
        kind, tt = key
        base = (LK if kind == 'K' else LV) + (tt & 3)*TILE
        mem.append([setm0(base), f's_mov_b32 s{sT0}, {hex(tt*TILE)}'])
        for n in range(4):
            mem.append([lambda n=n, kind=kind: a.vmem(dma((KD_ if kind == 'K' else VD_)(n), SK if kind == 'K' else SV, f's{sT0}', n))])
    need = lambda txt: int(txt.split()[1].strip('v,'))
    done_at = {}
    gi = 0
    order = [(c, st) for c in range(4) for st in range(8)]
    for idx, (c, st) in enumerate(order):
        q = Q_(st, c & 1)
        while any(q <= need(x[1]) < q + 4 for x in conv):
            x = conv.pop(0); a(x[1])
            if 'permlane' in x[1] or (conv and 'permlane' in conv[0][1]): a('s_nop 1')
        a(qk_mfma(c, st, '0'))
        n = 2
        if c & 1: a(kread(1, c >> 1, st)); n = 1
        elif mem and idx % 2 == 1 or (mem and idx >= 16):
            for x in mem.pop(0): x() if callable(x) else a(x)
            n = 0
        while n and conv:
            x = conv.pop(0); a(x[1]); n -= 1
            if 'permlane' in x[1] or (conv and 'permlane' in conv[0][1]): a('s_nop 1'); n = 0
        while n and zero:
            a(zero.pop(0)); n -= 1
    assert not mem
    for x in zero: a(x)
    softmax0(a, True, max(0, 8 - len(zero)))
    a(f's_mov_b32 s{sVO}, {3*TILE}'); a(f's_mov_b32 s{sKO}, {5*TILE}')
    if FUSE:
        a(WOPF)
        a('s_getpc_b64 s[24:25]'); a.label('K2_pc2')
        a('s_add_u32 s24, s24, K2_tail-K2_pc2'); a('s_addc_u32 s25, s25, 0'); a('s_and_b32 s25, s25, 0xffff')
        a('s_mov_b32 s26, K2_fb-K2_tail'); a('s_mov_b32 s27, 0x20000')
        a(f'v_and_b32 v{S_(0)}, 0x3ff, v{ST_(0)}'); a(f'v_lshlrev_b32 v{S_(0)}, 3, v{S_(0)}'); a(f's_lshl_b32 s{sT0}, s14, 13')
        a(f'buffer_load_dword a128, v{S_(0)}, s[24:27], s{sT0} offen')
    sp.stamp()
    if STAMP and not QS and not FUSE: a('s_memrealtime s[90:91]'); a('s_waitcnt lgkmcnt(0)')
    a('.p2align 6')
    a.label('K2_loop')
    pre_len = len(a.L)
    for u in range(4):
        a(f's_waitcnt vmcnt({VMW}) lgkmcnt(0)'); a('s_barrier')
        loop_body(a, u, verbose=bool(os.environ.get('V')))
        if u == 2:
            a('s_cbranch_scc1 K2_tail')
    a('s_branch K2_loop')
    body = a.L[pre_len:]
    for p in check_text(body + body, 'k2 loop wrap'): print('HAZARD', p)
    a.label('K2_tail')
    a(f's_waitcnt vmcnt({0 if FUSE else 16}) lgkmcnt(0)'); a('s_barrier')
    sp.stamp()
    if STAMP and not QS and not FUSE: a('s_memrealtime s[92:93]'); a('s_waitcnt lgkmcnt(0)'); a('s_sub_u32 s92, s92, s90')
    for db in range(16):
        for h in range(2): a(vread(3, db, h))
    for qb in range(2): xlane(a, 'v_add_f32', L_(qb), S_(qb))
    a(f's_mov_b32 s{sT0}, {f32(THRESH)}')
    a(f'v_add_f32 v{S_(0)+1}, v{L_(0)}, v{L_(1)}')
    a(f'v_cmp_ngt_f32 vcc, s{sT0}, v{S_(0)+1}')
    a(f'v_rcp_f32 v{L_(0)}, v{L_(0)}'); a(f'v_rcp_f32 v{L_(1)}, v{L_(1)}')
    a(f's_cmp_lg_u64 vcc, 0'); a(f's_cselect_b32 s{sT1}, 1, 0')
    a(f'v_mov_b32 v{S_(0)+2}, s{sT1}')
    a(f's_lshl_b32 s{sT0}, s14, 2'); a(f's_add_u32 s{sT0}, s{sT0}, {LFLAG}'); a(f'v_mov_b32 v{S_(0)+3}, s{sT0}')
    a(f'ds_write_b32 v{S_(0)+3}, v{S_(0)+2}')
    def ep_ops(sq, qb, pk):
        Xb, Yb = O_(2*sq, qb), O_(2*sq+1, qb)
        o = []
        if pk:
            LP = L_(0)
            sel = 'op_sel:[0,0] op_sel_hi:[1,0]' if qb == 0 else 'op_sel:[0,1] op_sel_hi:[1,1]'
            for b in (Xb, Xb+2, Yb, Yb+2): o.append(f'v_pk_mul_f32 v[{b}:{b+1}], v[{b}:{b+1}], v[{LP}:{LP+1}] {sel}')
        else:
            for i in range(4):
                o += [f'v_mul_f32 v{Xb+i}, v{Xb+i}, v{L_(qb)}', f'v_mul_f32 v{Yb+i}, v{Yb+i}, v{L_(qb)}']
        o += [f'v_cvt_pk_bf16_f32 v{Xb}, v{Xb}, v{Xb+1}', f'v_cvt_pk_bf16_f32 v{Xb+1}, v{Xb+2}, v{Xb+3}',
              f'v_cvt_pk_bf16_f32 v{Xb+2}, v{Yb}, v{Yb+1}', f'v_cvt_pk_bf16_f32 v{Xb+3}, v{Yb+2}, v{Yb+3}',
              f'buffer_store_dwordx4 {vr(Xb,4)}, v{ST_(qb)}, s[{SO}:{SO+3}], {"0" if sq < 4 else f"s{s4K}"} offen offset:{(sq&3)*1024} {OFLAG}']
        return o
    pend = []
    NOV = 3
    for sq in range(NOV):
        for qb in range(2): pend += [(4*sq + 2 + qb + 8, x) for x in ep_ops(sq, qb, False)]
    for db in range(16):
        if db % 4 == 0: a(f's_waitcnt lgkmcnt({min(15, 33 - 2*db - 8)})')
        for qb in range(2):
            k = 2*db + qb
            a(pv_mfma(db, qb, 1))
            n = 2
            while n and pend and pend[0][0] <= k:
                x = pend.pop(0)[1]; a(x); n -= 1
                if 'store' in x: n = 0
    sp.stamp()
    for x in pend: a(x[1])
    for sq in range(NOV, 8):
        for qb in range(2):
            for x in ep_ops(sq, qb, True): a(x)
    sp.stamp()
    if not FUSE:
        if STAMP: a('s_waitcnt vmcnt(0)')
        sp.stamp(); sp.stamp(True); sp.dump(10, 14, S_(2))
        if STAMP and not QS: a(f'v_mov_b32 v{S_(2)+1}, s92'); a(f'buffer_store_dword v{S_(2)+1}, v{S_(2)}, s[96:99], s100 offen offset:60')
        a(f's_cmp_lg_u32 s{sATT}, 0'); a('s_cbranch_scc1 K2_end')
        a(f'v_mov_b32 v{S_(0)+3}, {LFLAG}')
        a('s_waitcnt lgkmcnt(0)'); a('s_barrier')
    else:
        a.g3 = g3 = GP.Gemm(a, 3)
        GP.flag_srd(a)
        a(f's_cmp_ge_u32 s{GP.sIDX}, 28'); a('s_cbranch_scc1 K2_np')
        g3.w_setup()
        for ks in range(GP.NPRE):
            for f in g3.w_pre(ks): f()
        a(f's_waitcnt vmcnt({4*GP.NPRE})'); a('s_branch K2_nj')
        a.label('K2_np')
        a('s_waitcnt vmcnt(0)')
        a.label('K2_nj')
        a(f'v_mov_b32 v{S_(0)+3}, {LFLAG}')
        a('s_waitcnt lgkmcnt(0)'); a('s_barrier')
        a(f's_cmp_lg_u32 s{sATT}, 0'); a('s_cbranch_scc1 K2_go')
    a(f'ds_read_b128 {vr(S_(1),4)}, v{S_(0)+3}')
    a('s_waitcnt lgkmcnt(0)')
    a(f'v_or3_b32 v{S_(1)}, v{S_(1)}, v{S_(1)+1}, v{S_(1)+2}'); a(f'v_or_b32 v{S_(1)}, v{S_(1)}, v{S_(1)+3}')
    a('s_nop 0')
    a(f'v_readfirstlane_b32 s{sT0}, v{S_(1)}')
    a('s_nop 3')
    if not FUSE:
        a(f's_cmp_eq_u32 s{sT0}, 0'); a('s_cbranch_scc1 K2_end')
    else:
        a(f's_cmp_lg_u32 s{sT0}, 0'); a('s_cbranch_scc1 K2_fb')
        a.label('K2_go')
        a(f's_lshl_b32 s44, s13, 7'); a('s_lshl_b32 s45, s12, 2'); a('s_add_u32 s44, s44, s45')
        GP.set_flag(a, 'K2_a', 44, 8)
        sp.stamp(); sp.stamp(True); sp.dump(10, 14, 8)
        a(f's_cmp_ge_u32 s{GP.sIDX}, 28'); a('s_cbranch_scc1 K2_uw')
        GP.post(a, 'K2')
        a('s_endpgm')
        a.label('K2_uw')
        GP.uw_phase(a, 'K2')
        a('s_endpgm')
    a.label('K2_fb')
    a(f's_mov_b32 s{sATT}, 1')
    a('s_waitcnt vmcnt(0)'); a('s_barrier')
    for qb in range(2): a(f'v_mov_b32 v{NM_(qb)}, 0xff800000')
    a(f's_mov_b32 s{sKO}, 0')
    a.label('K2_mx')
    a(setm0(LK)); a('s_nop 0')
    for n in range(4): a(dma(KD_(n), SK, f's{sKO}', n))
    a('s_waitcnt vmcnt(0)'); a('s_barrier')
    for kb in range(2):
        for st in range(8): a(kread(0, kb, st))
    a('s_waitcnt lgkmcnt(0)'); a('s_barrier')
    for c in range(4):
        for st in range(8): a(qk_mfma(c, st, '0'))
    a.nop(8)
    for c in range(4):
        t = NM_(c & 1)
        a(f'v_max3_f32 v{t}, v{S_(c)}, v{S_(c)+1}, v{t}'); a(f'v_max3_f32 v{t}, v{S_(c)+2}, v{S_(c)+3}, v{t}')
    a(f's_add_u32 s{sKO}, s{sKO}, {TILE}'); a(f's_cmp_lt_u32 s{sKO}, {1<<20}'); a('s_cbranch_scc1 K2_mx')
    for qb in range(2): xlane(a, 'v_max_f32', NM_(qb), NM_(qb)+1)
    for qb in range(2):
        t = NM_(qb)
        a(f'v_sub_f32 v{t}, 0, v{t}')
        for i in range(1, 4): a(f'v_mov_b32 v{t+i}, v{t}')
    for i in range(0, 128, 2): a(f'v_mov_b64 v[{i}:{i+1}], 0')
    k0 = load_tile(a, 'K', 0); k1 = load_tile(a, 'K', 1)
    for kind, t in (('K', 2), ('V', 0), ('K', 3), ('V', 1), ('V', 2)): load_tile(a, kind, t)
    preamble(a, False, k0, k1)
    a(f's_mov_b32 s{sVO}, {3*TILE}'); a(f's_mov_b32 s{sKO}, {5*TILE}')
    if FUSE: a(WOPF); a(WOPF)
    a('s_branch K2_loop')
    a.label('K2_end')
    a('s_endpgm')
    return a, f'; @launch kernel={N} grid=(256,1,1) block=(256,1,1) lds={163840 if FUSE else LFLAG+64}', kd(N, 256, 132, sgpr=102 if STAMP else (80 if FUSE else 64))
```

```python
from gen_k2 import *
XR = lambda s, qb: (s*2+qb)*4
NA = lambda s, qb: 132 + (s*2+qb)*4
WAL = lambda i: 132 + i
WAH = lambda i: 200 + i
TID = 143
SDBG = 28
LSCR = 136*1024
NPROD = 84
FL_M, FL_N = 8192, 10240
P1 = int(os.environ.get('P1', 1)); SLP = int(os.environ.get('SLP', 4))
def gen_one():
    a = Asm()
    N = 'adaLN_cond__mha_block_cached__dense_activation_silu__prompt_kernel'
    head(a, N)
    a('s_cmp_ge_u32 s2, 256'); a('s_cbranch_scc1 K2_end')
    sp = Stamper(a, 80, 1)
    _st = sp.stamp; scnt = [0]
    def lim(real=False):
        scnt[0] += 1
        if scnt[0] in SEL: _st(real)
    SEL = eval(os.environ.get('SEL', '(1, 2, 6, 8, 9, 11, 12, 13)'))
    sp.stamp = lim
    XS = os.environ.get('XS', '')
    def xs(t):
        if t in XS: _st()
    QS = None
    sp.stamp(True); sp.stamp()
    sNON = 75
    a(f's_load_dwordx2 s[{SDBG}:{SDBG+1}], s[0:1], {KA["dbg"]}')
    a(f's_load_dwordx2 s[64:65], s[0:1], {KA["x"]}')
    a(f's_load_dwordx4 s[16:19], s[0:1], {KA["c"]}')
    a(f's_load_dwordx2 s[8:9], s[0:1], {KA["wq"]}')
    a(f's_load_dwordx2 s[10:11], s[0:1], {KA["ws"]}')
    a('s_memrealtime s[44:45]')
    NCL = 4
    a('v_lshrrev_b32 v1, 6, v0'); a('s_getpc_b64 s[56:57]'); a.label('K2_pc')
    a('v_readfirstlane_b32 s14, v1'); a('s_lshr_b32 s58, s2, 3'); a('s_lshl_b32 s58, s58, 2'); a('s_nop 1'); a('s_add_u32 s58, s58, s14')
    a('s_lshl_b32 s58, s58, 6')
    for i in range(NCL):
        a(f's_add_u32 s59, s58, {i*8192}'); a('s_min_u32 s59, s59, K2_tail-K2_pc-4'); a(f's_load_dword s{76+i}, s[56:57], s59')
    GP.roles(a)
    a('s_and_b32 s12, s2, 7'); a('s_lshl_b32 s12, s12, 1'); a('s_bfe_u32 s13, s2, 0x10003'); a('s_add_u32 s12, s12, s13')
    a('s_lshr_b32 s13, s2, 4')
    T = 208
    L, W, Qv, G, R, C4, Hh, Pp = T, T+1, T+2, T+3, T+4, T+5, T+6, T+7
    X, Y = 112, 113
    a(f'v_mov_b32 v{TID}, v0')
    a(f'v_and_b32 v{L}, 63, v0'); a(f'v_lshrrev_b32 v{W}, 6, v0'); a(f'v_and_b32 v{Qv}, 15, v0'); a(f'v_bfe_u32 v{G}, v0, 4, 2')
    a(f'v_bfe_u32 v{R}, v0, 2, 2'); a(f'v_and_b32 v{C4}, 3, v0'); a(f'v_bfe_u32 v{Hh}, v0, 5, 1'); a(f'v_and_b32 v{Pp}, 31, v0')
    GW, GC, XV = 114, 115, 116
    a(f'v_lshrrev_b32 v{GC}, 2, v0'); a(f'v_mul_u32_u24 v{GW}, 5376, v{GC}'); a(f'v_lshl_add_u32 v{GW}, v{C4}, 4, v{GW}'); a(f'v_lshlrev_b32 v{GC}, 1, v{GC}')
    a(f'v_mul_u32_u24 v{XV}, 896, v{Qv}'); a(f'v_lshl_add_u32 v{XV}, v{G}, 4, v{XV}'); a(f'v_lshl_add_u32 v{XV}, v{W}, 6, v{XV}')
    for n in range(4):
        a(f'v_lshl_add_u32 v{Y}, v{W}, 3, v{Hh}'); a(f'v_add_u32 v{Y}, {2*n}, v{Y}')
        a(f'v_and_b32 v{X}, 3, v{Y}'); a(f'v_bfe_u32 v{X+5}, v{Y}, 3, 1'); a(f'v_lshl_add_u32 v{X}, v{X+5}, 2, v{X}')
        a(f'v_lshlrev_b32 v{X}, 1, v{X}'); a(f'v_xor_b32 v{X}, v{X}, v{Pp}'); a(f'v_lshlrev_b32 v{X}, 4, v{X}')
        a(f'v_lshl_add_u32 v{WD_(n)}, v{Y}, 13, v{X}')
        if n: a(f'v_subrev_u32 v{WD_(n)}, {n*1024}, v{WD_(n)}')
    a('s_lshl_b32 s40, s14, 12'); a('s_lshl_b32 s50, s12, 20'); a('s_lshl_b32 s51, s12, 9')
    a('s_lshl_b32 s48, s13, 20'); a('s_lshl_b32 s49, s12, 13'); a('s_add_u32 s48, s48, s49')
    a('s_lshl_b32 s52, s13, 3'); a('s_and_b32 s53, s2, 7'); a('s_add_u32 s52, s52, s53')
    a('s_waitcnt lgkmcnt(0)')
    sp.stamp()
    a(f's_and_b32 s{SDBG+1}, s{SDBG+1}, 0xffff'); a(f's_mov_b32 s{SDBG+2}, 256'); a(f's_mov_b32 s{SDBG+3}, 0x20000')
    a('s_or_b32 s46, s2, s14'); a('s_cmp_lg_u32 s46, 0'); a('s_cbranch_scc1 K2_n0')
    a('s_or_b32 s44, s44, 1'); a('v_mov_b32 v1, 0'); a('v_mov_b32 v2, s44'); a('s_mov_b64 exec, 1')
    a(f'buffer_store_dword v2, v1, s[{SDBG}:{SDBG+3}], 0 offen sc1'); a('s_mov_b64 exec, -1')
    a.label('K2_n0')
    CV, CT_, GA, WR = 16, 24, 64, 32
    XRW = 0
    a('s_mov_b32 s47, 0')
    a('s_bitcmp1_b32 s2, 3'); a('s_cbranch_scc0 K2_ln0')
    a(f's_cmp_ge_u32 s52, {NPROD}'); a('s_cbranch_scc1 K2_g0')
    a('s_mov_b32 s47, 1')
    srd(a, 20, 16, 0, 896); srd(a, 36, 18, 0, 448*5376)
    for i in range(7): tC = a.vmem(f'buffer_load_ushort v{CV+i}, v{GC}, s[20:23], 0 offen offset:{128*i}')
    tG = {}
    a('s_lshl_b32 s46, s52, 6')
    for i in range(7):
        a(f's_add_u32 s53, s46, {64*5376*i}')
        tG[i] = a.vmem(f'buffer_load_dwordx4 {vr(WR+4*i,4)}, v{GW}, s[36:39], s53 offen')
    a('s_branch K2_g0')
    a.label('K2_ln0')
    a('s_mov_b32 s47, 2')
    a(f's_mul_i32 s46, s52, {16*896}')
    srd(a, 36, 64, 0, 16*896, 46)
    a('s_cmp_lt_u32 s14, 2'); a('s_cselect_b32 s53, 0, 0x100000')
    for i in range(4):
        a(f'buffer_load_dwordx4 {vr(XRW+4*i,4)}, v{XV}, s[36:39], {"s53" if i == 3 else "0"} offen offset:{256*i}')
    a.label('K2_g0')
    a(f's_load_dwordx4 s[4:7], s[0:1], {KA["k"]}')
    a(f's_load_dwordx2 s[66:67], s[0:1], {KA["out"]}')
    a(f's_load_dwordx2 s[60:61], s[0:1], {KA["wo"]}'); a(f's_load_dwordx2 s[62:63], s[0:1], {KA["w1"]}'); a(f's_load_dwordx2 s[54:55], s[0:1], {KA["w2"]}')
    srd(a, SWQ, 8, 0, 0, 51); a(f's_sub_u32 s{SWQ+2}, {448*8192}, s51')
    WSLOT = [LK+2*TILE, LV, LK+3*TILE, LV+TILE, LV+2*TILE, LV+3*TILE, LK, LK+TILE]
    wslot = lambda t: WSLOT[t % 8]
    tW = {}; tN = {}
    def wload(t):
        a(setm0(wslot(t))); a(f's_mov_b32 s{sT0}, {hex(t*32*8192)}')
        for n in range(4): tW[t] = a.vmem(dma(WD_(n), SWQ, f's{sT0}', n))
    wload(0); wload(1)
    v_after = a.vm
    srd(a, SMOD, 10, WS_MOD, 6*448*4)
    srd(a, 16, 10, WS_FLAG, 16384)
    t0, t1, t2 = 112, 113, 117
    for n in range(4):
        a(f'v_lshl_add_u32 v{t0}, v{W}, 3, v{Hh}'); a(f'v_add_u32 v{t1}, {2*n}, v{t0}')
        a(f'v_and_b32 v{t2}, 7, v{t1}'); a(f'v_lshlrev_b32 v{t2}, 1, v{t2}'); a(f'v_xor_b32 v{t2}, v{t2}, v{Pp}'); a(f'v_lshlrev_b32 v{t2}, 4, v{t2}')
        a(f'v_lshl_add_u32 v{VD_(n)}, v{t0}, 9, v{t2}')
        a(f'v_and_b32 v{t2}, 15, v{t1}'); a(f'v_xor_b32 v{t2}, v{t2}, v{Pp}'); a(f'v_lshlrev_b32 v{t2}, 4, v{t2}')
        a(f'v_lshl_add_u32 v{KD_(n)}, v{t0}, 9, v{t2}')
    for i in range(4):
        a(f'v_add_u32 v{t0}, {4*i}, v{G}'); a(f'v_xor_b32 v{t0}, v{t0}, v{Qv}'); a(f'v_lshlrev_b32 v{t0}, 4, v{t0}')
        a(f'v_lshl_add_u32 v{KA_(i)}, v{Qv}, 9, v{t0}')
    a(f'v_lshl_add_u32 v{t1}, v{G}, 2, v{R}')
    a(f'v_lshlrev_b32 v{t2}, 3, v{C4}'); a(f'v_lshl_add_u32 v{t2}, v{t1}, 9, v{t2}'); a(f'v_add_u32 v{t2}, {LV}, v{t2}')
    a(f'v_and_b32 v{t1}, 7, v{t1}')
    for i in range(8):
        a(f'v_xor_b32 v{t0}, {i}, v{t1}'); a(f'v_lshl_add_u32 v{VA_(i)}, v{t0}, 5, v{t2}')
    a(f'v_lshl_add_u32 v{t1}, v{G}, 3, v{R}')
    a(f'v_lshlrev_b32 v{t2}, 3, v{C4}'); a(f'v_lshl_add_u32 v{t2}, v{t1}, 9, v{t2}')
    a(f'v_and_b32 v{t1}, 1, v{G}'); a(f'v_lshl_add_u32 v{t1}, v{t1}, 2, v{R}')
    for i in range(8):
        a(f'v_xor_b32 v{t0}, {i}, v{t1}'); a(f'v_lshl_add_u32 v{WAL(i)}, v{t0}, 5, v{t2}'); a(f'v_add_u32 v{WAH(i)}, {LV}, v{WAL(i)}')
    a(f'v_lshlrev_b32 v{MA}, 5, v{G}'); a(f'v_add_u32 v{MA}, {LMOD}, v{MA}')
    a(f'v_lshlrev_b32 v{t0}, 18, v{W}'); a(f'v_lshl_add_u32 v{ST_(0)}, v{L}, 4, v{t0}'); a(f'v_add_u32 v{ST_(1)}, {1<<17}, v{ST_(0)}')
    a(f'v_mul_u32_u24 v{t0}, {2*14336}, v{W}'); a(f'v_lshl_add_u32 v{NV_(0)}, v{L}, 4, v{t0}'); a(f'v_add_u32 v{NV_(1)}, 14336, v{NV_(0)}')
    a('v_mov_b32 v118, 0'); a.vmem(f'buffer_load_dword v119, v118, s[{SDBG}:{SDBG+3}], 0 offen sc1')
    xs('a')
    a('s_cmp_eq_u32 s47, 1'); a('s_cbranch_scc1 K2_gv')
    a('s_cmp_eq_u32 s47, 2'); a('s_cbranch_scc1 K2_ln1')
    vm0 = a.vm
    wload(2); wload(3); wload(4)
    a('s_branch K2_g9')
    a.label('K2_gv')
    a.vm = vm0
    a.wait_vm(tC)
    for i in range(7): a(f'v_lshlrev_b32 v{CV+i}, 16, v{CV+i}')
    for i in range(7): a(f'v_mul_f32 v{CT_+i}, {f32(-LOG2E)}, v{CV+i}')
    for i in range(7): a(f'v_exp_f32 v{CT_+i}, v{CT_+i}')
    for i in range(7): a(f'v_add_f32 v{CT_+i}, 1.0, v{CT_+i}')
    for i in range(7): a(f'v_rcp_f32 v{CT_+i}, v{CT_+i}')
    for i in range(7): a(f'v_mul_f32 v{CV+i}, v{CV+i}, v{CT_+i}')
    for i in range(7): rbf(a, CV+i, CV+i)
    for i in range(7):
        a.wait_vm(tG[i])
        for j in range(4):
            u0, u1 = 72 + 2*(j & 1), 73 + 2*(j & 1)
            unpack(a, u0, u1, WR+4*i+j)
            op = 'v_mul_f32' if i == 0 else 'v_fmac_f32'
            a(f'{op} v{GA+2*j}, v{u0}, v{CV+i}'); a(f'{op} v{GA+2*j+1}, v{u1}, v{CV+i}')
    wload(2)
    a(f'v_lshlrev_b32 v76, 5, v{TID}'); a(f'v_add_u32 v76, {LSCR}, v76')
    a(f'ds_write_b128 v76, {vr(GA,4)}'); a(f'ds_write_b128 v76, {vr(GA+4,4)} offset:16')
    a(f'v_lshrrev_b32 v77, 5, v{TID}'); a(f'v_lshlrev_b32 v78, 2, v{Pp}'); a(f'v_add_u32 v78, {LSCR}, v78')
    a('v_lshl_add_u32 v79, v77, 10, v78'); a('v_lshl_add_u32 v80, v77, 7, v78')
    a('s_waitcnt lgkmcnt(0)'); a('s_barrier')
    for i in range(8): a(f'ds_read_b32 v{GA+i}, v79 offset:{128*i}')
    wload(3)
    a('s_waitcnt lgkmcnt(0)')
    for n in (4, 2, 1):
        for i in range(n): a(f'v_add_f32 v{GA+i}, v{GA+i}, v{GA+n+i}')
    a(f'ds_write_b32 v80, v{GA} offset:8192')
    a('s_waitcnt lgkmcnt(0)'); a('s_barrier')
    for i in range(8): a(f'ds_read_b32 v{GA+i}, v78 offset:{8192+128*i}')
    wload(4)
    a('s_waitcnt lgkmcnt(0)')
    for n in (4, 2, 1):
        for i in range(n): a(f'v_add_f32 v{GA+i}, v{GA+i}, v{GA+n+i}')
    rbf(a, GA, GA)
    a('s_sub_u32 s53, s52, 14'); a('s_cmp_lt_u32 s53, 14'); a('s_cbranch_scc1 K2_g1')
    a('s_sub_u32 s53, s52, 56'); a('s_cmp_lt_u32 s53, 14'); a('s_cbranch_scc0 K2_g2')
    a.label('K2_g1')
    a(f'v_add_f32 v{GA}, 1.0, v{GA}'); rbf(a, GA, GA)
    a.label('K2_g2')
    a('s_cmp_lt_u32 s52, 28'); a('s_cbranch_scc0 K2_g3')
    a(f'v_mul_f32 v{GA}, {f32(LOG2E/16)}, v{GA}')
    a.label('K2_g3')
    a(f's_lshl_b32 s46, s52, 4'); a(f's_add_u32 s46, s46, {FL_M}')
    a('s_cmp_lg_u32 s14, 0'); a('s_cbranch_scc1 K2_g9')
    a(f'v_lshlrev_b32 v77, 2, v{Pp}'); a('s_lshl_b32 s53, s52, 7')
    a(f'buffer_store_dword v{GA}, v77, s[{SMOD}:{SMOD+3}], s53 offen sc1')
    a('s_branch K2_g9')
    a.label('K2_ln1')
    F = 16
    a(f's_mul_i32 s46, s52, 14336'); srd(a, 36, 10, WS_N, 14336, 46)
    a('v_lshl_add_u32 v48, v{W}, 2, v{G}'.format(W=W, G=G)); a(f'v_lshlrev_b32 v49, 7, v{Qv}'); a(f'v_add_u32 v49, {LSCR}, v49'); a('v_lshl_add_u32 v48, v48, 3, v49')
    a(f'v_lshlrev_b32 v50, 4, v{L}'); a(f'v_lshl_add_u32 v50, v{W}, 10, v50')
    a(f's_waitcnt vmcnt({vm0 - (v_after - 8)})')
    for i in range(16): unpack(a, F+2*i, F+2*i+1, XRW+i)
    wload(2)
    a(f'v_add_f32 v52, v{F}, v{F+1}'); a(f'v_mul_f32 v53, v{F}, v{F}'); a(f'v_add_f32 v54, v{F+2}, v{F+3}'); a(f'v_mul_f32 v55, v{F+2}, v{F+2}')
    a(f'v_fmac_f32 v53, v{F+1}, v{F+1}'); a(f'v_fmac_f32 v55, v{F+3}, v{F+3}')
    for i in range(4, 32, 2):
        a(f'v_add_f32 v52, v52, v{F+i}'); a(f'v_fmac_f32 v53, v{F+i}, v{F+i}'); a(f'v_add_f32 v54, v54, v{F+i+1}'); a(f'v_fmac_f32 v55, v{F+i+1}, v{F+i+1}')
    a('v_add_f32 v52, v52, v54'); a('v_add_f32 v53, v53, v55')
    a('ds_write_b64 v48, v[52:53]')
    a('s_waitcnt lgkmcnt(0)'); a('s_barrier')
    for i in range(8): a(f'ds_read_b128 {vr(56+4*i,4)}, v49 offset:{16*i}')
    wload(3)
    a('s_waitcnt lgkmcnt(0)')
    n = 16
    while n > 1:
        n //= 2
        for i in range(n):
            a(f'v_add_f32 v{56+2*i}, v{56+2*i}, v{56+2*(n+i)}'); a(f'v_add_f32 v{57+2*i}, v{57+2*i}, v{57+2*(n+i)}')
    m, v = 56, 57
    a(f'v_mul_f32 v{m}, {f32(1/448)}, v{m}'); a(f'v_mul_f32 v{v}, {f32(1/448)}, v{v}')
    a(f'v_fma_f32 v{v}, -v{m}, v{m}, v{v}'); a(f'v_max_f32 v{v}, 0, v{v}')
    rbf(a, v, v); a(f'v_add_f32 v{v}, {f32(1e-5)}, v{v}'); rbf(a, v, v)
    a(f'v_sqrt_f32 v{v}, v{v}'); rbf(a, m, m)
    rbf(a, v, v); a(f'v_rcp_f32 v{v}, v{v}')
    for i in range(32): a(f'v_sub_f32 v{F+i}, v{F+i}, v{m}')
    wload(4)
    for i in range(16): a(f'v_cvt_pk_bf16_f32 v{XRW+i}, v{F+2*i}, v{F+2*i+1}')
    for i in range(16): unpack(a, F+2*i, F+2*i+1, XRW+i)
    for i in range(32): a(f'v_mul_f32 v{F+i}, v{F+i}, v{v}')
    for i in range(16): a(f'v_cvt_pk_bf16_f32 v{XRW+i}, v{F+2*i}, v{F+2*i+1}')
    for i in range(4):
        a(f's_mov_b32 s53, {4096*i}')
        a(f'buffer_store_dwordx4 {vr(XRW+4*i,4)}, v50, s[36:39], s53 offen sc1')
    a('s_waitcnt vmcnt(0)'); a('s_barrier')
    a('s_lshl_b32 s46, s13, 7'); a('s_and_b32 s53, s2, 7'); a('s_lshl_b32 s53, s53, 2'); a('s_add_u32 s46, s46, s53'); a(f's_add_u32 s46, s46, {FL_N}')
    a.label('K2_g9')
    xs('A')
    a('s_mov_b32 s44, 0x8000')
    a.label('K2_o_pl')
    a('s_waitcnt vmcnt(0)')
    a(f'v_readfirstlane_b32 s{sNON}, v119'); a('s_nop 3')
    a(f's_cmp_lg_u32 s{sNON}, 0'); a('s_cbranch_scc1 K2_o_pd')
    a(f'buffer_load_dword v119, v118, s[{SDBG}:{SDBG+3}], 0 offen sc1')
    a('s_sub_u32 s44, s44, 1'); a('s_cmp_lg_u32 s44, 0'); a('s_cbranch_scc1 K2_o_pl')
    a.label('K2_o_pd')
    a('s_cmp_eq_u32 s47, 0'); a('s_cbranch_scc1 K2_p9')
    a('s_cmp_lg_u32 s14, 0'); a('s_cbranch_scc1 K2_p9')
    a('s_mov_b64 exec, 1')
    a('buffer_store_dword v119, v118, s[16:19], s46 offen sc1')
    a('s_mov_b64 exec, -1')
    a.label('K2_p9')
    xs('B')
    a.vm = 0
    for t in range(5): tW[t] = 0
    a('s_waitcnt lgkmcnt(0)')
    a(f's_mov_b32 s{sATT}, 0'); a(f's_mov_b32 s{s4K}, 4096')
    srd(a, SV, 6, 0, 1 << 20, 50)
    srd(a, SO, 10, WS_O, 0, 48); a(f's_sub_u32 s{SO+2}, {1<<20}, s49')
    a('s_lshl_b32 s52, s2, 2'); a('s_add_u32 s52, s52, s14')
    a('s_mov_b32 s56, s54'); a('s_mov_b32 s57, s55'); a('s_mov_b32 s53, s52')
    a('s_cmp_lt_u32 s52, 196'); a('s_cbranch_scc1 K2_pf')
    a('s_mov_b32 s56, s62'); a('s_mov_b32 s57, s63'); a('s_sub_u32 s53, s52, 196')
    a.label('K2_pf')
    a('s_lshl_b32 s53, s53, 13'); a('s_add_u32 s56, s56, s53'); a('s_addc_u32 s57, s57, 0')
    a('s_lshl_b32 s53, s14, 18'); a('s_sub_u32 s56, s56, s53'); a('s_subb_u32 s57, s57, 0')
    a('s_and_b32 s57, s57, 0xffff'); a('s_mov_b32 s59, 0x20000')
    a('s_add_u32 s53, s53, 8192'); a('s_cmp_lt_u32 s52, 392'); a('s_cselect_b32 s58, s53, 0')
    a('s_mov_b32 s53, 0xfffffc00')
    GP.roles2(a)
    a('s_lshr_b32 s47, s2, 3'); a('s_lshl_b32 s47, s47, 2'); a('s_add_u32 s47, s47, s14'); a('s_mul_i32 s47, s47, 28672')
    a('s_add_u32 s76, s60, s47'); a('s_addc_u32 s77, s61, 0'); a('s_lshl_b32 s47, s14, 18'); a('s_sub_u32 s76, s76, s47'); a('s_subb_u32 s77, s77, 0')
    a('s_and_b32 s77, s77, 0xffff'); a('s_add_u32 s78, s47, 28672'); a('s_mov_b32 s79, 0x20000')
    a(f's_mul_i32 s47, s13, {8*14336}'); srd(a, SN, 10, WS_N, 8*14336, 47)
    a(f's_mov_b32 s47, {(63-WOS)*1024}')
    sp.stamp()
    a(f'v_lshlrev_b32 v0, 4, v{L}'); a(f'v_add_u32 v0, {FL_M}, v0')
    a('s_lshl_b32 s44, s13, 7'); a(f's_add_u32 s44, s44, {FL_N - 28*4}'); a(f'v_lshlrev_b32 v1, 2, v{L}'); a('v_add_u32 v1, s44, v1')
    a(f'v_cmp_gt_u32 vcc, 28, v{L}'); a('s_nop 1'); a('v_cndmask_b32 v0, v1, v0, vcc')
    a(f'v_lshlrev_b32 v2, 4, v{TID}'); a(f'v_add_u32 v3, {LMOD}, v2')
    a('s_mov_b32 s44, 0x8000')
    if P1: a('s_cmp_lg_u32 s14, 0'); a('s_cbranch_scc1 K2_m_pd')
    a.label('K2_m_pl')
    a('buffer_load_dword v1, v0, s[16:19], 0 offen sc1')
    a('s_waitcnt vmcnt(0)')
    a(f'v_cmp_eq_u32 vcc, s{sNON}, v1'); a('s_nop 1')
    a('s_and_b32 vcc_hi, vcc_hi, 15'); a('s_bcnt1_i32_b64 s73, vcc'); a('s_cmp_eq_u32 s73, 36'); a('s_cbranch_scc1 K2_m_pd')
    a(f's_sleep {SLP}')
    a('s_sub_u32 s44, s44, 1'); a('s_cmp_lg_u32 s44, 0'); a('s_cbranch_scc1 K2_m_pl')
    a.label('K2_m_pd')
    if P1: a('s_barrier')
    xs('D')
    tM = a.vmem(f'buffer_load_dwordx4 v[4:7], v2, s[{SMOD}:{SMOD+3}], 0 offen sc1')
    def nload(s):
        a(f's_mov_b32 s{sT1}, {s*1024}')
        for qb in range(2):
            tN[s] = a.vmem(f'buffer_load_dwordx4 {vr(NR_(s,qb),4)}, v{NV_(qb)}, s[{SN}:{SN+3}], s{sT1} offen sc1')
    nload(0); nload(1); nload(2)
    srd(a, SK, 4, 0, 1 << 20, 50)
    def wread(t, db, h):
        b = wslot(t); A = WAL if b < LV else WAH
        return f'ds_read_b64_tr_b16 {ar(VF_(db)+2*h,2)}, v{A(db&7)} offset:{(b % LV) + h*2048 + (db>>3)*256}'
    def modreads(s):
        m = MC_(s & 1)
        return [f'ds_read_b128 {vr(m,4)}, v{MA} offset:{1792+128*s}', f'ds_read_b128 {vr(m+4,4)}, v{MA} offset:{1792+128*s+16}',
                f'ds_read_b128 {vr(m+8,4)}, v{MA} offset:{128*s}', f'ds_read_b128 {vr(m+12,4)}, v{MA} offset:{128*s+16}']
    def modvalu(s):
        m = MC_(s & 1); out = []
        for qb in range(2):
            for i in range(4):
                k = (qb*4+i) % 4
                ta, tb = TMP + 2*k, TMP + 2*k + 1
                raw = NR_(s, qb) + i
                out.append([f'v_lshlrev_b32 v{ta}, 16, v{raw}', f'v_and_b32 v{tb}, 0xffff0000, v{raw}',
                            f'v_fma_f32 v{ta}, v{ta}, v{m+2*i}, v{m+8+2*i}', f'v_fma_f32 v{tb}, v{tb}, v{m+2*i+1}, v{m+8+2*i+1}',
                            f'v_cvt_pk_bf16_f32 v{H_(s&1,qb)+i}, v{ta}, v{tb}'])
        return out
    a.wait_vm(tM)
    a('ds_write_b128 v3, v[4:7]')
    a('s_waitcnt lgkmcnt(0)'); a('s_barrier')
    sp.stamp()
    for x in modreads(0): a(x)
    for db in range(16):
        for h in range(2): a(wread(0, db, h))
    a.wait_vm(tN[0], ' lgkmcnt(15)')
    for grp in modvalu(0):
        for x in grp: a(x)
    for x in modreads(1): a(x)
    a('s_waitcnt lgkmcnt(0)')
    sp.stamp()
    NS = 14
    tok = {}
    kv_at = {8: ('K', 0), 9: ('K', 1), 10: ('K', 2), 11: ('V', 0), 12: ('K', 3), 13: ('V', 1)}
    def tile_items(key):
        if key[0] == 'W':
            t = key[1]; base, so, vo, sd = wslot(t), t*32*8192, WD_, SWQ
        else:
            kind, tt = key
            base, so, vo, sd = (LK if kind == 'K' else LV) + tt*TILE, tt*TILE, (KD_ if kind == 'K' else VD_), (SK if kind == 'K' else SV)
        def mk(n):
            def f():
                tk = a.vmem(dma(vo(n), sd, f's{sT0}', n))
                if key[0] == 'W': tW[key[1]] = tk
                else: tok[key] = tk
            return f
        return [setm0(base), f's_mov_b32 s{sT0}, {hex(so)}'], [mk(n) for n in range(4)]
    def conv_ops(st, qb):
        Xb, Yb, q = O_(2*st, qb), O_(2*st+1, qb), Q_(st, qb)
        return ([f'v_cvt_pk_bf16_f32 v{q}, v{Xb}, v{Xb+1}', f'v_cvt_pk_bf16_f32 v{q+1}, v{Xb+2}, v{Xb+3}',
                 f'v_cvt_pk_bf16_f32 v{q+2}, v{Yb}, v{Yb+1}', f'v_cvt_pk_bf16_f32 v{q+3}, v{Yb+2}, v{Yb+3}'],
                [f'v_permlane32_swap_b32 v{q}, v{q+2}', f'v_permlane32_swap_b32 v{q+1}, v{q+3}'],
                [f'v_permlane16_swap_b32 v{q}, v{q+2}', f'v_permlane16_swap_b32 v{q+1}, v{q+3}'],
                [f'v_mov_b64 v[{Xb}:{Xb+1}], 0', f'v_mov_b64 v[{Xb+2}:{Xb+3}], 0', f'v_mov_b64 v[{Yb}:{Yb+1}], 0', f'v_mov_b64 v[{Yb+2}:{Yb+3}], 0'])
    for s in range(NS):
        if QS: sq_.stamp()
        G_ = [[] for _ in range(32)]
        Vv = [[] for _ in range(32)]
        cap = [1]*32
        bar = (s % 2 == 0)
        if s >= 1:
            G_[0].append(wread(s, 15, 0)); G_[1].append(wread(s, 15, 1))
        for k in (4, 12, 20, 28): G_[k].insert(0, 's_waitcnt lgkmcnt(8)'); cap[k] = 0
        tiles = []
        if s + 5 < NS: tiles.append(('W', s + 5))
        if s in kv_at: tiles.append(kv_at[s])
        if s + 1 < NS:
            def w(s=s, bar=bar):
                t = tN[s+1]
                if bar and s >= 2:
                    t = max(t, tW[s+1], tW[min(s+2, NS-1)])
                    if s == 12: t = max(t, tok['K', 1])
                a.wait_vm(t)
                if bar and s >= 2: a('s_barrier')
            G_[1].append(w)
            for k in range(30): G_[k+2].append(wread(s+1, k >> 1, k & 1))
            if s + 2 < NS:
                for i, x in enumerate(modreads(s+2)): G_[3+2*i].append(x); cap[3+2*i] = 0
            if s + 3 < NS:
                def nl(qb, s=s):
                    def f():
                        if qb == 0: a(f's_mov_b32 s{sT1}, {(s+3)*1024}')
                        tN[s+3] = a.vmem(f'buffer_load_dwordx4 {vr(NR_(s+3,qb),4)}, v{NV_(qb)}, s[{SN}:{SN+3}], s{sT1} offen sc1')
                    return f
                G_[2].append(nl(0)); G_[6].append(nl(1)); cap[2] = cap[6] = 0
        else:
            ks = [kread(0, kb, st) for kb in range(2) for st in range(8)]
            for i, x in enumerate(ks): G_[2+i].append(x)
        pos = [10, 14, 18, 22] if len(tiles) == 1 else [8, 11, 14, 17, 21, 24, 27, 30]
        for ti, key in enumerate(tiles):
            su, ds = tile_items(key)
            pp = pos[4*ti:4*ti+4]
            G_[pp[0]-1] = su + G_[pp[0]-1]; cap[pp[0]-1] = 0
            for p, d in zip(pp, ds): G_[p].append(d); cap[p] = 0
        if s + 1 < NS:
            grps = modvalu(s+1); seq = []
            for gi in range(10):
                if gi < 8: seq += grps[gi][0:2]
                if 1 <= gi < 9: seq += grps[gi-1][2:4]
                if gi >= 2: seq.append(grps[gi-2][4])
            lo = 10 if (bar and s >= 2) else 2
            rng = list(range(lo, 30))
            tot = len(seq); base = sum(cap[k] for k in rng); extra = tot - base
            cnt = {k: cap[k] for k in rng}
            order = [k for k in rng if cap[k]] + [k for k in rng if not cap[k]]
            i = 0
            while extra > 0:
                cnt[order[i % len(order)]] += 1; extra -= 1; i += 1
            p = 0
            for k in rng:
                Vv[k] = seq[p:p+cnt[k]]; p += cnt[k]
        else:
            pend = []
            for st in range(8):
                for qb in range(2):
                    c4, p32, p16, z = conv_ops(st, qb)
                    g = 4*st + 2 + qb + 5
                    pend += [(g, x) for x in c4] + [(g + 3, x) for x in p32] + [(g + 5, x) for x in p16] + [(g + 40, x) for x in z]
            pend.sort(key=lambda x: x[0])
            for k in range(32):
                n = 1 if G_[k] else 2
                while n and pend and pend[0][0] <= k:
                    Vv[k].append(pend.pop(0)[1]); n -= 1
        for db in range(16):
            for qb in range(2):
                k = db*2 + qb
                c = vr(O_(db, qb), 4)
                a(f'{M16} {c}, {ar(VF_(db),4)}, {vr(H_(s&1,qb),4)}, {c if s else 0}')
                for x in G_[k] + Vv[k]:
                    x() if callable(x) else a(x)
    if QS: sq_.stamp()
    a('s_waitcnt lgkmcnt(0)'); a('s_barrier')
    sp.stamp()
    conv = [x for x in pend if 'v_mov_b64' not in x[1]]
    zero = [x[1] for x in pend if 'v_mov_b64' in x[1]]
    mem = []
    for key in (('V', 2), ('K', 4)):
        kind, tt = key
        base = (LK if kind == 'K' else LV) + (tt & 3)*TILE
        mem.append([setm0(base), f's_mov_b32 s{sT0}, {hex(tt*TILE)}'])
        for n in range(4):
            mem.append([lambda n=n, kind=kind: a.vmem(dma((KD_ if kind == 'K' else VD_)(n), SK if kind == 'K' else SV, f's{sT0}', n))])
    need = lambda txt: int(txt.split()[1].strip('v,'))
    done_at = {}
    gi = 0
    order = [(c, st) for c in range(4) for st in range(8)]
    for idx, (c, st) in enumerate(order):
        q = Q_(st, c & 1)
        while any(q <= need(x[1]) < q + 4 for x in conv):
            x = conv.pop(0); a(x[1])
            if 'permlane' in x[1] or (conv and 'permlane' in conv[0][1]): a('s_nop 1')
        a(qk_mfma(c, st, '0'))
        n = 2
        if c & 1: a(kread(1, c >> 1, st)); n = 1
        elif mem and idx % 2 == 1 or (mem and idx >= 16):
            for x in mem.pop(0): x() if callable(x) else a(x)
            n = 0
        while n and conv:
            x = conv.pop(0); a(x[1]); n -= 1
            if 'permlane' in x[1] or (conv and 'permlane' in conv[0][1]): a('s_nop 1'); n = 0
        while n and zero:
            a(zero.pop(0)); n -= 1
    assert not mem
    for x in zero: a(x)
    softmax0(a, True, max(0, 8 - len(zero)))
    GP.flag_srd(a)
    a('s_mov_b32 s44, 0x8000'); a(f'v_and_b32 v{S_(0)}, 0x3ff, v{ST_(0)}'); a(f'v_add_u32 v{S_(0)}, {FL_M+448}, v{S_(0)}')
    a.label('K2_n_pl')
    a(f'buffer_load_dword v{S_(0)+1}, v{S_(0)}, s[{GP.SF_}:{GP.SF_+3}], 0 offen sc1')
    a('s_waitcnt vmcnt(0)')
    a(f'v_cmp_eq_u32 vcc, s{sNON}, v{S_(0)+1}'); a('s_nop 1')
    a('s_bcnt1_i32_b64 s73, vcc'); a('s_cmp_ge_u32 s73, 56'); a('s_cbranch_scc1 K2_n_pd')
    a('s_sleep 8')
    a('s_sub_u32 s44, s44, 1'); a('s_cmp_lg_u32 s44, 0'); a('s_cbranch_scc1 K2_n_pl')
    a.label('K2_n_pd')
    a(f's_mov_b32 s{sVO}, {3*TILE}'); a(f's_mov_b32 s{sKO}, {5*TILE}')
    if FUSE:
        a(WOPF)
        a('s_getpc_b64 s[24:25]'); a.label('K2_pc2')
        a('s_add_u32 s24, s24, K2_tail-K2_pc2'); a('s_addc_u32 s25, s25, 0'); a('s_and_b32 s25, s25, 0xffff')
        a('s_mov_b32 s26, K2_fb-K2_tail'); a('s_mov_b32 s27, 0x20000')
        a(f'v_and_b32 v{S_(0)}, 0x3ff, v{ST_(0)}'); a(f'v_lshlrev_b32 v{S_(0)}, 3, v{S_(0)}'); a(f's_lshl_b32 s{sT0}, s14, 13')
        a(f'buffer_load_dword a128, v{S_(0)}, s[24:27], s{sT0} offen')
    sp.stamp()
    if STAMP and not QS and not FUSE: a('s_memrealtime s[90:91]'); a('s_waitcnt lgkmcnt(0)')
    a('.p2align 6')
    a.label('K2_loop')
    pre_len = len(a.L)
    for u in range(4):
        a(f's_waitcnt vmcnt({VMW}) lgkmcnt(0)'); a('s_barrier')
        loop_body(a, u, verbose=bool(os.environ.get('V')))
        if u == 2:
            a('s_cbranch_scc1 K2_tail')
    a('s_branch K2_loop')
    body = a.L[pre_len:]
    for p in check_text(body + body, 'k2 loop wrap'): print('HAZARD', p)
    a.label('K2_tail')
    a(f's_waitcnt vmcnt({0 if FUSE else 16}) lgkmcnt(0)'); a('s_barrier')
    sp.stamp()
    if STAMP and not QS and not FUSE: a('s_memrealtime s[92:93]'); a('s_waitcnt lgkmcnt(0)'); a('s_sub_u32 s92, s92, s90')
    for db in range(16):
        for h in range(2): a(vread(3, db, h))
    for qb in range(2): xlane(a, 'v_add_f32', L_(qb), S_(qb))
    a(f's_mov_b32 s{sT0}, {f32(THRESH)}')
    a(f'v_add_f32 v{S_(0)+1}, v{L_(0)}, v{L_(1)}')
    a(f'v_cmp_ngt_f32 vcc, s{sT0}, v{S_(0)+1}')
    a(f'v_rcp_f32 v{L_(0)}, v{L_(0)}'); a(f'v_rcp_f32 v{L_(1)}, v{L_(1)}')
    a(f's_cmp_lg_u64 vcc, 0'); a(f's_cselect_b32 s{sT1}, 1, 0')
    a(f'v_mov_b32 v{S_(0)+2}, s{sT1}')
    a(f's_lshl_b32 s{sT0}, s14, 2'); a(f's_add_u32 s{sT0}, s{sT0}, {LFLAG}'); a(f'v_mov_b32 v{S_(0)+3}, s{sT0}')
    a(f'ds_write_b32 v{S_(0)+3}, v{S_(0)+2}')
    def ep_ops(sq, qb, pk):
        Xb, Yb = O_(2*sq, qb), O_(2*sq+1, qb)
        o = []
        if pk:
            LP = L_(0)
            sel = 'op_sel:[0,0] op_sel_hi:[1,0]' if qb == 0 else 'op_sel:[0,1] op_sel_hi:[1,1]'
            for b in (Xb, Xb+2, Yb, Yb+2): o.append(f'v_pk_mul_f32 v[{b}:{b+1}], v[{b}:{b+1}], v[{LP}:{LP+1}] {sel}')
        else:
            for i in range(4):
                o += [f'v_mul_f32 v{Xb+i}, v{Xb+i}, v{L_(qb)}', f'v_mul_f32 v{Yb+i}, v{Yb+i}, v{L_(qb)}']
        o += [f'v_cvt_pk_bf16_f32 v{Xb}, v{Xb}, v{Xb+1}', f'v_cvt_pk_bf16_f32 v{Xb+1}, v{Xb+2}, v{Xb+3}',
              f'v_cvt_pk_bf16_f32 v{Xb+2}, v{Yb}, v{Yb+1}', f'v_cvt_pk_bf16_f32 v{Xb+3}, v{Yb+2}, v{Yb+3}',
              f'buffer_store_dwordx4 {vr(Xb,4)}, v{ST_(qb)}, s[{SO}:{SO+3}], {"0" if sq < 4 else f"s{s4K}"} offen offset:{(sq&3)*1024} {OFLAG}']
        return o
    pend = []
    NOV = 3
    for sq in range(NOV):
        for qb in range(2): pend += [(4*sq + 2 + qb + 8, x) for x in ep_ops(sq, qb, False)]
    for db in range(16):
        if db % 4 == 0: a(f's_waitcnt lgkmcnt({min(15, 33 - 2*db - 8)})')
        for qb in range(2):
            k = 2*db + qb
            a(pv_mfma(db, qb, 1))
            n = 2
            while n and pend and pend[0][0] <= k:
                x = pend.pop(0)[1]; a(x); n -= 1
                if 'store' in x: n = 0
    sp.stamp()
    for x in pend: a(x[1])
    for sq in range(NOV, 8):
        for qb in range(2):
            for x in ep_ops(sq, qb, True): a(x)
    sp.stamp()
    if not FUSE:
        if STAMP: a('s_waitcnt vmcnt(0)')
        sp.stamp(); sp.stamp(True); sp.dump(10, 14, S_(2))
        if STAMP and not QS: a(f'v_mov_b32 v{S_(2)+1}, s92'); a(f'buffer_store_dword v{S_(2)+1}, v{S_(2)}, s[96:99], s100 offen offset:60')
        a(f's_cmp_lg_u32 s{sATT}, 0'); a('s_cbranch_scc1 K2_end')
        a(f'v_mov_b32 v{S_(0)+3}, {LFLAG}')
        a('s_waitcnt lgkmcnt(0)'); a('s_barrier')
    else:
        a.g3 = g3 = GP.Gemm(a, 3)
        a(f's_cmp_ge_u32 s{GP.sIDX}, 28'); a('s_cbranch_scc1 K2_np')
        g3.w_setup()
        for ks in range(GP.NPRE):
            for f in g3.w_pre(ks): f()
        a(f's_waitcnt vmcnt({4*GP.NPRE})'); a('s_branch K2_nj')
        a.label('K2_np')
        a('s_waitcnt vmcnt(0)')
        a.label('K2_nj')
        a(f'v_mov_b32 v{S_(0)+3}, {LFLAG}')
        a('s_waitcnt lgkmcnt(0)'); a('s_barrier')
        a(f's_cmp_lg_u32 s{sATT}, 0'); a('s_cbranch_scc1 K2_go')
    a(f'ds_read_b128 {vr(S_(1),4)}, v{S_(0)+3}')
    a('s_waitcnt lgkmcnt(0)')
    a(f'v_or3_b32 v{S_(1)}, v{S_(1)}, v{S_(1)+1}, v{S_(1)+2}'); a(f'v_or_b32 v{S_(1)}, v{S_(1)}, v{S_(1)+3}')
    a('s_nop 0')
    a(f'v_readfirstlane_b32 s{sT0}, v{S_(1)}')
    a('s_nop 3')
    if not FUSE:
        a(f's_cmp_eq_u32 s{sT0}, 0'); a('s_cbranch_scc1 K2_end')
    else:
        a(f's_cmp_lg_u32 s{sT0}, 0'); a('s_cbranch_scc1 K2_fb')
        a.label('K2_go')
        a(f's_lshl_b32 s44, s13, 7'); a('s_lshl_b32 s45, s12, 2'); a('s_add_u32 s44, s44, s45')
        GP.set_flag(a, 'K2_a', 44, 8)
        sp.stamp(); sp.stamp(True); sp.dump(10, 14, 8)
        a(f's_cmp_ge_u32 s{GP.sIDX}, 28'); a('s_cbranch_scc1 K2_uw')
        GP.post(a, 'K2')
        a('s_endpgm')
        a.label('K2_uw')
        GP.uw_phase(a, 'K2')
        a('s_endpgm')
    a.label('K2_fb')
    a(f's_mov_b32 s{sATT}, 1')
    a('s_waitcnt vmcnt(0)'); a('s_barrier')
    for qb in range(2): a(f'v_mov_b32 v{NM_(qb)}, 0xff800000')
    a(f's_mov_b32 s{sKO}, 0')
    a.label('K2_mx')
    a(setm0(LK)); a('s_nop 0')
    for n in range(4): a(dma(KD_(n), SK, f's{sKO}', n))
    a('s_waitcnt vmcnt(0)'); a('s_barrier')
    for kb in range(2):
        for st in range(8): a(kread(0, kb, st))
    a('s_waitcnt lgkmcnt(0)'); a('s_barrier')
    for c in range(4):
        for st in range(8): a(qk_mfma(c, st, '0'))
    a.nop(8)
    for c in range(4):
        t = NM_(c & 1)
        a(f'v_max3_f32 v{t}, v{S_(c)}, v{S_(c)+1}, v{t}'); a(f'v_max3_f32 v{t}, v{S_(c)+2}, v{S_(c)+3}, v{t}')
    a(f's_add_u32 s{sKO}, s{sKO}, {TILE}'); a(f's_cmp_lt_u32 s{sKO}, {1<<20}'); a('s_cbranch_scc1 K2_mx')
    for qb in range(2): xlane(a, 'v_max_f32', NM_(qb), NM_(qb)+1)
    for qb in range(2):
        t = NM_(qb)
        a(f'v_sub_f32 v{t}, 0, v{t}')
        for i in range(1, 4): a(f'v_mov_b32 v{t+i}, v{t}')
    for i in range(0, 128, 2): a(f'v_mov_b64 v[{i}:{i+1}], 0')
    k0 = load_tile(a, 'K', 0); k1 = load_tile(a, 'K', 1)
    for kind, t in (('K', 2), ('V', 0), ('K', 3), ('V', 1), ('V', 2)): load_tile(a, kind, t)
    preamble(a, False, k0, k1)
    a(f's_mov_b32 s{sVO}, {3*TILE}'); a(f's_mov_b32 s{sKO}, {5*TILE}')
    if FUSE: a(WOPF); a(WOPF)
    a('s_branch K2_loop')
    a.label('K2_end')
    a('s_endpgm')
    return a, f'; @launch {"" if os.environ.get("PLAIN") else "kernel="+N+" "}grid=(256,1,1) block=(256,1,1) lds=163840', kd(N, 256, 132, sgpr=102 if STAMP else (80 if FUSE else 64))
```

```python
from gen_common import *
M16 = 'v_mfma_f32_16x16x32_bf16'
FL_A, FL_B, FL_C, FL_U = 0, 2048, 4096, 6144
SC = 'sc1'
sX, sOUT, sW2, sWO, sW1, sWS, sWAVE = 64, 66, 54, 60, 62, 10, 14
sIDX, sTB, sNT, sLB, sROT = 68, 69, 70, 71, 72
sT = [73, 74, 75]
SW_, SA_, SF_ = 24, 28, 32
SX_, SM_, SO2, SO3 = 16, 20, 36, 40
ACC = lambda nb, tb: (nb*4+tb)*4
AF = lambda buf, nb: 64 + buf*16 + nb*4
BSL = [96, 112, 128, 160, 176, 192, 208, 224]
BF = lambda slot, tb: BSL[slot] + tb*4
WV = lambda m: 144 + m
RA = lambda nb: 148 + nb
BV = lambda tb: 152 + tb
LANE, GG, T0, T1 = 156, 157, 158, 159
E0 = 240
X1A = 120
D = 8; PF = 7
E4F = int(os.environ.get('E4F', 2))
NPRE = int(os.environ.get('NPRE', 2))
BSC = os.environ.get('BSC', SC)

def xlane(a, op, r, t):
    for sw in ('v_permlane32_swap_b32', 'v_permlane16_swap_b32'):
        a(f'v_mov_b32 v{t}, v{r}'); a('s_nop 1'); a(f'{sw} v{r}, v{t}'); a('s_nop 1')
        a(f'{op} v{r}, v{r}, v{t}')
def lane_id(a, r):
    a(f'v_mbcnt_lo_u32_b32 v{r}, -1, 0'); a(f'v_mbcnt_hi_u32_b32 v{r}, -1, v{r}')

def roles(a):
    a(f's_and_b32 s{sT[0]}, s2, 7'); a(f's_lshr_b32 s{sIDX}, s2, 3')
    a(f's_mul_i32 s{sTB}, s{sIDX}, 37'); a(f's_lshr_b32 s{sTB}, s{sTB}, 8')
    a(f's_mul_i32 s{sNT}, s{sTB}, 7'); a(f's_sub_u32 s{sNT}, s{sIDX}, s{sNT}')
    a(f's_lshl_b32 s{sT[1]}, s{sT[0]}, 2'); a(f's_add_u32 s{sTB}, s{sTB}, s{sT[1]}')
def roles2(a):
    a(f's_lshl_b32 s{sLB}, s{sWAVE}, 15'); a(f's_cmp_eq_u32 s{sWAVE}, 3'); a(f's_cselect_b32 s{sLB}, 0x20000, s{sLB}')

NONCE = int(os.environ.get('NONCE', 1))
sNON = 75
def flag_srd(a): srd(a, SF_, sWS, WS_FLAG, 16384)
def set_flag(a, tag, offreg, vt):
    a(f's_cmp_lg_u32 s{sWAVE}, 0'); a(f's_cbranch_scc1 {tag}_nf')
    a(f'v_mov_b32 v{vt}, 0'); a(f'v_mov_b32 v{vt+1}, ' + (f's{sNON}' if NONCE else '1'))
    a(f's_mov_b64 exec, 1')
    a(f'buffer_store_dword v{vt+1}, v{vt}, s[{SF_}:{SF_+3}], s{offreg} offen {SC}')
    a(f's_mov_b64 exec, -1')
    a.label(f'{tag}_nf')
def poll(a, tag, vaddr, vt, mask):
    a(f's_mov_b32 s{sT[1]}, 0x8000')
    a.label(f'{tag}_pl')
    a(f'buffer_load_dword v{vt}, v{vaddr}, s[{SF_}:{SF_+3}], 0 offen {SC}')
    a('s_waitcnt vmcnt(0)')
    a(f'v_cmp_eq_u32 vcc, s{sNON}, v{vt}' if NONCE else f'v_cmp_ne_u32 vcc, 0, v{vt}')
    a('s_nop 1')
    a(f's_and_b32 s{sT[0]}, vcc_lo, {hex(mask)}'); a(f's_cmp_eq_u32 s{sT[0]}, {hex(mask)}'); a(f's_cbranch_scc1 {tag}_pd')
    a('s_sleep 2')
    a(f's_sub_u32 s{sT[1]}, s{sT[1]}, 1'); a(f's_cmp_lg_u32 s{sT[1]}, 0'); a(f's_cbranch_scc1 {tag}_pl')
    a.label(f'{tag}_pd')
    a.vm = 0

class Gemm:
    def __init__(self, a, kid):
        self.a = a; self.kid = kid
        self.KS = 32 if kid == 3 else 14
        self.tB = {}; self.tW = {}
    def w_setup(self):
        a = self.a; KS = self.KS
        l, t0, t1 = RA(0), RA(1), RA(2)
        lane_id(a, l)
        a(f'v_bfe_u32 v{t0}, v{l}, 4, 2'); a(f'v_lshlrev_b32 v{t0}, 1, v{t0}'); a(f'v_and_b32 v{t1}, 7, v{l}'); a(f'v_xor_b32 v{t0}, v{t0}, v{t1}')
        a(f'v_lshlrev_b32 v{t0}, 4, v{t0}')
        a(f'v_lshrrev_b32 v{t1}, 3, v{l}'); a(f'v_mul_u32_u24 v{t1}, 896, v{t1}'); a(f'v_add_u32 v{WV(0)}, v{t0}, v{t1}')
        for m in range(1, 4): a(f'v_add_u32 v{WV(m)}, {6144*m}, v{WV(0)}')
        a(f's_mul_i32 s{sT[0]}, s{sWAVE}, {KS*32*896}'); a(f's_lshl_b32 s{sT[1]}, s{sNT}, 7'); a(f's_add_u32 s{sT[0]}, s{sT[0]}, s{sT[1]}')
        srd(a, SW_, sWO if self.kid == 3 else sW2, 0, 0, sT[0]); a(f's_sub_u32 s{SW_+2}, {4*KS*32*896}, s{sT[0]}')
        a(f's_and_b32 s{sROT}, s2, 7'); a(f's_mul_i32 s{sROT}, s{sROT}, {KS}'); a(f's_lshr_b32 s{sROT}, s{sROT}, 3')
        a(f's_mov_b32 s49, s{sROT}')
    def adv(self, reg):
        a = self.a
        a(f's_add_u32 s{reg}, s{reg}, 1'); a(f's_cmp_eq_u32 s{reg}, {self.KS}'); a(f's_cselect_b32 s{reg}, 0, s{reg}')
    def w_pre(self, ks):
        a = self.a
        def su():
            if ks: self.adv(49)
            a(f's_add_u32 m0, s{sLB}, {(ks % D)*4096}'); a(f's_mul_i32 s50, s49, {32*896}')
        def d(m):
            def f(): self.tW[ks] = a.vmem(f'buffer_load_dwordx4 v{WV(m)}, s[{SW_}:{SW_+3}], s50 offen offset:{1024*m} lds')
            return f
        return [su] + [d(m) for m in range(4)]
    def b_setup(self):
        a = self.a; KS = self.KS; NKS = 4*KS
        lane_id(a, LANE)
        a(f'v_bfe_u32 v{GG}, v{LANE}, 4, 2')
        a(f'v_lshlrev_b32 v{BV(0)}, 4, v{LANE}')
        for tb in range(1, 4): a(f'v_add_u32 v{BV(tb)}, {tb*NKS*1024}, v{BV(0)}')
        a(f's_mul_i32 s45, s{sTB}, {4*NKS*1024}'); a(f's_mul_i32 s46, s{sWAVE}, {KS*1024}'); a('s_add_u32 s45, s45, s46')
        srd(a, SA_, sWS, WS_O if self.kid == 3 else WS_H, 0, 45); a(f's_sub_u32 s{SA_+2}, {128*NKS*1024}, s45')
        a(f'v_bfe_u32 v{T0}, v{LANE}, 2, 4'); a(f'v_bfe_u32 v{T1}, v{T0}, 1, 2')
        a(f'v_lshlrev_b32 v{T0}, 7, v{T0}'); a(f'v_and_b32 v{E0}, 3, v{LANE}'); a(f'v_lshl_add_u32 v{T0}, v{E0}, 3, v{T0}'); a(f'v_add_u32 v{T0}, s{sLB}, v{T0}')
        for nb in range(4):
            a(f'v_xor_b32 v{E0}, {nb}, v{T1}'); a(f'v_lshl_add_u32 v{RA(nb)}, v{E0}, 5, v{T0}')
        a(f's_mov_b32 s48, s{sROT}')
    def b_load(self, ks, m):
        a = self.a
        if m == 0:
            if ks: self.adv(48)
            a('s_lshl_b32 s51, s48, 10')
        self.tB[ks] = a.vmem(f'buffer_load_dwordx4 {vr(BF(ks % D, m),4)}, v{BV(m)}, s[{SA_}:{SA_+3}], s51 offen {BSC}')
    def areads(self, ks):
        return [f'ds_read_b64_tr_b16 {vr(AF(ks&1,nb)+2*h,2)}, v{RA(nb)} offset:{(ks % D)*4096 + h*2048}' for nb in range(4) for h in range(2)]
    def main(self, sp):
        a = self.a; KS = self.KS; kid = self.kid
        for ks in range(PF):
            for m in range(4): self.b_load(ks, m)
            if ks == 0:
                for x in self.areads(0): a(x)
        EP = {}
        for ks in range(KS):
            nxt = []
            if ks + 1 < KS:
                t = self.tB[ks+1] if ks + 1 < PF else max(self.tB[ks+1], self.tW[ks+1])
                a.wait_vm(max(t, self.tB[ks]), ' lgkmcnt(0)'); nxt = self.areads(ks+1)
            else: a('s_waitcnt lgkmcnt(0)')
            pf = ks + PF; i = 0
            wp = self.w_pre(pf) if pf < KS else []
            for nb in range(4):
                for tb in range(4):
                    c = vr(ACC(nb, tb), 4)
                    a(f'{M16} {c}, {vr(AF(ks&1,nb),4)}, {vr(BF(ks % D, tb),4)}, {c if ks else 0}')
                    if i < 8 and nxt: a(nxt.pop(0))
                    if wp:
                        if i == 0: wp[0]()
                        if i >= 8:
                            m = (i - 8) >> 1
                            if i & 1: self.b_load(pf, m)
                            else: wp[1+m]()
                    i += 1
            if ks == KS - PF:
                EPB = BF((ks + PF) % D, 0); EP['B'] = EPB
                a(f'v_and_b32 v{E0+5}, 15, v{LANE}')
                a(f's_lshl_b32 s52, s{sTB}, 6'); a(f's_lshl_b32 s53, s{sWAVE}, 4'); a('s_add_u32 s52, s52, s53')
                a(f's_lshl_b32 s44, s{sNT}, 8')
                srd(a, SM_, sWS, WS_MOD, 6*448*4)
                a(f'v_lshlrev_b32 v{E0+6}, 4, v{GG}')
                a(f's_add_u32 s47, s44, {(2 if kid == 3 else 5)*1792}')
                for nb in range(4): a.vmem(f'buffer_load_dwordx4 {vr(EPB+4*nb,4)}, v{E0+6}, s[{SM_}:{SM_+3}], s47 offen offset:{64*nb} {SC}')
            if ks == KS - PF + 1 and kid == 3:
                EPC = BF((ks + PF) % D, 0); EP['C'] = EPC
                a(f's_add_u32 s47, s44, {4*1792}')
                for nb in range(4): a.vmem(f'buffer_load_dwordx4 {vr(EPC+4*nb,4)}, v{E0+6}, s[{SM_}:{SM_+3}], s47 offen offset:{64*nb} {SC}')
            if ks == KS - PF + 2:
                EPX = BF((ks + PF) % D, 0); EP['X'] = EPX
                a('s_lshr_b32 s56, s52, 4'); a(f's_mul_i32 s56, s56, {14*1024}'); a(f's_lshl_b32 s57, s{sNT}, 11'); a('s_add_u32 s56, s56, s57')
                a('s_mul_i32 s58, s52, 896'); a(f's_lshl_b32 s57, s{sNT}, 7'); a('s_add_u32 s58, s58, s57')
                a(f'v_mul_u32_u24 v{E0+7}, 896, v{E0+5}'); a(f'v_lshl_add_u32 v{E0+7}, v{GG}, 3, v{E0+7}')
                srd(a, SX_, sX if kid == 3 else sOUT, 0, 2048*896)
                if kid == 3:
                    for nb in range(4): a.vmem(f'buffer_load_dwordx2 {vr(EPX+2*nb,2)}, v{E0+7}, s[{SX_}:{SX_+3}], s58 offen offset:{32*nb}')
                    srd(a, SO2, sWS, WS_Y, 128*14*1024); srd(a, SO3, sWS, WS_STAT, 7*2048*8)
        sp.stamp()
        a(f'v_add_u32 v{E0+8}, s{sLB}, v{BV(0)}')
        a(f's_lshl_b32 s59, s{sWAVE}, 12')
        a(f'v_add_u32 v{E0+9}, s59, v{BV(0)}'); a(f'v_add_u32 v{E0+10}, 65536, v{E0+9}'); a(f'v_add_u32 v{E0+11}, 131072, v{E0+9}')
        a.nop(3)
        for tb in range(4):
            for nb in range(4): a(f'ds_write_b128 v{E0+8}, {vr(ACC(nb,tb),4)} offset:{(tb*4+nb)*1024}')
        a('s_waitcnt lgkmcnt(0)'); a('s_barrier')
        for src in range(4):
            for nb in range(4):
                a(f'ds_read_b128 {vr((src*4+nb)*4,4)}, v{E0+9+max(0,src-1)} offset:{(32768 if src == 1 else 0) + nb*1024}')
        a('s_waitcnt lgkmcnt(8)')
        for i in range(16): a(f'v_add_f32 v{i}, v{i}, v{16+i}')
        a('s_waitcnt lgkmcnt(0)')
        if kid == 3: a('s_barrier')
        for i in range(16): a(f'v_add_f32 v{32+i}, v{32+i}, v{48+i}')
        for i in range(16): a(f'v_add_f32 v{i}, v{i}, v{32+i}')
        sp.stamp()
        EPB = EP['B']
        a('s_waitcnt vmcnt(0)')
        for i in range(0, 16, 2): a(f'v_cvt_pk_bf16_f32 v{16+i//2}, v{i}, v{i+1}')
        for i in range(8): unpack(a, 2*i, 2*i+1, 16+i)
        for i in range(16): a(f'v_mul_f32 v{i}, v{i}, v{EPB+i}')
        for i in range(0, 16, 2): a(f'v_cvt_pk_bf16_f32 v{16+i//2}, v{i}, v{i+1}')
        if kid == 5:
            for i in range(8): a(f'v_accvgpr_read_b32 v{24+i}, a{X1A+i}')
            EPX = 24
        else: EPX = EP['X']
        for i in range(8): unpack(a, 2*i, 2*i+1, 16+i)
        for i in range(8): unpack(a, 32+2*i, 33+2*i, EPX+i)
        for i in range(16): a(f'v_add_f32 v{i}, v{i}, v{32+i}')
        for i in range(0, 16, 2): a(f'v_cvt_pk_bf16_f32 v{16+i//2}, v{i}, v{i+1}')
        if kid == 5:
            for nb in range(4): a(f'buffer_store_dwordx2 {vr(16+2*nb,2)}, v{E0+7}, s[{SX_}:{SX_+3}], s58 offen offset:{32*nb}')
            return
        EPC = EP['C']
        for i in range(8): unpack(a, 2*i, 2*i+1, 16+i)
        for i in range(16): a(f'v_mul_f32 v{32+i}, v{i}, v{EPC+i}')
        for i in range(0, 16, 2): a(f'v_cvt_pk_bf16_f32 v{24+i//2}, v{32+i}, v{33+i}')
        for hh in range(2): a.vmem(f'buffer_store_dwordx4 {vr(24+4*hh,4)}, v{BV(0)}, s[{SO2}:{SO2+3}], s56 offen offset:{1024*hh} {SC}')
        a('v_add_f32 v48, v0, v1'); a('v_mul_f32 v49, v0, v0'); a('v_add_f32 v50, v2, v3'); a('v_mul_f32 v51, v2, v2')
        a('v_fmac_f32 v49, v1, v1'); a('v_fmac_f32 v51, v3, v3')
        for i in range(4, 16, 2):
            a(f'v_add_f32 v48, v48, v{i}'); a(f'v_fmac_f32 v49, v{i}, v{i}'); a(f'v_add_f32 v50, v50, v{i+1}'); a(f'v_fmac_f32 v51, v{i+1}, v{i+1}')
        a('v_add_f32 v48, v48, v50'); a('v_add_f32 v49, v49, v51')
        for sw in ('v_permlane32_swap_b32', 'v_permlane16_swap_b32'):
            a('v_mov_b32 v50, v48'); a('v_mov_b32 v51, v49'); a('s_nop 0'); a(f'{sw} v48, v50'); a(f'{sw} v49, v51'); a('s_nop 0')
            a('v_add_f32 v48, v48, v50'); a('v_add_f32 v49, v49, v51')
        a(f'v_lshlrev_b32 v50, 3, v{E0+5}')
        a(f's_lshl_b32 s57, s{sNT}, 14'); a('s_lshl_b32 s59, s52, 3'); a('s_add_u32 s57, s57, s59')
        self.tlast = a.vmem(f'buffer_store_dwordx2 v[48:49], v50, s[{SO3}:{SO3+3}], s57 offen {SC}')
        for i in range(8): a(f'v_accvgpr_write_b32 a{X1A+i}, v{16+i}')

def uw_phase(a, T):
    a(f's_sub_u32 s13, s{sIDX}, 28'); a('s_lshl_b32 s13, s13, 3'); a('s_and_b32 s12, s2, 7'); a('s_add_u32 s13, s13, s12')
    a('s_cmp_ge_u32 s13, 28'); a(f's_cbranch_scc1 {T}_end')
    lane_id(a, 0); a(f's_lshl_b32 s12, s{sWAVE}, 6'); a('v_add_u32 v0, s12, v0')
    a('v_and_b32 v1, 7, v0'); a('v_lshrrev_b32 v2, 3, v0')
    a('v_mul_u32_u24 v3, 3584, v2'); a('v_lshl_add_u32 v3, v1, 4, v3'); a('v_lshlrev_b32 v4, 2, v2')
    a('s_lshl_b32 s44, s13, 7'); a('s_lshl_b32 s45, s13, 8')
    srd(a, 16, sW1, 0, 448*3584); srd(a, 20, sWS, WS_MOD + 3*1792, 2*1792); srd(a, 24, sWS, WS_U, 0x4000)
    CS, CC, Wr = 8, 24, 40
    for i in range(14):
        a(f'buffer_load_dword v{CS+i}, v4, s[20:23], 0 offen offset:{128*i} {SC}')
        a(f'buffer_load_dword v{CC+i}, v4, s[20:23], 0 offen offset:{1792+128*i} {SC}')
    for i in range(14):
        a(f's_add_u32 s46, s44, {32*3584*i}')
        a(f'buffer_load_dwordx4 {vr(Wr+4*i,4)}, v3, s[16:19], s46 offen')
    AU, AW = 96, 104
    for i in range(14):
        a(f's_waitcnt vmcnt({13-i})')
        for j in range(4):
            unpack(a, 112, 113, Wr+4*i+j)
            op = 'v_mul_f32' if i == 0 else 'v_fmac_f32'
            a(f'{op} v{AU+2*j}, v112, v{CC+i}'); a(f'{op} v{AU+2*j+1}, v113, v{CC+i}')
            a(f'{op} v{AW+2*j}, v112, v{CS+i}'); a(f'{op} v{AW+2*j+1}, v113, v{CS+i}')
    a('v_lshlrev_b32 v5, 8, v2'); a('v_lshl_add_u32 v5, v1, 5, v5')
    a(f'ds_write_b128 v5, {vr(AU,4)}'); a(f'ds_write_b128 v5, {vr(AU+4,4)} offset:16')
    a(f'ds_write_b128 v5, {vr(AW,4)} offset:8192'); a(f'ds_write_b128 v5, {vr(AW+4,4)} offset:8208')
    a('v_and_b32 v6, 63, v0'); a('v_lshlrev_b32 v6, 2, v6'); a('v_bfe_u32 v7, v0, 6, 1'); a('v_lshl_add_u32 v8, v7, 13, v6')
    a('s_waitcnt lgkmcnt(0)'); a('s_barrier')
    for i in range(32): a(f'ds_read_b32 v{40+i}, v8 offset:{256*i}')
    a('s_waitcnt lgkmcnt(0)')
    n = 32
    while n > 1:
        n //= 2
        for i in range(n): a(f'v_add_f32 v{40+i}, v{40+i}, v{40+n+i}')
    a(f'v_mov_b32 v41, {f32(LOG2E)}'); a('v_cmp_eq_u32 vcc, 0, v7'); a('s_nop 1'); a('v_cndmask_b32 v41, v41, 1.0, vcc'); a('v_mul_f32 v40, v40, v41')
    a(f'buffer_store_dword v40, v8, s[24:27], s45 offen {SC}')
    a('s_waitcnt vmcnt(0)'); a('s_barrier')
    a(f's_lshl_b32 s46, s13, 2'); a(f's_add_u32 s46, s46, {FL_U}')
    set_flag(a, f'{T}_u', 46, 1)

class Mlp1:
    NS = 14
    ACC = staticmethod(lambda fb, tb: (fb*2+tb)*4)
    BF = staticmethod(lambda ks, tb: 64 + (ks*2+tb)*4)
    U_ = staticmethod(lambda fb: 176 + 4*fb)
    W_ = staticmethod(lambda fb: 208 + 4*fb)
    RA = staticmethod(lambda i: 240 + i)
    WV = staticmethod(lambda m: 248 + m)
    BV = staticmethod(lambda tb: 250 + tb)
    E0 = 252
    AF = staticmethod(lambda fb: 4*fb)
    ST = staticmethod(lambda tb, nt: 32 + (tb*7+nt)*2)
    SW, SY, SU, SS, SH = 24, 28, 16, 20, 36
    sTB4, sFT = 12, 13
    def __init__(self, a): self.a = a
    def w_issue(self):
        a = self.a; WV = self.WV
        l, t0, t1, t2 = 244, 245, 246, 247
        a(f's_cmp_ge_u32 s{sIDX}, 14'); a(f's_cselect_b32 s{self.sTB4}, 1, 0'); a(f's_mul_i32 s{self.sFT}, s{self.sTB4}, 14'); a(f's_sub_u32 s{self.sFT}, s{sIDX}, s{self.sFT}')
        a('s_and_b32 s44, s2, 7'); a('s_lshl_b32 s44, s44, 1'); a(f's_add_u32 s{self.sTB4}, s{self.sTB4}, s44')
        lane_id(a, l)
        a(f'v_and_b32 v{t2}, 15, v{l}')
        a(f's_mul_i32 s45, s{sWAVE}, {8*3584}')
        for m in range(2):
            a(f'v_lshrrev_b32 v{t0}, 4, v{l}')
            if m: a(f'v_add_u32 v{t0}, 4, v{t0}')
            a(f'v_lshlrev_b32 v{t1}, 1, v{t0}'); a(f'v_xor_b32 v{t1}, v{t1}, v{t2}'); a(f'v_lshlrev_b32 v{t1}, 4, v{t1}')
            a(f'v_mul_u32_u24 v{t0}, 3584, v{t0}'); a(f'v_add3_u32 v{WV(m)}, v{t0}, v{t1}, s45')
            if m: a(f'v_subrev_u32 v{WV(m)}, 1024, v{WV(m)}')
        a(f's_lshl_b32 s46, s{self.sFT}, 8'); a(f's_lshl_b32 s48, s{sWAVE}, 11')
        srd(a, self.SW, sW1, 0, 0, 46); a(f's_sub_u32 s{self.SW+2}, {448*3584}, s46')
        self.w_more(0, 2*NPRE)
    def w_more(self, k0, k1):
        a = self.a; WV = self.WV
        for ks in range(k0, k1):
            a(f's_add_u32 m0, s48, {ks*8192}'); a(f's_mov_b32 s50, {ks*32*3584}')
            for m in range(2): a.vmem(f'buffer_load_dwordx4 v{WV(m)}, s[{self.SW}:{self.SW+3}], s50 offen offset:{1024*m} lds')
    def setup(self):
        a = self.a; RA = self.RA; BV = self.BV; E0 = self.E0
        L, t0, t1, t2 = 1, 2, 3, 4
        lane_id(a, L)
        a(f'v_bfe_u32 v{t0}, v{L}, 2, 4'); a(f'v_and_b32 v{t1}, 7, v{t0}'); a(f'v_lshlrev_b32 v{t0}, 8, v{t0}')
        a(f'v_and_b32 v{t2}, 3, v{L}'); a(f'v_lshl_add_u32 v{t0}, v{t2}, 3, v{t0}')
        for i in range(8):
            a(f'v_xor_b32 v{t2}, {i}, v{t1}'); a(f'v_lshl_add_u32 v{RA(i)}, v{t2}, 5, v{t0}')
        a(f's_mul_i32 s44, s{sWAVE}, {2*14336}'); a(f'v_lshlrev_b32 v{t0}, 4, v{L}')
        a(f'v_add_u32 v{BV(0)}, s44, v{t0}'); a(f'v_add_u32 v{BV(1)}, 14336, v{BV(0)}')
        a(f'v_lshrrev_b32 v{t1}, 4, v{L}'); a(f'v_lshlrev_b32 v{E0}, 4, v{t1}')
        a(f's_lshl_b32 s44, s{sWAVE}, 8'); a(f'v_and_b32 v{t2}, 15, v{L}'); a(f'v_lshlrev_b32 v{t2}, 3, v{t2}'); a(f'v_add_u32 v{E0+1}, s44, v{t2}')
        a(f's_mul_i32 s44, s{sWAVE}, {2*56*1024}'); a(f'v_add_u32 v{E0+2}, s44, v{t0}'); a(f'v_add_u32 v{E0+3}, {56*1024}, v{E0+2}')
        a(f's_mul_i32 s45, s{self.sTB4}, {8*14336}')
        srd(a, self.SY, sWS, WS_Y, 8*14336, 45)
        srd(a, self.SU, sWS, WS_U, 0x4000); srd(a, self.SS, sWS, WS_STAT, 7*2048*8)
        a(f's_mul_i32 s52, s{self.sTB4}, {8*56*1024}'); a(f's_lshl_b32 s53, s{self.sFT}, 12'); a('s_add_u32 s52, s52, s53')
        srd(a, self.SH, sWS, WS_H, 0, 52); a(f's_sub_u32 s{self.SH+2}, {128*56*1024}, s52')
        a(f's_lshl_b32 s44, s{self.sFT}, 9'); a('s_add_u32 s45, s44, 0x2000'); a(f's_lshl_b32 s56, s{self.sTB4}, 10')
        a(f's_lshl_b32 s46, s{self.sTB4}, 7'); a(f's_add_u32 s46, s46, {FL_B}')
        a(f's_lshl_b32 s47, s{self.sFT}, 3'); a(f's_add_u32 s47, s47, {FL_U - 56}')
        a(f'v_mov_b32 v{t0}, s46'); a(f'v_mov_b32 v{t1}, s47'); a(f'v_cmp_gt_u32 vcc, 14, v{L}'); a('s_nop 1')
        a(f'v_cndmask_b32 v{t0}, v{t1}, v{t0}, vcc'); a(f'v_lshl_add_u32 v{t0}, v{L}, 2, v{t0}')
        return t0
    def main(self, sp, w2pre):
        a = self.a; NS = self.NS
        ACC, BF, U_, W_, RA, BV, E0, AF, ST = self.ACC, self.BF, self.U_, self.W_, self.RA, self.BV, self.E0, self.AF, self.ST
        tk = {}
        LA = 5
        def ld(ks, m):
            if m == 0: a(f's_mov_b32 s51, {ks*1024}')
            tk[ks] = a.vmem(f'buffer_load_dwordx4 {vr(BF(ks,m),4)}, v{BV(m)}, s[{self.SY}:{self.SY+3}], s51 offen {SC}')
        def aread(ks, fb, h): return f'ds_read_b64_tr_b16 {ar(AF(fb)+2*h,2)}, v{RA(fb)} offset:{(ks % 8)*8192 + h*4096}'
        for ks in range(LA):
            for m in range(2): ld(ks, m)
        a('s_barrier')
        for fb in range(8):
            for h in range(2): a(aread(0, fb, h))
        extra = []
        for nt in range(7):
            for tb in range(2):
                def f(nt=nt, tb=tb):
                    a(f's_add_u32 s57, s56, {nt*16384 + tb*128}')
                    a.vmem(f'buffer_load_dwordx2 {ar(ST(tb,nt),2)}, v{E0+1}, s[{self.SS}:{self.SS+3}], s57 offen {SC}')
                extra.append(f)
        for fb in range(8):
            extra.append(lambda fb=fb: a.vmem(f'buffer_load_dwordx4 {vr(U_(fb),4)}, v{E0}, s[{self.SU}:{self.SU+3}], s44 offen offset:{64*fb} {SC}'))
            extra.append(lambda fb=fb: a.vmem(f'buffer_load_dwordx4 {vr(W_(fb),4)}, v{E0}, s[{self.SU}:{self.SU+3}], s45 offen offset:{64*fb} {SC}'))
        a.wait_vm(tk[0], ' lgkmcnt(0)')
        for ks in range(NS):
            G_ = [[] for _ in range(16)]
            if ks >= 1:
                G_[0].append(aread(ks, 7, 0)); G_[1].append(aread(ks, 7, 1))
            G_[5].insert(0, 's_waitcnt lgkmcnt(4)'); G_[13].insert(0, 's_waitcnt lgkmcnt(4)')
            if ks + 1 < NS:
                G_[15].append(lambda ks=ks: a.wait_vm(tk[ks+1]))
                if ks + 1 == 8:
                    for i in range(7): G_[1].append(f'v_add_u32 v{RA(i)}, 65536, v{RA(i)}')
                for k in range(14): G_[k+2].append(aread(ks+1, k >> 1, k & 1))
            if ks == 7: G_[15].append(f'v_add_u32 v{RA(7)}, 65536, v{RA(7)}')
            slots = [3, 7, 11, 14]
            if ks + LA < NS:
                for m in range(2): G_[slots.pop(0)].append(lambda ks=ks, m=m: ld(ks + LA, m))
            for k in slots:
                if extra: G_[k].append(extra.pop(0))
            for fb in range(8):
                for tb in range(2):
                    k = fb*2 + tb
                    c = vr(ACC(fb, tb), 4)
                    a(f'{M16} {c}, {ar(AF(fb),4)}, {vr(BF(ks,tb),4)}, {c if ks else 0}')
                    for x in G_[k]: x() if callable(x) else a(x)
        assert not extra
        sp.stamp()
        a('s_waitcnt vmcnt(0)'); a('s_barrier')
        B0 = 64
        MEAN = lambda tb: B0 + 32 + tb
        RS = lambda tb: B0 + 34 + tb
        pre = list(w2pre)
        def fill(n=1):
            for _ in range(n):
                if pre: pre.pop(0)()
        fill(1)
        for tb in range(2):
            for i in range(14): a(f'v_accvgpr_read_b32 v{B0+tb*14+i}, a{ST(tb,0)+i}')
        fill(2)
        for tb in range(2):
            b = B0 + tb*14
            for nt in range(1, 7):
                a(f'v_add_f32 v{b}, v{b}, v{b+2*nt}'); a(f'v_add_f32 v{b+1}, v{b+1}, v{b+2*nt+1}')
        fill(1)
        for tb in range(2):
            b = B0 + tb*14
            a(f'v_mul_f32 v{b}, {f32(1/448)}, v{b}'); a(f'v_mul_f32 v{b+1}, {f32(1/448)}, v{b+1}')
            a(f'v_fma_f32 v{b+1}, -v{b}, v{b}, v{b+1}'); a(f'v_max_f32 v{b+1}, 0, v{b+1}')
            rbf(a, b+1, b+1); a(f'v_add_f32 v{b+1}, {f32(1e-5)}, v{b+1}'); rbf(a, b+1, b+1)
            a(f'v_sqrt_f32 v{b+1}, v{b+1}'); rbf(a, MEAN(tb), b)
            rbf(a, b+1, b+1); a(f'v_rcp_f32 v{RS(tb)}, v{b+1}')
            a(f'v_sub_f32 v{MEAN(tb)}, 0, v{MEAN(tb)}')
            fill(1)
        TT = B0 + 40; LP = B0 + 38
        a(f'v_mov_b32 v{LP}, {f32(LOG2E)}')
        for tb in range(2): a(f'v_mul_f32 v{RS(tb)}, {f32(LOG2E)}, v{RS(tb)}')
        for sq in range(4):
            for tb in range(2):
                rg = [(ACC(2*sq+e, tb)+r, U_(2*sq+e)+r, W_(2*sq+e)+r) for e in range(2) for r in range(4)]
                tm = [TT + ((sq*2+tb) % 2)*8 + i for i in range(8)]
                for (x, u, w) in rg: a(f'v_fma_f32 v{x}, v{MEAN(tb)}, v{u}, v{x}')
                fill()
                for (x, u, w) in rg: a(f'v_fma_f32 v{x}, v{RS(tb)}, v{x}, v{w}')
                for (x, u, w), t in zip(rg, tm): a(f'v_exp_f32 v{t}, -v{x}')
                fill()
                for t in tm: a(f'v_fma_f32 v{t}, v{t}, v{LP}, v{LP}')
                for t in tm: a(f'v_rcp_f32 v{t}, v{t}')
                if E4F > 2: fill()
                for (x, u, w), t in zip(rg, tm): a(f'v_mul_f32 v{x}, v{x}, v{t}')
                d = ACC(2*sq, tb); xs = [r[0] for r in rg]
                for i in range(4): a(f'v_cvt_pk_bf16_f32 v{d+i}, v{xs[2*i]}, v{xs[2*i+1]}')
                self.tlast = a.vmem(f'buffer_store_dwordx4 {vr(d,4)}, v{E0+2+tb}, s[{self.SH}:{self.SH+3}], 0 offen offset:{1024*sq} {SC}')
        self.rest = pre

def post(a, T):
    sp = Stamper(a, 80, 3); sp.stamp(True); sp.stamp()
    g3 = a.g3
    for ks in range(NPRE, PF):
        for f in g3.w_pre(ks): f()
    g3.b_setup()
    a(f's_lshr_b32 s44, s{sTB}, 1'); a('s_lshl_b32 s44, s44, 7'); a(f'v_lshlrev_b32 v{T0}, 2, v{LANE}'); a(f'v_add_u32 v{T0}, s44, v{T0}')
    poll(a, f'{T}_a', T0, T1, 0xffff)
    sp.stamp()
    g3.main(sp)
    m = Mlp1(a)
    m.w_issue()
    a.wait_vm(g3.tlast); a('s_barrier')
    a(f's_lshr_b32 s44, s{sTB}, 1'); a('s_lshl_b32 s44, s44, 7'); a(f's_and_b32 s45, s{sTB}, 1'); a('s_mul_i32 s45, s45, 7'); a(f's_add_u32 s45, s45, s{sNT}')
    a('s_lshl_b32 s45, s45, 2'); a('s_add_u32 s44, s44, s45'); a(f's_add_u32 s44, s44, {FL_B}')
    set_flag(a, f'{T}_b', 44, 8)
    sp.stamp(); sp.stamp(True); sp.dump(sWS, sWAVE, 8)
    sp = Stamper(a, 80, 4); sp.stamp(True); sp.stamp()
    m.w_more(2*NPRE, 14)
    pa = m.setup()
    poll(a, f'{T}_b', pa, pa + 1, 0xffff)
    sp.stamp()
    g5 = Gemm(a, 5)
    pre = [g5.w_setup]
    for ks in range(PF): pre += g5.w_pre(ks)
    m.main(sp, pre)
    sp.stamp()
    a.wait_vm(m.tlast); a('s_barrier')
    a(f's_lshl_b32 s44, s{m.sTB4}, 7'); a(f's_lshl_b32 s45, s{m.sFT}, 2'); a('s_add_u32 s44, s44, s45'); a(f's_add_u32 s44, s44, {FL_C}')
    set_flag(a, f'{T}_c', 44, 8)
    sp.stamp(); sp.stamp(True); sp.dump(sWS, sWAVE, 8)
    sp = Stamper(a, 80, 5); sp.stamp(True); sp.stamp()
    for f in m.rest: f()
    g5.b_setup()
    a(f's_lshr_b32 s44, s{sTB}, 1'); a('s_lshl_b32 s44, s44, 7'); a(f's_add_u32 s44, s44, {FL_C}'); a(f'v_lshlrev_b32 v{T0}, 2, v{LANE}'); a(f'v_add_u32 v{T0}, s44, v{T0}')
    poll(a, f'{T}_c', T0, T1, 0x3fff)
    sp.stamp()
    g5.main(sp)
    sp.stamp()
    if STAMP: a('s_waitcnt vmcnt(0)')
    sp.stamp(True); sp.dump(sWS, sWAVE, 60)
```

```python
class Item:
    def __init__(self, text, typ, lo=0, hi=10**9, after=(), name=None, pref=None):
        self.text = text; self.typ = typ
        self.lo = lo; self.hi = hi; self.after = list(after); self.gap = None; self.name = name
        self.pref = pref if pref is not None else lo
def fits(cur, typ):
    c = ''.join(sorted(cur + typ))
    free = {'t','r','d','e','v','s','tt','tv','rv','st','rs','es','sv','ss','sss','ssv','vv'}
    return c in free
ORDER = {'s': 0, 't': 1, 'r': 1, 'd': 1, 'v': 2, 'e': 3}
LC = {'t': 2.6, 'r': 4}
BMAX = 7.5
def schedule(ngaps, items, novalu=(), verbose=False):
    gaps = [[] for _ in range(ngaps)]
    pend = []
    for it in items:
        if it.lo == it.hi: it.gap = it.lo; gaps[it.lo].append(it)
        else: pend.append(it)
    over = 0
    ldsc = lambda g: sum(LC.get(i.typ, 0) for i in gaps[g]) if 0 <= g < ngaps else 0
    back = 0
    for g in range(ngaps):
        back = max(0, back + ldsc(g-1) - 4)
        def ready(it, soft=True):
            if it.lo > g: return False
            if soft and it.pref > g: return False
            for (p, dist) in it.after:
                if p.gap is None or p.gap + dist > g: return False
            if it.typ in 'ev' and g in novalu: return False
            return True
        def put(it): it.gap = g; gaps[g].append(it); pend.remove(it)
        cur = lambda: ''.join(i.typ for i in gaps[g])
        while True:
            cand = [it for it in pend if ready(it, False) and it.hi <= g]
            if not cand: break
            it = min(cand, key=lambda i: i.hi)
            if cur() and not fits(cur(), it.typ): over += 1
            put(it)
        for cls in ('tr', 'v', 's', 'tr', 'v', 's', 's'):
            cand = [it for it in pend if it.typ in cls and ready(it) and (not cur() or fits(cur(), it.typ))]
            if cls == 'tr': cand = [it for it in cand if back + ldsc(g) + LC[it.typ] <= BMAX]
            if cls == 's' and not ('e' in cur() or cur() == '' or set(cur()) <= set('sv')): cand = []
            if cand: put(min(cand, key=lambda i: (i.hi, i.pref)))
    assert not pend, [(i.text, i.lo, i.hi) for i in pend]
    for g in range(ngaps):
        gaps[g].sort(key=lambda i: ORDER[i.typ])
    if verbose:
        print('sched:', '|'.join(''.join(i.typ for i in gp) or '-' for gp in gaps), 'overflow', over)
    return gaps
def emit(a, mfmas, gaps, lds_waits=True):
    seq = []
    for m, gp in zip(mfmas, gaps):
        seq.append(m)
        seq.extend(gp)
    ldsidx = {}
    n = 0
    for x in seq:
        if isinstance(x, Item):
            if x.typ in 'tr':
                n += 1; ldsidx[id(x)] = n
            if isinstance(x.text, tuple) and x.text[0] == 'WAITLG':
                last = max(ldsidx[id(y)] for y in x.text[1])
                cnt = n - last
                cnt = min(cnt, 15)
                a(f's_waitcnt lgkmcnt({cnt})')
            elif callable(x.text): x.text()
            else: a(x.text)
        else: a(x)
```

```python
from gen_common import *
M16 = 'v_mfma_f32_16x16x32_bf16'
FL_A, FL_B, FL_C, FL_U = 0, 2048, 4096, 6144
SC = 'sc1'
sX, sOUT, sW2, sWO, sW1, sWS, sWAVE = 64, 66, 54, 60, 62, 10, 14
sIDX, sTB, sNT, sLB, sROT = 68, 69, 70, 71, 72
sT = [73, 74, 75]
SW_, SA_, SF_ = 24, 28, 32
SX_, SM_, SO2, SO3 = 16, 20, 36, 40
ACC = lambda nb, tb: (nb*4+tb)*4
AF = lambda buf, nb: 64 + buf*16 + nb*4
BSL = [96, 112, 128, 160, 176, 192, 208, 224]
BF = lambda slot, tb: BSL[slot] + tb*4
WV = lambda m: 144 + m
RA = lambda nb: 148 + nb
BV = lambda tb: 152 + tb
LANE, GG, T0, T1 = 156, 157, 158, 159
E0 = 240
X1A = 120
D = 8; PF = 7
E4F = int(os.environ.get('E4F', 2))
NPRE = int(os.environ.get('NPRE', 2))
BSC = os.environ.get('BSC', SC)

def xlane(a, op, r, t):
    for sw in ('v_permlane32_swap_b32', 'v_permlane16_swap_b32'):
        a(f'v_mov_b32 v{t}, v{r}'); a('s_nop 1'); a(f'{sw} v{r}, v{t}'); a('s_nop 1')
        a(f'{op} v{r}, v{r}, v{t}')
def lane_id(a, r):
    a(f'v_mbcnt_lo_u32_b32 v{r}, -1, 0'); a(f'v_mbcnt_hi_u32_b32 v{r}, -1, v{r}')

def roles(a):
    a(f's_and_b32 s{sT[0]}, s2, 7'); a(f's_lshr_b32 s{sIDX}, s2, 3')
    a(f's_mul_i32 s{sTB}, s{sIDX}, 37'); a(f's_lshr_b32 s{sTB}, s{sTB}, 8')
    a(f's_mul_i32 s{sNT}, s{sTB}, 7'); a(f's_sub_u32 s{sNT}, s{sIDX}, s{sNT}')
    a(f's_lshl_b32 s{sT[1]}, s{sT[0]}, 2'); a(f's_add_u32 s{sTB}, s{sTB}, s{sT[1]}')
def roles2(a):
    a(f's_lshl_b32 s{sLB}, s{sWAVE}, 15'); a(f's_cmp_eq_u32 s{sWAVE}, 3'); a(f's_cselect_b32 s{sLB}, 0x20000, s{sLB}')

def flag_srd(a): srd(a, SF_, sWS, WS_FLAG, 8192)
def set_flag(a, tag, offreg, vt):
    a(f's_cmp_lg_u32 s{sWAVE}, 0'); a(f's_cbranch_scc1 {tag}_nf')
    a(f'v_mov_b32 v{vt}, 0'); a(f'v_mov_b32 v{vt+1}, 1')
    a(f's_mov_b64 exec, 1')
    a(f'buffer_store_dword v{vt+1}, v{vt}, s[{SF_}:{SF_+3}], s{offreg} offen {SC}')
    a(f's_mov_b64 exec, -1')
    a.label(f'{tag}_nf')
def poll(a, tag, vaddr, vt, mask):
    a(f's_mov_b32 s{sT[2]}, 0x8000')
    a.label(f'{tag}_pl')
    a(f'buffer_load_dword v{vt}, v{vaddr}, s[{SF_}:{SF_+3}], 0 offen {SC}')
    a('s_waitcnt vmcnt(0)')
    a(f'v_cmp_ne_u32 vcc, 0, v{vt}')
    a('s_nop 1')
    a(f's_and_b32 s{sT[0]}, vcc_lo, {hex(mask)}'); a(f's_cmp_eq_u32 s{sT[0]}, {hex(mask)}'); a(f's_cbranch_scc1 {tag}_pd')
    a('s_sleep 2')
    a(f's_sub_u32 s{sT[2]}, s{sT[2]}, 1'); a(f's_cmp_lg_u32 s{sT[2]}, 0'); a(f's_cbranch_scc1 {tag}_pl')
    a.label(f'{tag}_pd')
    a.vm = 0

class Gemm:
    def __init__(self, a, kid):
        self.a = a; self.kid = kid
        self.KS = 32 if kid == 3 else 14
        self.tB = {}; self.tW = {}
    def w_setup(self):
        a = self.a; KS = self.KS
        l, t0, t1 = RA(0), RA(1), RA(2)
        lane_id(a, l)
        a(f'v_bfe_u32 v{t0}, v{l}, 4, 2'); a(f'v_lshlrev_b32 v{t0}, 1, v{t0}'); a(f'v_and_b32 v{t1}, 7, v{l}'); a(f'v_xor_b32 v{t0}, v{t0}, v{t1}')
        a(f'v_lshlrev_b32 v{t0}, 4, v{t0}')
        a(f'v_lshrrev_b32 v{t1}, 3, v{l}'); a(f'v_mul_u32_u24 v{t1}, 896, v{t1}'); a(f'v_add_u32 v{WV(0)}, v{t0}, v{t1}')
        for m in range(1, 4): a(f'v_add_u32 v{WV(m)}, {6144*m}, v{WV(0)}')
        a(f's_mul_i32 s{sT[0]}, s{sWAVE}, {KS*32*896}'); a(f's_lshl_b32 s{sT[1]}, s{sNT}, 7'); a(f's_add_u32 s{sT[0]}, s{sT[0]}, s{sT[1]}')
        srd(a, SW_, sWO if self.kid == 3 else sW2, 0, 0, sT[0]); a(f's_sub_u32 s{SW_+2}, {4*KS*32*896}, s{sT[0]}')
        a(f's_and_b32 s{sROT}, s2, 7'); a(f's_mul_i32 s{sROT}, s{sROT}, {KS}'); a(f's_lshr_b32 s{sROT}, s{sROT}, 3')
        a(f's_mov_b32 s49, s{sROT}')
    def adv(self, reg):
        a = self.a
        a(f's_add_u32 s{reg}, s{reg}, 1'); a(f's_cmp_eq_u32 s{reg}, {self.KS}'); a(f's_cselect_b32 s{reg}, 0, s{reg}')
    def w_pre(self, ks):
        a = self.a
        def su():
            if ks: self.adv(49)
            a(f's_add_u32 m0, s{sLB}, {(ks % D)*4096}'); a(f's_mul_i32 s50, s49, {32*896}')
        def d(m):
            def f(): self.tW[ks] = a.vmem(f'buffer_load_dwordx4 v{WV(m)}, s[{SW_}:{SW_+3}], s50 offen offset:{1024*m} lds')
            return f
        return [su] + [d(m) for m in range(4)]
    def b_setup(self):
        a = self.a; KS = self.KS; NKS = 4*KS
        lane_id(a, LANE)
        a(f'v_bfe_u32 v{GG}, v{LANE}, 4, 2')
        a(f'v_lshlrev_b32 v{BV(0)}, 4, v{LANE}')
        for tb in range(1, 4): a(f'v_add_u32 v{BV(tb)}, {tb*NKS*1024}, v{BV(0)}')
        a(f's_mul_i32 s45, s{sTB}, {4*NKS*1024}'); a(f's_mul_i32 s46, s{sWAVE}, {KS*1024}'); a('s_add_u32 s45, s45, s46')
        srd(a, SA_, sWS, WS_O if self.kid == 3 else WS_H, 0, 45); a(f's_sub_u32 s{SA_+2}, {128*NKS*1024}, s45')
        a(f'v_bfe_u32 v{T0}, v{LANE}, 2, 4'); a(f'v_bfe_u32 v{T1}, v{T0}, 1, 2')
        a(f'v_lshlrev_b32 v{T0}, 7, v{T0}'); a(f'v_and_b32 v{E0}, 3, v{LANE}'); a(f'v_lshl_add_u32 v{T0}, v{E0}, 3, v{T0}'); a(f'v_add_u32 v{T0}, s{sLB}, v{T0}')
        for nb in range(4):
            a(f'v_xor_b32 v{E0}, {nb}, v{T1}'); a(f'v_lshl_add_u32 v{RA(nb)}, v{E0}, 5, v{T0}')
        a(f's_mov_b32 s48, s{sROT}')
    def b_load(self, ks, m):
        a = self.a
        if m == 0:
            if ks: self.adv(48)
            a('s_lshl_b32 s51, s48, 10')
        self.tB[ks] = a.vmem(f'buffer_load_dwordx4 {vr(BF(ks % D, m),4)}, v{BV(m)}, s[{SA_}:{SA_+3}], s51 offen {BSC}')
    def areads(self, ks):
        return [f'ds_read_b64_tr_b16 {vr(AF(ks&1,nb)+2*h,2)}, v{RA(nb)} offset:{(ks % D)*4096 + h*2048}' for nb in range(4) for h in range(2)]
    def main(self, sp):
        a = self.a; KS = self.KS; kid = self.kid
        for ks in range(PF):
            for m in range(4): self.b_load(ks, m)
            if ks == 0:
                for x in self.areads(0): a(x)
        EP = {}
        for ks in range(KS):
            nxt = []
            if ks + 1 < KS:
                t = self.tB[ks+1] if ks + 1 < PF else max(self.tB[ks+1], self.tW[ks+1])
                a.wait_vm(max(t, self.tB[ks]), ' lgkmcnt(0)'); nxt = self.areads(ks+1)
            else: a('s_waitcnt lgkmcnt(0)')
            pf = ks + PF; i = 0
            wp = self.w_pre(pf) if pf < KS else []
            for nb in range(4):
                for tb in range(4):
                    c = vr(ACC(nb, tb), 4)
                    a(f'{M16} {c}, {vr(AF(ks&1,nb),4)}, {vr(BF(ks % D, tb),4)}, {c if ks else 0}')
                    if i < 8 and nxt: a(nxt.pop(0))
                    if wp:
                        if i == 0: wp[0]()
                        if i >= 8:
                            m = (i - 8) >> 1
                            if i & 1: self.b_load(pf, m)
                            else: wp[1+m]()
                    i += 1
            if ks == KS - PF:
                EPB = BF((ks + PF) % D, 0); EP['B'] = EPB
                a(f'v_and_b32 v{E0+5}, 15, v{LANE}')
                a(f's_lshl_b32 s52, s{sTB}, 6'); a(f's_lshl_b32 s53, s{sWAVE}, 4'); a('s_add_u32 s52, s52, s53')
                a(f's_lshl_b32 s44, s{sNT}, 8')
                srd(a, SM_, sWS, WS_MOD, 6*448*4)
                a(f'v_lshlrev_b32 v{E0+6}, 4, v{GG}')
                a(f's_add_u32 s47, s44, {(2 if kid == 3 else 5)*1792}')
                for nb in range(4): a.vmem(f'buffer_load_dwordx4 {vr(EPB+4*nb,4)}, v{E0+6}, s[{SM_}:{SM_+3}], s47 offen offset:{64*nb}')
            if ks == KS - PF + 1 and kid == 3:
                EPC = BF((ks + PF) % D, 0); EP['C'] = EPC
                a(f's_add_u32 s47, s44, {4*1792}')
                for nb in range(4): a.vmem(f'buffer_load_dwordx4 {vr(EPC+4*nb,4)}, v{E0+6}, s[{SM_}:{SM_+3}], s47 offen offset:{64*nb}')
            if ks == KS - PF + 2:
                EPX = BF((ks + PF) % D, 0); EP['X'] = EPX
                a('s_lshr_b32 s56, s52, 4'); a(f's_mul_i32 s56, s56, {14*1024}'); a(f's_lshl_b32 s57, s{sNT}, 11'); a('s_add_u32 s56, s56, s57')
                a('s_mul_i32 s58, s52, 896'); a(f's_lshl_b32 s57, s{sNT}, 7'); a('s_add_u32 s58, s58, s57')
                a(f'v_mul_u32_u24 v{E0+7}, 896, v{E0+5}'); a(f'v_lshl_add_u32 v{E0+7}, v{GG}, 3, v{E0+7}')
                srd(a, SX_, sX if kid == 3 else sOUT, 0, 2048*896)
                if kid == 3:
                    for nb in range(4): a.vmem(f'buffer_load_dwordx2 {vr(EPX+2*nb,2)}, v{E0+7}, s[{SX_}:{SX_+3}], s58 offen offset:{32*nb}')
                    srd(a, SO2, sWS, WS_Y, 128*14*1024); srd(a, SO3, sWS, WS_STAT, 7*2048*8)
        sp.stamp()
        a(f'v_add_u32 v{E0+8}, s{sLB}, v{BV(0)}')
        a(f's_lshl_b32 s59, s{sWAVE}, 12')
        a(f'v_add_u32 v{E0+9}, s59, v{BV(0)}'); a(f'v_add_u32 v{E0+10}, 65536, v{E0+9}'); a(f'v_add_u32 v{E0+11}, 131072, v{E0+9}')
        a.nop(3)
        for tb in range(4):
            for nb in range(4): a(f'ds_write_b128 v{E0+8}, {vr(ACC(nb,tb),4)} offset:{(tb*4+nb)*1024}')
        a('s_waitcnt lgkmcnt(0)'); a('s_barrier')
        for src in range(4):
            for nb in range(4):
                a(f'ds_read_b128 {vr((src*4+nb)*4,4)}, v{E0+9+max(0,src-1)} offset:{(32768 if src == 1 else 0) + nb*1024}')
        a('s_waitcnt lgkmcnt(8)')
        for i in range(16): a(f'v_add_f32 v{i}, v{i}, v{16+i}')
        a('s_waitcnt lgkmcnt(0)')
        if kid == 3: a('s_barrier')
        for i in range(16): a(f'v_add_f32 v{32+i}, v{32+i}, v{48+i}')
        for i in range(16): a(f'v_add_f32 v{i}, v{i}, v{32+i}')
        sp.stamp()
        EPB = EP['B']
        a('s_waitcnt vmcnt(0)')
        for i in range(0, 16, 2): a(f'v_cvt_pk_bf16_f32 v{16+i//2}, v{i}, v{i+1}')
        for i in range(8): unpack(a, 2*i, 2*i+1, 16+i)
        for i in range(16): a(f'v_mul_f32 v{i}, v{i}, v{EPB+i}')
        for i in range(0, 16, 2): a(f'v_cvt_pk_bf16_f32 v{16+i//2}, v{i}, v{i+1}')
        if kid == 5:
            for i in range(8): a(f'v_accvgpr_read_b32 v{24+i}, a{X1A+i}')
            EPX = 24
        else: EPX = EP['X']
        for i in range(8): unpack(a, 2*i, 2*i+1, 16+i)
        for i in range(8): unpack(a, 32+2*i, 33+2*i, EPX+i)
        for i in range(16): a(f'v_add_f32 v{i}, v{i}, v{32+i}')
        for i in range(0, 16, 2): a(f'v_cvt_pk_bf16_f32 v{16+i//2}, v{i}, v{i+1}')
        if kid == 5:
            for nb in range(4): a(f'buffer_store_dwordx2 {vr(16+2*nb,2)}, v{E0+7}, s[{SX_}:{SX_+3}], s58 offen offset:{32*nb}')
            return
        EPC = EP['C']
        for i in range(8): unpack(a, 2*i, 2*i+1, 16+i)
        for i in range(16): a(f'v_mul_f32 v{32+i}, v{i}, v{EPC+i}')
        for i in range(0, 16, 2): a(f'v_cvt_pk_bf16_f32 v{24+i//2}, v{32+i}, v{33+i}')
        for hh in range(2): a.vmem(f'buffer_store_dwordx4 {vr(24+4*hh,4)}, v{BV(0)}, s[{SO2}:{SO2+3}], s56 offen offset:{1024*hh} {SC}')
        a('v_add_f32 v48, v0, v1'); a('v_mul_f32 v49, v0, v0'); a('v_add_f32 v50, v2, v3'); a('v_mul_f32 v51, v2, v2')
        a('v_fmac_f32 v49, v1, v1'); a('v_fmac_f32 v51, v3, v3')
        for i in range(4, 16, 2):
            a(f'v_add_f32 v48, v48, v{i}'); a(f'v_fmac_f32 v49, v{i}, v{i}'); a(f'v_add_f32 v50, v50, v{i+1}'); a(f'v_fmac_f32 v51, v{i+1}, v{i+1}')
        a('v_add_f32 v48, v48, v50'); a('v_add_f32 v49, v49, v51')
        for sw in ('v_permlane32_swap_b32', 'v_permlane16_swap_b32'):
            a('v_mov_b32 v50, v48'); a('v_mov_b32 v51, v49'); a('s_nop 0'); a(f'{sw} v48, v50'); a(f'{sw} v49, v51'); a('s_nop 0')
            a('v_add_f32 v48, v48, v50'); a('v_add_f32 v49, v49, v51')
        a(f'v_lshlrev_b32 v50, 3, v{E0+5}')
        a(f's_lshl_b32 s57, s{sNT}, 14'); a('s_lshl_b32 s59, s52, 3'); a('s_add_u32 s57, s57, s59')
        self.tlast = a.vmem(f'buffer_store_dwordx2 v[48:49], v50, s[{SO3}:{SO3+3}], s57 offen {SC}')
        for i in range(8): a(f'v_accvgpr_write_b32 a{X1A+i}, v{16+i}')

def uw_phase(a, T):
    a(f's_sub_u32 s13, s{sIDX}, 28'); a('s_lshl_b32 s13, s13, 3'); a('s_and_b32 s12, s2, 7'); a('s_add_u32 s13, s13, s12')
    a('s_cmp_ge_u32 s13, 28'); a(f's_cbranch_scc1 {T}_end')
    lane_id(a, 0); a(f's_lshl_b32 s12, s{sWAVE}, 6'); a('v_add_u32 v0, s12, v0')
    a('v_and_b32 v1, 7, v0'); a('v_lshrrev_b32 v2, 3, v0')
    a('v_mul_u32_u24 v3, 3584, v2'); a('v_lshl_add_u32 v3, v1, 4, v3'); a('v_lshlrev_b32 v4, 2, v2')
    a('s_lshl_b32 s44, s13, 7'); a('s_lshl_b32 s45, s13, 8')
    srd(a, 16, sW1, 0, 448*3584); srd(a, 20, sWS, WS_MOD + 3*1792, 2*1792); srd(a, 24, sWS, WS_U, 0x4000)
    CS, CC, Wr = 8, 24, 40
    for i in range(14):
        a(f'buffer_load_dword v{CS+i}, v4, s[20:23], 0 offen offset:{128*i}')
        a(f'buffer_load_dword v{CC+i}, v4, s[20:23], 0 offen offset:{1792+128*i}')
    for i in range(14):
        a(f's_add_u32 s46, s44, {32*3584*i}')
        a(f'buffer_load_dwordx4 {vr(Wr+4*i,4)}, v3, s[16:19], s46 offen')
    AU, AW = 96, 104
    for i in range(14):
        a(f's_waitcnt vmcnt({13-i})')
        for j in range(4):
            unpack(a, 112, 113, Wr+4*i+j)
            op = 'v_mul_f32' if i == 0 else 'v_fmac_f32'
            a(f'{op} v{AU+2*j}, v112, v{CC+i}'); a(f'{op} v{AU+2*j+1}, v113, v{CC+i}')
            a(f'{op} v{AW+2*j}, v112, v{CS+i}'); a(f'{op} v{AW+2*j+1}, v113, v{CS+i}')
    a('v_lshlrev_b32 v5, 8, v2'); a('v_lshl_add_u32 v5, v1, 5, v5')
    a(f'ds_write_b128 v5, {vr(AU,4)}'); a(f'ds_write_b128 v5, {vr(AU+4,4)} offset:16')
    a(f'ds_write_b128 v5, {vr(AW,4)} offset:8192'); a(f'ds_write_b128 v5, {vr(AW+4,4)} offset:8208')
    a('v_and_b32 v6, 63, v0'); a('v_lshlrev_b32 v6, 2, v6'); a('v_bfe_u32 v7, v0, 6, 1'); a('v_lshl_add_u32 v8, v7, 13, v6')
    a('s_waitcnt lgkmcnt(0)'); a('s_barrier')
    for i in range(32): a(f'ds_read_b32 v{40+i}, v8 offset:{256*i}')
    a('s_waitcnt lgkmcnt(0)')
    n = 32
    while n > 1:
        n //= 2
        for i in range(n): a(f'v_add_f32 v{40+i}, v{40+i}, v{40+n+i}')
    a(f'v_mov_b32 v41, {f32(LOG2E)}'); a('v_cmp_eq_u32 vcc, 0, v7'); a('s_nop 1'); a('v_cndmask_b32 v41, v41, 1.0, vcc'); a('v_mul_f32 v40, v40, v41')
    a(f'buffer_store_dword v40, v8, s[24:27], s45 offen {SC}')
    a('s_waitcnt vmcnt(0)'); a('s_barrier')
    a(f's_lshl_b32 s46, s13, 2'); a(f's_add_u32 s46, s46, {FL_U}')
    set_flag(a, f'{T}_u', 46, 1)

class Mlp1:
    NS = 14
    ACC = staticmethod(lambda fb, tb: (fb*2+tb)*4)
    BF = staticmethod(lambda ks, tb: 64 + (ks*2+tb)*4)
    U_ = staticmethod(lambda fb: 176 + 4*fb)
    W_ = staticmethod(lambda fb: 208 + 4*fb)
    RA = staticmethod(lambda i: 240 + i)
    WV = staticmethod(lambda m: 248 + m)
    BV = staticmethod(lambda tb: 250 + tb)
    E0 = 252
    AF = staticmethod(lambda fb: 4*fb)
    ST = staticmethod(lambda tb, nt: 32 + (tb*7+nt)*2)
    SW, SY, SU, SS, SH = 24, 28, 16, 20, 36
    sTB4, sFT = 12, 13
    def __init__(self, a): self.a = a
    def w_issue(self):
        a = self.a; WV = self.WV
        l, t0, t1, t2 = 244, 245, 246, 247
        a(f's_cmp_ge_u32 s{sIDX}, 14'); a(f's_cselect_b32 s{self.sTB4}, 1, 0'); a(f's_mul_i32 s{self.sFT}, s{self.sTB4}, 14'); a(f's_sub_u32 s{self.sFT}, s{sIDX}, s{self.sFT}')
        a('s_and_b32 s44, s2, 7'); a('s_lshl_b32 s44, s44, 1'); a(f's_add_u32 s{self.sTB4}, s{self.sTB4}, s44')
        lane_id(a, l)
        a(f'v_and_b32 v{t2}, 15, v{l}')
        a(f's_mul_i32 s45, s{sWAVE}, {8*3584}')
        for m in range(2):
            a(f'v_lshrrev_b32 v{t0}, 4, v{l}')
            if m: a(f'v_add_u32 v{t0}, 4, v{t0}')
            a(f'v_lshlrev_b32 v{t1}, 1, v{t0}'); a(f'v_xor_b32 v{t1}, v{t1}, v{t2}'); a(f'v_lshlrev_b32 v{t1}, 4, v{t1}')
            a(f'v_mul_u32_u24 v{t0}, 3584, v{t0}'); a(f'v_add3_u32 v{WV(m)}, v{t0}, v{t1}, s45')
            if m: a(f'v_subrev_u32 v{WV(m)}, 1024, v{WV(m)}')
        a(f's_lshl_b32 s46, s{self.sFT}, 8'); a(f's_lshl_b32 s48, s{sWAVE}, 11')
        srd(a, self.SW, sW1, 0, 0, 46); a(f's_sub_u32 s{self.SW+2}, {448*3584}, s46')
        self.w_more(0, 2*NPRE)
    def w_more(self, k0, k1):
        a = self.a; WV = self.WV
        for ks in range(k0, k1):
            a(f's_add_u32 m0, s48, {ks*8192}'); a(f's_mov_b32 s50, {ks*32*3584}')
            for m in range(2): a.vmem(f'buffer_load_dwordx4 v{WV(m)}, s[{self.SW}:{self.SW+3}], s50 offen offset:{1024*m} lds')
    def setup(self):
        a = self.a; RA = self.RA; BV = self.BV; E0 = self.E0
        L, t0, t1, t2 = 1, 2, 3, 4
        lane_id(a, L)
        a(f'v_bfe_u32 v{t0}, v{L}, 2, 4'); a(f'v_and_b32 v{t1}, 7, v{t0}'); a(f'v_lshlrev_b32 v{t0}, 8, v{t0}')
        a(f'v_and_b32 v{t2}, 3, v{L}'); a(f'v_lshl_add_u32 v{t0}, v{t2}, 3, v{t0}')
        for i in range(8):
            a(f'v_xor_b32 v{t2}, {i}, v{t1}'); a(f'v_lshl_add_u32 v{RA(i)}, v{t2}, 5, v{t0}')
        a(f's_mul_i32 s44, s{sWAVE}, {2*14336}'); a(f'v_lshlrev_b32 v{t0}, 4, v{L}')
        a(f'v_add_u32 v{BV(0)}, s44, v{t0}'); a(f'v_add_u32 v{BV(1)}, 14336, v{BV(0)}')
        a(f'v_lshrrev_b32 v{t1}, 4, v{L}'); a(f'v_lshlrev_b32 v{E0}, 4, v{t1}')
        a(f's_lshl_b32 s44, s{sWAVE}, 8'); a(f'v_and_b32 v{t2}, 15, v{L}'); a(f'v_lshlrev_b32 v{t2}, 3, v{t2}'); a(f'v_add_u32 v{E0+1}, s44, v{t2}')
        a(f's_mul_i32 s44, s{sWAVE}, {2*56*1024}'); a(f'v_add_u32 v{E0+2}, s44, v{t0}'); a(f'v_add_u32 v{E0+3}, {56*1024}, v{E0+2}')
        a(f's_mul_i32 s45, s{self.sTB4}, {8*14336}')
        srd(a, self.SY, sWS, WS_Y, 8*14336, 45)
        srd(a, self.SU, sWS, WS_U, 0x4000); srd(a, self.SS, sWS, WS_STAT, 7*2048*8)
        a(f's_mul_i32 s52, s{self.sTB4}, {8*56*1024}'); a(f's_lshl_b32 s53, s{self.sFT}, 12'); a('s_add_u32 s52, s52, s53')
        srd(a, self.SH, sWS, WS_H, 0, 52); a(f's_sub_u32 s{self.SH+2}, {128*56*1024}, s52')
        a(f's_lshl_b32 s44, s{self.sFT}, 9'); a('s_add_u32 s45, s44, 0x2000'); a(f's_lshl_b32 s56, s{self.sTB4}, 10')
        a(f's_lshl_b32 s46, s{self.sTB4}, 7'); a(f's_add_u32 s46, s46, {FL_B}')
        a(f's_lshl_b32 s47, s{self.sFT}, 3'); a(f's_add_u32 s47, s47, {FL_U - 56}')
        a(f'v_mov_b32 v{t0}, s46'); a(f'v_mov_b32 v{t1}, s47'); a(f'v_cmp_gt_u32 vcc, 14, v{L}'); a('s_nop 1')
        a(f'v_cndmask_b32 v{t0}, v{t1}, v{t0}, vcc'); a(f'v_lshl_add_u32 v{t0}, v{L}, 2, v{t0}')
        return t0
    def main(self, sp, w2pre):
        a = self.a; NS = self.NS
        ACC, BF, U_, W_, RA, BV, E0, AF, ST = self.ACC, self.BF, self.U_, self.W_, self.RA, self.BV, self.E0, self.AF, self.ST
        tk = {}
        LA = 5
        def ld(ks, m):
            if m == 0: a(f's_mov_b32 s51, {ks*1024}')
            tk[ks] = a.vmem(f'buffer_load_dwordx4 {vr(BF(ks,m),4)}, v{BV(m)}, s[{self.SY}:{self.SY+3}], s51 offen {SC}')
        def aread(ks, fb, h): return f'ds_read_b64_tr_b16 {ar(AF(fb)+2*h,2)}, v{RA(fb)} offset:{(ks % 8)*8192 + h*4096}'
        for ks in range(LA):
            for m in range(2): ld(ks, m)
        a('s_barrier')
        for fb in range(8):
            for h in range(2): a(aread(0, fb, h))
        extra = []
        for nt in range(7):
            for tb in range(2):
                def f(nt=nt, tb=tb):
                    a(f's_add_u32 s57, s56, {nt*16384 + tb*128}')
                    a.vmem(f'buffer_load_dwordx2 {ar(ST(tb,nt),2)}, v{E0+1}, s[{self.SS}:{self.SS+3}], s57 offen {SC}')
                extra.append(f)
        for fb in range(8):
            extra.append(lambda fb=fb: a.vmem(f'buffer_load_dwordx4 {vr(U_(fb),4)}, v{E0}, s[{self.SU}:{self.SU+3}], s44 offen offset:{64*fb} {SC}'))
            extra.append(lambda fb=fb: a.vmem(f'buffer_load_dwordx4 {vr(W_(fb),4)}, v{E0}, s[{self.SU}:{self.SU+3}], s45 offen offset:{64*fb} {SC}'))
        a.wait_vm(tk[0], ' lgkmcnt(0)')
        for ks in range(NS):
            G_ = [[] for _ in range(16)]
            if ks >= 1:
                G_[0].append(aread(ks, 7, 0)); G_[1].append(aread(ks, 7, 1))
            G_[5].insert(0, 's_waitcnt lgkmcnt(4)'); G_[13].insert(0, 's_waitcnt lgkmcnt(4)')
            if ks + 1 < NS:
                G_[15].append(lambda ks=ks: a.wait_vm(tk[ks+1]))
                if ks + 1 == 8:
                    for i in range(7): G_[1].append(f'v_add_u32 v{RA(i)}, 65536, v{RA(i)}')
                for k in range(14): G_[k+2].append(aread(ks+1, k >> 1, k & 1))
            if ks == 7: G_[15].append(f'v_add_u32 v{RA(7)}, 65536, v{RA(7)}')
            slots = [3, 7, 11, 14]
            if ks + LA < NS:
                for m in range(2): G_[slots.pop(0)].append(lambda ks=ks, m=m: ld(ks + LA, m))
            for k in slots:
                if extra: G_[k].append(extra.pop(0))
            for fb in range(8):
                for tb in range(2):
                    k = fb*2 + tb
                    c = vr(ACC(fb, tb), 4)
                    a(f'{M16} {c}, {ar(AF(fb),4)}, {vr(BF(ks,tb),4)}, {c if ks else 0}')
                    for x in G_[k]: x() if callable(x) else a(x)
        assert not extra
        sp.stamp()
        a('s_waitcnt vmcnt(0)'); a('s_barrier')
        B0 = 64
        MEAN = lambda tb: B0 + 32 + tb
        RS = lambda tb: B0 + 34 + tb
        pre = list(w2pre)
        def fill(n=1):
            for _ in range(n):
                if pre: pre.pop(0)()
        fill(1)
        for tb in range(2):
            for i in range(14): a(f'v_accvgpr_read_b32 v{B0+tb*14+i}, a{ST(tb,0)+i}')
        fill(2)
        for tb in range(2):
            b = B0 + tb*14
            for nt in range(1, 7):
                a(f'v_add_f32 v{b}, v{b}, v{b+2*nt}'); a(f'v_add_f32 v{b+1}, v{b+1}, v{b+2*nt+1}')
        fill(1)
        for tb in range(2):
            b = B0 + tb*14
            a(f'v_mul_f32 v{b}, {f32(1/448)}, v{b}'); a(f'v_mul_f32 v{b+1}, {f32(1/448)}, v{b+1}')
            a(f'v_fma_f32 v{b+1}, -v{b}, v{b}, v{b+1}'); a(f'v_max_f32 v{b+1}, 0, v{b+1}')
            rbf(a, b+1, b+1); a(f'v_add_f32 v{b+1}, {f32(1e-5)}, v{b+1}'); rbf(a, b+1, b+1)
            a(f'v_sqrt_f32 v{b+1}, v{b+1}'); rbf(a, MEAN(tb), b)
            rbf(a, b+1, b+1); a(f'v_rcp_f32 v{RS(tb)}, v{b+1}')
            a(f'v_sub_f32 v{MEAN(tb)}, 0, v{MEAN(tb)}')
            fill(1)
        TT = B0 + 40; LP = B0 + 38
        a(f'v_mov_b32 v{LP}, {f32(LOG2E)}')
        for tb in range(2): a(f'v_mul_f32 v{RS(tb)}, {f32(LOG2E)}, v{RS(tb)}')
        for sq in range(4):
            for tb in range(2):
                rg = [(ACC(2*sq+e, tb)+r, U_(2*sq+e)+r, W_(2*sq+e)+r) for e in range(2) for r in range(4)]
                tm = [TT + ((sq*2+tb) % 2)*8 + i for i in range(8)]
                for (x, u, w) in rg: a(f'v_fma_f32 v{x}, v{MEAN(tb)}, v{u}, v{x}')
                fill()
                for (x, u, w) in rg: a(f'v_fma_f32 v{x}, v{RS(tb)}, v{x}, v{w}')
                for (x, u, w), t in zip(rg, tm): a(f'v_exp_f32 v{t}, -v{x}')
                fill()
                for t in tm: a(f'v_fma_f32 v{t}, v{t}, v{LP}, v{LP}')
                for t in tm: a(f'v_rcp_f32 v{t}, v{t}')
                if E4F > 2: fill()
                for (x, u, w), t in zip(rg, tm): a(f'v_mul_f32 v{x}, v{x}, v{t}')
                d = ACC(2*sq, tb); xs = [r[0] for r in rg]
                for i in range(4): a(f'v_cvt_pk_bf16_f32 v{d+i}, v{xs[2*i]}, v{xs[2*i+1]}')
                self.tlast = a.vmem(f'buffer_store_dwordx4 {vr(d,4)}, v{E0+2+tb}, s[{self.SH}:{self.SH+3}], 0 offen offset:{1024*sq} {SC}')
        self.rest = pre

def post(a, T):
    sp = Stamper(a, 80, 3); sp.stamp(True); sp.stamp()
    g3 = a.g3
    for ks in range(NPRE, PF):
        for f in g3.w_pre(ks): f()
    g3.b_setup()
    a(f's_lshr_b32 s44, s{sTB}, 1'); a('s_lshl_b32 s44, s44, 7'); a(f'v_lshlrev_b32 v{T0}, 2, v{LANE}'); a(f'v_add_u32 v{T0}, s44, v{T0}')
    poll(a, f'{T}_a', T0, T1, 0xffff)
    sp.stamp()
    g3.main(sp)
    m = Mlp1(a)
    m.w_issue()
    a.wait_vm(g3.tlast); a('s_barrier')
    a(f's_lshr_b32 s44, s{sTB}, 1'); a('s_lshl_b32 s44, s44, 7'); a(f's_and_b32 s45, s{sTB}, 1'); a('s_mul_i32 s45, s45, 7'); a(f's_add_u32 s45, s45, s{sNT}')
    a('s_lshl_b32 s45, s45, 2'); a('s_add_u32 s44, s44, s45'); a(f's_add_u32 s44, s44, {FL_B}')
    set_flag(a, f'{T}_b', 44, 8)
    sp.stamp(); sp.stamp(True); sp.dump(sWS, sWAVE, 8)
    sp = Stamper(a, 80, 4); sp.stamp(True); sp.stamp()
    m.w_more(2*NPRE, 14)
    pa = m.setup()
    poll(a, f'{T}_b', pa, pa + 1, 0xffff)
    sp.stamp()
    g5 = Gemm(a, 5)
    pre = [g5.w_setup]
    for ks in range(PF): pre += g5.w_pre(ks)
    m.main(sp, pre)
    sp.stamp()
    a.wait_vm(m.tlast); a('s_barrier')
    a(f's_lshl_b32 s44, s{m.sTB4}, 7'); a(f's_lshl_b32 s45, s{m.sFT}, 2'); a('s_add_u32 s44, s44, s45'); a(f's_add_u32 s44, s44, {FL_C}')
    set_flag(a, f'{T}_c', 44, 8)
    sp.stamp(); sp.stamp(True); sp.dump(sWS, sWAVE, 8)
    sp = Stamper(a, 80, 5); sp.stamp(True); sp.stamp()
    for f in m.rest: f()
    g5.b_setup()
    a(f's_lshr_b32 s44, s{sTB}, 1'); a('s_lshl_b32 s44, s44, 7'); a(f's_add_u32 s44, s44, {FL_C}'); a(f'v_lshlrev_b32 v{T0}, 2, v{LANE}'); a(f'v_add_u32 v{T0}, s44, v{T0}')
    poll(a, f'{T}_c', T0, T1, 0x3fff)
    sp.stamp()
    g5.main(sp)
    sp.stamp()
    if STAMP: a('s_waitcnt vmcnt(0)')
    sp.stamp(True); sp.dump(sWS, sWAVE, 60)
```

```python
from gen_common import *
from sched import *
import os
import gen_post as GP
FUSE = int(os.environ.get('FUSE', 1))
WOS = int(os.environ.get('WOS', 32))
M16 = 'v_mfma_f32_16x16x32_bf16'
O_ = lambda db, qb: (db*2+qb)*4
S_ = lambda c: 128 + 4*c
P_ = lambda buf, qb: 144 + buf*8 + qb*4
NM_ = lambda qb: 160 + 4*qb
L_ = lambda qb: 168 + qb
KA_ = lambda i: 170 + i
VA_ = lambda i: 174 + i
KD_ = lambda i: 182 + i
VD_ = lambda i: 186 + i
ST_ = lambda qb: 190 + qb
Q_ = lambda st, qb: 192 + (st*2+qb)*4
WD_ = lambda i: 128 + i
VA2_ = lambda i: 132 + i
MA = 140
NV_ = lambda qb: 141 + qb
MC_ = lambda buf: (144 if buf == 0 else 240)
H_ = lambda buf, qb: (192 if buf == 0 else 160) + qb*4
TMP = 208
NR_ = lambda s, qb: 216 + ((s % 3)*2 + qb)*4
KF_ = lambda kb, st: (kb*8+st)*4
VF_ = lambda db: 64 + 4*db
SK, SV, SWQ, SN, SMOD, SO = 16, 20, 24, 28, 32, 36
sWB, sKO, sVO, sATT, sT0, sT1, s4K = 40, 41, 42, 43, 44, 45, 46
LK, LV, LMOD, LFLAG = 0, 65536, 131072, (0x18000 if FUSE else 135168)
WOL2 = int(os.environ.get('WOL2', 0))
VMW = 18 if (FUSE and WOL2) else 16
TILE = 16384
THRESH = 2.0**80
OFLAG = os.environ.get('OFLAG', 'sc1' if FUSE else '')
PFW = int(os.environ.get('PFW', 1))

def kread(slot, kb, st):
    return f'ds_read_b128 {ar(KF_(kb,st),4)}, v{KA_(st&3)} offset:{slot*TILE + kb*8192 + (st>>2)*256}'
def vread(slot, db, half, alt=False):
    A = VA2_ if alt else VA_
    return f'ds_read_b64_tr_b16 {ar(VF_(db)+2*half,2)}, v{A(db&7)} offset:{slot*TILE + half*8192 + (db>>3)*256}'
def setm0(ldsbase): return f's_add_u32 m0, s{sWB}, {hex(ldsbase)}'
DFLAG = os.environ.get('DFLAG', 'nt')
def dma(vo, srdb, soff, n): return f'buffer_load_dwordx4 v{vo}, s[{srdb}:{srdb+3}], {soff} offen offset:{n*1024}{" "+DFLAG if DFLAG else ""} lds'
def qk_mfma(c, st, C=None):
    kb, qb = c >> 1, c & 1
    if st == 0: cc = C if C is not None else vr(NM_(qb), 4)
    else: cc = vr(S_(c), 4)
    return f'{M16} {vr(S_(c),4)}, {ar(KF_(kb,st),4)}, {vr(Q_(st,qb),4)}, {cc}'
def pv_mfma(db, qb, buf):
    return f'{M16} {vr(O_(db,qb),4)}, {ar(VF_(db),4)}, {vr(P_(buf,qb),4)}, {vr(O_(db,qb),4)}'

def xlane(a, op, r, t):
    for sw in ('v_permlane32_swap_b32', 'v_permlane16_swap_b32'):
        a(f'v_mov_b32 v{t}, v{r}'); a('s_nop 1'); a(f'{sw} v{r}, v{t}'); a('s_nop 1')
        a(f'{op} v{r}, v{r}, v{t}')

def load_tile(a, kind, t):
    base = (LK if kind == 'K' else LV) + (t & 3)*TILE
    a(setm0(base)); a(f's_mov_b32 s{sT0}, {hex(t*TILE)}')
    for n in range(4):
        tok = a.vmem(dma((KD_ if kind == 'K' else VD_)(n), SK if kind == 'K' else SV, f's{sT0}', n))
    return tok

def softmax0(a, first, nops=8):
    a.nop(nops)
    if first:
        for qb in range(2):
            c0, c1 = S_(qb), S_(2+qb)
            t = NM_(qb)
            a(f'v_max3_f32 v{t}, v{c0}, v{c0+1}, v{c0+2}')
            a(f'v_max3_f32 v{t+1}, v{c0+3}, v{c1}, v{c1+1}')
            a(f'v_max3_f32 v{t}, v{t}, v{c1+2}, v{c1+3}')
            a(f'v_max_f32 v{t}, v{t}, v{t+1}')
        for qb in range(2): xlane(a, 'v_max_f32', NM_(qb), NM_(qb)+1)
        for qb in range(2):
            t = NM_(qb)
            a(f'v_sub_f32 v{t}, 0, v{t}')
            for i in range(1, 4): a(f'v_mov_b32 v{t+i}, v{t}')
    for c in range(4):
        for r in range(4): a(f'v_add_f32 v{S_(c)+r}, v{S_(c)+r}, v{NM_(c&1)+((r+1)&3)}')
    for c in range(4):
        for r in range(4): a(f'v_exp_f32 v{S_(c)+r}, v{S_(c)+r}')
    for qb in range(2): a(f'v_add_f32 v{L_(qb)}, v{S_(qb)}, v{S_(qb)+1}')
    for c in range(4):
        for r in range(4):
            if c < 2 and r < 2: continue
            a(f'v_add_f32 v{L_(c&1)}, v{S_(c)+r}, v{L_(c&1)}')
    for c in range(4):
        kb, qb = c >> 1, c & 1
        for p in range(2): a(f'v_cvt_pk_bf16_f32 v{P_(0,qb)+kb*2+p}, v{S_(c)+2*p}, v{S_(c)+2*p+1}')

def preamble(a, first, tokK0, tokK1):
    a.wait_vm(tokK0); a('s_barrier')
    for kb in range(2):
        for st in range(8): a(kread(0, kb, st))
    a.wait_vm(tokK1, ' lgkmcnt(0)'); a('s_barrier')
    load_tile(a, 'K', 4)
    for c in range(4):
        for st in range(8):
            a(qk_mfma(c, st, '0'))
            if c & 1: a(kread(1, c >> 1, st))
    softmax0(a, first)

EG = [12,14,17,20, 23,26,29,32, 34,37,40,42, 45,48,50,53]
DG = [3,11,19,27, 35,43,51,59]
TG = [0,0,1,2,2,4,4,5,5,6,7,7,8,9,9,10,10, 15,15,21,21,25,25,31,31,38,38,44,44,49,49,52]
RG = [13,16,18,22,24,28,30,33, 36,39,41,46,47,54,55,56]
VG = [13,16,18,22,24,28,30,33,36,39,41,46,47,52,54,55,56, 57,57,58,60,61,61,62]
WOPF = f'buffer_load_dwordx4 a[128:131], v{ST_(0)}, s[76:79], s47 offen'
def loop_body(a, u, verbose=False):
    mf = [qk_mfma(c, st) for c in range(4) for st in range(8)]
    mf += [pv_mfma(db, qb, u & 1) for db in range(16) for qb in range(2)]
    it = []
    F = lambda text, typ, g: it.append(Item(text, typ, g, g)) or it[-1]
    vs = u; ks = (u + 2) & 3
    VR = {}
    for k in range(32):
        db, h = k >> 1, k & 1
        assert TG[k] <= 32 + 2*db - 8
        VR[db, h] = F(vread(vs, db, h), 't', TG[k])
    for (d0, d1, g) in ((0, 4, 26), (4, 8, 37), (8, 12, 45), (12, 14, 53), (14, 16, 58)):
        assert g < 32 + 2*d0
        F(('WAITLG', [VR[db, h] for db in range(d0, d1) for h in range(2)]), 's', g)
    for kb in range(2):
        for st in range(8):
            assert RG[kb*8+st] >= 8 + 16*kb + st
            F(kread(ks, kb, st), 'r', RG[kb*8+st])
    nb = (u + 1) & 1
    va = []
    for c in range(4):
        kb, qb = c >> 1, c & 1
        for r in range(4):
            g = EG[4*c+r]; assert g >= 8*c + 12
            F(f'v_exp_f32 v{S_(c)+r}, v{S_(c)+r}', 'e', g)
            va.append((g + 1, f'v_add_f32 v{L_(qb)}, v{S_(c)+r}, v{L_(qb)}'))
            if r & 1:
                p = r >> 1
                va.append((g + 1, f'v_cvt_pk_bf16_f32 v{P_(nb,qb)+kb*2+p}, v{S_(c)+2*p}, v{S_(c)+2*p+1}'))
    for g, (av, tx) in zip(VG, va):
        assert av <= g, (av, g)
        F(tx, 'v', g)
    for gi, (kind, slot, gm, ga) in enumerate((('V', (u + 3) & 3, 1, 34), ('K', (u + 1) & 3, 29, 60))):
        base = (LK if kind == 'K' else LV) + slot*TILE
        so = sKO if kind == 'K' else sVO
        F(setm0(base), 's', gm)
        for n in range(4):
            F(dma((KD_ if kind == 'K' else VD_)(n), SK if kind == 'K' else SV, f's{so}', n), 'd', DG[gi*4+n])
        F(f's_add_u32 s{so}, s{so}, {TILE}', 's', ga)
    if u == 3 and PFW:
        F(f'buffer_load_dwordx4 a[128:131], v{ST_(0)}, s[56:59], s53 offen', 'd', 62 if (FUSE and WOL2) else 63); F('s_add_u32 s53, s53, 1024', 's', 62 if (FUSE and WOL2) else 63)
    if FUSE and WOL2:
        F(WOPF, 'd', 63); F('s_add_u32 s47, s47, 1024', 's', 48); F('s_and_b32 s47, s47, 0xffff', 's', 50)
    if u == 2: F(f's_cmp_eq_u32 s{sVO}, {hex(66*TILE)}', 's', 62)
    ABL = os.environ.get('ABL', '')
    if 'd' in ABL: it = [x for x in it if x.typ != 'd']
    if 'v' in ABL: it = [x for x in it if x.typ not in 'ev']
    if 'e' in ABL: it = [x for x in it if x.typ not in 'e']
    if 'l' in ABL: it = [x for x in it if x.typ not in 'tr' and not isinstance(x.text, tuple)]
    if 't' in ABL: it = [x for x in it if x.typ not in 't' and not isinstance(x.text, tuple)]
    gaps = schedule(64, it, novalu=range(0, 8), verbose=verbose)
    emit(a, mf, gaps)

def gen_k2():
    a = Asm()
    N = 'k2_kernel'
    head(a, N)
    a('s_cmp_ge_u32 s2, 256'); a('s_cbranch_scc1 K2_end')
    sp = Stamper(a, 80 if FUSE else 64, 1)
    if FUSE:
        _st = sp.stamp; scnt = [0]
        def lim(real=False):
            scnt[0] += 1
            if scnt[0] in (1, 2, 5, 7, 8, 10, 11, 12): _st(real)
        sp.stamp = lim
    QS = os.environ.get('QSTAMP')
    if QS:
        sq_ = sp; sp = Stamper(a, 64, 1); sp.stamp = lambda *x: None; sp.dump = lambda *x: sq_.dump(*x)
    sp.stamp(True); sp.stamp()
    a(f's_load_dwordx4 s[4:7], s[0:1], {KA["k"]}')
    a(f's_load_dwordx2 s[8:9], s[0:1], {KA["wq"]}')
    a(f's_load_dwordx2 s[10:11], s[0:1], {KA["ws"]}')
    if FUSE:
        a(f's_load_dwordx2 s[64:65], s[0:1], {KA["x"]}'); a(f's_load_dwordx2 s[66:67], s[0:1], {KA["out"]}'); GP.roles(a)
    if PFW:
        a(f's_load_dwordx2 s[60:61], s[0:1], {KA["wo"]}'); a(f's_load_dwordx2 s[62:63], s[0:1], {KA["w1"]}'); a(f's_load_dwordx2 s[54:55], s[0:1], {KA["w2"]}')
    code_touch(a, 'K2', 1, 'a1', 56, 4, 'K2_fb', 1)
    a('s_and_b32 s12, s2, 7'); a('s_lshl_b32 s12, s12, 1'); a('s_bfe_u32 s13, s2, 0x10003'); a('s_add_u32 s12, s12, s13')
    a('s_lshr_b32 s13, s2, 4')
    T = 208
    L, W, Qv, G, R, C4, Hh, Pp = T, T+1, T+2, T+3, T+4, T+5, T+6, T+7
    X, Y = 216, 217
    a(f'v_and_b32 v{L}, 63, v0'); a(f'v_lshrrev_b32 v{W}, 6, v0'); a(f'v_and_b32 v{Qv}, 15, v0'); a(f'v_bfe_u32 v{G}, v0, 4, 2')
    a(f'v_bfe_u32 v{R}, v0, 2, 2'); a(f'v_and_b32 v{C4}, 3, v0'); a(f'v_bfe_u32 v{Hh}, v0, 5, 1'); a(f'v_and_b32 v{Pp}, 31, v0')
    a(f'v_readfirstlane_b32 s14, v{W}'); a('v_mov_b32 v143, v0')
    for n in range(4):
        a(f'v_lshl_add_u32 v{X}, v{W}, 3, v{Hh}')
        a(f'v_add_u32 v{Y}, {2*n}, v{X}')
        a(f'v_and_b32 v{X+2}, 7, v{Y}'); a(f'v_lshlrev_b32 v{X+2}, 1, v{X+2}'); a(f'v_xor_b32 v{X+2}, v{X+2}, v{Pp}')
        a(f'v_lshlrev_b32 v{X+2}, 4, v{X+2}')
        a(f'v_lshl_add_u32 v{VD_(n)}, v{X}, 9, v{X+2}')
        a(f'v_lshl_add_u32 v{WD_(n)}, v{Y}, 13, v{X+2}')
        if n: a(f'v_subrev_u32 v{WD_(n)}, {n*1024}, v{WD_(n)}')
        a(f'v_and_b32 v{X+2}, 15, v{Y}'); a(f'v_xor_b32 v{X+2}, v{X+2}, v{Pp}'); a(f'v_lshlrev_b32 v{X+2}, 4, v{X+2}')
        a(f'v_lshl_add_u32 v{KD_(n)}, v{X}, 9, v{X+2}')
    a(f'v_mul_u32_u24 v{X}, {2*14336}, v{W}'); a(f'v_lshl_add_u32 v{NV_(0)}, v{L}, 4, v{X}'); a(f'v_add_u32 v{NV_(1)}, 14336, v{NV_(0)}')
    a(f'v_lshlrev_b32 v{X+3}, 4, v0')
    a('s_lshl_b32 s40, s14, 12')
    a('s_lshl_b32 s50, s12, 20')
    a('s_lshl_b32 s51, s12, 9')
    a(f's_mul_i32 s47, s13, {8*14336}')
    a('s_lshl_b32 s48, s13, 20'); a('s_lshl_b32 s49, s12, 13'); a('s_add_u32 s48, s48, s49')
    a('s_waitcnt lgkmcnt(0)')
    sp.stamp()
    srd(a, SMOD, 10, WS_MOD, 4096)
    srd(a, SN, 10, WS_N, 8*14336, 47)
    srd(a, SWQ, 8, 0, 0, 51); a(f's_sub_u32 s{SWQ+2}, {448*8192}, s51')
    a(f's_lshl_b32 s{sT0}, s14, 10'); a(f's_add_u32 m0, s{sT0}, {hex(LMOD)}'); a('s_nop 0')
    tMOD = a.vmem(f'buffer_load_dwordx4 v{X+3}, s[{SMOD}:{SMOD+3}], 0 offen lds')
    WSLOT = [LK+2*TILE, LV, LK+3*TILE, LV+TILE, LV+2*TILE, LV+3*TILE, LK, LK+TILE]
    wslot = lambda t: WSLOT[t % 8]
    tN = {}; tW = {}
    def nload(s):
        a(f's_mov_b32 s{sT1}, {s*1024}')
        for qb in range(2):
            tN[s] = a.vmem(f'buffer_load_dwordx4 {vr(NR_(s,qb),4)}, v{NV_(qb)}, s[{SN}:{SN+3}], s{sT1} offen')
    def wload(t):
        a(setm0(wslot(t))); a(f's_mov_b32 s{sT0}, {hex(t*32*8192)}')
        for n in range(4): tW[t] = a.vmem(dma(WD_(n), SWQ, f's{sT0}', n))
    nload(0); wload(0); nload(1); wload(1)
    srd(a, SK, 4, 0, 1 << 20, 50); srd(a, SV, 6, 0, 1 << 20, 50)
    srd(a, SO, 10, WS_O, 0, 48); a(f's_sub_u32 s{SO+2}, {1<<20}, s49')
    a(f's_mov_b32 s{sATT}, 0'); a(f's_mov_b32 s{s4K}, 4096')
    t0, t1, t2 = 1, 2, 3
    for i in range(4):
        a(f'v_add_u32 v{t0}, {4*i}, v{G}'); a(f'v_xor_b32 v{t0}, v{t0}, v{Qv}'); a(f'v_lshlrev_b32 v{t0}, 4, v{t0}')
        a(f'v_lshl_add_u32 v{KA_(i)}, v{Qv}, 9, v{t0}')
    a(f'v_lshl_add_u32 v{t1}, v{G}, 2, v{R}')
    a(f'v_lshlrev_b32 v{t2}, 3, v{C4}'); a(f'v_lshl_add_u32 v{t2}, v{t1}, 9, v{t2}')
    a(f'v_and_b32 v{t1}, 7, v{t1}')
    for i in range(8):
        a(f'v_xor_b32 v{t0}, {i}, v{t1}'); a(f'v_lshl_add_u32 v{VA2_(i)}, v{t0}, 5, v{t2}')
        a(f'v_add_u32 v{VA_(i)}, {LV}, v{VA2_(i)}')
    a(f'v_lshlrev_b32 v{MA}, 4, v{G}'); a(f'v_add_u32 v{MA}, {LMOD}, v{MA}')
    a(f'v_lshlrev_b32 v{t0}, 18, v{W}'); a(f'v_lshl_add_u32 v{ST_(0)}, v{L}, 4, v{t0}'); a(f'v_add_u32 v{ST_(1)}, {1<<17}, v{ST_(0)}')
    TN = int(os.environ.get('TN', 0))
    if TN:
        a(f'v_lshlrev_b32 v{t0}, 7, v143')
        for i in range(4):
            if i: a(f'v_add_u32 v{t0}, 32768, v{t0}')
            a.vmem(f'buffer_load_dword a{2+i}, v{t0}, s[{SN}:{SN+3}], 0 offen')
        a(f's_mul_i32 s52, s13, 112')
        a(f'v_add_u32 v{t0}, s52, v143'); a(f'v_lshrrev_b32 v{t1}, 2, v{t0}'); a(f'v_and_b32 v{t0}, 3, v{t0}')
        a(f'v_lshlrev_b32 v{t0}, 7, v{t0}'); a(f'v_lshl_add_u32 v{t0}, v{t1}, 13, v{t0}')
        a('s_cmp_ge_u32 s14, 2'); a('s_cbranch_scc1 K2_tq')
        a(f'buffer_load_dword a6, v{t0}, s[{SWQ}:{SWQ+3}], 0 offen')
        a.label('K2_tq')
    wload(2); nload(2); wload(3); wload(4)
    if PFW:
        a('s_lshl_b32 s52, s2, 2'); a('s_add_u32 s52, s52, s14')
        if not FUSE:
            a('s_mov_b32 s56, s60'); a('s_mov_b32 s57, s61'); a('s_mov_b32 s53, s52')
            a('s_cmp_lt_u32 s52, 448'); a('s_cbranch_scc1 K2_pf')
        else: a('s_add_u32 s52, s52, 448')
        a('s_mov_b32 s56, s54'); a('s_mov_b32 s57, s55'); a('s_sub_u32 s53, s52, 448')
        a('s_cmp_lt_u32 s52, 644'); a('s_cbranch_scc1 K2_pf')
        a('s_mov_b32 s56, s62'); a('s_mov_b32 s57, s63'); a('s_sub_u32 s53, s52, 644')
        a.label('K2_pf')
        a('s_lshl_b32 s53, s53, 13'); a('s_add_u32 s56, s56, s53'); a('s_addc_u32 s57, s57, 0')
        a('s_lshl_b32 s53, s14, 18'); a('s_sub_u32 s56, s56, s53'); a('s_subb_u32 s57, s57, 0')
        a('s_and_b32 s57, s57, 0xffff'); a('s_mov_b32 s59, 0x20000')
        a('s_add_u32 s53, s53, 8192'); a('s_cmp_lt_u32 s52, 840'); a('s_cselect_b32 s58, s53, 0')
        a('s_mov_b32 s53, 0xfffffc00')
    if FUSE:
        GP.roles2(a)
        a('s_lshr_b32 s47, s2, 3'); a('s_lshl_b32 s47, s47, 2'); a('s_add_u32 s47, s47, s14'); a('s_mul_i32 s47, s47, 28672')
        a('s_add_u32 s76, s60, s47'); a('s_addc_u32 s77, s61, 0'); a('s_lshl_b32 s47, s14, 18'); a('s_sub_u32 s76, s76, s47'); a('s_subb_u32 s77, s77, 0')
        a('s_and_b32 s77, s77, 0xffff'); a('s_add_u32 s78, s47, 28672'); a('s_mov_b32 s79, 0x20000')
        a(f's_mov_b32 s47, {(63-WOS)*1024}')
    def wread(t, db, h):
        b = wslot(t); alt = b < LV
        return vread(((b - (0 if alt else LV)) // TILE), db, h, alt)
    def modreads(s):
        m = MC_(s & 1)
        return [f'ds_read_b128 {vr(m,4)}, v{MA} offset:{1792+128*s}', f'ds_read_b128 {vr(m+4,4)}, v{MA} offset:{1792+128*s+64}',
                f'ds_read_b128 {vr(m+8,4)}, v{MA} offset:{128*s}', f'ds_read_b128 {vr(m+12,4)}, v{MA} offset:{128*s+64}']
    def modvalu(s):
        m = MC_(s & 1); out = []
        for qb in range(2):
            for i in range(4):
                k = (qb*4+i) % 4
                ta, tb = TMP + 2*k, TMP + 2*k + 1
                raw = NR_(s, qb) + i
                out.append([f'v_lshlrev_b32 v{ta}, 16, v{raw}', f'v_and_b32 v{tb}, 0xffff0000, v{raw}',
                            f'v_fma_f32 v{ta}, v{ta}, v{m+2*i}, v{m+8+2*i}', f'v_fma_f32 v{tb}, v{tb}, v{m+2*i+1}, v{m+8+2*i+1}',
                            f'v_cvt_pk_bf16_f32 v{H_(s&1,qb)+i}, v{ta}, v{tb}'])
        return out
    a.wait_vm(tW[0]); a('s_barrier')
    sp.stamp()
    for x in modreads(0): a(x)
    for db in range(16):
        for h in range(2): a(wread(0, db, h))
    a('s_waitcnt lgkmcnt(15)')
    for grp in modvalu(0):
        for x in grp: a(x)
    for x in modreads(1): a(x)
    a('s_waitcnt lgkmcnt(0)')
    sp.stamp()
    NS = 14
    tok = {}
    kv_at = {8: ('K', 0), 9: ('K', 1), 10: ('K', 2), 11: ('V', 0), 12: ('K', 3), 13: ('V', 1)}
    def tile_items(key):
        if key[0] == 'W':
            t = key[1]; base, so, vo, sd = wslot(t), t*32*8192, WD_, SWQ
        else:
            kind, tt = key
            base, so, vo, sd = (LK if kind == 'K' else LV) + tt*TILE, tt*TILE, (KD_ if kind == 'K' else VD_), (SK if kind == 'K' else SV)
        def mk(n):
            def f():
                tk = a.vmem(dma(vo(n), sd, f's{sT0}', n))
                if key[0] == 'W': tW[key[1]] = tk
                else: tok[key] = tk
            return f
        return [setm0(base), f's_mov_b32 s{sT0}, {hex(so)}'], [mk(n) for n in range(4)]
    def conv_ops(st, qb):
        Xb, Yb, q = O_(2*st, qb), O_(2*st+1, qb), Q_(st, qb)
        return ([f'v_cvt_pk_bf16_f32 v{q}, v{Xb}, v{Xb+1}', f'v_cvt_pk_bf16_f32 v{q+1}, v{Xb+2}, v{Xb+3}',
                 f'v_cvt_pk_bf16_f32 v{q+2}, v{Yb}, v{Yb+1}', f'v_cvt_pk_bf16_f32 v{q+3}, v{Yb+2}, v{Yb+3}'],
                [f'v_permlane32_swap_b32 v{q}, v{q+2}', f'v_permlane32_swap_b32 v{q+1}, v{q+3}'],
                [f'v_permlane16_swap_b32 v{q}, v{q+2}', f'v_permlane16_swap_b32 v{q+1}, v{q+3}'],
                [f'v_mov_b64 v[{Xb}:{Xb+1}], 0', f'v_mov_b64 v[{Xb+2}:{Xb+3}], 0', f'v_mov_b64 v[{Yb}:{Yb+1}], 0', f'v_mov_b64 v[{Yb+2}:{Yb+3}], 0'])
    for s in range(NS):
        if QS: sq_.stamp()
        G_ = [[] for _ in range(32)]
        Vv = [[] for _ in range(32)]
        cap = [1]*32
        bar = (s % 2 == 0)
        if s >= 1:
            G_[0].append(wread(s, 15, 0)); G_[1].append(wread(s, 15, 1))
        for k in (4, 12, 20, 28): G_[k].insert(0, 's_waitcnt lgkmcnt(8)'); cap[k] = 0
        tiles = []
        if s + 5 < NS: tiles.append(('W', s + 5))
        if s in kv_at: tiles.append(kv_at[s])
        if s + 1 < NS:
            def w(s=s, bar=bar):
                t = tN[s+1]
                if bar:
                    t = max(t, tW[s+1], tW[min(s+2, NS-1)])
                    if s == 12: t = max(t, tok['K', 1])
                a.wait_vm(t)
                if bar: a('s_barrier')
            G_[1].append(w)
            for k in range(30): G_[k+2].append(wread(s+1, k >> 1, k & 1))
            if s + 2 < NS:
                for i, x in enumerate(modreads(s+2)): G_[3+2*i].append(x); cap[3+2*i] = 0
            if s + 3 < NS:
                def nl(qb, s=s):
                    def f():
                        if qb == 0: a(f's_mov_b32 s{sT1}, {(s+3)*1024}')
                        tN[s+3] = a.vmem(f'buffer_load_dwordx4 {vr(NR_(s+3,qb),4)}, v{NV_(qb)}, s[{SN}:{SN+3}], s{sT1} offen')
                    return f
                G_[2].append(nl(0)); G_[6].append(nl(1)); cap[2] = cap[6] = 0
        else:
            ks = [kread(0, kb, st) for kb in range(2) for st in range(8)]
            for i, x in enumerate(ks): G_[2+i].append(x)
        pos = [10, 14, 18, 22] if len(tiles) == 1 else [8, 11, 14, 17, 21, 24, 27, 30]
        for ti, key in enumerate(tiles):
            su, ds = tile_items(key)
            pp = pos[4*ti:4*ti+4]
            G_[pp[0]-1] = su + G_[pp[0]-1]; cap[pp[0]-1] = 0
            for p, d in zip(pp, ds): G_[p].append(d); cap[p] = 0
        if s + 1 < NS:
            grps = modvalu(s+1); seq = []
            for gi in range(10):
                if gi < 8: seq += grps[gi][0:2]
                if 1 <= gi < 9: seq += grps[gi-1][2:4]
                if gi >= 2: seq.append(grps[gi-2][4])
            lo = 10 if bar else 2
            rng = list(range(lo, 30))
            tot = len(seq); base = sum(cap[k] for k in rng); extra = tot - base
            cnt = {k: cap[k] for k in rng}
            order = [k for k in rng if cap[k]] + [k for k in rng if not cap[k]]
            i = 0
            while extra > 0:
                cnt[order[i % len(order)]] += 1; extra -= 1; i += 1
            p = 0
            for k in rng:
                Vv[k] = seq[p:p+cnt[k]]; p += cnt[k]
        else:
            pend = []
            for st in range(8):
                for qb in range(2):
                    c4, p32, p16, z = conv_ops(st, qb)
                    g = 4*st + 2 + qb + 5
                    pend += [(g, x) for x in c4] + [(g + 3, x) for x in p32] + [(g + 5, x) for x in p16] + [(g + 40, x) for x in z]
            pend.sort(key=lambda x: x[0])
            for k in range(32):
                n = 1 if G_[k] else 2
                while n and pend and pend[0][0] <= k:
                    Vv[k].append(pend.pop(0)[1]); n -= 1
        for db in range(16):
            for qb in range(2):
                k = db*2 + qb
                c = vr(O_(db, qb), 4)
                a(f'{M16} {c}, {ar(VF_(db),4)}, {vr(H_(s&1,qb),4)}, {c if s else 0}')
                for x in G_[k] + Vv[k]:
                    x() if callable(x) else a(x)
    if QS: sq_.stamp()
    a('s_waitcnt lgkmcnt(0)'); a('s_barrier')
    sp.stamp()
    conv = [x for x in pend if 'v_mov_b64' not in x[1]]
    zero = [x[1] for x in pend if 'v_mov_b64' in x[1]]
    mem = []
    for key in (('V', 2), ('K', 4)):
        kind, tt = key
        base = (LK if kind == 'K' else LV) + (tt & 3)*TILE
        mem.append([setm0(base), f's_mov_b32 s{sT0}, {hex(tt*TILE)}'])
        for n in range(4):
            mem.append([lambda n=n, kind=kind: a.vmem(dma((KD_ if kind == 'K' else VD_)(n), SK if kind == 'K' else SV, f's{sT0}', n))])
    need = lambda txt: int(txt.split()[1].strip('v,'))
    done_at = {}
    gi = 0
    order = [(c, st) for c in range(4) for st in range(8)]
    for idx, (c, st) in enumerate(order):
        q = Q_(st, c & 1)
        while any(q <= need(x[1]) < q + 4 for x in conv):
            x = conv.pop(0); a(x[1])
            if 'permlane' in x[1] or (conv and 'permlane' in conv[0][1]): a('s_nop 1')
        a(qk_mfma(c, st, '0'))
        n = 2
        if c & 1: a(kread(1, c >> 1, st)); n = 1
        elif mem and idx % 2 == 1 or (mem and idx >= 16):
            for x in mem.pop(0): x() if callable(x) else a(x)
            n = 0
        while n and conv:
            x = conv.pop(0); a(x[1]); n -= 1
            if 'permlane' in x[1] or (conv and 'permlane' in conv[0][1]): a('s_nop 1'); n = 0
        while n and zero:
            a(zero.pop(0)); n -= 1
    assert not mem
    for x in zero: a(x)
    softmax0(a, True, max(0, 8 - len(zero)))
    a(f's_mov_b32 s{sVO}, {3*TILE}'); a(f's_mov_b32 s{sKO}, {5*TILE}')
    if FUSE:
        a(WOPF)
        a('s_getpc_b64 s[24:25]'); a.label('K2_pc2')
        a('s_add_u32 s24, s24, K2_tail-K2_pc2'); a('s_addc_u32 s25, s25, 0'); a('s_and_b32 s25, s25, 0xffff')
        a('s_mov_b32 s26, K2_fb-K2_tail'); a('s_mov_b32 s27, 0x20000')
        a(f'v_and_b32 v{S_(0)}, 0x3ff, v{ST_(0)}'); a(f'v_lshlrev_b32 v{S_(0)}, 3, v{S_(0)}'); a(f's_lshl_b32 s{sT0}, s14, 13')
        a(f'buffer_load_dword a128, v{S_(0)}, s[24:27], s{sT0} offen')
    sp.stamp()
    if STAMP and not QS and not FUSE: a('s_memrealtime s[90:91]'); a('s_waitcnt lgkmcnt(0)')
    a('.p2align 6')
    a.label('K2_loop')
    pre_len = len(a.L)
    for u in range(4):
        a(f's_waitcnt vmcnt({VMW}) lgkmcnt(0)'); a('s_barrier')
        loop_body(a, u, verbose=bool(os.environ.get('V')))
        if u == 2:
            a('s_cbranch_scc1 K2_tail')
    a('s_branch K2_loop')
    body = a.L[pre_len:]
    for p in check_text(body + body, 'k2 loop wrap'): print('HAZARD', p)
    a.label('K2_tail')
    a(f's_waitcnt vmcnt({0 if FUSE else 16}) lgkmcnt(0)'); a('s_barrier')
    sp.stamp()
    if STAMP and not QS and not FUSE: a('s_memrealtime s[92:93]'); a('s_waitcnt lgkmcnt(0)'); a('s_sub_u32 s92, s92, s90')
    for db in range(16):
        for h in range(2): a(vread(3, db, h))
    for qb in range(2): xlane(a, 'v_add_f32', L_(qb), S_(qb))
    a(f's_mov_b32 s{sT0}, {f32(THRESH)}')
    a(f'v_add_f32 v{S_(0)+1}, v{L_(0)}, v{L_(1)}')
    a(f'v_cmp_ngt_f32 vcc, s{sT0}, v{S_(0)+1}')
    a(f'v_rcp_f32 v{L_(0)}, v{L_(0)}'); a(f'v_rcp_f32 v{L_(1)}, v{L_(1)}')
    a(f's_cmp_lg_u64 vcc, 0'); a(f's_cselect_b32 s{sT1}, 1, 0')
    a(f'v_mov_b32 v{S_(0)+2}, s{sT1}')
    a(f's_lshl_b32 s{sT0}, s14, 2'); a(f's_add_u32 s{sT0}, s{sT0}, {LFLAG}'); a(f'v_mov_b32 v{S_(0)+3}, s{sT0}')
    a(f'ds_write_b32 v{S_(0)+3}, v{S_(0)+2}')
    def ep_ops(sq, qb, pk):
        Xb, Yb = O_(2*sq, qb), O_(2*sq+1, qb)
        o = []
        if pk:
            LP = L_(0)
            sel = 'op_sel:[0,0] op_sel_hi:[1,0]' if qb == 0 else 'op_sel:[0,1] op_sel_hi:[1,1]'
            for b in (Xb, Xb+2, Yb, Yb+2): o.append(f'v_pk_mul_f32 v[{b}:{b+1}], v[{b}:{b+1}], v[{LP}:{LP+1}] {sel}')
        else:
            for i in range(4):
                o += [f'v_mul_f32 v{Xb+i}, v{Xb+i}, v{L_(qb)}', f'v_mul_f32 v{Yb+i}, v{Yb+i}, v{L_(qb)}']
        o += [f'v_cvt_pk_bf16_f32 v{Xb}, v{Xb}, v{Xb+1}', f'v_cvt_pk_bf16_f32 v{Xb+1}, v{Xb+2}, v{Xb+3}',
              f'v_cvt_pk_bf16_f32 v{Xb+2}, v{Yb}, v{Yb+1}', f'v_cvt_pk_bf16_f32 v{Xb+3}, v{Yb+2}, v{Yb+3}',
              f'buffer_store_dwordx4 {vr(Xb,4)}, v{ST_(qb)}, s[{SO}:{SO+3}], {"0" if sq < 4 else f"s{s4K}"} offen offset:{(sq&3)*1024} {OFLAG}']
        return o
    pend = []
    NOV = 3
    for sq in range(NOV):
        for qb in range(2): pend += [(4*sq + 2 + qb + 8, x) for x in ep_ops(sq, qb, False)]
    for db in range(16):
        if db % 4 == 0: a(f's_waitcnt lgkmcnt({min(15, 33 - 2*db - 8)})')
        for qb in range(2):
            k = 2*db + qb
            a(pv_mfma(db, qb, 1))
            n = 2
            while n and pend and pend[0][0] <= k:
                x = pend.pop(0)[1]; a(x); n -= 1
                if 'store' in x: n = 0
    sp.stamp()
    for x in pend: a(x[1])
    for sq in range(NOV, 8):
        for qb in range(2):
            for x in ep_ops(sq, qb, True): a(x)
    sp.stamp()
    if not FUSE:
        if STAMP: a('s_waitcnt vmcnt(0)')
        sp.stamp(); sp.stamp(True); sp.dump(10, 14, S_(2))
        if STAMP and not QS: a(f'v_mov_b32 v{S_(2)+1}, s92'); a(f'buffer_store_dword v{S_(2)+1}, v{S_(2)}, s[96:99], s100 offen offset:60')
        a(f's_cmp_lg_u32 s{sATT}, 0'); a('s_cbranch_scc1 K2_end')
        a(f'v_mov_b32 v{S_(0)+3}, {LFLAG}')
        a('s_waitcnt lgkmcnt(0)'); a('s_barrier')
    else:
        a.g3 = g3 = GP.Gemm(a, 3)
        GP.flag_srd(a)
        a(f's_cmp_ge_u32 s{GP.sIDX}, 28'); a('s_cbranch_scc1 K2_np')
        g3.w_setup()
        for ks in range(GP.NPRE):
            for f in g3.w_pre(ks): f()
        a(f's_waitcnt vmcnt({4*GP.NPRE})'); a('s_branch K2_nj')
        a.label('K2_np')
        a('s_waitcnt vmcnt(0)')
        a.label('K2_nj')
        a(f'v_mov_b32 v{S_(0)+3}, {LFLAG}')
        a('s_waitcnt lgkmcnt(0)'); a('s_barrier')
        a(f's_cmp_lg_u32 s{sATT}, 0'); a('s_cbranch_scc1 K2_go')
    a(f'ds_read_b128 {vr(S_(1),4)}, v{S_(0)+3}')
    a('s_waitcnt lgkmcnt(0)')
    a(f'v_or3_b32 v{S_(1)}, v{S_(1)}, v{S_(1)+1}, v{S_(1)+2}'); a(f'v_or_b32 v{S_(1)}, v{S_(1)}, v{S_(1)+3}')
    a('s_nop 0')
    a(f'v_readfirstlane_b32 s{sT0}, v{S_(1)}')
    a('s_nop 3')
    if not FUSE:
        a(f's_cmp_eq_u32 s{sT0}, 0'); a('s_cbranch_scc1 K2_end')
    else:
        a(f's_cmp_lg_u32 s{sT0}, 0'); a('s_cbranch_scc1 K2_fb')
        a.label('K2_go')
        a(f's_lshl_b32 s44, s13, 7'); a('s_lshl_b32 s45, s12, 2'); a('s_add_u32 s44, s44, s45')
        GP.set_flag(a, 'K2_a', 44, 8)
        sp.stamp(); sp.stamp(True); sp.dump(10, 14, 8)
        a(f's_cmp_ge_u32 s{GP.sIDX}, 28'); a('s_cbranch_scc1 K2_uw')
        GP.post(a, 'K2')
        a('s_endpgm')
        a.label('K2_uw')
        GP.uw_phase(a, 'K2')
        a('s_endpgm')
    a.label('K2_fb')
    a(f's_mov_b32 s{sATT}, 1')
    a('s_waitcnt vmcnt(0)'); a('s_barrier')
    for qb in range(2): a(f'v_mov_b32 v{NM_(qb)}, 0xff800000')
    a(f's_mov_b32 s{sKO}, 0')
    a.label('K2_mx')
    a(setm0(LK)); a('s_nop 0')
    for n in range(4): a(dma(KD_(n), SK, f's{sKO}', n))
    a('s_waitcnt vmcnt(0)'); a('s_barrier')
    for kb in range(2):
        for st in range(8): a(kread(0, kb, st))
    a('s_waitcnt lgkmcnt(0)'); a('s_barrier')
    for c in range(4):
        for st in range(8): a(qk_mfma(c, st, '0'))
    a.nop(8)
    for c in range(4):
        t = NM_(c & 1)
        a(f'v_max3_f32 v{t}, v{S_(c)}, v{S_(c)+1}, v{t}'); a(f'v_max3_f32 v{t}, v{S_(c)+2}, v{S_(c)+3}, v{t}')
    a(f's_add_u32 s{sKO}, s{sKO}, {TILE}'); a(f's_cmp_lt_u32 s{sKO}, {1<<20}'); a('s_cbranch_scc1 K2_mx')
    for qb in range(2): xlane(a, 'v_max_f32', NM_(qb), NM_(qb)+1)
    for qb in range(2):
        t = NM_(qb)
        a(f'v_sub_f32 v{t}, 0, v{t}')
        for i in range(1, 4): a(f'v_mov_b32 v{t+i}, v{t}')
    for i in range(0, 128, 2): a(f'v_mov_b64 v[{i}:{i+1}], 0')
    k0 = load_tile(a, 'K', 0); k1 = load_tile(a, 'K', 1)
    for kind, t in (('K', 2), ('V', 0), ('K', 3), ('V', 1), ('V', 2)): load_tile(a, kind, t)
    preamble(a, False, k0, k1)
    a(f's_mov_b32 s{sVO}, {3*TILE}'); a(f's_mov_b32 s{sKO}, {5*TILE}')
    if FUSE: a(WOPF); a(WOPF)
    a('s_branch K2_loop')
    a.label('K2_end')
    a('s_endpgm')
    return a, f'; @launch kernel={N} grid=(256,1,1) block=(256,1,1) lds={163840 if FUSE else LFLAG+64}', kd(N, 256, 132, sgpr=102 if STAMP else (80 if FUSE else 64))
```

```python
from gen_k2 import *
import gen_post2 as GP2
X3 = int(os.environ.get('X3', 0))
if X3: LFLAG = 131072
XR = lambda s, qb: (s*2+qb)*4
NA = lambda s, qb: 132 + (s*2+qb)*4
WAL = lambda i: 132 + i
WAH = lambda i: 200 + i
TID = 143
SDBG = 28
LSCR = 136*1024
WLATE = int(os.environ.get('WLATE', 2))
LNFAST = int(os.environ.get('LNFAST', 0))
NPROD = 84
FL_M, FL_N = 8192, 10240
P1 = int(os.environ.get('P1', 1)); SLP = int(os.environ.get('SLP', 2))
def gen_one():
    a = Asm()
    N = 'adaLN_cond__mha_block_cached__dense_activation_silu__prompt_kernel'
    head(a, N)
    a('s_cmp_ge_u32 s2, 256'); a('s_cbranch_scc1 K2_end')
    sp = Stamper(a, 80, 1)
    _st = sp.stamp; scnt = [0]
    def lim(real=False):
        scnt[0] += 1
        if scnt[0] in SEL: _st(real)
    SEL = eval(os.environ.get('SEL', '(1, 2, 6, 8, 9, 11, 12, 13)'))
    sp.stamp = lim
    XS = os.environ.get('XS', '')
    def xs(t):
        if t in XS: _st()
    QS = None
    sp.stamp(True); sp.stamp()
    sNON = 75
    a(f's_load_dwordx2 s[{SDBG}:{SDBG+1}], s[0:1], {KA["dbg"]}')
    a(f's_load_dwordx2 s[64:65], s[0:1], {KA["x"]}')
    a(f's_load_dwordx4 s[16:19], s[0:1], {KA["c"]}')
    a(f's_load_dwordx2 s[8:9], s[0:1], {KA["wq"]}')
    a(f's_load_dwordx2 s[10:11], s[0:1], {KA["ws"]}')
    a('s_memrealtime s[44:45]')
    NCL = 4
    a('v_lshrrev_b32 v1, 6, v0'); a('s_getpc_b64 s[56:57]'); a.label('K2_pc')
    a('v_readfirstlane_b32 s14, v1'); a('s_lshr_b32 s58, s2, 3'); a('s_lshl_b32 s58, s58, 2'); a('s_nop 1'); a('s_add_u32 s58, s58, s14')
    a('s_lshl_b32 s58, s58, 6')
    for i in range(NCL):
        a(f's_add_u32 s59, s58, {i*8192}'); a('s_min_u32 s59, s59, K2_tail-K2_pc-4'); a(f's_load_dword s{76+i}, s[56:57], s59')
    GP.roles(a)
    a('s_and_b32 s12, s2, 7'); a('s_lshl_b32 s12, s12, 1'); a('s_bfe_u32 s13, s2, 0x10003'); a('s_add_u32 s12, s12, s13')
    a('s_lshr_b32 s13, s2, 4')
    T = 208
    L, W, Qv, G, R, C4, Hh, Pp = T, T+1, T+2, T+3, T+4, T+5, T+6, T+7
    X, Y = 112, 113
    a(f'v_mov_b32 v{TID}, v0')
    a(f'v_and_b32 v{L}, 63, v0'); a(f'v_lshrrev_b32 v{W}, 6, v0'); a(f'v_and_b32 v{Qv}, 15, v0'); a(f'v_bfe_u32 v{G}, v0, 4, 2')
    a(f'v_bfe_u32 v{R}, v0, 2, 2'); a(f'v_and_b32 v{C4}, 3, v0'); a(f'v_bfe_u32 v{Hh}, v0, 5, 1'); a(f'v_and_b32 v{Pp}, 31, v0')
    GW, GC, XV = 114, 115, 116
    a(f'v_lshrrev_b32 v{GC}, 2, v0'); a(f'v_mul_u32_u24 v{GW}, 5376, v{GC}'); a(f'v_lshl_add_u32 v{GW}, v{C4}, 4, v{GW}'); a(f'v_lshlrev_b32 v{GC}, 1, v{GC}')
    a(f'v_mul_u32_u24 v{XV}, 896, v{Qv}'); a(f'v_lshl_add_u32 v{XV}, v{G}, 4, v{XV}'); a(f'v_lshl_add_u32 v{XV}, v{W}, 6, v{XV}')
    for n in range(4):
        a(f'v_lshl_add_u32 v{Y}, v{W}, 3, v{Hh}'); a(f'v_add_u32 v{Y}, {2*n}, v{Y}')
        a(f'v_and_b32 v{X}, 3, v{Y}'); a(f'v_bfe_u32 v{X+5}, v{Y}, 3, 1'); a(f'v_lshl_add_u32 v{X}, v{X+5}, 2, v{X}')
        a(f'v_lshlrev_b32 v{X}, 1, v{X}'); a(f'v_xor_b32 v{X}, v{X}, v{Pp}'); a(f'v_lshlrev_b32 v{X}, 4, v{X}')
        a(f'v_lshl_add_u32 v{WD_(n)}, v{Y}, 13, v{X}')
        if n: a(f'v_subrev_u32 v{WD_(n)}, {n*1024}, v{WD_(n)}')
    a('s_lshl_b32 s40, s14, 12'); a('s_lshl_b32 s50, s12, 20'); a('s_lshl_b32 s51, s12, 9')
    a('s_lshl_b32 s48, s13, 20'); a('s_lshl_b32 s49, s12, 13'); a('s_add_u32 s48, s48, s49')
    a('s_lshl_b32 s52, s13, 3'); a('s_and_b32 s53, s2, 7'); a('s_add_u32 s52, s52, s53')
    a('s_waitcnt lgkmcnt(0)')
    sp.stamp()
    a(f's_and_b32 s{SDBG+1}, s{SDBG+1}, 0xffff'); a(f's_mov_b32 s{SDBG+2}, 256'); a(f's_mov_b32 s{SDBG+3}, 0x20000')
    a('s_or_b32 s46, s2, s14'); a('s_cmp_lg_u32 s46, 0'); a('s_cbranch_scc1 K2_n0')
    a('s_or_b32 s44, s44, 1'); a('v_mov_b32 v1, 0'); a('v_mov_b32 v2, s44'); a('s_mov_b64 exec, 1')
    a(f'buffer_store_dword v2, v1, s[{SDBG}:{SDBG+3}], 0 offen sc1'); a('s_mov_b64 exec, -1')
    a.label('K2_n0')
    CV, CT_, GA, WR = 16, 24, 64, 32
    XRW = 0
    a('s_mov_b32 s47, 0')
    a('s_bitcmp1_b32 s2, 3'); a('s_cbranch_scc0 K2_ln0')
    a(f's_cmp_ge_u32 s52, {NPROD}'); a('s_cbranch_scc1 K2_g0')
    a('s_mov_b32 s47, 1')
    srd(a, 20, 16, 0, 896); srd(a, 36, 18, 0, 448*5376)
    for i in range(7): tC = a.vmem(f'buffer_load_ushort v{CV+i}, v{GC}, s[20:23], 0 offen offset:{128*i}')
    tG = {}
    a('s_lshl_b32 s46, s52, 6')
    for i in range(7):
        a(f's_add_u32 s53, s46, {64*5376*i}')
        tG[i] = a.vmem(f'buffer_load_dwordx4 {vr(WR+4*i,4)}, v{GW}, s[36:39], s53 offen')
    a('s_branch K2_g0')
    a.label('K2_ln0')
    a('s_mov_b32 s47, 2')
    a(f's_mul_i32 s46, s52, {16*896}')
    srd(a, 36, 64, 0, 16*896, 46)
    a('s_cmp_lt_u32 s14, 2'); a('s_cselect_b32 s53, 0, 0x100000')
    for i in range(4):
        a(f'buffer_load_dwordx4 {vr(XRW+4*i,4)}, v{XV}, s[36:39], {"s53" if i == 3 else "0"} offen offset:{256*i}')
    a.label('K2_g0')
    a(f's_load_dwordx4 s[4:7], s[0:1], {KA["k"]}')
    a(f's_load_dwordx2 s[66:67], s[0:1], {KA["out"]}')
    a(f's_load_dwordx2 s[60:61], s[0:1], {KA["wo"]}'); a(f's_load_dwordx2 s[62:63], s[0:1], {KA["w1"]}'); a(f's_load_dwordx2 s[54:55], s[0:1], {KA["w2"]}')
    srd(a, SWQ, 8, 0, 0, 51); a(f's_sub_u32 s{SWQ+2}, {448*8192}, s51')
    WSLOT = [LK+2*TILE, LV, LK+3*TILE, LV+TILE, LV+2*TILE, LV+3*TILE, LK, LK+TILE]
    wslot = lambda t: WSLOT[t % 8]
    tW = {}; tN = {}
    def wload(t):
        a(setm0(wslot(t))); a(f's_mov_b32 s{sT0}, {hex(t*32*8192)}')
        for n in range(4): tW[t] = a.vmem(dma(WD_(n), SWQ, f's{sT0}', n))
    if WLATE < 2: wload(0); wload(1)
    v_after = a.vm + (8 if WLATE >= 2 else 0)
    srd(a, SMOD, 10, WS_MOD, 6*448*4)
    srd(a, 16, 10, WS_FLAG, 16384)
    a('v_mov_b32 v118, 0'); a.vmem(f'buffer_load_dword v119, v118, s[{SDBG}:{SDBG+3}], 0 offen sc1')
    xs('a')
    a('s_cmp_eq_u32 s47, 1'); a('s_cbranch_scc1 K2_gv')
    a('s_cmp_eq_u32 s47, 2'); a('s_cbranch_scc1 K2_ln1')
    vm0 = a.vm
    if not WLATE: wload(2); wload(3); wload(4)
    a('s_branch K2_g9')
    a.label('K2_gv')
    a.vm = vm0
    a.wait_vm(tC)
    for i in range(7): a(f'v_lshlrev_b32 v{CV+i}, 16, v{CV+i}')
    for i in range(7): a(f'v_mul_f32 v{CT_+i}, {f32(-LOG2E)}, v{CV+i}')
    for i in range(7): a(f'v_exp_f32 v{CT_+i}, v{CT_+i}')
    for i in range(7): a(f'v_add_f32 v{CT_+i}, 1.0, v{CT_+i}')
    for i in range(7): a(f'v_rcp_f32 v{CT_+i}, v{CT_+i}')
    for i in range(7): a(f'v_mul_f32 v{CV+i}, v{CV+i}, v{CT_+i}')
    for i in range(7): rbf(a, CV+i, CV+i)
    for i in range(7):
        a.wait_vm(tG[i])
        for j in range(4):
            u0, u1 = 72 + 2*(j & 1), 73 + 2*(j & 1)
            unpack(a, u0, u1, WR+4*i+j)
            op = 'v_mul_f32' if i == 0 else 'v_fmac_f32'
            a(f'{op} v{GA+2*j}, v{u0}, v{CV+i}'); a(f'{op} v{GA+2*j+1}, v{u1}, v{CV+i}')
    if not WLATE: wload(2)
    a(f'v_lshlrev_b32 v76, 5, v{TID}'); a(f'v_add_u32 v76, {LSCR}, v76')
    a(f'ds_write_b128 v76, {vr(GA,4)}'); a(f'ds_write_b128 v76, {vr(GA+4,4)} offset:16')
    a(f'v_lshrrev_b32 v77, 5, v{TID}'); a(f'v_lshlrev_b32 v78, 2, v{Pp}'); a(f'v_add_u32 v78, {LSCR}, v78')
    a('v_lshl_add_u32 v79, v77, 10, v78'); a('v_lshl_add_u32 v80, v77, 7, v78')
    a('s_waitcnt lgkmcnt(0)'); a('s_barrier')
    for i in range(8): a(f'ds_read_b32 v{GA+i}, v79 offset:{128*i}')
    if not WLATE: wload(3)
    a('s_waitcnt lgkmcnt(0)')
    for n in (4, 2, 1):
        for i in range(n): a(f'v_add_f32 v{GA+i}, v{GA+i}, v{GA+n+i}')
    a(f'ds_write_b32 v80, v{GA} offset:8192')
    a('s_waitcnt lgkmcnt(0)'); a('s_barrier')
    for i in range(8): a(f'ds_read_b32 v{GA+i}, v78 offset:{8192+128*i}')
    if not WLATE: wload(4)
    a('s_waitcnt lgkmcnt(0)')
    for n in (4, 2, 1):
        for i in range(n): a(f'v_add_f32 v{GA+i}, v{GA+i}, v{GA+n+i}')
    rbf(a, GA, GA)
    a('s_sub_u32 s53, s52, 14'); a('s_cmp_lt_u32 s53, 14'); a('s_cbranch_scc1 K2_g1')
    a('s_sub_u32 s53, s52, 56'); a('s_cmp_lt_u32 s53, 14'); a('s_cbranch_scc0 K2_g2')
    a.label('K2_g1')
    a(f'v_add_f32 v{GA}, 1.0, v{GA}'); rbf(a, GA, GA)
    a.label('K2_g2')
    a('s_cmp_lt_u32 s52, 28'); a('s_cbranch_scc0 K2_g3')
    a(f'v_mul_f32 v{GA}, {f32(LOG2E/16)}, v{GA}')
    a.label('K2_g3')
    a(f's_lshl_b32 s46, s52, 4'); a(f's_add_u32 s46, s46, {FL_M}')
    a('s_cmp_lg_u32 s14, 0'); a('s_cbranch_scc1 K2_g9')
    a(f'v_lshlrev_b32 v77, 2, v{Pp}'); a('s_lshl_b32 s53, s52, 7')
    a(f'buffer_store_dword v{GA}, v77, s[{SMOD}:{SMOD+3}], s53 offen sc1')
    a('s_branch K2_g9')
    a.label('K2_ln1')
    F = 16
    a(f's_mul_i32 s46, s52, 14336'); srd(a, 36, 10, WS_N, 14336, 46)
    a('v_lshl_add_u32 v48, v{W}, 2, v{G}'.format(W=W, G=G)); a(f'v_lshlrev_b32 v49, 7, v{Qv}'); a(f'v_add_u32 v49, {LSCR}, v49'); a('v_lshl_add_u32 v48, v48, 3, v49')
    a(f'v_lshlrev_b32 v50, 4, v{L}'); a(f'v_lshl_add_u32 v50, v{W}, 10, v50')
    a(f's_waitcnt vmcnt({vm0 - (v_after - 8)})')
    for i in range(16): unpack(a, F+2*i, F+2*i+1, XRW+i)
    if not WLATE: wload(2)
    a(f'v_add_f32 v52, v{F}, v{F+1}'); a(f'v_mul_f32 v53, v{F}, v{F}'); a(f'v_add_f32 v54, v{F+2}, v{F+3}'); a(f'v_mul_f32 v55, v{F+2}, v{F+2}')
    a(f'v_fmac_f32 v53, v{F+1}, v{F+1}'); a(f'v_fmac_f32 v55, v{F+3}, v{F+3}')
    for i in range(4, 32, 2):
        a(f'v_add_f32 v52, v52, v{F+i}'); a(f'v_fmac_f32 v53, v{F+i}, v{F+i}'); a(f'v_add_f32 v54, v54, v{F+i+1}'); a(f'v_fmac_f32 v55, v{F+i+1}, v{F+i+1}')
    a('v_add_f32 v52, v52, v54'); a('v_add_f32 v53, v53, v55')
    a('ds_write_b64 v48, v[52:53]')
    a('s_waitcnt lgkmcnt(0)'); a('s_barrier')
    for i in range(8): a(f'ds_read_b128 {vr(56+4*i,4)}, v49 offset:{16*i}')
    if not WLATE: wload(3)
    a('s_waitcnt lgkmcnt(0)')
    n = 16
    while n > 1:
        n //= 2
        for i in range(n):
            a(f'v_add_f32 v{56+2*i}, v{56+2*i}, v{56+2*(n+i)}'); a(f'v_add_f32 v{57+2*i}, v{57+2*i}, v{57+2*(n+i)}')
    m, v = 56, 57
    a(f'v_mul_f32 v{m}, {f32(1/448)}, v{m}'); a(f'v_mul_f32 v{v}, {f32(1/448)}, v{v}')
    a(f'v_fma_f32 v{v}, -v{m}, v{m}, v{v}'); a(f'v_max_f32 v{v}, 0, v{v}')
    rbf(a, v, v); a(f'v_add_f32 v{v}, {f32(1e-5)}, v{v}'); rbf(a, v, v)
    a(f'v_sqrt_f32 v{v}, v{v}'); rbf(a, m, m)
    rbf(a, v, v); a(f'v_rcp_f32 v{v}, v{v}')
    if LNFAST:
        a('s_nop 0'); a(f'v_mul_f32 v{m}, v{m}, v{v}')
        for i in range(32): a(f'v_fma_f32 v{F+i}, v{F+i}, v{v}, -v{m}')
        for i in range(16): a(f'v_cvt_pk_bf16_f32 v{XRW+i}, v{F+2*i}, v{F+2*i+1}')
    else:
        for i in range(32): a(f'v_sub_f32 v{F+i}, v{F+i}, v{m}')
        if not WLATE: wload(4)
        for i in range(16): a(f'v_cvt_pk_bf16_f32 v{XRW+i}, v{F+2*i}, v{F+2*i+1}')
        for i in range(16): unpack(a, F+2*i, F+2*i+1, XRW+i)
        for i in range(32): a(f'v_mul_f32 v{F+i}, v{F+i}, v{v}')
        for i in range(16): a(f'v_cvt_pk_bf16_f32 v{XRW+i}, v{F+2*i}, v{F+2*i+1}')
    for i in range(4):
        a(f's_mov_b32 s53, {4096*i}')
        a(f'buffer_store_dwordx4 {vr(XRW+4*i,4)}, v50, s[36:39], s53 offen sc1')
    a('s_waitcnt vmcnt(0)'); a('s_barrier')
    a('s_lshl_b32 s46, s13, 7'); a('s_and_b32 s53, s2, 7'); a('s_lshl_b32 s53, s53, 2'); a('s_add_u32 s46, s46, s53'); a(f's_add_u32 s46, s46, {FL_N}')
    a.label('K2_g9')
    xs('A')
    a('s_mov_b32 s44, 0x8000')
    a.label('K2_o_pl')
    a('s_waitcnt vmcnt(0)')
    a(f'v_readfirstlane_b32 s{sNON}, v119'); a('s_nop 3')
    a(f's_cmp_lg_u32 s{sNON}, 0'); a('s_cbranch_scc1 K2_o_pd')
    a(f'buffer_load_dword v119, v118, s[{SDBG}:{SDBG+3}], 0 offen sc1')
    a('s_sub_u32 s44, s44, 1'); a('s_cmp_lg_u32 s44, 0'); a('s_cbranch_scc1 K2_o_pl')
    a.label('K2_o_pd')
    a('s_cmp_eq_u32 s47, 0'); a('s_cbranch_scc1 K2_p9')
    a('s_cmp_lg_u32 s14, 0'); a('s_cbranch_scc1 K2_p9')
    a('s_mov_b64 exec, 1')
    a('buffer_store_dword v119, v118, s[16:19], s46 offen sc1')
    a('s_mov_b64 exec, -1')
    a.label('K2_p9')
    xs('B')
    a.vm = 0
    if WLATE >= 2: wload(0); wload(1)
    if WLATE: wload(2); wload(3); wload(4)
    for t in range(5): tW[t] = 0
    t0, t1, t2 = 112, 113, 117
    for n in range(4):
        a(f'v_lshl_add_u32 v{t0}, v{W}, 3, v{Hh}'); a(f'v_add_u32 v{t1}, {2*n}, v{t0}')
        a(f'v_and_b32 v{t2}, 7, v{t1}'); a(f'v_lshlrev_b32 v{t2}, 1, v{t2}'); a(f'v_xor_b32 v{t2}, v{t2}, v{Pp}'); a(f'v_lshlrev_b32 v{t2}, 4, v{t2}')
        a(f'v_lshl_add_u32 v{VD_(n)}, v{t0}, 9, v{t2}')
        a(f'v_and_b32 v{t2}, 15, v{t1}'); a(f'v_xor_b32 v{t2}, v{t2}, v{Pp}'); a(f'v_lshlrev_b32 v{t2}, 4, v{t2}')
        a(f'v_lshl_add_u32 v{KD_(n)}, v{t0}, 9, v{t2}')
    for i in range(4):
        a(f'v_add_u32 v{t0}, {4*i}, v{G}'); a(f'v_xor_b32 v{t0}, v{t0}, v{Qv}'); a(f'v_lshlrev_b32 v{t0}, 4, v{t0}')
        a(f'v_lshl_add_u32 v{KA_(i)}, v{Qv}, 9, v{t0}')
    a(f'v_lshl_add_u32 v{t1}, v{G}, 2, v{R}')
    a(f'v_lshlrev_b32 v{t2}, 3, v{C4}'); a(f'v_lshl_add_u32 v{t2}, v{t1}, 9, v{t2}'); a(f'v_add_u32 v{t2}, {LV}, v{t2}')
    a(f'v_and_b32 v{t1}, 7, v{t1}')
    for i in range(8):
        a(f'v_xor_b32 v{t0}, {i}, v{t1}'); a(f'v_lshl_add_u32 v{VA_(i)}, v{t0}, 5, v{t2}')
    a(f'v_lshl_add_u32 v{t1}, v{G}, 3, v{R}')
    a(f'v_lshlrev_b32 v{t2}, 3, v{C4}'); a(f'v_lshl_add_u32 v{t2}, v{t1}, 9, v{t2}')
    a(f'v_and_b32 v{t1}, 1, v{G}'); a(f'v_lshl_add_u32 v{t1}, v{t1}, 2, v{R}')
    for i in range(8):
        a(f'v_xor_b32 v{t0}, {i}, v{t1}'); a(f'v_lshl_add_u32 v{WAL(i)}, v{t0}, 5, v{t2}'); a(f'v_add_u32 v{WAH(i)}, {LV}, v{WAL(i)}')
    a(f'v_lshlrev_b32 v{MA}, 5, v{G}'); a(f'v_add_u32 v{MA}, {LMOD}, v{MA}')
    a(f'v_lshlrev_b32 v{t0}, 18, v{W}'); a(f'v_lshl_add_u32 v{ST_(0)}, v{L}, 4, v{t0}'); a(f'v_add_u32 v{ST_(1)}, {1<<17}, v{ST_(0)}')
    a(f'v_mul_u32_u24 v{t0}, {2*14336}, v{W}'); a(f'v_lshl_add_u32 v{NV_(0)}, v{L}, 4, v{t0}'); a(f'v_add_u32 v{NV_(1)}, 14336, v{NV_(0)}')
    a('s_waitcnt lgkmcnt(0)')
    a(f's_mov_b32 s{sATT}, 0'); a(f's_mov_b32 s{s4K}, 4096')
    srd(a, SV, 6, 0, 1 << 20, 50)
    srd(a, SO, 10, WS_O, 0, 48); a(f's_sub_u32 s{SO+2}, {1<<20}, s49')
    a('s_lshl_b32 s52, s2, 2'); a('s_add_u32 s52, s52, s14')
    if not WOL2:
        a('s_mov_b32 s56, s60'); a('s_mov_b32 s57, s61'); a('s_sub_u32 s53, s52, 392')
        a('s_cmp_ge_u32 s52, 392'); a('s_cbranch_scc1 K2_pf')
    a('s_mov_b32 s56, s54'); a('s_mov_b32 s57, s55'); a('s_mov_b32 s53, s52')
    a('s_cmp_lt_u32 s52, 196'); a('s_cbranch_scc1 K2_pf')
    a('s_mov_b32 s56, s62'); a('s_mov_b32 s57, s63'); a('s_sub_u32 s53, s52, 196')
    a.label('K2_pf')
    a('s_lshl_b32 s53, s53, 13'); a('s_add_u32 s56, s56, s53'); a('s_addc_u32 s57, s57, 0')
    a('s_lshl_b32 s53, s14, 18'); a('s_sub_u32 s56, s56, s53'); a('s_subb_u32 s57, s57, 0')
    a('s_and_b32 s57, s57, 0xffff'); a('s_mov_b32 s59, 0x20000')
    a('s_add_u32 s53, s53, 8192'); a(f's_cmp_lt_u32 s52, {392 if WOL2 else 840}'); a('s_cselect_b32 s58, s53, 0')
    a('s_mov_b32 s53, 0xfffffc00')
    GP.roles2(a)
    a('s_lshr_b32 s47, s2, 3'); a('s_lshl_b32 s47, s47, 2'); a('s_add_u32 s47, s47, s14'); a(f's_mul_i32 s47, s47, {7168 if X3 else 28672}')
    if X3: a('s_bfe_u32 s73, s2, 0x20001'); a(f's_mul_i32 s73, s73, {1024*896}'); a('s_add_u32 s47, s47, s73')
    a('s_add_u32 s76, s60, s47'); a('s_addc_u32 s77, s61, 0'); a('s_lshl_b32 s47, s14, 18'); a('s_sub_u32 s76, s76, s47'); a('s_subb_u32 s77, s77, 0')
    a('s_and_b32 s77, s77, 0xffff'); a(f's_add_u32 s78, s47, {7168 if X3 else 28672}'); a('s_mov_b32 s79, 0x20000')
    a(f's_mul_i32 s47, s13, {8*14336}'); srd(a, SN, 10, WS_N, 8*14336, 47)
    a(f's_mov_b32 s47, {(63-WOS)*1024}')
    sp.stamp()
    a(f'v_lshlrev_b32 v0, 4, v{L}'); a(f'v_add_u32 v0, {FL_M}, v0')
    a('s_lshl_b32 s44, s13, 7'); a(f's_add_u32 s44, s44, {FL_N - 28*4}'); a(f'v_lshlrev_b32 v1, 2, v{L}'); a('v_add_u32 v1, s44, v1')
    a(f'v_cmp_gt_u32 vcc, 28, v{L}'); a('s_nop 1'); a('v_cndmask_b32 v0, v1, v0, vcc')
    a(f'v_lshlrev_b32 v2, 4, v{TID}'); a(f'v_add_u32 v3, {LMOD}, v2')
    a('s_mov_b32 s44, 0x8000')
    if P1: a('s_cmp_lg_u32 s14, 0'); a('s_cbranch_scc1 K2_m_pd')
    a.label('K2_m_pl')
    a('buffer_load_dword v1, v0, s[16:19], 0 offen sc1')
    a('s_waitcnt vmcnt(0)')
    a(f'v_cmp_eq_u32 vcc, s{sNON}, v1'); a('s_nop 1')
    a('s_and_b32 vcc_hi, vcc_hi, 15'); a('s_bcnt1_i32_b64 s73, vcc'); a('s_cmp_eq_u32 s73, 36'); a('s_cbranch_scc1 K2_m_pd')
    a(f's_sleep {SLP}')
    a('s_sub_u32 s44, s44, 1'); a('s_cmp_lg_u32 s44, 0'); a('s_cbranch_scc1 K2_m_pl')
    a.label('K2_m_pd')
    if P1: a('s_barrier')
    xs('D')
    tM = a.vmem(f'buffer_load_dwordx4 v[4:7], v2, s[{SMOD}:{SMOD+3}], 0 offen sc1')
    def nload(s):
        a(f's_mov_b32 s{sT1}, {s*1024}')
        for qb in range(2):
            tN[s] = a.vmem(f'buffer_load_dwordx4 {vr(NR_(s,qb),4)}, v{NV_(qb)}, s[{SN}:{SN+3}], s{sT1} offen sc1')
    nload(0); nload(1); nload(2)
    srd(a, SK, 4, 0, 1 << 20, 50)
    def wread(t, db, h):
        b = wslot(t); A = WAL if b < LV else WAH
        return f'ds_read_b64_tr_b16 {ar(VF_(db)+2*h,2)}, v{A(db&7)} offset:{(b % LV) + h*2048 + (db>>3)*256}'
    def modreads(s):
        m = MC_(s & 1)
        return [f'ds_read_b128 {vr(m,4)}, v{MA} offset:{1792+128*s}', f'ds_read_b128 {vr(m+4,4)}, v{MA} offset:{1792+128*s+16}',
                f'ds_read_b128 {vr(m+8,4)}, v{MA} offset:{128*s}', f'ds_read_b128 {vr(m+12,4)}, v{MA} offset:{128*s+16}']
    def modvalu(s):
        m = MC_(s & 1); out = []
        for qb in range(2):
            for i in range(4):
                k = (qb*4+i) % 4
                ta, tb = TMP + 2*k, TMP + 2*k + 1
                raw = NR_(s, qb) + i
                out.append([f'v_lshlrev_b32 v{ta}, 16, v{raw}', f'v_and_b32 v{tb}, 0xffff0000, v{raw}',
                            f'v_fma_f32 v{ta}, v{ta}, v{m+2*i}, v{m+8+2*i}', f'v_fma_f32 v{tb}, v{tb}, v{m+2*i+1}, v{m+8+2*i+1}',
                            f'v_cvt_pk_bf16_f32 v{H_(s&1,qb)+i}, v{ta}, v{tb}'])
        return out
    a.wait_vm(tM)
    a('ds_write_b128 v3, v[4:7]')
    a('s_waitcnt lgkmcnt(0)'); a('s_barrier')
    sp.stamp()
    for x in modreads(0): a(x)
    for db in range(16):
        for h in range(2): a(wread(0, db, h))
    a.wait_vm(tN[0], ' lgkmcnt(15)')
    for grp in modvalu(0):
        for x in grp: a(x)
    for x in modreads(1): a(x)
    a('s_waitcnt lgkmcnt(0)')
    sp.stamp()
    NS = 14
    tok = {}
    kv_at = {8: ('K', 0), 9: ('K', 1), 10: ('K', 2), 11: ('V', 0), 12: ('K', 3), 13: ('V', 1)}
    def tile_items(key):
        if key[0] == 'W':
            t = key[1]; base, so, vo, sd = wslot(t), t*32*8192, WD_, SWQ
        else:
            kind, tt = key
            base, so, vo, sd = (LK if kind == 'K' else LV) + tt*TILE, tt*TILE, (KD_ if kind == 'K' else VD_), (SK if kind == 'K' else SV)
        def mk(n):
            def f():
                tk = a.vmem(dma(vo(n), sd, f's{sT0}', n))
                if key[0] == 'W': tW[key[1]] = tk
                else: tok[key] = tk
            return f
        return [setm0(base), f's_mov_b32 s{sT0}, {hex(so)}'], [mk(n) for n in range(4)]
    def conv_ops(st, qb):
        Xb, Yb, q = O_(2*st, qb), O_(2*st+1, qb), Q_(st, qb)
        return ([f'v_cvt_pk_bf16_f32 v{q}, v{Xb}, v{Xb+1}', f'v_cvt_pk_bf16_f32 v{q+1}, v{Xb+2}, v{Xb+3}',
                 f'v_cvt_pk_bf16_f32 v{q+2}, v{Yb}, v{Yb+1}', f'v_cvt_pk_bf16_f32 v{q+3}, v{Yb+2}, v{Yb+3}'],
                [f'v_permlane32_swap_b32 v{q}, v{q+2}', f'v_permlane32_swap_b32 v{q+1}, v{q+3}'],
                [f'v_permlane16_swap_b32 v{q}, v{q+2}', f'v_permlane16_swap_b32 v{q+1}, v{q+3}'],
                [f'v_mov_b64 v[{Xb}:{Xb+1}], 0', f'v_mov_b64 v[{Xb+2}:{Xb+3}], 0', f'v_mov_b64 v[{Yb}:{Yb+1}], 0', f'v_mov_b64 v[{Yb+2}:{Yb+3}], 0'])
    for s in range(NS):
        if QS: sq_.stamp()
        G_ = [[] for _ in range(32)]
        Vv = [[] for _ in range(32)]
        cap = [1]*32
        bar = (s % 2 == 0)
        if s >= 1:
            G_[0].append(wread(s, 15, 0)); G_[1].append(wread(s, 15, 1))
        for k in (4, 12, 20, 28): G_[k].insert(0, 's_waitcnt lgkmcnt(8)'); cap[k] = 0
        tiles = []
        if s + 5 < NS: tiles.append(('W', s + 5))
        if s in kv_at: tiles.append(kv_at[s])
        if s + 1 < NS:
            def w(s=s, bar=bar):
                t = tN[s+1]
                if bar and s >= 2:
                    t = max(t, tW[s+1], tW[min(s+2, NS-1)])
                    if s == 12: t = max(t, tok['K', 1])
                a.wait_vm(t)
                if bar and s >= 2: a('s_barrier')
            G_[1].append(w)
            for k in range(30): G_[k+2].append(wread(s+1, k >> 1, k & 1))
            if s + 2 < NS:
                for i, x in enumerate(modreads(s+2)): G_[3+2*i].append(x); cap[3+2*i] = 0
            if s + 3 < NS:
                def nl(qb, s=s):
                    def f():
                        if qb == 0: a(f's_mov_b32 s{sT1}, {(s+3)*1024}')
                        tN[s+3] = a.vmem(f'buffer_load_dwordx4 {vr(NR_(s+3,qb),4)}, v{NV_(qb)}, s[{SN}:{SN+3}], s{sT1} offen sc1')
                    return f
                G_[2].append(nl(0)); G_[6].append(nl(1)); cap[2] = cap[6] = 0
        else:
            ks = [kread(0, kb, st) for kb in range(2) for st in range(8)]
            for i, x in enumerate(ks): G_[2+i].append(x)
        pos = [10, 14, 18, 22] if len(tiles) == 1 else [8, 11, 14, 17, 21, 24, 27, 30]
        for ti, key in enumerate(tiles):
            su, ds = tile_items(key)
            pp = pos[4*ti:4*ti+4]
            G_[pp[0]-1] = su + G_[pp[0]-1]; cap[pp[0]-1] = 0
            for p, d in zip(pp, ds): G_[p].append(d); cap[p] = 0
        if s + 1 < NS:
            grps = modvalu(s+1); seq = []
            for gi in range(10):
                if gi < 8: seq += grps[gi][0:2]
                if 1 <= gi < 9: seq += grps[gi-1][2:4]
                if gi >= 2: seq.append(grps[gi-2][4])
            lo = 10 if (bar and s >= 2) else 2
            rng = list(range(lo, 30))
            tot = len(seq); base = sum(cap[k] for k in rng); extra = tot - base
            cnt = {k: cap[k] for k in rng}
            order = [k for k in rng if cap[k]] + [k for k in rng if not cap[k]]
            i = 0
            while extra > 0:
                cnt[order[i % len(order)]] += 1; extra -= 1; i += 1
            p = 0
            for k in rng:
                Vv[k] = seq[p:p+cnt[k]]; p += cnt[k]
        else:
            pend = []
            for st in range(8):
                for qb in range(2):
                    c4, p32, p16, z = conv_ops(st, qb)
                    g = 4*st + 2 + qb + 5
                    pend += [(g, x) for x in c4] + [(g + 3, x) for x in p32] + [(g + 5, x) for x in p16] + [(g + 40, x) for x in z]
            pend.sort(key=lambda x: x[0])
            for k in range(32):
                n = 1 if G_[k] else 2
                while n and pend and pend[0][0] <= k:
                    Vv[k].append(pend.pop(0)[1]); n -= 1
        for db in range(16):
            for qb in range(2):
                k = db*2 + qb
                c = vr(O_(db, qb), 4)
                a(f'{M16} {c}, {ar(VF_(db),4)}, {vr(H_(s&1,qb),4)}, {c if s else 0}')
                for x in G_[k] + Vv[k]:
                    x() if callable(x) else a(x)
    if QS: sq_.stamp()
    a('s_waitcnt lgkmcnt(0)'); a('s_barrier')
    sp.stamp()
    conv = [x for x in pend if 'v_mov_b64' not in x[1]]
    zero = [x[1] for x in pend if 'v_mov_b64' in x[1]]
    mem = []
    for key in (('V', 2), ('K', 4)):
        kind, tt = key
        base = (LK if kind == 'K' else LV) + (tt & 3)*TILE
        mem.append([setm0(base), f's_mov_b32 s{sT0}, {hex(tt*TILE)}'])
        for n in range(4):
            mem.append([lambda n=n, kind=kind: a.vmem(dma((KD_ if kind == 'K' else VD_)(n), SK if kind == 'K' else SV, f's{sT0}', n))])
    need = lambda txt: int(txt.split()[1].strip('v,'))
    done_at = {}
    gi = 0
    order = [(c, st) for c in range(4) for st in range(8)]
    for idx, (c, st) in enumerate(order):
        q = Q_(st, c & 1)
        while any(q <= need(x[1]) < q + 4 for x in conv):
            x = conv.pop(0); a(x[1])
            if 'permlane' in x[1] or (conv and 'permlane' in conv[0][1]): a('s_nop 1')
        a(qk_mfma(c, st, '0'))
        n = 2
        if c & 1: a(kread(1, c >> 1, st)); n = 1
        elif mem and idx % 2 == 1 or (mem and idx >= 16):
            for x in mem.pop(0): x() if callable(x) else a(x)
            n = 0
        while n and conv:
            x = conv.pop(0); a(x[1]); n -= 1
            if 'permlane' in x[1] or (conv and 'permlane' in conv[0][1]): a('s_nop 1'); n = 0
        while n and zero:
            a(zero.pop(0)); n -= 1
    assert not mem
    for x in zero: a(x)
    softmax0(a, True, max(0, 8 - len(zero)))
    GP.flag_srd(a)
    if not GP.LATE:
        a('s_mov_b32 s44, 0x8000'); a(f'v_and_b32 v{S_(0)}, 0x3ff, v{ST_(0)}'); a(f'v_add_u32 v{S_(0)}, {FL_M+448}, v{S_(0)}')
        a.label('K2_n_pl')
        a(f'buffer_load_dword v{S_(0)+1}, v{S_(0)}, s[{GP.SF_}:{GP.SF_+3}], 0 offen sc1')
        a('s_waitcnt vmcnt(0)')
        a(f'v_cmp_eq_u32 vcc, s{sNON}, v{S_(0)+1}'); a('s_nop 1')
        a('s_bcnt1_i32_b64 s73, vcc'); a('s_cmp_ge_u32 s73, 56'); a('s_cbranch_scc1 K2_n_pd')
        a('s_sleep 8')
        a('s_sub_u32 s44, s44, 1'); a('s_cmp_lg_u32 s44, 0'); a('s_cbranch_scc1 K2_n_pl')
        a.label('K2_n_pd')
    a(f's_mov_b32 s{sVO}, {3*TILE}'); a(f's_mov_b32 s{sKO}, {5*TILE}')
    if FUSE:
        a(WOPF)
        a('s_getpc_b64 s[24:25]'); a.label('K2_pc2')
        a('s_add_u32 s24, s24, K2_tail-K2_pc2'); a('s_addc_u32 s25, s25, 0'); a('s_and_b32 s25, s25, 0xffff')
        a('s_mov_b32 s26, K2_fb-K2_tail'); a('s_mov_b32 s27, 0x20000')
        a(f'v_and_b32 v{S_(0)}, 0x3ff, v{ST_(0)}'); a(f'v_lshlrev_b32 v{S_(0)}, 3, v{S_(0)}'); a(f's_lshl_b32 s{sT0}, s14, 13')
        a(f'buffer_load_dword a128, v{S_(0)}, s[24:27], s{sT0} offen')
    sp.stamp()
    if STAMP and not QS and not FUSE: a('s_memrealtime s[90:91]'); a('s_waitcnt lgkmcnt(0)')
    a('.p2align 6')
    a.label('K2_loop')
    pre_len = len(a.L)
    for u in range(4):
        a(f's_waitcnt vmcnt({VMW}) lgkmcnt(0)'); a('s_barrier')
        loop_body(a, u, verbose=bool(os.environ.get('V')))
        if u == 2:
            a('s_cbranch_scc1 K2_tail')
    a('s_branch K2_loop')
    body = a.L[pre_len:]
    for p in check_text(body + body, 'k2 loop wrap'): print('HAZARD', p)
    a.label('K2_tail')
    a(f's_waitcnt vmcnt({0 if FUSE else 16}) lgkmcnt(0)'); a('s_barrier')
    sp.stamp()
    if STAMP and not QS and not FUSE: a('s_memrealtime s[92:93]'); a('s_waitcnt lgkmcnt(0)'); a('s_sub_u32 s92, s92, s90')
    for db in range(16):
        for h in range(2): a(vread(3, db, h))
    for qb in range(2): xlane(a, 'v_add_f32', L_(qb), S_(qb))
    a(f's_mov_b32 s{sT0}, {f32(THRESH)}')
    a(f'v_add_f32 v{S_(0)+1}, v{L_(0)}, v{L_(1)}')
    a(f'v_cmp_ngt_f32 vcc, s{sT0}, v{S_(0)+1}')
    a(f'v_rcp_f32 v{L_(0)}, v{L_(0)}'); a(f'v_rcp_f32 v{L_(1)}, v{L_(1)}')
    a(f's_cmp_lg_u64 vcc, 0'); a(f's_cselect_b32 s{sT1}, 1, 0')
    a(f'v_mov_b32 v{S_(0)+2}, s{sT1}')
    a(f's_lshl_b32 s{sT0}, s14, 2'); a(f's_add_u32 s{sT0}, s{sT0}, {LFLAG}'); a(f'v_mov_b32 v{S_(0)+3}, s{sT0}')
    a(f'ds_write_b32 v{S_(0)+3}, v{S_(0)+2}')
    def ep_ops(sq, qb, pk):
        Xb, Yb = O_(2*sq, qb), O_(2*sq+1, qb)
        o = []
        if pk:
            LP = L_(0)
            sel = 'op_sel:[0,0] op_sel_hi:[1,0]' if qb == 0 else 'op_sel:[0,1] op_sel_hi:[1,1]'
            for b in (Xb, Xb+2, Yb, Yb+2): o.append(f'v_pk_mul_f32 v[{b}:{b+1}], v[{b}:{b+1}], v[{LP}:{LP+1}] {sel}')
        else:
            for i in range(4):
                o += [f'v_mul_f32 v{Xb+i}, v{Xb+i}, v{L_(qb)}', f'v_mul_f32 v{Yb+i}, v{Yb+i}, v{L_(qb)}']
        o += [f'v_cvt_pk_bf16_f32 v{Xb}, v{Xb}, v{Xb+1}', f'v_cvt_pk_bf16_f32 v{Xb+1}, v{Xb+2}, v{Xb+3}',
              f'v_cvt_pk_bf16_f32 v{Xb+2}, v{Yb}, v{Yb+1}', f'v_cvt_pk_bf16_f32 v{Xb+3}, v{Yb+2}, v{Yb+3}',
              f'buffer_store_dwordx4 {vr(Xb,4)}, v{ST_(qb)}, s[{SO}:{SO+3}], {"0" if sq < 4 else f"s{s4K}"} offen offset:{(sq&3)*1024} {OFLAG}']
        return o
    pend = []
    NOV = 3
    for sq in range(NOV):
        for qb in range(2): pend += [(4*sq + 2 + qb + 8, x) for x in ep_ops(sq, qb, False)]
    for db in range(16):
        if db % 4 == 0: a(f's_waitcnt lgkmcnt({min(15, 33 - 2*db - 8)})')
        for qb in range(2):
            k = 2*db + qb
            a(pv_mfma(db, qb, 1))
            n = 2
            while n and pend and pend[0][0] <= k:
                x = pend.pop(0)[1]; a(x); n -= 1
                if 'store' in x: n = 0
    sp.stamp()
    for x in pend: a(x[1])
    for sq in range(NOV, 8):
        for qb in range(2):
            for x in ep_ops(sq, qb, True): a(x)
    sp.stamp()
    if not FUSE:
        if STAMP: a('s_waitcnt vmcnt(0)')
        sp.stamp(); sp.stamp(True); sp.dump(10, 14, S_(2))
        if STAMP and not QS: a(f'v_mov_b32 v{S_(2)+1}, s92'); a(f'buffer_store_dword v{S_(2)+1}, v{S_(2)}, s[96:99], s100 offen offset:60')
        a(f's_cmp_lg_u32 s{sATT}, 0'); a('s_cbranch_scc1 K2_end')
        a(f'v_mov_b32 v{S_(0)+3}, {LFLAG}')
        a('s_waitcnt lgkmcnt(0)'); a('s_barrier')
    else:
        if X3:
            a.g3 = g3 = GP2.Oproj(a)
            g3.w_setup()
            for ks in range(2*GP.NPRE):
                for f in g3.w_tile(ks): f()
            a(f's_waitcnt vmcnt({4*GP.NPRE})')
        else:
            a.g3 = g3 = GP.Gemm(a, 3)
            a(f's_cmp_ge_u32 s{GP.sIDX}, 28'); a('s_cbranch_scc1 K2_np')
            g3.w_setup()
            for ks in range(GP.NPRE):
                for f in g3.w_pre(ks): f()
            a(f's_waitcnt vmcnt({4*GP.NPRE})'); a('s_branch K2_nj')
            a.label('K2_np')
            a('s_waitcnt vmcnt(0)')
            a.label('K2_nj')
        a(f'v_mov_b32 v{S_(0)+3}, {LFLAG}')
        a('s_waitcnt lgkmcnt(0)'); a('s_barrier')
        a(f's_cmp_lg_u32 s{sATT}, 0'); a('s_cbranch_scc1 K2_go')
    a(f'ds_read_b128 {vr(S_(1),4)}, v{S_(0)+3}')
    a('s_waitcnt lgkmcnt(0)')
    a(f'v_or3_b32 v{S_(1)}, v{S_(1)}, v{S_(1)+1}, v{S_(1)+2}'); a(f'v_or_b32 v{S_(1)}, v{S_(1)}, v{S_(1)+3}')
    a('s_nop 0')
    a(f'v_readfirstlane_b32 s{sT0}, v{S_(1)}')
    a('s_nop 3')
    if not FUSE:
        a(f's_cmp_eq_u32 s{sT0}, 0'); a('s_cbranch_scc1 K2_end')
    else:
        a(f's_cmp_lg_u32 s{sT0}, 0'); a('s_cbranch_scc1 K2_fb')
        a.label('K2_go')
        a(f's_lshl_b32 s44, s13, 7'); a('s_lshl_b32 s45, s12, 2'); a('s_add_u32 s44, s44, s45')
        GP.set_flag(a, 'K2_a', 44, 8)
        sp.stamp(); sp.stamp(True); sp.dump(10, 14, 8)
        if X3:
            GP2.post2(a, 'K2')
            a('s_endpgm')
        else:
            a(f's_cmp_ge_u32 s{GP.sIDX}, 28'); a('s_cbranch_scc1 K2_uw')
            GP.post(a, 'K2')
            a('s_endpgm')
            a.label('K2_uw')
            GP.uw_phase(a, 'K2')
            a('s_endpgm')
    a.label('K2_fb')
    a(f's_mov_b32 s{sATT}, 1')
    a('s_waitcnt vmcnt(0)'); a('s_barrier')
    for qb in range(2): a(f'v_mov_b32 v{NM_(qb)}, 0xff800000')
    a(f's_mov_b32 s{sKO}, 0')
    a.label('K2_mx')
    a(setm0(LK)); a('s_nop 0')
    for n in range(4): a(dma(KD_(n), SK, f's{sKO}', n))
    a('s_waitcnt vmcnt(0)'); a('s_barrier')
    for kb in range(2):
        for st in range(8): a(kread(0, kb, st))
    a('s_waitcnt lgkmcnt(0)'); a('s_barrier')
    for c in range(4):
        for st in range(8): a(qk_mfma(c, st, '0'))
    a.nop(8)
    for c in range(4):
        t = NM_(c & 1)
        a(f'v_max3_f32 v{t}, v{S_(c)}, v{S_(c)+1}, v{t}'); a(f'v_max3_f32 v{t}, v{S_(c)+2}, v{S_(c)+3}, v{t}')
    a(f's_add_u32 s{sKO}, s{sKO}, {TILE}'); a(f's_cmp_lt_u32 s{sKO}, {1<<20}'); a('s_cbranch_scc1 K2_mx')
    for qb in range(2): xlane(a, 'v_max_f32', NM_(qb), NM_(qb)+1)
    for qb in range(2):
        t = NM_(qb)
        a(f'v_sub_f32 v{t}, 0, v{t}')
        for i in range(1, 4): a(f'v_mov_b32 v{t+i}, v{t}')
    for i in range(0, 128, 2): a(f'v_mov_b64 v[{i}:{i+1}], 0')
    k0 = load_tile(a, 'K', 0); k1 = load_tile(a, 'K', 1)
    for kind, t in (('K', 2), ('V', 0), ('K', 3), ('V', 1), ('V', 2)): load_tile(a, kind, t)
    preamble(a, False, k0, k1)
    a(f's_mov_b32 s{sVO}, {3*TILE}'); a(f's_mov_b32 s{sKO}, {5*TILE}')
    if FUSE: a(WOPF); a(WOPF)
    a('s_branch K2_loop')
    a.label('K2_end')
    a('s_endpgm')
    return a, f'; @launch {"" if os.environ.get("PLAIN") else "kernel="+N+" "}grid=(256,1,1) block=(256,1,1) lds=163840', kd(N, 256, 132, sgpr=102 if STAMP else (80 if FUSE else 64))
```

```python
from gen_common import *
M16 = 'v_mfma_f32_16x16x32_bf16'
FL_A, FL_B, FL_C, FL_U = 0, 2048, 4096, 6144
SC = 'sc1'
sX, sOUT, sW2, sWO, sW1, sWS, sWAVE = 64, 66, 54, 60, 62, 10, 14
sIDX, sTB, sNT, sLB, sROT = 68, 69, 70, 71, 72
sT = [73, 74, 75]
SW_, SA_, SF_ = 24, 28, 32
SX_, SM_, SO2, SO3 = 16, 20, 36, 40
ACC = lambda nb, tb: (nb*4+tb)*4
AF = lambda buf, nb: 64 + buf*16 + nb*4
BSL = [96, 112, 128, 160, 176, 192, 208, 224]
BF = lambda slot, tb: BSL[slot] + tb*4
WV = lambda m: 144 + m
RA = lambda nb: 148 + nb
BV = lambda tb: 152 + tb
LANE, GG, T0, T1 = 156, 157, 158, 159
E0 = 240
X1A = 120
D = 8; PF = 7
E4F = int(os.environ.get('E4F', 2))
DYN = int(os.environ.get('DYN', 1))
LATE = int(os.environ.get('LATE', 1))
PSL = int(os.environ.get('PSL', 2))
FL_M = 8192
NPRE = int(os.environ.get('NPRE', 2))
BSC = os.environ.get('BSC', SC)

def xlane(a, op, r, t):
    for sw in ('v_permlane32_swap_b32', 'v_permlane16_swap_b32'):
        a(f'v_mov_b32 v{t}, v{r}'); a('s_nop 1'); a(f'{sw} v{r}, v{t}'); a('s_nop 1')
        a(f'{op} v{r}, v{r}, v{t}')
def lane_id(a, r):
    a(f'v_mbcnt_lo_u32_b32 v{r}, -1, 0'); a(f'v_mbcnt_hi_u32_b32 v{r}, -1, v{r}')

def roles(a):
    a(f's_and_b32 s{sT[0]}, s2, 7'); a(f's_lshr_b32 s{sIDX}, s2, 3')
    a(f's_mul_i32 s{sTB}, s{sIDX}, 37'); a(f's_lshr_b32 s{sTB}, s{sTB}, 8')
    a(f's_mul_i32 s{sNT}, s{sTB}, 7'); a(f's_sub_u32 s{sNT}, s{sIDX}, s{sNT}')
    a(f's_lshl_b32 s{sT[1]}, s{sT[0]}, 2'); a(f's_add_u32 s{sTB}, s{sTB}, s{sT[1]}')
def roles2(a):
    a(f's_lshl_b32 s{sLB}, s{sWAVE}, 15'); a(f's_cmp_eq_u32 s{sWAVE}, 3'); a(f's_cselect_b32 s{sLB}, 0x20000, s{sLB}')

NONCE = int(os.environ.get('NONCE', 1))
sNON = 75
def flag_srd(a): srd(a, SF_, sWS, WS_FLAG, 16384)
def set_flag(a, tag, offreg, vt):
    a(f's_cmp_lg_u32 s{sWAVE}, 0'); a(f's_cbranch_scc1 {tag}_nf')
    a(f'v_mov_b32 v{vt}, 0'); a(f'v_mov_b32 v{vt+1}, ' + (f's{sNON}' if NONCE else '1'))
    a(f's_mov_b64 exec, 1')
    a(f'buffer_store_dword v{vt+1}, v{vt}, s[{SF_}:{SF_+3}], s{offreg} offen {SC}')
    a(f's_mov_b64 exec, -1')
    a.label(f'{tag}_nf')
def poll(a, tag, vaddr, vt, mask, extra=None):
    a(f's_mov_b32 s{sT[1]}, 0x8000')
    a.label(f'{tag}_pl')
    a(f'buffer_load_dword v{vt}, v{vaddr}, s[{SF_}:{SF_+3}], 0 offen {SC}')
    if extra: a(f'buffer_load_dword v{extra[1]}, v{extra[0]}, s[{SF_}:{SF_+3}], 0 offen {SC}')
    a('s_waitcnt vmcnt(0)')
    a(f'v_cmp_eq_u32 vcc, s{sNON}, v{vt}' if NONCE else f'v_cmp_ne_u32 vcc, 0, v{vt}')
    a('s_nop 1')
    a(f's_and_b32 s{sT[0]}, vcc_lo, {hex(mask)}')
    if extra:
        a(f'v_cmp_eq_u32 vcc, s{sNON}, v{extra[1]}'); a('s_nop 1'); a('s_bcnt1_i32_b64 s46, vcc')
        a(f's_cmp_ge_u32 s46, {extra[2]}'); a(f's_cselect_b32 s{sT[0]}, s{sT[0]}, 0')
    a(f's_cmp_eq_u32 s{sT[0]}, {hex(mask)}'); a(f's_cbranch_scc1 {tag}_pd')
    a(f's_sleep {PSL}')
    a(f's_sub_u32 s{sT[1]}, s{sT[1]}, 1'); a(f's_cmp_lg_u32 s{sT[1]}, 0'); a(f's_cbranch_scc1 {tag}_pl')
    a.label(f'{tag}_pd')
    a.vm = 0

class Gemm:
    X1MEM = False
    def __init__(self, a, kid):
        self.a = a; self.kid = kid
        self.KS = 32 if kid == 3 else 14
        self.tB = {}; self.tW = {}
    def w_setup(self):
        a = self.a; KS = self.KS
        l, t0, t1 = RA(0), RA(1), RA(2)
        lane_id(a, l)
        a(f'v_bfe_u32 v{t0}, v{l}, 4, 2'); a(f'v_lshlrev_b32 v{t0}, 1, v{t0}'); a(f'v_and_b32 v{t1}, 7, v{l}'); a(f'v_xor_b32 v{t0}, v{t0}, v{t1}')
        a(f'v_lshlrev_b32 v{t0}, 4, v{t0}')
        a(f'v_lshrrev_b32 v{t1}, 3, v{l}'); a(f'v_mul_u32_u24 v{t1}, 896, v{t1}'); a(f'v_add_u32 v{WV(0)}, v{t0}, v{t1}')
        for m in range(1, 4): a(f'v_add_u32 v{WV(m)}, {6144*m}, v{WV(0)}')
        self.dyn = DYN and self.kid == 3
        self.nw0 = 4 if (self.dyn and DYN != 1) else PF
        a(f's_mul_i32 s{sT[0]}, s{sWAVE}, {(4 if self.dyn else KS)*32*896}'); a(f's_lshl_b32 s{sT[1]}, s{sNT}, 7'); a(f's_add_u32 s{sT[0]}, s{sT[0]}, s{sT[1]}')
        srd(a, SW_, sWO if self.kid == 3 else sW2, 0, 0, sT[0]); a(f's_sub_u32 s{SW_+2}, {4*KS*32*896}, s{sT[0]}')
        RM = int(os.environ.get('RM', 0))
        if RM == 0:
            a(f's_and_b32 s{sROT}, s2, 7'); a(f's_mul_i32 s{sROT}, s{sROT}, {KS}'); a(f's_lshr_b32 s{sROT}, s{sROT}, 3')
        elif RM == 1:
            a(f's_and_b32 s{sROT}, s{sTB}, 3'); a(f's_lshl_b32 s{sT[0]}, s{sNT}, 2'); a(f's_add_u32 s{sROT}, s{sROT}, s{sT[0]}')
            a(f's_mul_i32 s{sROT}, s{sROT}, {KS*2341}'); a(f's_lshr_b32 s{sROT}, s{sROT}, 16')
        else:
            a(f's_mul_i32 s{sROT}, s{sNT}, {KS*9363}'); a(f's_lshr_b32 s{sROT}, s{sROT}, 16')
        a(f's_mov_b32 s49, s{sROT}')
        if self.dyn:
            a('s_and_b32 s49, s2, 7'); a('s_lshl_b32 s49, s49, 4')
    def adv(self, reg):
        a = self.a
        a(f's_add_u32 s{reg}, s{reg}, 1'); a(f's_cmp_eq_u32 s{reg}, {self.KS}'); a(f's_cselect_b32 s{reg}, 0, s{reg}')
    def w_pre(self, ks):
        a = self.a
        def su():
            if self.dyn and DYN == 1 and 4 <= ks < PF:
                a('s_add_u32 s51, s49, 16'); a('s_and_b32 s51, s51, 127')
                a(f's_add_u32 m0, s{sLB}, {(ks % D)*4096}'); a(f's_add_u32 s51, s51, {ks % 4}'); a(f's_mul_i32 s50, s51, {32*896}')
                return
            if self.dyn:
                if ks and ks % 4 == 0: self.pick(ks // 4)
                a(f's_add_u32 m0, s{sLB}, {(ks % D)*4096}'); a(f's_add_u32 s51, s49, {ks % 4}'); a(f's_mul_i32 s50, s51, {32*896}'); a('s_lshl_b32 s51, s51, 10')
                return
            if ks: self.adv(49)
            a(f's_add_u32 m0, s{sLB}, {(ks % D)*4096}'); a(f's_mul_i32 s50, s49, {32*896}')
        def d(m):
            def f(): self.tW[ks] = a.vmem(f'buffer_load_dwordx4 v{WV(m)}, s[{SW_}:{SW_+3}], s50 offen offset:{1024*m} lds')
            return f
        return [su] + [d(m) for m in range(4)]
    def ready_mask(self):
        a = self.a
        a('s_lshr_b32 s73, vcc_lo, 1'); a('s_and_b32 s73, s73, vcc_lo'); a(f's_and_b32 s{sROT}, s73, 0x5555')
    def pick(self, j):
        a = self.a; T = f'K2_d{j}'
        if DYN == 1:
            a('s_add_u32 s49, s49, 16'); a('s_and_b32 s49, s49, 127'); a('s_lshr_b32 s73, s49, 3'); a('s_lshl_b32 s43, 1, s73')
            test = f's_and_b32 s73, s{sROT}, s43'
        else:
            test = f's_andn2_b32 s73, s{sROT}, s43'
        a(f's_mov_b32 s{sT[1]}, 0x8000')
        a.label(f'{T}_l')
        a(test); a(f's_cbranch_scc1 {T}_g')
        a(f'buffer_load_dword v{T1}, v{T0}, s[{SF_}:{SF_+3}], 0 offen {SC}')
        a('s_waitcnt vmcnt(0)')
        a(f'v_cmp_eq_u32 vcc, s{sNON}, v{T1}'); a('s_nop 1')
        self.ready_mask()
        a(test); a(f's_cbranch_scc1 {T}_g')
        a('s_sleep 4')
        a(f's_sub_u32 s{sT[1]}, s{sT[1]}, 1'); a(f's_cmp_lg_u32 s{sT[1]}, 0'); a(f's_cbranch_scc1 {T}_l')
        a(f's_mov_b32 s{sROT}, 0x5555'); a(f's_branch {T}_l')
        a.label(f'{T}_g')
        if DYN != 1: a('s_ff1_i32_b32 s73, s73'); a('s_bitset1_b32 s43, s73'); a('s_lshl_b32 s49, s73, 3')
    def b_setup(self):
        a = self.a; KS = self.KS; NKS = 4*KS
        lane_id(a, LANE)
        a(f'v_bfe_u32 v{GG}, v{LANE}, 4, 2')
        a(f'v_lshlrev_b32 v{BV(0)}, 4, v{LANE}')
        for tb in range(1, 4): a(f'v_add_u32 v{BV(tb)}, {tb*NKS*1024}, v{BV(0)}')
        a(f's_mul_i32 s45, s{sTB}, {4*NKS*1024}'); a(f's_mul_i32 s46, s{sWAVE}, {(4 if self.dyn else KS)*1024}'); a('s_add_u32 s45, s45, s46')
        srd(a, SA_, sWS, WS_O if self.kid == 3 else WS_H, 0, 45); a(f's_sub_u32 s{SA_+2}, {128*NKS*1024}, s45')
        a(f'v_bfe_u32 v{T0}, v{LANE}, 2, 4'); a(f'v_bfe_u32 v{T1}, v{T0}, 1, 2')
        a(f'v_lshlrev_b32 v{T0}, 7, v{T0}'); a(f'v_and_b32 v{E0}, 3, v{LANE}'); a(f'v_lshl_add_u32 v{T0}, v{E0}, 3, v{T0}'); a(f'v_add_u32 v{T0}, s{sLB}, v{T0}')
        for nb in range(4):
            a(f'v_xor_b32 v{E0}, {nb}, v{T1}'); a(f'v_lshl_add_u32 v{RA(nb)}, v{E0}, 5, v{T0}')
        a(f's_mov_b32 s48, s{sROT}')
    def b_load(self, ks, m):
        a = self.a
        if m == 0 and self.dyn:
            if ks == 4 and DYN == 1: self.pick(1)
            if ks < self.nw0: a(f's_add_u32 s51, s49, {ks % 4}'); a('s_lshl_b32 s51, s51, 10')
        elif m == 0:
            if ks: self.adv(48)
            a('s_lshl_b32 s51, s48, 10')
        self.tB[ks] = a.vmem(f'buffer_load_dwordx4 {vr(BF(ks % D, m),4)}, v{BV(m)}, s[{SA_}:{SA_+3}], s51 offen {BSC}')
    def areads(self, ks):
        return [f'ds_read_b64_tr_b16 {vr(AF(ks&1,nb)+2*h,2)}, v{RA(nb)} offset:{(ks % D)*4096 + h*2048}' for nb in range(4) for h in range(2)]
    def main(self, sp):
        a = self.a; KS = self.KS; kid = self.kid
        NW0 = self.nw0
        for ks in range(PF):
            wq = self.w_pre(ks) if ks >= NW0 else None
            if wq: wq[0]()
            for m in range(4):
                if wq: wq[1+m]()
                self.b_load(ks, m)
            if ks == 0:
                for x in self.areads(0): a(x)
        EP = {}
        for ks in range(KS):
            nxt = []
            if ks + 1 < KS:
                t = self.tB[ks+1] if ks + 1 < NW0 else max(self.tB[ks+1], self.tW[ks+1])
                a.wait_vm(max(t, self.tB[ks]), ' lgkmcnt(0)'); nxt = self.areads(ks+1)
            else: a('s_waitcnt lgkmcnt(0)')
            pf = ks + PF; i = 0
            wp = self.w_pre(pf) if pf < KS else []
            for nb in range(4):
                for tb in range(4):
                    c = vr(ACC(nb, tb), 4)
                    a(f'{M16} {c}, {vr(AF(ks&1,nb),4)}, {vr(BF(ks % D, tb),4)}, {c if ks else 0}')
                    if i < 8 and nxt: a(nxt.pop(0))
                    if wp:
                        if i == 0: wp[0]()
                        if i >= 8:
                            m = (i - 8) >> 1
                            if i & 1: self.b_load(pf, m)
                            else: wp[1+m]()
                    i += 1
            if ks == KS - PF:
                EPB = BF((ks + PF) % D, 0); EP['B'] = EPB
                a(f'v_and_b32 v{E0+5}, 15, v{LANE}')
                a(f's_lshl_b32 s52, s{sTB}, 6'); a(f's_lshl_b32 s53, s{sWAVE}, 4'); a('s_add_u32 s52, s52, s53')
                a(f's_lshl_b32 s44, s{sNT}, 8')
                srd(a, SM_, sWS, WS_MOD, 6*448*4)
                a(f'v_lshlrev_b32 v{E0+6}, 4, v{GG}')
                a(f's_add_u32 s47, s44, {(2 if kid == 3 else 5)*1792}')
                for nb in range(4): a.vmem(f'buffer_load_dwordx4 {vr(EPB+4*nb,4)}, v{E0+6}, s[{SM_}:{SM_+3}], s47 offen offset:{64*nb} {SC}')
            if ks == KS - PF + 1 and kid == 3:
                EPC = BF((ks + PF) % D, 0); EP['C'] = EPC
                a(f's_add_u32 s47, s44, {4*1792}')
                for nb in range(4): a.vmem(f'buffer_load_dwordx4 {vr(EPC+4*nb,4)}, v{E0+6}, s[{SM_}:{SM_+3}], s47 offen offset:{64*nb} {SC}')
            if ks == KS - PF + 2:
                EPX = BF((ks + PF) % D, 0); EP['X'] = EPX
                a('s_lshr_b32 s56, s52, 4'); a(f's_mul_i32 s56, s56, {14*1024}'); a(f's_lshl_b32 s57, s{sNT}, 11'); a('s_add_u32 s56, s56, s57')
                a('s_mul_i32 s58, s52, 896'); a(f's_lshl_b32 s57, s{sNT}, 7'); a('s_add_u32 s58, s58, s57')
                a(f'v_mul_u32_u24 v{E0+7}, 896, v{E0+5}'); a(f'v_lshl_add_u32 v{E0+7}, v{GG}, 3, v{E0+7}')
                srd(a, SX_, sX if kid == 3 else sOUT, 0, 2048*896)
                if kid == 3:
                    for nb in range(4): a.vmem(f'buffer_load_dwordx2 {vr(EPX+2*nb,2)}, v{E0+7}, s[{SX_}:{SX_+3}], s58 offen offset:{32*nb}')
                    srd(a, SO2, sWS, WS_Y, 128*14*1024); srd(a, SO3, sWS, WS_STAT, 7*2048*8)
                elif self.X1MEM:
                    srd(a, SO2, sWS, WS_X1, 128*14*1024)
                    for hh in range(2): a.vmem(f'buffer_load_dwordx4 {vr(EPX+4*hh,4)}, v{BV(0)}, s[{SO2}:{SO2+3}], s56 offen offset:{1024*hh} {SC}')
        sp.stamp()
        a(f'v_add_u32 v{E0+8}, s{sLB}, v{BV(0)}')
        a(f's_lshl_b32 s59, s{sWAVE}, 12')
        a(f'v_add_u32 v{E0+9}, s59, v{BV(0)}'); a(f'v_add_u32 v{E0+10}, 65536, v{E0+9}'); a(f'v_add_u32 v{E0+11}, 131072, v{E0+9}')
        a.nop(3)
        for tb in range(4):
            for nb in range(4): a(f'ds_write_b128 v{E0+8}, {vr(ACC(nb,tb),4)} offset:{(tb*4+nb)*1024}')
        a('s_waitcnt lgkmcnt(0)'); a('s_barrier')
        for src in range(4):
            for nb in range(4):
                a(f'ds_read_b128 {vr((src*4+nb)*4,4)}, v{E0+9+max(0,src-1)} offset:{(32768 if src == 1 else 0) + nb*1024}')
        a('s_waitcnt lgkmcnt(8)')
        for i in range(16): a(f'v_add_f32 v{i}, v{i}, v{16+i}')
        a('s_waitcnt lgkmcnt(0)')
        if kid == 3: a('s_barrier')
        for i in range(16): a(f'v_add_f32 v{32+i}, v{32+i}, v{48+i}')
        for i in range(16): a(f'v_add_f32 v{i}, v{i}, v{32+i}')
        sp.stamp()
        EPB = EP['B']
        a('s_waitcnt vmcnt(0)')
        for i in range(0, 16, 2): a(f'v_cvt_pk_bf16_f32 v{16+i//2}, v{i}, v{i+1}')
        for i in range(8): unpack(a, 2*i, 2*i+1, 16+i)
        for i in range(16): a(f'v_mul_f32 v{i}, v{i}, v{EPB+i}')
        for i in range(0, 16, 2): a(f'v_cvt_pk_bf16_f32 v{16+i//2}, v{i}, v{i+1}')
        if kid == 5 and not self.X1MEM:
            for i in range(8): a(f'v_accvgpr_read_b32 v{24+i}, a{X1A+i}')
            EPX = 24
        else: EPX = EP['X']
        for i in range(8): unpack(a, 2*i, 2*i+1, 16+i)
        for i in range(8): unpack(a, 32+2*i, 33+2*i, EPX+i)
        for i in range(16): a(f'v_add_f32 v{i}, v{i}, v{32+i}')
        for i in range(0, 16, 2): a(f'v_cvt_pk_bf16_f32 v{16+i//2}, v{i}, v{i+1}')
        if kid == 5:
            for nb in range(4): a(f'buffer_store_dwordx2 {vr(16+2*nb,2)}, v{E0+7}, s[{SX_}:{SX_+3}], s58 offen offset:{32*nb}')
            return
        EPC = EP['C']
        for i in range(8): unpack(a, 2*i, 2*i+1, 16+i)
        for i in range(16): a(f'v_mul_f32 v{32+i}, v{i}, v{EPC+i}')
        for i in range(0, 16, 2): a(f'v_cvt_pk_bf16_f32 v{24+i//2}, v{32+i}, v{33+i}')
        for hh in range(2): a.vmem(f'buffer_store_dwordx4 {vr(24+4*hh,4)}, v{BV(0)}, s[{SO2}:{SO2+3}], s56 offen offset:{1024*hh} {SC}')
        a('v_add_f32 v48, v0, v1'); a('v_mul_f32 v49, v0, v0'); a('v_add_f32 v50, v2, v3'); a('v_mul_f32 v51, v2, v2')
        a('v_fmac_f32 v49, v1, v1'); a('v_fmac_f32 v51, v3, v3')
        for i in range(4, 16, 2):
            a(f'v_add_f32 v48, v48, v{i}'); a(f'v_fmac_f32 v49, v{i}, v{i}'); a(f'v_add_f32 v50, v50, v{i+1}'); a(f'v_fmac_f32 v51, v{i+1}, v{i+1}')
        a('v_add_f32 v48, v48, v50'); a('v_add_f32 v49, v49, v51')
        for sw in ('v_permlane32_swap_b32', 'v_permlane16_swap_b32'):
            a('v_mov_b32 v50, v48'); a('v_mov_b32 v51, v49'); a('s_nop 0'); a(f'{sw} v48, v50'); a(f'{sw} v49, v51'); a('s_nop 0')
            a('v_add_f32 v48, v48, v50'); a('v_add_f32 v49, v49, v51')
        a(f'v_lshlrev_b32 v50, 3, v{E0+5}')
        a(f's_lshl_b32 s57, s{sNT}, 14'); a('s_lshl_b32 s59, s52, 3'); a('s_add_u32 s57, s57, s59')
        self.tlast = a.vmem(f'buffer_store_dwordx2 v[48:49], v50, s[{SO3}:{SO3+3}], s57 offen {SC}')
        for i in range(8): a(f'v_accvgpr_write_b32 a{X1A+i}, v{16+i}')

def uw_phase(a, T):
    a(f's_sub_u32 s13, s{sIDX}, 28'); a('s_lshl_b32 s13, s13, 3'); a('s_and_b32 s12, s2, 7'); a('s_add_u32 s13, s13, s12')
    a('s_cmp_ge_u32 s13, 28'); a(f's_cbranch_scc1 {T}_end')
    lane_id(a, 0); a(f's_lshl_b32 s12, s{sWAVE}, 6'); a('v_add_u32 v0, s12, v0')
    if LATE:
        lane_id(a, 1); a('v_lshlrev_b32 v1, 4, v1'); a(f'v_add_u32 v1, {FL_M+448}, v1')
        poll(a, f'{T}_u', 1, 2, 0xffffffff, (1, 3, 56))
    a('v_and_b32 v1, 7, v0'); a('v_lshrrev_b32 v2, 3, v0')
    a('v_mul_u32_u24 v3, 3584, v2'); a('v_lshl_add_u32 v3, v1, 4, v3'); a('v_lshlrev_b32 v4, 2, v2')
    a('s_lshl_b32 s44, s13, 7'); a('s_lshl_b32 s45, s13, 8')
    srd(a, 16, sW1, 0, 448*3584); srd(a, 20, sWS, WS_MOD + 3*1792, 2*1792); srd(a, 24, sWS, WS_U, 0x4000)
    CS, CC, Wr = 8, 24, 40
    for i in range(14):
        a(f'buffer_load_dword v{CS+i}, v4, s[20:23], 0 offen offset:{128*i} {SC}')
        a(f'buffer_load_dword v{CC+i}, v4, s[20:23], 0 offen offset:{1792+128*i} {SC}')
    for i in range(14):
        a(f's_add_u32 s46, s44, {32*3584*i}')
        a(f'buffer_load_dwordx4 {vr(Wr+4*i,4)}, v3, s[16:19], s46 offen')
    AU, AW = 96, 104
    for i in range(14):
        a(f's_waitcnt vmcnt({13-i})')
        for j in range(4):
            unpack(a, 112, 113, Wr+4*i+j)
            op = 'v_mul_f32' if i == 0 else 'v_fmac_f32'
            a(f'{op} v{AU+2*j}, v112, v{CC+i}'); a(f'{op} v{AU+2*j+1}, v113, v{CC+i}')
            a(f'{op} v{AW+2*j}, v112, v{CS+i}'); a(f'{op} v{AW+2*j+1}, v113, v{CS+i}')
    a('v_lshlrev_b32 v5, 8, v2'); a('v_lshl_add_u32 v5, v1, 5, v5')
    a(f'ds_write_b128 v5, {vr(AU,4)}'); a(f'ds_write_b128 v5, {vr(AU+4,4)} offset:16')
    a(f'ds_write_b128 v5, {vr(AW,4)} offset:8192'); a(f'ds_write_b128 v5, {vr(AW+4,4)} offset:8208')
    a('v_and_b32 v6, 63, v0'); a('v_lshlrev_b32 v6, 2, v6'); a('v_bfe_u32 v7, v0, 6, 1'); a('v_lshl_add_u32 v8, v7, 13, v6')
    a('s_waitcnt lgkmcnt(0)'); a('s_barrier')
    for i in range(32): a(f'ds_read_b32 v{40+i}, v8 offset:{256*i}')
    a('s_waitcnt lgkmcnt(0)')
    n = 32
    while n > 1:
        n //= 2
        for i in range(n): a(f'v_add_f32 v{40+i}, v{40+i}, v{40+n+i}')
    a(f'v_mov_b32 v41, {f32(LOG2E)}'); a('v_cmp_eq_u32 vcc, 0, v7'); a('s_nop 1'); a('v_cndmask_b32 v41, v41, 1.0, vcc'); a('v_mul_f32 v40, v40, v41')
    a(f'buffer_store_dword v40, v8, s[24:27], s45 offen {SC}')
    a('s_waitcnt vmcnt(0)'); a('s_barrier')
    a(f's_lshl_b32 s46, s13, 2'); a(f's_add_u32 s46, s46, {FL_U}')
    set_flag(a, f'{T}_u', 46, 1)

class Mlp1:
    NS = 14
    ACC = staticmethod(lambda fb, tb: (fb*2+tb)*4)
    BF = staticmethod(lambda ks, tb: 64 + (ks*2+tb)*4)
    U_ = staticmethod(lambda fb: 176 + 4*fb)
    W_ = staticmethod(lambda fb: 208 + 4*fb)
    RA = staticmethod(lambda i: 240 + i)
    WV = staticmethod(lambda m: 248 + m)
    BV = staticmethod(lambda tb: 250 + tb)
    E0 = 252
    AF = staticmethod(lambda fb: 4*fb)
    ST = staticmethod(lambda tb, nt: 32 + (tb*7+nt)*2)
    SW, SY, SU, SS, SH = 24, 28, 16, 20, 36
    sTB4, sFT = 76, 77
    V2 = False
    NPART = 7
    def __init__(self, a): self.a = a
    def w_issue(self):
        a = self.a; WV = self.WV
        l, t0, t1, t2 = 244, 245, 246, 247
        a(f's_cmp_ge_u32 s{sIDX}, 14'); a(f's_cselect_b32 s{self.sTB4}, 1, 0'); a(f's_mul_i32 s{self.sFT}, s{self.sTB4}, 14'); a(f's_sub_u32 s{self.sFT}, s{sIDX}, s{self.sFT}')
        a('s_and_b32 s44, s2, 7'); a('s_lshl_b32 s44, s44, 1'); a(f's_add_u32 s{self.sTB4}, s{self.sTB4}, s44')
        lane_id(a, l)
        a(f'v_and_b32 v{t2}, 15, v{l}')
        a(f's_mul_i32 s45, s{sWAVE}, {8*3584}')
        for m in range(2):
            a(f'v_lshrrev_b32 v{t0}, 4, v{l}')
            if m: a(f'v_add_u32 v{t0}, 4, v{t0}')
            a(f'v_lshlrev_b32 v{t1}, 1, v{t0}'); a(f'v_xor_b32 v{t1}, v{t1}, v{t2}'); a(f'v_lshlrev_b32 v{t1}, 4, v{t1}')
            a(f'v_mul_u32_u24 v{t0}, 3584, v{t0}'); a(f'v_add3_u32 v{WV(m)}, v{t0}, v{t1}, s45')
            if m: a(f'v_subrev_u32 v{WV(m)}, 1024, v{WV(m)}')
        a(f's_lshl_b32 s46, s{self.sFT}, 8'); a(f's_lshl_b32 s48, s{sWAVE}, 11')
        srd(a, self.SW, sW1, 0, 0, 46); a(f's_sub_u32 s{self.SW+2}, {448*3584}, s46')
        self.w_more(0, 2*NPRE)
    def w_more(self, k0, k1):
        a = self.a; WV = self.WV
        for ks in range(k0, k1):
            a(f's_add_u32 m0, s48, {ks*8192}'); a(f's_mov_b32 s50, {ks*32*3584}')
            for m in range(2): a.vmem(f'buffer_load_dwordx4 v{WV(m)}, s[{self.SW}:{self.SW+3}], s50 offen offset:{1024*m} lds')
    def setup(self):
        a = self.a; RA = self.RA; BV = self.BV; E0 = self.E0
        L, t0, t1, t2 = 1, 2, 3, 4
        lane_id(a, L)
        a(f'v_bfe_u32 v{t0}, v{L}, 2, 4'); a(f'v_and_b32 v{t1}, 7, v{t0}'); a(f'v_lshlrev_b32 v{t0}, 8, v{t0}')
        a(f'v_and_b32 v{t2}, 3, v{L}'); a(f'v_lshl_add_u32 v{t0}, v{t2}, 3, v{t0}')
        for i in range(8):
            a(f'v_xor_b32 v{t2}, {i}, v{t1}'); a(f'v_lshl_add_u32 v{RA(i)}, v{t2}, 5, v{t0}')
        a(f's_mul_i32 s44, s{sWAVE}, {2*14336}'); a(f'v_lshlrev_b32 v{t0}, 4, v{L}')
        a(f'v_add_u32 v{BV(0)}, s44, v{t0}'); a(f'v_add_u32 v{BV(1)}, 14336, v{BV(0)}')
        a(f'v_lshrrev_b32 v{t1}, 4, v{L}'); a(f'v_lshlrev_b32 v{E0}, 4, v{t1}')
        a(f's_lshl_b32 s44, s{sWAVE}, 8'); a(f'v_and_b32 v{t2}, 15, v{L}'); a(f'v_lshlrev_b32 v{t2}, 3, v{t2}'); a(f'v_add_u32 v{E0+1}, s44, v{t2}')
        a(f's_mul_i32 s44, s{sWAVE}, {2*56*1024}'); a(f'v_add_u32 v{E0+2}, s44, v{t0}'); a(f'v_add_u32 v{E0+3}, {56*1024}, v{E0+2}')
        a(f's_mul_i32 s45, s{self.sTB4}, {8*14336}')
        srd(a, self.SY, sWS, WS_Y, 8*14336, 45)
        srd(a, self.SU, sWS, WS_U, 0x4000); srd(a, self.SS, sWS, WS_STAT, 8*2048*8)
        a(f's_mul_i32 s52, s{self.sTB4}, {8*56*1024}'); a(f's_lshl_b32 s53, s{self.sFT}, 12'); a('s_add_u32 s52, s52, s53')
        srd(a, self.SH, sWS, WS_H, 0, 52); a(f's_sub_u32 s{self.SH+2}, {128*56*1024}, s52')
        a(f's_lshl_b32 s44, s{self.sFT}, 9'); a('s_add_u32 s45, s44, 0x2000'); a(f's_lshl_b32 s56, s{self.sTB4}, 10')
        a(f's_lshl_b32 s46, s{self.sTB4}, 7'); a(f's_add_u32 s46, s46, {FL_B}')
        if self.V2:
            a(f'v_lshlrev_b32 v{t0}, 2, v{L}'); a(f'v_add_u32 v{t0}, s46, v{t0}')
            return t0
        a(f's_lshl_b32 s47, s{self.sFT}, 3'); a(f's_add_u32 s47, s47, {FL_U - 56}')
        a(f'v_mov_b32 v{t0}, s46'); a(f'v_mov_b32 v{t1}, s47'); a(f'v_cmp_gt_u32 vcc, 14, v{L}'); a('s_nop 1')
        a(f'v_cndmask_b32 v{t0}, v{t1}, v{t0}, vcc'); a(f'v_lshl_add_u32 v{t0}, v{L}, 2, v{t0}')
        return t0
    def main(self, sp, w2pre):
        a = self.a; NS = self.NS
        ACC, BF, U_, W_, RA, BV, E0, AF, ST = self.ACC, self.BF, self.U_, self.W_, self.RA, self.BV, self.E0, self.AF, self.ST
        tk = {}
        LA = 5
        def ld(ks, m):
            if m == 0: a(f's_mov_b32 s51, {ks*1024}')
            tk[ks] = a.vmem(f'buffer_load_dwordx4 {vr(BF(ks,m),4)}, v{BV(m)}, s[{self.SY}:{self.SY+3}], s51 offen {SC}')
        def aread(ks, fb, h): return f'ds_read_b64_tr_b16 {ar(AF(fb)+2*h,2)}, v{RA(fb)} offset:{(ks % 8)*8192 + h*4096}'
        for ks in range(LA):
            for m in range(2): ld(ks, m)
        if not self.V2: a('s_barrier')
        for fb in range(8):
            for h in range(2): a(aread(0, fb, h))
        extra = []
        for nt in range(self.NPART):
            for tb in range(2):
                def f(nt=nt, tb=tb):
                    a(f's_add_u32 s57, s56, {nt*16384 + tb*128}')
                    a.vmem(f'buffer_load_dwordx2 {ar(ST(tb,nt),2)}, v{E0+1}, s[{self.SS}:{self.SS+3}], s57 offen {SC}')
                extra.append(f)
        for fb in range(0 if self.V2 else 8):
            extra.append(lambda fb=fb: a.vmem(f'buffer_load_dwordx4 {vr(U_(fb),4)}, v{E0}, s[{self.SU}:{self.SU+3}], s44 offen offset:{64*fb} {SC}'))
            extra.append(lambda fb=fb: a.vmem(f'buffer_load_dwordx4 {vr(W_(fb),4)}, v{E0}, s[{self.SU}:{self.SU+3}], s45 offen offset:{64*fb} {SC}'))
        a.wait_vm(tk[0], ' lgkmcnt(0)')
        for ks in range(NS):
            G_ = [[] for _ in range(16)]
            if ks >= 1:
                G_[0].append(aread(ks, 7, 0)); G_[1].append(aread(ks, 7, 1))
            G_[5].insert(0, 's_waitcnt lgkmcnt(4)'); G_[13].insert(0, 's_waitcnt lgkmcnt(4)')
            if ks + 1 < NS:
                G_[15].append(lambda ks=ks: a.wait_vm(tk[ks+1]))
                if ks + 1 == 8:
                    for i in range(7): G_[1].append(f'v_add_u32 v{RA(i)}, 65536, v{RA(i)}')
                for k in range(14): G_[k+2].append(aread(ks+1, k >> 1, k & 1))
            if ks == 7: G_[15].append(f'v_add_u32 v{RA(7)}, 65536, v{RA(7)}')
            slots = [3, 7, 11, 14]
            if ks + LA < NS:
                for m in range(2): G_[slots.pop(0)].append(lambda ks=ks, m=m: ld(ks + LA, m))
            for k in slots:
                if extra: G_[k].append(extra.pop(0))
            for fb in range(8):
                for tb in range(2):
                    k = fb*2 + tb
                    c = vr(ACC(fb, tb), 4)
                    a(f'{M16} {c}, {ar(AF(fb),4)}, {vr(BF(ks,tb),4)}, {c if ks else 0}')
                    for x in G_[k]: x() if callable(x) else a(x)
        assert not extra
        sp.stamp()
        a('s_waitcnt vmcnt(0)'); a('s_barrier')
        B0 = 64
        MEAN = lambda tb: B0 + 32 + tb
        RS = lambda tb: B0 + 34 + tb
        pre = list(w2pre)
        def fill(n=1):
            for _ in range(n):
                if pre: pre.pop(0)()
        NP = self.NPART
        if self.V2:
            for fb in range(8):
                a(f'ds_read_b128 {vr(U_(fb),4)}, v{E0} offset:{64*fb}'); a(f'ds_read_b128 {vr(W_(fb),4)}, v{E0} offset:{512+64*fb}')
        fill(1)
        for tb in range(2):
            for i in range(2*NP): a(f'v_accvgpr_read_b32 v{B0+tb*16+i}, a{ST(tb,0)+i}')
        fill(2)
        for tb in range(2):
            b = B0 + tb*16
            for nt in range(1, NP):
                a(f'v_add_f32 v{b}, v{b}, v{b+2*nt}'); a(f'v_add_f32 v{b+1}, v{b+1}, v{b+2*nt+1}')
        fill(1)
        for tb in range(2):
            b = B0 + tb*16
            a(f'v_mul_f32 v{b}, {f32(1/448)}, v{b}'); a(f'v_mul_f32 v{b+1}, {f32(1/448)}, v{b+1}')
            a(f'v_fma_f32 v{b+1}, -v{b}, v{b}, v{b+1}'); a(f'v_max_f32 v{b+1}, 0, v{b+1}')
            rbf(a, b+1, b+1); a(f'v_add_f32 v{b+1}, {f32(1e-5)}, v{b+1}'); rbf(a, b+1, b+1)
            a(f'v_sqrt_f32 v{b+1}, v{b+1}'); rbf(a, MEAN(tb), b)
            rbf(a, b+1, b+1); a(f'v_rcp_f32 v{RS(tb)}, v{b+1}')
            a(f'v_sub_f32 v{MEAN(tb)}, 0, v{MEAN(tb)}')
            fill(1)
        TT = B0 + 40; LP = B0 + 38
        a(f'v_mov_b32 v{LP}, {f32(LOG2E)}')
        if self.V2: a('s_waitcnt lgkmcnt(0)')
        for tb in range(2): a(f'v_mul_f32 v{RS(tb)}, {f32(LOG2E)}, v{RS(tb)}')
        for sq in range(4):
            for tb in range(2):
                rg = [(ACC(2*sq+e, tb)+r, U_(2*sq+e)+r, W_(2*sq+e)+r) for e in range(2) for r in range(4)]
                tm = [TT + ((sq*2+tb) % 2)*8 + i for i in range(8)]
                for (x, u, w) in rg: a(f'v_fma_f32 v{x}, v{MEAN(tb)}, v{u}, v{x}')
                if E4F > 0: fill()
                for (x, u, w) in rg: a(f'v_fma_f32 v{x}, v{RS(tb)}, v{x}, v{w}')
                for (x, u, w), t in zip(rg, tm): a(f'v_exp_f32 v{t}, -v{x}')
                if E4F > 1: fill()
                for t in tm: a(f'v_fma_f32 v{t}, v{t}, v{LP}, v{LP}')
                for t in tm: a(f'v_rcp_f32 v{t}, v{t}')
                if E4F > 2: fill()
                for (x, u, w), t in zip(rg, tm): a(f'v_mul_f32 v{x}, v{x}, v{t}')
                d = ACC(2*sq, tb); xs = [r[0] for r in rg]
                for i in range(4): a(f'v_cvt_pk_bf16_f32 v{d+i}, v{xs[2*i]}, v{xs[2*i+1]}')
                self.tlast = a.vmem(f'buffer_store_dwordx4 {vr(d,4)}, v{E0+2+tb}, s[{self.SH}:{self.SH+3}], 0 offen offset:{1024*sq} {SC}')
        self.rest = pre

def post(a, T):
    sp = Stamper(a, 80, 3); sp.stamp(True); sp.stamp()
    g3 = a.g3
    for ks in range(NPRE, g3.nw0):
        for f in g3.w_pre(ks): f()
    g3.b_setup()
    a(f's_lshr_b32 s44, s{sTB}, 1'); a('s_lshl_b32 s44, s44, 7'); a(f'v_lshlrev_b32 v{T0}, 2, v{LANE}'); a(f'v_add_u32 v{T0}, s44, v{T0}')
    a(f'v_add_u32 v0, {FL_M+448}, v{BV(0)}')
    if g3.dyn:
        a('s_and_b32 s45, s2, 7'); a('s_lshl_b32 s45, s45, 1'); a('s_lshl_b32 s43, 1, s45')
        a(f's_mov_b32 s{sT[1]}, 0x8000')
        a.label(f'{T}_a_pl')
        a(f'buffer_load_dword v{T1}, v{T0}, s[{SF_}:{SF_+3}], 0 offen {SC}')
        a(f'buffer_load_dword v1, v0, s[{SF_}:{SF_+3}], 0 offen {SC}')
        a('s_waitcnt vmcnt(0)')
        a(f'v_cmp_eq_u32 vcc, s{sNON}, v1'); a('s_nop 1'); a('s_bcnt1_i32_b64 s46, vcc')
        a(f'v_cmp_eq_u32 vcc, s{sNON}, v{T1}'); a('s_nop 1')
        g3.ready_mask()
        a('s_cmp_ge_u32 s46, 56'); a(f's_cselect_b32 s73, s{sROT}, 0'); a('s_and_b32 s73, s73, s43'); a(f's_cbranch_scc1 {T}_a_pd')
        a(f's_sleep {PSL}')
        a(f's_sub_u32 s{sT[1]}, s{sT[1]}, 1'); a(f's_cmp_lg_u32 s{sT[1]}, 0'); a(f's_cbranch_scc1 {T}_a_pl')
        a.label(f'{T}_a_pd')
        a.vm = 0
    else:
        poll(a, f'{T}_a', T0, T1, 0xffff, (0, 1, 56) if LATE else None)
    sp.stamp()
    g3.main(sp)
    m = Mlp1(a)
    m.w_issue()
    a.wait_vm(g3.tlast); a('s_barrier')
    a(f's_lshr_b32 s44, s{sTB}, 1'); a('s_lshl_b32 s44, s44, 7'); a(f's_and_b32 s45, s{sTB}, 1'); a('s_mul_i32 s45, s45, 7'); a(f's_add_u32 s45, s45, s{sNT}')
    a('s_lshl_b32 s45, s45, 2'); a('s_add_u32 s44, s44, s45'); a(f's_add_u32 s44, s44, {FL_B}')
    set_flag(a, f'{T}_b', 44, 8)
    sp.stamp(); sp.stamp(True); sp.dump(sWS, sWAVE, 8)
    sp = Stamper(a, 80, 4); sp.stamp(True); sp.stamp()
    m.w_more(2*NPRE, 14)
    pa = m.setup()
    poll(a, f'{T}_b', pa, pa + 1, 0xffff)
    sp.stamp()
    g5 = Gemm(a, 5)
    pre = [g5.w_setup]
    for ks in range(PF): pre += g5.w_pre(ks)
    m.main(sp, pre)
    sp.stamp()
    a.wait_vm(m.tlast); a('s_barrier')
    a(f's_lshl_b32 s44, s{m.sTB4}, 7'); a(f's_lshl_b32 s45, s{m.sFT}, 2'); a('s_add_u32 s44, s44, s45'); a(f's_add_u32 s44, s44, {FL_C}')
    set_flag(a, f'{T}_c', 44, 8)
    sp.stamp(); sp.stamp(True); sp.dump(sWS, sWAVE, 8)
    sp = Stamper(a, 80, 5); sp.stamp(True); sp.stamp()
    for f in m.rest: f()
    g5.b_setup()
    a(f's_lshr_b32 s44, s{sTB}, 1'); a('s_lshl_b32 s44, s44, 7'); a(f's_add_u32 s44, s44, {FL_C}'); a(f'v_lshlrev_b32 v{T0}, 2, v{LANE}'); a(f'v_add_u32 v{T0}, s44, v{T0}')
    poll(a, f'{T}_c', T0, T1, 0x3fff)
    sp.stamp()
    g5.main(sp)
    sp.stamp()
    if STAMP: a('s_waitcnt vmcnt(0)')
    sp.stamp(True); sp.dump(sWS, sWAVE, 60)
```

```python
from gen_post import *
import gen_post as GP
WS_PART = 0x2000000
FL_X = 12288
sKS4, sTB3, sNT4, sJ3, sJA = 4, 5, 12, 13, 6

class Oproj:
    NK = 32
    ACC = staticmethod(lambda nb, tb: (nb*2+tb)*4)
    NB_ = 13
    BF = staticmethod(lambda ks, tb: (64 + (ks % 13)*8 if ks % 13 < 8 else 196 + (ks % 13 - 8)*8) + tb*4)
    RA = staticmethod(lambda i: 240 + i)
    WV = staticmethod(lambda m: 144 + m)
    BV = staticmethod(lambda tb: 250 + tb)
    AF = staticmethod(lambda nb: 4*nb)
    SW, SA = 24, 28
    def __init__(self, a): self.a = a; self.tW = {}
    def w_setup(self):
        a = self.a; WV = self.WV
        l, t0, t1, t2 = 146, 147, 148, 149
        lane_id(a, l)
        a(f'v_and_b32 v{t2}, 15, v{l}')
        a(f's_mul_i32 s73, s{sWAVE}, {8*896}')
        for m in range(2):
            a(f'v_lshrrev_b32 v{t0}, 4, v{l}')
            if m: a(f'v_add_u32 v{t0}, 4, v{t0}')
            a(f'v_lshlrev_b32 v{t1}, 1, v{t0}'); a(f'v_xor_b32 v{t1}, v{t1}, v{t2}')
            a(f'v_cmp_gt_u32 vcc, 14, v{t1}')
            a(f'v_lshlrev_b32 v{t1}, 4, v{t1}')
            a(f'v_mul_u32_u24 v{t0}, 896, v{t0}'); a(f'v_add3_u32 v{t0}, v{t0}, v{t1}, s73')
            if m: a(f'v_subrev_u32 v{t0}, 1024, v{t0}')
            a(f'v_mov_b32 v{t1}, 0x7ff00000'); a(f'v_cndmask_b32 v{WV(m)}, v{t1}, v{t0}, vcc')
        a('s_bfe_u32 s49, s2, 0x20001')
        a(f's_and_b32 s51, s{sIDX}, 3')
        a(f's_mul_i32 s73, s49, {1024*896}'); a('s_mul_i32 s74, s51, 224'); a('s_add_u32 s73, s73, s74')
        srd(a, self.SW, sWO, 0, 0, 73); a(f's_sub_u32 s{self.SW+2}, {4096*896}, s73')
        a(f's_lshl_b32 s48, s{sWAVE}, 11')
    def w_tile(self, ks):
        a = self.a
        def su(): a(f's_add_u32 m0, s48, {(ks % 16)*8192}'); a(f's_mov_b32 s50, {ks*32*896}')
        def d(m):
            def f(): self.tW[ks] = a.vmem(f'buffer_load_dwordx4 v{self.WV(m)}, s[{self.SW}:{self.SW+3}], s50 offen offset:{1024*m} lds')
            return f
        return [su, d(0), d(1)]
    def setup(self):
        a = self.a; RA = self.RA; BV = self.BV
        a(f's_mov_b32 s{sKS4}, s49'); a(f's_mov_b32 s{sNT4}, s51')
        a(f's_and_b32 s{sTB3}, s2, 1'); a(f's_lshl_b32 s{sTB3}, s{sTB3}, 3'); a(f's_lshr_b32 s44, s{sIDX}, 2'); a(f's_add_u32 s{sTB3}, s{sTB3}, s44')
        a(f's_cmp_ge_u32 s{sKS4}, 2'); a(f's_cselect_b32 s{sJ3}, 0x40000000, 0')
        L, t0, t1, t2 = LANE, 1, 2, 3
        lane_id(a, L)
        a(f'v_bfe_u32 v{GG}, v{L}, 4, 2')
        a(f'v_bfe_u32 v{t0}, v{L}, 2, 4'); a(f'v_and_b32 v{t1}, 7, v{t0}'); a(f'v_lshlrev_b32 v{t0}, 8, v{t0}')
        a(f'v_and_b32 v{t2}, 3, v{L}'); a(f'v_lshl_add_u32 v{t0}, v{t2}, 3, v{t0}')
        for i in range(7):
            a(f'v_xor_b32 v{t2}, {i}, v{t1}'); a(f'v_lshl_add_u32 v{RA(i)}, v{t2}, 5, v{t0}')
        a(f'v_lshlrev_b32 v{T0}, 4, v{L}')
        a(f's_lshl_b32 s44, s{sWAVE}, 18'); a(f'v_add_u32 v{BV(0)}, s44, v{T0}'); a(f'v_add_u32 v{BV(1)}, {1<<17}, v{BV(0)}')
        a(f's_lshl_b32 s45, s{sTB3}, 20'); a(f's_lshl_b32 s44, s{sKS4}, 15'); a('s_add_u32 s45, s45, s44')
        srd(a, self.SA, sWS, WS_O, 0, 45); a(f's_sub_u32 s{self.SA+2}, {1<<24}, s45')
        a(f's_lshl_b32 s44, s{sTB3}, 7'); a(f's_lshl_b32 s45, s{sKS4}, 4'); a('s_add_u32 s44, s44, s45')
        a(f'v_lshlrev_b32 v{t0}, 2, v{L}'); a(f'v_add_u32 v{t0}, s44, v{t0}')
        return t0
    def main(self, sp):
        a = self.a; NK = self.NK
        ACC, BF, RA, BV, AF = self.ACC, self.BF, self.RA, self.BV, self.AF
        tB = {}; tW = self.tW
        for k in list(tW): tW[k] = 0
        LB = int(os.environ.get('LB3', 12))
        def ld(ks, tb):
            if tb == 0: a(f's_mov_b32 s51, {ks*1024}')
            tB[ks] = a.vmem(f'buffer_load_dwordx4 {vr(BF(ks,tb),4)}, v{BV(tb)}, s[{self.SA}:{self.SA+3}], s51 offen {BSC}')
        def aread(ks, nb, h): return f'ds_read_b64_tr_b16 {ar(AF(nb)+2*h,2)}, v{RA(nb)} offset:{(ks % 8)*8192 + h*4096}'
        for ks in range(LB):
            for tb in range(2): ld(ks, tb)
        a('s_barrier')
        for nb in range(7):
            for h in range(2): a(aread(0, nb, h))
        EG_, EC, EX = 128, 160, 176
        E = E0 + 12
        a(f'v_and_b32 v{E+2}, 15, v{LANE}'); a(f'v_mul_u32_u24 v{E}, 896, v{E+2}'); a(f'v_lshl_add_u32 v{E}, v{GG}, 3, v{E}')
        a(f'v_lshlrev_b32 v{E+1}, 4, v{GG}'); a(f'v_lshlrev_b32 v{E+2}, 3, v{E+2}')
        a(f's_lshl_b32 s52, s{sTB3}, 3'); a(f's_lshl_b32 s44, s{sWAVE}, 1'); a('s_add_u32 s52, s52, s44'); a(f's_and_b32 s44, s{sKS4}, 1'); a('s_add_u32 s52, s52, s44')
        NBJ = 40
        a(f's_and_b32 s44, s{sNT4}, 1'); a(f's_lshr_b32 s45, s{sKS4}, 1'); a('s_lshl_b32 s45, s45, 2'); a(f's_add_u32 s{NBJ}, s44, s45')
        for j in range(1, 4): a(f's_add_u32 s{NBJ+j}, s{NBJ}, {j}')
        a('s_cmp_eq_u32 s44, 1'); a('s_cselect_b32 s45, 0, 6'); a(f's_cmp_ge_u32 s{sKS4}, 2'); a(f's_cselect_b32 s{NBJ+2}, s45, s{NBJ+2}')
        a(f's_cselect_b32 s{sJA}, 0, 0x40000000')
        a(f's_mul_i32 s53, s{sNT4}, 7')
        srd(a, SM_, sWS, WS_MOD, 6*448*4); srd(a, SX_, sX, 0, 2048*896)
        a(f's_mul_i32 s57, s52, {16*896}')
        extra = []
        for j in range(4):
            for (base, dst) in ((2*1792, EG_), (4*1792, EC)):
                def f(j=j, base=base, dst=dst):
                    a(f's_add_u32 s44, s53, s{NBJ+j}'); a('s_lshl_b32 s44, s44, 6'); a(f's_add_u32 s44, s44, {base}')
                    if j == 3: a(f's_add_u32 s44, s44, s{sJ3}')
                    a.vmem(f'buffer_load_dwordx4 {vr(dst+4*j,4)}, v{E+1}, s[{SM_}:{SM_+3}], s44 offen {SC}')
                extra.append(f)
            def f(j=j):
                a(f's_add_u32 s44, s53, s{NBJ+j}'); a('s_lshl_b32 s44, s44, 5'); a('s_add_u32 s44, s44, s57')
                if j == 3: a(f's_add_u32 s44, s44, s{sJ3}')
                a.vmem(f'buffer_load_dwordx2 {vr(EX+2*j,2)}, v{E}, s[{SX_}:{SX_+3}], s44 offen')
            extra.append(f)
        MV = 184
        a(f's_lshl_b32 s44, s{sWAVE}, 10'); a(f'v_add_u32 v{MV+8}, s44, v{T0}')
        a(f'v_mov_b32 v{MV+9}, 0x7ff00000'); a(f'v_cmp_gt_u32 vcc, 1792, v{MV+8}'); a('s_nop 1'); a(f'v_cndmask_b32 v{MV+8}, v{MV+9}, v{MV+8}, vcc')
        a(f's_mov_b32 s58, {4*1792}'); a(f's_mov_b32 s59, {3*1792}')
        extra.append(lambda: a.vmem(f'buffer_load_dwordx4 {vr(MV,4)}, v{MV+8}, s[{SM_}:{SM_+3}], s58 offen {SC}'))
        extra.append(lambda: a.vmem(f'buffer_load_dwordx4 {vr(MV+4,4)}, v{MV+8}, s[{SM_}:{SM_+3}], s59 offen {SC}'))
        a.wait_vm(tB[0], ' lgkmcnt(0)')
        for ks in range(NK):
            G_ = [[] for _ in range(14)]
            if ks >= 1:
                G_[0].append(aread(ks, 6, 0)); G_[1].append(aread(ks, 6, 1))
            G_[4].insert(0, 's_waitcnt lgkmcnt(3)'); G_[11].insert(0, 's_waitcnt lgkmcnt(3)')
            if ks + 1 < NK:
                if ks % 4 == 0 and ks >= 4:
                    G_[1].append(lambda ks=ks: (a.wait_vm(max(tW.get(t, 0) for t in range(ks+1, min(ks+5, NK)))), a('s_barrier')))
                G_[13].append(lambda ks=ks: a.wait_vm(tB[ks+1]))
                if (ks + 1) % 8 == 0:
                    op = 'v_add_u32' if ((ks + 1) // 8) % 2 else 'v_subrev_u32'
                    for i in range(6): G_[1].append(f'{op} v{RA(i)}, 65536, v{RA(i)}')
                    G_[13].append(f'{op} v{RA(6)}, 65536, v{RA(6)}')
                for k in range(12): G_[k+2].append(aread(ks+1, k >> 1, k & 1))
            slots = [3, 6, 9, 12]
            if ks + LB < NK:
                for tb in range(2): G_[slots.pop(0)].append(lambda ks=ks, tb=tb: ld(ks + LB, tb))
            if 4 <= ks and ks + 12 < NK:
                su, d0, d1 = self.w_tile(ks + 12)
                G_[8].insert(0, su); G_[slots.pop(0)].append(d0); G_[slots.pop(0)].append(d1)
            if ks >= 20:
                for k in slots:
                    if extra: G_[k].append(extra.pop(0))
            for nb in range(7):
                for tb in range(2):
                    k = nb*2 + tb
                    c = vr(ACC(nb, tb), 4)
                    a(f'{M16} {c}, {ar(AF(nb),4)}, {vr(BF(ks,tb),4)}, {c if ks else 0}')
                    for x in G_[k]: x() if callable(x) else a(x)
        assert not extra
        sp.stamp()
        a(f's_lshl_b32 s44, s{sTB3}, 2'); a(f's_add_u32 s44, s44, s{sNT4}')
        a(f's_lshl_b32 s78, s44, 4'); a(f's_add_u32 s78, s78, {FL_X}')
        a(f's_mul_i32 s45, s44, {16*14336}'); a(f's_mul_i32 s47, s{sWAVE}, 14336'); a('s_add_u32 s45, s45, s47')
        srd(a, SO2, sWS, WS_PART, 3*4*14336 + 14336, 45)
        a(f's_mul_i32 s47, s{sKS4}, {4*14336}')
        a('s_barrier')
        for tb in range(2):
            for nb in range(7):
                b = tb*7 + nb
                if b % 4 == 0: a(f's_add_u32 s44, s47, {b*1024}')
                self.tlast = a.vmem(f'buffer_store_dwordx4 {vr(ACC(nb,tb),4)}, v{T0}, s[{SO2}:{SO2+3}], s44 offen offset:{(b%4)*1024} {SC}')
        self.E = E; self.regs = (EG_, EC, EX, MV)
    def finish(self, sp):
        a = self.a; E = self.E; EG_, EC, EX, MV = self.regs
        NBJ = 40
        a(f's_and_b32 s44, s{sKS4}, 1'); a('s_mul_i32 s44, s44, 7')
        for j in range(4): a(f's_add_u32 s{48+j}, s44, s{NBJ+j}'); a(f's_lshl_b32 s{48+j}, s{48+j}, 10')
        a(f's_add_u32 s51, s51, s{sJ3}')
        tk = []
        for src in range(4):
            for j in range(4):
                if src: a(f's_add_u32 s{48+j}, s{48+j}, {4*14336}')
                tk.append(a.vmem(f'buffer_load_dwordx4 {vr((src*4+j)*4,4)}, v{T0}, s[{SO2}:{SO2+3}], s{48+j} offen {SC}'))
        a(f's_mul_i32 s56, s52, 14336')
        a(f's_add_u32 s44, s53, s{NBJ}'); a('s_lshr_b32 s44, s44, 1'); a('s_lshl_b32 s44, s44, 10'); a('s_add_u32 s48, s44, s56')
        a(f's_add_u32 s49, s48, 1024'); a(f's_add_u32 s49, s49, s{sJ3}')
        a(f's_add_u32 s44, s53, s{NBJ+2}'); a('s_lshr_b32 s45, s44, 1'); a('s_lshl_b32 s45, s45, 10'); a('s_and_b32 s44, s44, 1'); a('s_lshl_b32 s44, s44, 3')
        a('s_add_u32 s45, s45, s44'); a('s_add_u32 s50, s45, s56'); a(f's_add_u32 s50, s50, s{sJA}')
        srd(a, SX_, sWS, WS_X1, 128*14336); srd(a, SM_, sWS, WS_Y, 128*14336); srd(a, SO3, sWS, WS_STAT, 8*2048*8)
        def st3(base, sd):
            a.vmem(f'buffer_store_dwordx4 {vr(base,4)}, v{T0}, s[{sd}:{sd+3}], s48 offen {SC}')
            a.vmem(f'buffer_store_dwordx4 {vr(base+4,4)}, v{T0}, s[{sd}:{sd+3}], s49 offen {SC}')
            return a.vmem(f'buffer_store_dwordx2 {vr(base+4,2)}, v{T0}, s[{sd}:{sd+3}], s50 offen {SC}')
        for i in range(8): unpack(a, 96+2*i, 97+2*i, EX+i)
        a.wait_vm(tk[7])
        for i in range(16): a(f'v_add_f32 v{i}, v{i}, v{16+i}')
        a.wait_vm(tk[15])
        for i in range(16): a(f'v_add_f32 v{32+i}, v{32+i}, v{48+i}')
        for i in range(16): a(f'v_add_f32 v{i}, v{i}, v{32+i}')
        sp.stamp()
        for i in range(0, 16, 2): a(f'v_cvt_pk_bf16_f32 v{16+i//2}, v{i}, v{i+1}')
        for i in range(8): unpack(a, 2*i, 2*i+1, 16+i)
        for i in range(16): a(f'v_mul_f32 v{i}, v{i}, v{EG_+i}')
        for i in range(0, 16, 2): a(f'v_cvt_pk_bf16_f32 v{16+i//2}, v{i}, v{i+1}')
        for i in range(8): unpack(a, 2*i, 2*i+1, 16+i)
        for i in range(16): a(f'v_add_f32 v{i}, v{i}, v{96+i}')
        for i in range(0, 16, 2): a(f'v_cvt_pk_bf16_f32 v{16+i//2}, v{i}, v{i+1}')
        for i in range(8): unpack(a, 2*i, 2*i+1, 16+i)
        for i in range(16): a(f'v_mul_f32 v{32+i}, v{i}, v{EC+i}')
        for i in range(0, 16, 2): a(f'v_cvt_pk_bf16_f32 v{24+i//2}, v{32+i}, v{33+i}')
        st3(24, SM_); st3(16, SX_)
        a('v_add_f32 v48, v0, v1'); a('v_mul_f32 v49, v0, v0'); a('v_add_f32 v50, v2, v3'); a('v_mul_f32 v51, v2, v2')
        a('v_fmac_f32 v49, v1, v1'); a('v_fmac_f32 v51, v3, v3')
        for i in range(4, 16, 2):
            a(f'v_add_f32 v48, v48, v{i}'); a(f'v_fmac_f32 v49, v{i}, v{i}'); a(f'v_add_f32 v50, v50, v{i+1}'); a(f'v_fmac_f32 v51, v{i+1}, v{i+1}')
        a('v_add_f32 v48, v48, v50'); a('v_add_f32 v49, v49, v51')
        for sw in ('v_permlane32_swap_b32', 'v_permlane16_swap_b32'):
            a('v_mov_b32 v50, v48'); a('v_mov_b32 v51, v49'); a('s_nop 0'); a(f'{sw} v48, v50'); a(f'{sw} v49, v51'); a('s_nop 0')
            a('v_add_f32 v48, v48, v50'); a('v_add_f32 v49, v49, v51')
        a(f's_lshl_b32 s44, s{sNT4}, 1'); a(f's_lshr_b32 s45, s{sKS4}, 1'); a('s_add_u32 s44, s44, s45'); a('s_lshl_b32 s44, s44, 14'); a('s_lshl_b32 s45, s52, 7'); a('s_add_u32 s44, s44, s45')
        a.vmem(f'buffer_store_dwordx2 v[48:49], v{E+2}, s[{SO3}:{SO3+3}], s44 offen {SC}')

LUW = 112*1024
class Mlp1b(Mlp1):
    ST = staticmethod(lambda tb, nt: 32 + (tb*8+nt)*2)
    V2 = True
    NPART = 8
    def uw(self, MV):
        a = self.a; RA = self.RA
        L = 1
        for i in range(2):
            a(f'v_cvt_pk_bf16_f32 v{MV+2*i*2}, v{MV+4*i}, v{MV+4*i+1}'); a(f'v_cvt_pk_bf16_f32 v{MV+2*i*2+1}, v{MV+4*i+2}, v{MV+4*i+3}')
        a(f's_lshl_b32 s46, s{sWAVE}, 9'); a(f's_add_u32 s46, s46, {LUW}'); a(f'v_lshlrev_b32 v8, 3, v{L}'); a('v_add_u32 v8, s46, v8')
        a(f's_cmp_ge_u32 s{sWAVE}, 2'); a('s_cbranch_scc1 K2_uw1')
        a(f'ds_write_b64 v8, {vr(MV,2)}'); a(f'ds_write_b64 v8, {vr(MV+4,2)} offset:1024')
        a.label('K2_uw1')
        a(f'v_lshrrev_b32 v9, 4, v{L}'); a('v_lshlrev_b32 v9, 3, v9'); a(f'v_add_u32 v9, {LUW}, v9')
        a(f's_lshl_b32 s46, s{sWAVE}, 6'); a(f'v_xor_b32 v10, s46, v{RA(0)}'); a('v_xor_b32 v11, 32, v10')
        a('v_add_u32 v12, 65536, v10'); a('v_add_u32 v13, 65536, v11')
        a('s_waitcnt vmcnt(0) lgkmcnt(0)'); a('s_barrier')
        UA = lambda e, which: 16 + (e*2+which)*4
        for half in range(2):
            for s in range(7*half, 7*half+7):
                b = 32 + (s % 7)*16
                for which in range(2):
                    for h in range(2): a(f'ds_read_b64 {vr(b+which*4+2*h,2)}, v9 offset:{which*1024 + 64*s + 32*h}')
                for e in range(2):
                    for h in range(2): a(f'ds_read_b64_tr_b16 {vr(b+8+e*4+2*h,2)}, v{10+e+(2 if s >= 8 else 0)} offset:{(s % 8)*8192 + h*4096}')
                if s % 7 == 0: continue
            a('s_waitcnt lgkmcnt(0)')
            for s in range(7*half, 7*half+7):
                b = 32 + (s % 7)*16
                for e in range(2):
                    for which in range(2):
                        c = vr(UA(e, which), 4)
                        a(f'{M16} {c}, {vr(b+8+e*4,4)}, {vr(b+which*4,4)}, {c if s else 0}')
        a(f'v_lshrrev_b32 v8, 4, v{L}'); a('v_lshlrev_b32 v8, 4, v8'); a(f's_lshl_b32 s46, s{sWAVE}, 7'); a(f's_add_u32 s46, s46, {LUW+2048}')
        a(f'v_add_u32 v{self.E0}, {LUW+2048}, v8'); a('v_add_u32 v8, s46, v8')
        a.nop(4)
        for e in range(2):
            for i in range(4): a(f'v_mul_f32 v{UA(e,1)+i}, {f32(LOG2E)}, v{UA(e,1)+i}')
        for e in range(2):
            for which in range(2): a(f'ds_write_b128 v8, {vr(UA(e,which),4)} offset:{which*512 + e*64}')

def post2(a, T):
    sp = Stamper(a, 80, 3); sp.stamp(True); sp.stamp()
    o = a.g3
    for ks in range(2*NPRE, 16):
        for f in o.w_tile(ks): f()
    pa = o.setup()
    poll(a, f'{T}_a', pa, pa + 1, 0xf)
    sp.stamp()
    o.main(sp)
    m = Mlp1b(a)
    a(f's_cmp_ge_u32 s{sIDX}, 28'); a(f's_cbranch_scc1 {T}_x0')
    vm0 = a.vm
    m.w_issue()
    a.wait_vm(o.tlast); a(f's_branch {T}_x1')
    a.label(f'{T}_x0')
    a('s_waitcnt vmcnt(0)')
    a.label(f'{T}_x1')
    a('s_barrier')
    a(f's_lshl_b32 s44, s{sKS4}, 2'); a('s_add_u32 s44, s44, s78')
    set_flag(a, f'{T}_x', 44, 56)
    a(f's_cmp_ge_u32 s{sIDX}, 28'); a(f's_cbranch_scc1 {T}_x2')
    m.w_more(2*NPRE, 14)
    a.label(f'{T}_x2')
    a(f'v_lshlrev_b32 v56, 2, v{LANE}'); a('v_add_u32 v56, s78, v56')
    poll(a, f'{T}_x', 56, 57, 0xf)
    sp.stamp()
    o.finish(sp)
    a('s_waitcnt vmcnt(0)'); a('s_barrier')
    a(f's_lshl_b32 s44, s{sTB3}, 7'); a(f's_lshl_b32 s45, s{sNT4}, 4'); a('s_add_u32 s44, s44, s45'); a(f's_lshl_b32 s45, s{sKS4}, 2'); a('s_add_u32 s44, s44, s45')
    a(f's_add_u32 s44, s44, {FL_B}')
    set_flag(a, f'{T}_b', 44, 8)
    sp.stamp(); sp.stamp(True); sp.dump(sWS, sWAVE, 8)
    a(f's_cmp_ge_u32 s{sIDX}, 28'); a(f's_cbranch_scc1 {T}_end')
    sp = Stamper(a, 80, 4); sp.stamp(True); sp.stamp()
    pa = m.setup()
    m.uw(o.regs[3])
    sp.stamp()
    poll(a, f'{T}_b', pa, pa + 1, 0xffff)
    sp.stamp()
    g5 = Gemm(a, 5); g5.X1MEM = True
    pre = [g5.w_setup]
    for ks in range(PF): pre += g5.w_pre(ks)
    m.main(sp, pre)
    sp.stamp()
    a.wait_vm(m.tlast); a('s_barrier')
    a(f's_lshl_b32 s44, s{m.sTB4}, 7'); a(f's_lshl_b32 s45, s{m.sFT}, 2'); a('s_add_u32 s44, s44, s45'); a(f's_add_u32 s44, s44, {FL_C}')
    set_flag(a, f'{T}_c', 44, 8)
    sp.stamp(); sp.stamp(True); sp.dump(sWS, sWAVE, 8)
    sp = Stamper(a, 80, 5); sp.stamp(True); sp.stamp()
    for f in m.rest: f()
    g5.b_setup()
    a(f's_lshr_b32 s44, s{sTB}, 1'); a('s_lshl_b32 s44, s44, 7'); a(f's_add_u32 s44, s44, {FL_C}'); a(f'v_lshlrev_b32 v{T0}, 2, v{LANE}'); a(f'v_add_u32 v{T0}, s44, v{T0}')
    poll(a, f'{T}_c', T0, T1, 0x3fff)
    sp.stamp()
    g5.main(sp)
    sp.stamp()
    if STAMP: a('s_waitcnt vmcnt(0)')
    sp.stamp(True); sp.dump(sWS, sWAVE, 60)
```

```python
from gen_k2 import *
import gen_post2 as GP2
X3 = int(os.environ.get('X3', 0))
if X3: LFLAG = 131072
XR = lambda s, qb: (s*2+qb)*4
NA = lambda s, qb: 132 + (s*2+qb)*4
WAL = lambda i: 132 + i
WAH = lambda i: 200 + i
TID = 143
SDBG = 28
LSCR = 136*1024
WLATE = int(os.environ.get('WLATE', 2))
LNFAST = int(os.environ.get('LNFAST', 0))
HP = int(os.environ.get('HP', 0))
WS_MODG = 0x28000
HSL = [208, 216, 224, 144, 152, 232, 240, 248, 160]
HR = lambda s, qb: HSL[s % 9] + 4*qb
W8 = int(os.environ.get('W8', 0))
TLBW = int(os.environ.get('TLBW', 0))
WMID = int(os.environ.get('WMID', 0))
NPROD = 84
FL_M, FL_N = 8192, 10240
P1 = int(os.environ.get('P1', 1)); SLP = int(os.environ.get('SLP', 2))
def gen_one():
    a = Asm()
    N = 'adaLN_cond__mha_block_cached__dense_activation_silu__prompt_kernel'
    head(a, N)
    a('s_cmp_ge_u32 s2, 256'); a('s_cbranch_scc1 K2_end')
    sp = Stamper(a, 80, 1)
    _st = sp.stamp; scnt = [0]
    def lim(real=False):
        scnt[0] += 1
        if scnt[0] in SEL: _st(real)
    SEL = eval(os.environ.get('SEL', '(1, 2, 6, 8, 9, 11, 12, 13)'))
    sp.stamp = lim
    XS = os.environ.get('XS', '')
    def xs(t):
        if t in XS: _st()
    QS = None
    sp.stamp(True); sp.stamp()
    sNON = 75
    a(f's_load_dwordx2 s[{SDBG}:{SDBG+1}], s[0:1], {KA["dbg"]}')
    a(f's_load_dwordx2 s[64:65], s[0:1], {KA["x"]}')
    a(f's_load_dwordx4 s[16:19], s[0:1], {KA["c"]}')
    a(f's_load_dwordx2 s[8:9], s[0:1], {KA["wq"]}')
    a(f's_load_dwordx2 s[10:11], s[0:1], {KA["ws"]}')
    a('s_memrealtime s[44:45]')
    NCL = 4
    a('v_lshrrev_b32 v1, 6, v0'); a('s_getpc_b64 s[56:57]'); a.label('K2_pc')
    a('v_readfirstlane_b32 s14, v1'); a('s_lshr_b32 s58, s2, 3'); a('s_lshl_b32 s58, s58, 2'); a('s_nop 1'); a('s_add_u32 s58, s58, s14')
    a('s_lshl_b32 s58, s58, 6')
    for i in range(NCL):
        a(f's_add_u32 s59, s58, {i*8192}'); a('s_min_u32 s59, s59, K2_tail-K2_pc-4'); a(f's_load_dword s{76+i}, s[56:57], s59')
    GP.roles(a)
    a('s_and_b32 s12, s2, 7'); a('s_lshl_b32 s12, s12, 1'); a('s_bfe_u32 s13, s2, 0x10003'); a('s_add_u32 s12, s12, s13')
    a('s_lshr_b32 s13, s2, 4')
    T = 208
    L, W, Qv, G, R, C4, Hh, Pp = T, T+1, T+2, T+3, T+4, T+5, T+6, T+7
    X, Y = 112, 113
    a(f'v_mov_b32 v{TID}, v0')
    a(f'v_and_b32 v{L}, 63, v0'); a(f'v_lshrrev_b32 v{W}, 6, v0'); a(f'v_and_b32 v{Qv}, 15, v0'); a(f'v_bfe_u32 v{G}, v0, 4, 2')
    a(f'v_bfe_u32 v{R}, v0, 2, 2'); a(f'v_and_b32 v{C4}, 3, v0'); a(f'v_bfe_u32 v{Hh}, v0, 5, 1'); a(f'v_and_b32 v{Pp}, 31, v0')
    GW, GC, XV = 114, 115, 116
    a(f'v_lshrrev_b32 v{GC}, 2, v0'); a(f'v_mul_u32_u24 v{GW}, 5376, v{GC}'); a(f'v_lshl_add_u32 v{GW}, v{C4}, 4, v{GW}'); a(f'v_lshlrev_b32 v{GC}, 1, v{GC}')
    a(f'v_mul_u32_u24 v{XV}, 896, v{Qv}'); a(f'v_lshl_add_u32 v{XV}, v{G}, 4, v{XV}'); a(f'v_lshl_add_u32 v{XV}, v{W}, 6, v{XV}')
    for n in range(4):
        a(f'v_lshl_add_u32 v{Y}, v{W}, 3, v{Hh}'); a(f'v_add_u32 v{Y}, {2*n}, v{Y}')
        a(f'v_and_b32 v{X}, 3, v{Y}'); a(f'v_bfe_u32 v{X+5}, v{Y}, 3, 1'); a(f'v_lshl_add_u32 v{X}, v{X+5}, 2, v{X}')
        a(f'v_lshlrev_b32 v{X}, 1, v{X}'); a(f'v_xor_b32 v{X}, v{X}, v{Pp}'); a(f'v_lshlrev_b32 v{X}, 4, v{X}')
        a(f'v_lshl_add_u32 v{WD_(n)}, v{Y}, 13, v{X}')
        if n: a(f'v_subrev_u32 v{WD_(n)}, {n*1024}, v{WD_(n)}')
    a('s_lshl_b32 s40, s14, 12'); a('s_lshl_b32 s50, s12, 20'); a('s_lshl_b32 s51, s12, 9')
    a('s_lshl_b32 s48, s13, 20'); a('s_lshl_b32 s49, s12, 13'); a('s_add_u32 s48, s48, s49')
    a('s_lshl_b32 s52, s13, 3'); a('s_and_b32 s53, s2, 7'); a('s_add_u32 s52, s52, s53')
    a('s_waitcnt lgkmcnt(0)')
    sp.stamp()
    a(f's_and_b32 s{SDBG+1}, s{SDBG+1}, 0xffff'); a(f's_mov_b32 s{SDBG+2}, 256'); a(f's_mov_b32 s{SDBG+3}, 0x20000')
    a('s_or_b32 s46, s2, s14'); a('s_cmp_lg_u32 s46, 0'); a('s_cbranch_scc1 K2_n0')
    a('s_or_b32 s44, s44, 1'); a('v_mov_b32 v1, 0'); a('v_mov_b32 v2, s44'); a('s_mov_b64 exec, 1')
    a(f'buffer_store_dword v2, v1, s[{SDBG}:{SDBG+3}], 0 offen sc1'); a('s_mov_b64 exec, -1')
    a.label('K2_n0')
    CV, CT_, GA, WR = 16, 24, 64, 32
    XRW = 0
    a('s_mov_b32 s47, 0')
    a('s_bitcmp1_b32 s2, 3'); a('s_cbranch_scc0 K2_ln0')
    a(f's_cmp_ge_u32 s52, {NPROD}'); a('s_cbranch_scc1 K2_g0')
    a('s_mov_b32 s47, 1')
    srd(a, 20, 16, 0, 896); srd(a, 36, 18, 0, 448*5376)
    for i in range(7): tC = a.vmem(f'buffer_load_ushort v{CV+i}, v{GC}, s[20:23], 0 offen offset:{128*i}')
    tG = {}
    a('s_lshl_b32 s46, s52, 6')
    for i in range(7):
        a(f's_add_u32 s53, s46, {64*5376*i}')
        tG[i] = a.vmem(f'buffer_load_dwordx4 {vr(WR+4*i,4)}, v{GW}, s[36:39], s53 offen')
    a('s_branch K2_g0')
    a.label('K2_ln0')
    a('s_mov_b32 s47, 2')
    a(f's_mul_i32 s46, s52, {16*896}')
    srd(a, 36, 64, 0, 16*896, 46)
    a('s_cmp_lt_u32 s14, 2'); a('s_cselect_b32 s53, 0, 0x100000')
    for i in range(4):
        a(f'buffer_load_dwordx4 {vr(XRW+4*i,4)}, v{XV}, s[36:39], {"s53" if i == 3 else "0"} offen offset:{256*i}')
    a.label('K2_g0')
    a(f's_load_dwordx4 s[4:7], s[0:1], {KA["k"]}')
    a(f's_load_dwordx2 s[66:67], s[0:1], {KA["out"]}')
    a(f's_load_dwordx2 s[60:61], s[0:1], {KA["wo"]}'); a(f's_load_dwordx2 s[62:63], s[0:1], {KA["w1"]}'); a(f's_load_dwordx2 s[54:55], s[0:1], {KA["w2"]}')
    srd(a, SWQ, 8, 0, 0, 51); a(f's_sub_u32 s{SWQ+2}, {448*8192}, s51')
    WSLOT = [LK+2*TILE, LV, LK+3*TILE, LV+TILE, LV+2*TILE, LV+3*TILE, LK, LK+TILE]
    wslot = lambda t: WSLOT[t % 8]
    tW = {}; tN = {}
    def wload(t):
        a(setm0(wslot(t))); a(f's_mov_b32 s{sT0}, {hex(t*32*8192)}')
        for n in range(4): tW[t] = a.vmem(dma(WD_(n), SWQ, f's{sT0}', n))
    if WLATE < 2: wload(0); wload(1)
    v_after = a.vm + (8 if WLATE >= 2 else 0)
    srd(a, SMOD, 10, WS_MOD, 6*448*4)
    if TLBW: srd(a, 40, 10, 0, 0x200000)
    srd(a, 16, 10, WS_FLAG, 16384)
    if TLBW:
        a(f'v_lshlrev_b32 v117, 18, v{C4}'); a.vmem('buffer_load_dword v116, v117, s[40:43], 0 offen')
    a('v_mov_b32 v118, 0'); a.vmem(f'buffer_load_dword v119, v118, s[{SDBG}:{SDBG+3}], 0 offen sc1')
    xs('a')
    a('s_cmp_eq_u32 s47, 1'); a('s_cbranch_scc1 K2_gv')
    a('s_cmp_eq_u32 s47, 2'); a('s_cbranch_scc1 K2_ln1')
    vm0 = a.vm
    if not WLATE: wload(2); wload(3); wload(4)
    a('s_branch K2_g8')
    a.label('K2_gv')
    a.vm = vm0
    def nonce_wait(T, n0=0):
        a('s_mov_b32 s45, 0x8000')
        a(f's_waitcnt vmcnt({n0})')
        a.label(f'{T}_pl')
        a(f'v_readfirstlane_b32 s{sNON}, v119'); a('s_nop 3')
        a(f's_cmp_lg_u32 s{sNON}, 0'); a(f's_cbranch_scc1 {T}_pd')
        a(f'buffer_load_dword v119, v118, s[{SDBG}:{SDBG+3}], 0 offen sc1'); a('s_waitcnt vmcnt(0)')
        a('s_sub_u32 s45, s45, 1'); a('s_cmp_lg_u32 s45, 0'); a(f's_cbranch_scc1 {T}_pl')
        a.label(f'{T}_pd')
    a.wait_vm(tC)
    for i in range(7): a(f'v_lshlrev_b32 v{CV+i}, 16, v{CV+i}')
    for i in range(7): a(f'v_mul_f32 v{CT_+i}, {f32(-LOG2E)}, v{CV+i}')
    for i in range(7): a(f'v_exp_f32 v{CT_+i}, v{CT_+i}')
    for i in range(7): a(f'v_add_f32 v{CT_+i}, 1.0, v{CT_+i}')
    for i in range(7): a(f'v_rcp_f32 v{CT_+i}, v{CT_+i}')
    for i in range(7): a(f'v_mul_f32 v{CV+i}, v{CV+i}, v{CT_+i}')
    for i in range(7): rbf(a, CV+i, CV+i)
    for i in range(7):
        a.wait_vm(tG[i])
        for j in range(4):
            u0, u1 = 72 + 2*(j & 1), 73 + 2*(j & 1)
            unpack(a, u0, u1, WR+4*i+j)
            op = 'v_mul_f32' if i == 0 else 'v_fmac_f32'
            a(f'{op} v{GA+2*j}, v{u0}, v{CV+i}'); a(f'{op} v{GA+2*j+1}, v{u1}, v{CV+i}')
    if not WLATE: wload(2)
    a(f'v_lshlrev_b32 v76, 5, v{TID}'); a(f'v_add_u32 v76, {LSCR}, v76')
    a(f'ds_write_b128 v76, {vr(GA,4)}'); a(f'ds_write_b128 v76, {vr(GA+4,4)} offset:16')
    a(f'v_lshrrev_b32 v77, 5, v{TID}'); a(f'v_lshlrev_b32 v78, 2, v{Pp}'); a(f'v_add_u32 v78, {LSCR}, v78')
    a('v_lshl_add_u32 v79, v77, 10, v78'); a('v_lshl_add_u32 v80, v77, 7, v78')
    a('s_waitcnt lgkmcnt(0)'); a('s_barrier')
    for i in range(8): a(f'ds_read_b32 v{GA+i}, v79 offset:{128*i}')
    if not WLATE: wload(3)
    a('s_waitcnt lgkmcnt(0)')
    for n in (4, 2, 1):
        for i in range(n): a(f'v_add_f32 v{GA+i}, v{GA+i}, v{GA+n+i}')
    a(f'ds_write_b32 v80, v{GA} offset:8192')
    a('s_waitcnt lgkmcnt(0)'); a('s_barrier')
    for i in range(8): a(f'ds_read_b32 v{GA+i}, v78 offset:{8192+128*i}')
    if not WLATE: wload(4)
    a('s_waitcnt lgkmcnt(0)')
    for n in (4, 2, 1):
        for i in range(n): a(f'v_add_f32 v{GA+i}, v{GA+i}, v{GA+n+i}')
    rbf(a, GA, GA)
    a('s_sub_u32 s53, s52, 14'); a('s_cmp_lt_u32 s53, 14'); a('s_cbranch_scc1 K2_g1')
    a('s_sub_u32 s53, s52, 56'); a('s_cmp_lt_u32 s53, 14'); a('s_cbranch_scc0 K2_g2')
    a.label('K2_g1')
    a(f'v_add_f32 v{GA}, 1.0, v{GA}'); rbf(a, GA, GA)
    a.label('K2_g2')
    a('s_cmp_lt_u32 s52, 28'); a('s_cbranch_scc0 K2_g3')
    a(f'v_mul_f32 v{GA}, {f32(LOG2E/16)}, v{GA}')
    a.label('K2_g3')
    a(f's_lshl_b32 s46, s52, 4'); a(f's_add_u32 s46, s46, {FL_M}')
    a('s_cmp_lg_u32 s14, 0'); a('s_cbranch_scc1 K2_g8')
    if HP:
        a('s_cmp_lt_u32 s52, 28'); a('s_cbranch_scc0 K2_g4')
        srd(a, 36, 10, WS_MODG, 896*8)
        nonce_wait('K2_q')
        a(f'v_mov_b32 v{GA+1}, v119'); a(f'v_lshlrev_b32 v77, 3, v{Pp}'); a('s_lshl_b32 s53, s52, 8')
        a(f'buffer_store_dwordx2 {vr(GA,2)}, v77, s[36:39], s53 offen sc1')
        a('s_mov_b32 s47, 0')
        a('s_branch K2_g9')
        a.label('K2_g4')
    a(f'v_lshlrev_b32 v77, 2, v{Pp}'); a('s_lshl_b32 s53, s52, 7')
    a(f'buffer_store_dword v{GA}, v77, s[{SMOD}:{SMOD+3}], s53 offen sc1')
    a.label('K2_g8')
    for t in range(WMID): wload(t)
    a('s_branch K2_g9')
    a.label('K2_ln1')
    F = 16
    a(f's_mul_i32 s46, s52, 14336'); srd(a, 36, 10, WS_N, 14336, 46)
    a('v_lshl_add_u32 v48, v{W}, 2, v{G}'.format(W=W, G=G)); a(f'v_lshlrev_b32 v49, 7, v{Qv}'); a(f'v_add_u32 v49, {LSCR}, v49'); a('v_lshl_add_u32 v48, v48, 3, v49')
    a(f'v_lshlrev_b32 v50, 4, v{L}'); a(f'v_lshl_add_u32 v50, v{W}, 10, v50')
    a(f's_waitcnt vmcnt({vm0 - (v_after - 8)})')
    for i in range(16): unpack(a, F+2*i, F+2*i+1, XRW+i)
    if not WLATE: wload(2)
    a(f'v_add_f32 v52, v{F}, v{F+1}'); a(f'v_mul_f32 v53, v{F}, v{F}'); a(f'v_add_f32 v54, v{F+2}, v{F+3}'); a(f'v_mul_f32 v55, v{F+2}, v{F+2}')
    a(f'v_fmac_f32 v53, v{F+1}, v{F+1}'); a(f'v_fmac_f32 v55, v{F+3}, v{F+3}')
    for i in range(4, 32, 2):
        a(f'v_add_f32 v52, v52, v{F+i}'); a(f'v_fmac_f32 v53, v{F+i}, v{F+i}'); a(f'v_add_f32 v54, v54, v{F+i+1}'); a(f'v_fmac_f32 v55, v{F+i+1}, v{F+i+1}')
    a('v_add_f32 v52, v52, v54'); a('v_add_f32 v53, v53, v55')
    a('ds_write_b64 v48, v[52:53]')
    a('s_waitcnt lgkmcnt(0)'); a('s_barrier')
    for i in range(8): a(f'ds_read_b128 {vr(56+4*i,4)}, v49 offset:{16*i}')
    if not WLATE: wload(3)
    a('s_waitcnt lgkmcnt(0)')
    n = 16
    while n > 1:
        n //= 2
        for i in range(n):
            a(f'v_add_f32 v{56+2*i}, v{56+2*i}, v{56+2*(n+i)}'); a(f'v_add_f32 v{57+2*i}, v{57+2*i}, v{57+2*(n+i)}')
    m, v = 56, 57
    a(f'v_mul_f32 v{m}, {f32(1/448)}, v{m}'); a(f'v_mul_f32 v{v}, {f32(1/448)}, v{v}')
    a(f'v_fma_f32 v{v}, -v{m}, v{m}, v{v}'); a(f'v_max_f32 v{v}, 0, v{v}')
    rbf(a, v, v); a(f'v_add_f32 v{v}, {f32(1e-5)}, v{v}'); rbf(a, v, v)
    a(f'v_sqrt_f32 v{v}, v{v}'); rbf(a, m, m)
    rbf(a, v, v); a(f'v_rcp_f32 v{v}, v{v}')
    if LNFAST:
        a('s_nop 0'); a(f'v_mul_f32 v{m}, v{m}, v{v}')
        for i in range(32): a(f'v_fma_f32 v{F+i}, v{F+i}, v{v}, -v{m}')
        for i in range(16): a(f'v_cvt_pk_bf16_f32 v{XRW+i}, v{F+2*i}, v{F+2*i+1}')
    else:
        for i in range(32): a(f'v_sub_f32 v{F+i}, v{F+i}, v{m}')
        if not WLATE: wload(4)
        for i in range(16): a(f'v_cvt_pk_bf16_f32 v{XRW+i}, v{F+2*i}, v{F+2*i+1}')
        for i in range(16): unpack(a, F+2*i, F+2*i+1, XRW+i)
        for i in range(32): a(f'v_mul_f32 v{F+i}, v{F+i}, v{v}')
        for i in range(16): a(f'v_cvt_pk_bf16_f32 v{XRW+i}, v{F+2*i}, v{F+2*i+1}')
    if HP:
        for i in range(16): unpack(a, F+2*i, F+2*i+1, XRW+i)
        srd(a, 20, 10, WS_MODG, 896*8)
        a(f'v_lshlrev_b32 v48, 4, v{TID}'); a(f'v_lshlrev_b32 v49, 3, v{TID}'); a(f'v_add_u32 v49, {LMOD}, v49')
        a(f'v_lshlrev_b32 v51, 5, v{G}'); a(f'v_lshl_add_u32 v51, v{W}, 7, v51'); a(f'v_add_u32 v51, {LMOD}, v51')
        a(f's_mov_b32 s53, 4096'); a('s_cmp_lt_u32 s14, 3'); a('s_cselect_b32 s45, 128, 64')
        nonce_wait('K2_r')
        a('s_mov_b32 s44, 0x8000')
        a.label('K2_h_pl')
        a('buffer_load_dwordx4 v[52:55], v48, s[20:23], 0 offen sc1'); a('buffer_load_dwordx4 v[56:59], v48, s[20:23], s53 offen sc1')
        a('s_waitcnt vmcnt(0)')
        a('v_xor_b32 v60, v53, v55'); a('v_xor_b32 v61, v57, v59'); a(f'v_xor_b32 v62, s{sNON}, v53'); a(f'v_xor_b32 v63, s{sNON}, v57')
        a('v_or_b32 v60, v60, v62'); a('v_or_b32 v61, v61, v63')
        a('v_cmp_eq_u32 vcc, 0, v60'); a('v_cmp_eq_u32 s[72:73], 0, v61'); a('s_nop 1')
        a('s_bcnt1_i32_b64 s46, vcc'); a('s_bcnt1_i32_b64 s74, s[72:73]'); a('s_add_u32 s46, s46, s74')
        a('s_cmp_eq_u32 s46, s45'); a('s_cbranch_scc1 K2_h_pd')
        a('s_sleep 1')
        a('s_sub_u32 s44, s44, 1'); a('s_cmp_lg_u32 s44, 0'); a('s_cbranch_scc1 K2_h_pl')
        a.label('K2_h_pd')
        a('v_mov_b32 v53, v54'); a('v_mov_b32 v57, v58')
        a('ds_write_b64 v49, v[52:53]'); a('ds_write_b64 v49, v[56:57] offset:2048')
        a('s_waitcnt lgkmcnt(0)'); a('s_barrier')
        for i in range(4):
            for j, off in enumerate((1792, 1792+16, 0, 16)): a(f'ds_read_b128 {vr(52+16*i+4*j,4)}, v51 offset:{off + 512*i}')
        for i in range(4):
            a(f's_waitcnt lgkmcnt({12-4*i})')
            for e in range(8): a(f'v_fma_f32 v{F+8*i+e}, v{F+8*i+e}, v{52+16*i+e}, v{52+16*i+8+e}')
            for e in range(4): a(f'v_cvt_pk_bf16_f32 v{XRW+4*i+e}, v{F+8*i+2*e}, v{F+8*i+2*e+1}')
    for i in range(4):
        a(f's_mov_b32 s53, {4096*i}')
        a(f'buffer_store_dwordx4 {vr(XRW+4*i,4)}, v50, s[36:39], s53 offen sc1')
    for t in range(WMID): wload(t)
    a(f's_waitcnt vmcnt({4*WMID})'); a('s_barrier')
    a('s_lshl_b32 s46, s13, 7'); a('s_and_b32 s53, s2, 7'); a('s_lshl_b32 s53, s53, 2'); a('s_add_u32 s46, s46, s53'); a(f's_add_u32 s46, s46, {FL_N}')
    a.label('K2_g9')
    xs('A')
    nonce_wait('K2_o', 4*WMID)
    a('s_cmp_eq_u32 s47, 0'); a('s_cbranch_scc1 K2_p9')
    a('s_cmp_lg_u32 s14, 0'); a('s_cbranch_scc1 K2_p9')
    a('s_mov_b64 exec, 1')
    a('buffer_store_dword v119, v118, s[16:19], s46 offen sc1')
    a('s_mov_b64 exec, -1')
    a.label('K2_p9')
    xs('B')
    a.vm = 0
    if TLBW: a('s_lshl_b32 s40, s14, 12')
    for t in range(WMID, 5): wload(t)
    if W8: W8P = 1
    for t in range(8 if W8 else 5): tW[t] = 0
    t0, t1, t2 = 112, 113, 117
    for n in range(4):
        a(f'v_lshl_add_u32 v{t0}, v{W}, 3, v{Hh}'); a(f'v_add_u32 v{t1}, {2*n}, v{t0}')
        a(f'v_and_b32 v{t2}, 7, v{t1}'); a(f'v_lshlrev_b32 v{t2}, 1, v{t2}'); a(f'v_xor_b32 v{t2}, v{t2}, v{Pp}'); a(f'v_lshlrev_b32 v{t2}, 4, v{t2}')
        a(f'v_lshl_add_u32 v{VD_(n)}, v{t0}, 9, v{t2}')
        a(f'v_and_b32 v{t2}, 15, v{t1}'); a(f'v_xor_b32 v{t2}, v{t2}, v{Pp}'); a(f'v_lshlrev_b32 v{t2}, 4, v{t2}')
        a(f'v_lshl_add_u32 v{KD_(n)}, v{t0}, 9, v{t2}')
    for i in range(4):
        a(f'v_add_u32 v{t0}, {4*i}, v{G}'); a(f'v_xor_b32 v{t0}, v{t0}, v{Qv}'); a(f'v_lshlrev_b32 v{t0}, 4, v{t0}')
        a(f'v_lshl_add_u32 v{KA_(i)}, v{Qv}, 9, v{t0}')
    a(f'v_lshl_add_u32 v{t1}, v{G}, 2, v{R}')
    a(f'v_lshlrev_b32 v{t2}, 3, v{C4}'); a(f'v_lshl_add_u32 v{t2}, v{t1}, 9, v{t2}'); a(f'v_add_u32 v{t2}, {LV}, v{t2}')
    a(f'v_and_b32 v{t1}, 7, v{t1}')
    for i in range(8):
        a(f'v_xor_b32 v{t0}, {i}, v{t1}'); a(f'v_lshl_add_u32 v{VA_(i)}, v{t0}, 5, v{t2}')
    a(f'v_lshl_add_u32 v{t1}, v{G}, 3, v{R}')
    a(f'v_lshlrev_b32 v{t2}, 3, v{C4}'); a(f'v_lshl_add_u32 v{t2}, v{t1}, 9, v{t2}')
    a(f'v_and_b32 v{t1}, 1, v{G}'); a(f'v_lshl_add_u32 v{t1}, v{t1}, 2, v{R}')
    for i in range(8):
        a(f'v_xor_b32 v{t0}, {i}, v{t1}'); a(f'v_lshl_add_u32 v{WAL(i)}, v{t0}, 5, v{t2}'); a(f'v_add_u32 v{WAH(i)}, {LV}, v{WAL(i)}')
    a(f'v_lshlrev_b32 v{MA}, 5, v{G}'); a(f'v_add_u32 v{MA}, {LMOD}, v{MA}')
    a(f'v_lshlrev_b32 v{t0}, 18, v{W}'); a(f'v_lshl_add_u32 v{ST_(0)}, v{L}, 4, v{t0}'); a(f'v_add_u32 v{ST_(1)}, {1<<17}, v{ST_(0)}')
    a(f'v_mul_u32_u24 v{t0}, {2*14336}, v{W}'); a(f'v_lshl_add_u32 v{NV_(0)}, v{L}, 4, v{t0}'); a(f'v_add_u32 v{NV_(1)}, 14336, v{NV_(0)}')
    a('s_waitcnt lgkmcnt(0)')
    a(f's_mov_b32 s{sATT}, 0'); a(f's_mov_b32 s{s4K}, 4096')
    srd(a, SV, 6, 0, 1 << 20, 50)
    srd(a, SO, 10, WS_O, 0, 48); a(f's_sub_u32 s{SO+2}, {1<<20}, s49')
    a('s_lshl_b32 s52, s2, 2'); a('s_add_u32 s52, s52, s14')
    if not WOL2:
        a('s_mov_b32 s56, s60'); a('s_mov_b32 s57, s61'); a('s_sub_u32 s53, s52, 392')
        a('s_cmp_ge_u32 s52, 392'); a('s_cbranch_scc1 K2_pf')
    a('s_mov_b32 s56, s54'); a('s_mov_b32 s57, s55'); a('s_mov_b32 s53, s52')
    a('s_cmp_lt_u32 s52, 196'); a('s_cbranch_scc1 K2_pf')
    a('s_mov_b32 s56, s62'); a('s_mov_b32 s57, s63'); a('s_sub_u32 s53, s52, 196')
    a.label('K2_pf')
    a('s_lshl_b32 s53, s53, 13'); a('s_add_u32 s56, s56, s53'); a('s_addc_u32 s57, s57, 0')
    a('s_lshl_b32 s53, s14, 18'); a('s_sub_u32 s56, s56, s53'); a('s_subb_u32 s57, s57, 0')
    a('s_and_b32 s57, s57, 0xffff'); a('s_mov_b32 s59, 0x20000')
    a('s_add_u32 s53, s53, 8192'); a(f's_cmp_lt_u32 s52, {392 if WOL2 else 840}'); a('s_cselect_b32 s58, s53, 0')
    a('s_mov_b32 s53, 0xfffffc00')
    GP.roles2(a)
    a('s_lshr_b32 s47, s2, 3'); a('s_lshl_b32 s47, s47, 2'); a('s_add_u32 s47, s47, s14'); a(f's_mul_i32 s47, s47, {7168 if X3 else 28672}')
    if X3: a('s_bfe_u32 s73, s2, 0x20001'); a(f's_mul_i32 s73, s73, {1024*896}'); a('s_add_u32 s47, s47, s73')
    a('s_add_u32 s76, s60, s47'); a('s_addc_u32 s77, s61, 0'); a('s_lshl_b32 s47, s14, 18'); a('s_sub_u32 s76, s76, s47'); a('s_subb_u32 s77, s77, 0')
    a('s_and_b32 s77, s77, 0xffff'); a(f's_add_u32 s78, s47, {7168 if X3 else 28672}'); a('s_mov_b32 s79, 0x20000')
    a(f's_mul_i32 s47, s13, {8*14336}'); srd(a, SN, 10, WS_N, 8*14336, 47)
    a(f's_mov_b32 s47, {(63-WOS)*1024}')
    if W8:
        wload(5); wload(6); wload(7)
        for t in range(8): tW[t] = 0
    sp.stamp()
    if HP:
        a('s_lshl_b32 s44, s13, 7'); a(f's_add_u32 s44, s44, {FL_N}'); a(f'v_lshlrev_b32 v0, 2, v{Pp}'); a('v_add_u32 v0, s44, v0')
    else:
        a(f'v_lshlrev_b32 v0, 4, v{L}'); a(f'v_add_u32 v0, {FL_M}, v0')
        a('s_lshl_b32 s44, s13, 7'); a(f's_add_u32 s44, s44, {FL_N - 28*4}'); a(f'v_lshlrev_b32 v1, 2, v{L}'); a('v_add_u32 v1, s44, v1')
        a(f'v_cmp_gt_u32 vcc, 28, v{L}'); a('s_nop 1'); a('v_cndmask_b32 v0, v1, v0, vcc')
        a(f'v_lshlrev_b32 v2, 4, v{TID}'); a(f'v_add_u32 v3, {LMOD}, v2')
    a('s_mov_b32 s44, 0x8000')
    if P1: a('s_cmp_lg_u32 s14, 0'); a('s_cbranch_scc1 K2_m_pd')
    a.label('K2_m_pl')
    a('buffer_load_dword v1, v0, s[16:19], 0 offen sc1')
    a('s_waitcnt vmcnt(0)')
    a(f'v_cmp_eq_u32 vcc, s{sNON}, v1'); a('s_nop 1')
    a('s_and_b32 vcc_hi, vcc_hi, 15'); a('s_bcnt1_i32_b64 s73, vcc' if not HP else 's_bcnt1_i32_b32 s73, vcc_lo'); a(f's_cmp_eq_u32 s73, {8 if HP else 36}'); a('s_cbranch_scc1 K2_m_pd')
    a(f's_sleep {SLP}')
    a('s_sub_u32 s44, s44, 1'); a('s_cmp_lg_u32 s44, 0'); a('s_cbranch_scc1 K2_m_pl')
    a.label('K2_m_pd')
    if P1: a('s_waitcnt vmcnt(0)'); a('s_barrier')
    xs('D')
    def hload(s, qb):
        if qb == 0: a(f's_mov_b32 s{sT1}, {s*1024}')
        tN[s] = a.vmem(f'buffer_load_dwordx4 {vr(HR(s,qb),4)}, v{NV_(qb)}, s[{SN}:{SN+3}], s{sT1} offen sc1')
    if HP:
        a.vm = 0
        for s_ in range(8):
            for qb in range(2): hload(s_, qb)
    else:
        tM = a.vmem(f'buffer_load_dwordx4 v[4:7], v2, s[{SMOD}:{SMOD+3}], 0 offen sc1')
        def nload(s):
            a(f's_mov_b32 s{sT1}, {s*1024}')
            for qb in range(2):
                tN[s] = a.vmem(f'buffer_load_dwordx4 {vr(NR_(s,qb),4)}, v{NV_(qb)}, s[{SN}:{SN+3}], s{sT1} offen sc1')
        nload(0); nload(1); nload(2)
    srd(a, SK, 4, 0, 1 << 20, 50)
    def wread(t, db, h):
        b = wslot(t); A = WAL if b < LV else WAH
        return f'ds_read_b64_tr_b16 {ar(VF_(db)+2*h,2)}, v{A(db&7)} offset:{(b % LV) + h*2048 + (db>>3)*256}'
    def modreads(s):
        m = MC_(s & 1)
        return [f'ds_read_b128 {vr(m,4)}, v{MA} offset:{1792+128*s}', f'ds_read_b128 {vr(m+4,4)}, v{MA} offset:{1792+128*s+16}',
                f'ds_read_b128 {vr(m+8,4)}, v{MA} offset:{128*s}', f'ds_read_b128 {vr(m+12,4)}, v{MA} offset:{128*s+16}']
    def modvalu(s):
        m = MC_(s & 1); out = []
        for qb in range(2):
            for i in range(4):
                k = (qb*4+i) % 4
                ta, tb = TMP + 2*k, TMP + 2*k + 1
                raw = NR_(s, qb) + i
                out.append([f'v_lshlrev_b32 v{ta}, 16, v{raw}', f'v_and_b32 v{tb}, 0xffff0000, v{raw}',
                            f'v_fma_f32 v{ta}, v{ta}, v{m+2*i}, v{m+8+2*i}', f'v_fma_f32 v{tb}, v{tb}, v{m+2*i+1}, v{m+8+2*i+1}',
                            f'v_cvt_pk_bf16_f32 v{H_(s&1,qb)+i}, v{ta}, v{tb}'])
        return out
    if HP:
        sp.stamp()
        for db in range(16):
            for h in range(2): a(wread(0, db, h))
        a.wait_vm(tN[0], ' lgkmcnt(0)')
        sp.stamp()
    else:
        a.wait_vm(tM)
        a('ds_write_b128 v3, v[4:7]')
        a('s_waitcnt lgkmcnt(0)'); a('s_barrier')
        sp.stamp()
        for x in modreads(0): a(x)
        for db in range(16):
            for h in range(2): a(wread(0, db, h))
        a.wait_vm(tN[0], ' lgkmcnt(15)')
        for grp in modvalu(0):
            for x in grp: a(x)
        for x in modreads(1): a(x)
        a('s_waitcnt lgkmcnt(0)')
        sp.stamp()
    NS = 14
    tok = {}
    kv_at = {8: ('K', 0), 9: ('K', 1), 10: ('K', 2), 11: ('V', 0), 12: ('K', 3), 13: ('V', 1)}
    def tile_items(key):
        if key[0] == 'W':
            t = key[1]; base, so, vo, sd = wslot(t), t*32*8192, WD_, SWQ
        else:
            kind, tt = key
            base, so, vo, sd = (LK if kind == 'K' else LV) + tt*TILE, tt*TILE, (KD_ if kind == 'K' else VD_), (SK if kind == 'K' else SV)
        def mk(n):
            def f():
                tk = a.vmem(dma(vo(n), sd, f's{sT0}', n))
                if key[0] == 'W': tW[key[1]] = tk
                else: tok[key] = tk
            return f
        return [setm0(base), f's_mov_b32 s{sT0}, {hex(so)}'], [mk(n) for n in range(4)]
    def conv_ops(st, qb):
        Xb, Yb, q = O_(2*st, qb), O_(2*st+1, qb), Q_(st, qb)
        return ([f'v_cvt_pk_bf16_f32 v{q}, v{Xb}, v{Xb+1}', f'v_cvt_pk_bf16_f32 v{q+1}, v{Xb+2}, v{Xb+3}',
                 f'v_cvt_pk_bf16_f32 v{q+2}, v{Yb}, v{Yb+1}', f'v_cvt_pk_bf16_f32 v{q+3}, v{Yb+2}, v{Yb+3}'],
                [f'v_permlane32_swap_b32 v{q}, v{q+2}', f'v_permlane32_swap_b32 v{q+1}, v{q+3}'],
                [f'v_permlane16_swap_b32 v{q}, v{q+2}', f'v_permlane16_swap_b32 v{q+1}, v{q+3}'],
                [f'v_mov_b64 v[{Xb}:{Xb+1}], 0', f'v_mov_b64 v[{Xb+2}:{Xb+3}], 0', f'v_mov_b64 v[{Yb}:{Yb+1}], 0', f'v_mov_b64 v[{Yb+2}:{Yb+3}], 0'])
    for s in range(NS):
        if QS: sq_.stamp()
        G_ = [[] for _ in range(32)]
        Vv = [[] for _ in range(32)]
        cap = [1]*32
        bar = (s % 2 == 0)
        if s >= 1:
            G_[0].append(wread(s, 15, 0)); G_[1].append(wread(s, 15, 1))
        for k in (4, 12, 20, 28): G_[k].insert(0, 's_waitcnt lgkmcnt(8)'); cap[k] = 0
        tiles = []
        if W8:
            if 2 <= s and s + 6 < NS: tiles.append(('W', s + 6))
        elif s + 5 < NS: tiles.append(('W', s + 5))
        if s in kv_at: tiles.append(kv_at[s])
        if s + 1 < NS:
            def w(s=s, bar=bar):
                t = 0 if HP else tN[s+1]
                if bar and s >= 2:
                    t = max(t, tW[s+1], tW[min(s+2, NS-1)])
                    if s == 12: t = max(t, tok['K', 1])
                a.wait_vm(t)
                if bar and s >= 2: a('s_barrier')
            if HP:
                G_[31].append(lambda s=s: a.wait_vm(tN[s+1]))
                if bar and s >= 2: G_[1].append(w)
            else: G_[1].append(w)
            for k in range(30): G_[k+2].append(wread(s+1, k >> 1, k & 1))
            if s + 2 < NS and not HP:
                for i, x in enumerate(modreads(s+2)): G_[3+2*i].append(x); cap[3+2*i] = 0
            if HP and s + 8 < NS:
                G_[2].append(lambda s=s: hload(s+8, 0)); G_[6].append(lambda s=s: hload(s+8, 1))
            if s + 3 < NS and not HP:
                def nl(qb, s=s):
                    def f():
                        if qb == 0: a(f's_mov_b32 s{sT1}, {(s+3)*1024}')
                        tN[s+3] = a.vmem(f'buffer_load_dwordx4 {vr(NR_(s+3,qb),4)}, v{NV_(qb)}, s[{SN}:{SN+3}], s{sT1} offen sc1')
                    return f
                G_[2].append(nl(0)); G_[6].append(nl(1)); cap[2] = cap[6] = 0
        else:
            ks = [kread(0, kb, st) for kb in range(2) for st in range(8)]
            for i, x in enumerate(ks): G_[2+i].append(x)
        pos = [10, 14, 18, 22] if len(tiles) == 1 else [8, 11, 14, 17, 21, 24, 27, 30]
        for ti, key in enumerate(tiles):
            su, ds = tile_items(key)
            pp = pos[4*ti:4*ti+4]
            G_[pp[0]-1] = su + G_[pp[0]-1]; cap[pp[0]-1] = 0
            for p, d in zip(pp, ds): G_[p].append(d); cap[p] = 0
        if HP and s + 1 < NS: pass
        elif s + 1 < NS:
            grps = modvalu(s+1); seq = []
            for gi in range(10):
                if gi < 8: seq += grps[gi][0:2]
                if 1 <= gi < 9: seq += grps[gi-1][2:4]
                if gi >= 2: seq.append(grps[gi-2][4])
            lo = 10 if (bar and s >= 2) else 2
            rng = list(range(lo, 30))
            tot = len(seq); base = sum(cap[k] for k in rng); extra = tot - base
            cnt = {k: cap[k] for k in rng}
            order = [k for k in rng if cap[k]] + [k for k in rng if not cap[k]]
            i = 0
            while extra > 0:
                cnt[order[i % len(order)]] += 1; extra -= 1; i += 1
            p = 0
            for k in rng:
                Vv[k] = seq[p:p+cnt[k]]; p += cnt[k]
        else:
            pend = []; zero = []
            for st in range(8):
                A_, B_ = conv_ops(st, 0), conv_ops(st, 1)
                g = 4*st + 3 + 5
                for part in range(3): pend += [(g, st, x) for x in A_[part] + B_[part]]
                zero += A_[3] + B_[3]
            for k in range(32):
                n = 1 if G_[k] else 2
                if k >= 18: n = 3
                while n and pend and pend[0][0] <= k:
                    Vv[k].append(pend.pop(0)[2]); n -= 1
        for db in range(16):
            for qb in range(2):
                k = db*2 + qb
                c = vr(O_(db, qb), 4)
                a(f'{M16} {c}, {ar(VF_(db),4)}, {vr(HR(s,qb) if HP else H_(s&1,qb),4)}, {c if s else 0}')
                for x in G_[k] + Vv[k]:
                    x() if callable(x) else a(x)
    if QS: sq_.stamp()
    a('s_waitcnt lgkmcnt(0)'); a('s_barrier')
    sp.stamp()
    conv = pend
    mem = []
    for key in (('V', 2), ('K', 4)):
        kind, tt = key
        base = (LK if kind == 'K' else LV) + (tt & 3)*TILE
        mem.append([setm0(base), f's_mov_b32 s{sT0}, {hex(tt*TILE)}'])
        for n in range(4):
            mem.append([lambda n=n, kind=kind: a.vmem(dma((KD_ if kind == 'K' else VD_)(n), SK if kind == 'K' else SV, f's{sT0}', n))])
    first_left = conv[0][1] if conv else 8
    a.nop(2)
    for st in range(8):
        for c in range(4):
            if c == 0 and any(x[1] <= st for x in conv):
                while any(x[1] <= st for x in conv): a(conv.pop(0)[2])
                a('s_nop 1')
            q0 = qk_mfma(c, st, '0')
            a(q0)
            n = 3
            if c & 1: a(kread(1, c >> 1, st)); n = 2
            elif mem:
                for x in mem.pop(0): x() if callable(x) else a(x)
                n = 1
            while n and conv: a(conv.pop(0)[2]); n -= 1
            while n and zero and not conv: a(zero.pop(0)); n -= 1
    assert not mem
    for x in zero: a(x)
    softmax0(a, True, max(0, 8 - len(zero)))
    GP.flag_srd(a)
    if not GP.LATE:
        a('s_mov_b32 s44, 0x8000'); a(f'v_and_b32 v{S_(0)}, 0x3ff, v{ST_(0)}'); a(f'v_add_u32 v{S_(0)}, {FL_M+448}, v{S_(0)}')
        a.label('K2_n_pl')
        a(f'buffer_load_dword v{S_(0)+1}, v{S_(0)}, s[{GP.SF_}:{GP.SF_+3}], 0 offen sc1')
        a('s_waitcnt vmcnt(0)')
        a(f'v_cmp_eq_u32 vcc, s{sNON}, v{S_(0)+1}'); a('s_nop 1')
        a('s_bcnt1_i32_b64 s73, vcc'); a('s_cmp_ge_u32 s73, 56'); a('s_cbranch_scc1 K2_n_pd')
        a('s_sleep 8')
        a('s_sub_u32 s44, s44, 1'); a('s_cmp_lg_u32 s44, 0'); a('s_cbranch_scc1 K2_n_pl')
        a.label('K2_n_pd')
    a(f's_mov_b32 s{sVO}, {3*TILE}'); a(f's_mov_b32 s{sKO}, {5*TILE}')
    if FUSE:
        a(WOPF)
        a('s_getpc_b64 s[24:25]'); a.label('K2_pc2')
        a('s_add_u32 s24, s24, K2_tail-K2_pc2'); a('s_addc_u32 s25, s25, 0'); a('s_and_b32 s25, s25, 0xffff')
        a('s_mov_b32 s26, K2_fb-K2_tail'); a('s_mov_b32 s27, 0x20000')
        a(f'v_and_b32 v{S_(0)}, 0x3ff, v{ST_(0)}'); a(f'v_lshlrev_b32 v{S_(0)}, 3, v{S_(0)}'); a(f's_lshl_b32 s{sT0}, s14, 13')
        a(f'buffer_load_dword a128, v{S_(0)}, s[24:27], s{sT0} offen')
    sp.stamp()
    if STAMP and not QS and not FUSE: a('s_memrealtime s[90:91]'); a('s_waitcnt lgkmcnt(0)')
    a('.p2align 6')
    a.label('K2_loop')
    pre_len = len(a.L)
    for u in range(4):
        a(f's_waitcnt vmcnt({VMW}) lgkmcnt(0)'); a('s_barrier')
        loop_body(a, u, verbose=bool(os.environ.get('V')))
        if u == 2:
            a('s_cbranch_scc1 K2_tail')
    a('s_branch K2_loop')
    body = a.L[pre_len:]
    for p in check_text(body + body, 'k2 loop wrap'): print('HAZARD', p)
    a.label('K2_tail')
    a(f's_waitcnt vmcnt({0 if FUSE else 16}) lgkmcnt(0)'); a('s_barrier')
    sp.stamp()
    if STAMP and not QS and not FUSE: a('s_memrealtime s[92:93]'); a('s_waitcnt lgkmcnt(0)'); a('s_sub_u32 s92, s92, s90')
    for db in range(16):
        for h in range(2): a(vread(3, db, h))
    for qb in range(2): xlane(a, 'v_add_f32', L_(qb), S_(qb))
    a(f's_mov_b32 s{sT0}, {f32(THRESH)}')
    a(f'v_add_f32 v{S_(0)+1}, v{L_(0)}, v{L_(1)}')
    a(f'v_cmp_ngt_f32 vcc, s{sT0}, v{S_(0)+1}')
    a(f'v_rcp_f32 v{L_(0)}, v{L_(0)}'); a(f'v_rcp_f32 v{L_(1)}, v{L_(1)}')
    a(f's_cmp_lg_u64 vcc, 0'); a(f's_cselect_b32 s{sT1}, 1, 0')
    a(f'v_mov_b32 v{S_(0)+2}, s{sT1}')
    a(f's_lshl_b32 s{sT0}, s14, 2'); a(f's_add_u32 s{sT0}, s{sT0}, {LFLAG}'); a(f'v_mov_b32 v{S_(0)+3}, s{sT0}')
    a(f'ds_write_b32 v{S_(0)+3}, v{S_(0)+2}')
    def ep_ops(sq, qb, pk):
        Xb, Yb = O_(2*sq, qb), O_(2*sq+1, qb)
        o = []
        if pk:
            LP = L_(0)
            sel = 'op_sel:[0,0] op_sel_hi:[1,0]' if qb == 0 else 'op_sel:[0,1] op_sel_hi:[1,1]'
            for b in (Xb, Xb+2, Yb, Yb+2): o.append(f'v_pk_mul_f32 v[{b}:{b+1}], v[{b}:{b+1}], v[{LP}:{LP+1}] {sel}')
        else:
            for i in range(4):
                o += [f'v_mul_f32 v{Xb+i}, v{Xb+i}, v{L_(qb)}', f'v_mul_f32 v{Yb+i}, v{Yb+i}, v{L_(qb)}']
        o += [f'v_cvt_pk_bf16_f32 v{Xb}, v{Xb}, v{Xb+1}', f'v_cvt_pk_bf16_f32 v{Xb+1}, v{Xb+2}, v{Xb+3}',
              f'v_cvt_pk_bf16_f32 v{Xb+2}, v{Yb}, v{Yb+1}', f'v_cvt_pk_bf16_f32 v{Xb+3}, v{Yb+2}, v{Yb+3}',
              f'buffer_store_dwordx4 {vr(Xb,4)}, v{ST_(qb)}, s[{SO}:{SO+3}], {"0" if sq < 4 else f"s{s4K}"} offen offset:{(sq&3)*1024} {OFLAG}']
        return o
    pend = []
    NOV = 3
    for sq in range(NOV):
        for qb in range(2): pend += [(4*sq + 2 + qb + 8, x) for x in ep_ops(sq, qb, False)]
    for db in range(16):
        if db % 4 == 0: a(f's_waitcnt lgkmcnt({min(15, 33 - 2*db - 8)})')
        for qb in range(2):
            k = 2*db + qb
            a(pv_mfma(db, qb, 1))
            n = 2
            while n and pend and pend[0][0] <= k:
                x = pend.pop(0)[1]; a(x); n -= 1
                if 'store' in x: n = 0
    sp.stamp()
    for x in pend: a(x[1])
    for sq in range(NOV, 8):
        for qb in range(2):
            for x in ep_ops(sq, qb, True): a(x)
    sp.stamp()
    if not FUSE:
        if STAMP: a('s_waitcnt vmcnt(0)')
        sp.stamp(); sp.stamp(True); sp.dump(10, 14, S_(2))
        if STAMP and not QS: a(f'v_mov_b32 v{S_(2)+1}, s92'); a(f'buffer_store_dword v{S_(2)+1}, v{S_(2)}, s[96:99], s100 offen offset:60')
        a(f's_cmp_lg_u32 s{sATT}, 0'); a('s_cbranch_scc1 K2_end')
        a(f'v_mov_b32 v{S_(0)+3}, {LFLAG}')
        a('s_waitcnt lgkmcnt(0)'); a('s_barrier')
    else:
        if X3:
            a.g3 = g3 = GP2.Oproj(a)
            g3.w_setup()
            for ks in range(2*GP.NPRE):
                for f in g3.w_tile(ks): f()
            a(f's_waitcnt vmcnt({4*GP.NPRE})')
        else:
            a.g3 = g3 = GP.Gemm(a, 3)
            a(f's_cmp_ge_u32 s{GP.sIDX}, 28'); a('s_cbranch_scc1 K2_np')
            g3.w_setup()
            for ks in range(GP.NPRE):
                for f in g3.w_pre(ks): f()
            a(f's_waitcnt vmcnt({4*GP.NPRE})'); a('s_branch K2_nj')
            a.label('K2_np')
            a('s_waitcnt vmcnt(0)')
            a.label('K2_nj')
        a(f'v_mov_b32 v{S_(0)+3}, {LFLAG}')
        a('s_waitcnt lgkmcnt(0)'); a('s_barrier')
        a(f's_cmp_lg_u32 s{sATT}, 0'); a('s_cbranch_scc1 K2_go')
    a(f'ds_read_b128 {vr(S_(1),4)}, v{S_(0)+3}')
    a('s_waitcnt lgkmcnt(0)')
    a(f'v_or3_b32 v{S_(1)}, v{S_(1)}, v{S_(1)+1}, v{S_(1)+2}'); a(f'v_or_b32 v{S_(1)}, v{S_(1)}, v{S_(1)+3}')
    a('s_nop 0')
    a(f'v_readfirstlane_b32 s{sT0}, v{S_(1)}')
    a('s_nop 3')
    if not FUSE:
        a(f's_cmp_eq_u32 s{sT0}, 0'); a('s_cbranch_scc1 K2_end')
    else:
        a(f's_cmp_lg_u32 s{sT0}, 0'); a('s_cbranch_scc1 K2_fb')
        a.label('K2_go')
        a(f's_lshl_b32 s44, s13, 7'); a('s_lshl_b32 s45, s12, 2'); a('s_add_u32 s44, s44, s45')
        GP.set_flag(a, 'K2_a', 44, 8)
        sp.stamp(); sp.stamp(True); sp.dump(10, 14, 8)
        if X3:
            GP2.post2(a, 'K2')
            a('s_endpgm')
        else:
            a(f's_cmp_ge_u32 s{GP.sIDX}, 28'); a('s_cbranch_scc1 K2_uw')
            GP.post(a, 'K2')
            a('s_endpgm')
            a.label('K2_uw')
            GP.uw_phase(a, 'K2')
            a('s_endpgm')
    a.label('K2_fb')
    a(f's_mov_b32 s{sATT}, 1')
    a('s_waitcnt vmcnt(0)'); a('s_barrier')
    for qb in range(2): a(f'v_mov_b32 v{NM_(qb)}, 0xff800000')
    a(f's_mov_b32 s{sKO}, 0')
    a.label('K2_mx')
    a(setm0(LK)); a('s_nop 0')
    for n in range(4): a(dma(KD_(n), SK, f's{sKO}', n))
    a('s_waitcnt vmcnt(0)'); a('s_barrier')
    for kb in range(2):
        for st in range(8): a(kread(0, kb, st))
    a('s_waitcnt lgkmcnt(0)'); a('s_barrier')
    for c in range(4):
        for st in range(8): a(qk_mfma(c, st, '0'))
    a.nop(8)
    for c in range(4):
        t = NM_(c & 1)
        a(f'v_max3_f32 v{t}, v{S_(c)}, v{S_(c)+1}, v{t}'); a(f'v_max3_f32 v{t}, v{S_(c)+2}, v{S_(c)+3}, v{t}')
    a(f's_add_u32 s{sKO}, s{sKO}, {TILE}'); a(f's_cmp_lt_u32 s{sKO}, {1<<20}'); a('s_cbranch_scc1 K2_mx')
    for qb in range(2): xlane(a, 'v_max_f32', NM_(qb), NM_(qb)+1)
    for qb in range(2):
        t = NM_(qb)
        a(f'v_sub_f32 v{t}, 0, v{t}')
        for i in range(1, 4): a(f'v_mov_b32 v{t+i}, v{t}')
    for i in range(0, 128, 2): a(f'v_mov_b64 v[{i}:{i+1}], 0')
    k0 = load_tile(a, 'K', 0); k1 = load_tile(a, 'K', 1)
    for kind, t in (('K', 2), ('V', 0), ('K', 3), ('V', 1), ('V', 2)): load_tile(a, kind, t)
    preamble(a, False, k0, k1)
    a(f's_mov_b32 s{sVO}, {3*TILE}'); a(f's_mov_b32 s{sKO}, {5*TILE}')
    if FUSE: a(WOPF); a(WOPF)
    a('s_branch K2_loop')
    a.label('K2_end')
    a('s_endpgm')
    return a, f'; @launch {"" if os.environ.get("PLAIN") else "kernel="+N+" "}grid=(256,1,1) block=(256,1,1) lds=163840', kd(N, 256, 132, sgpr=102 if STAMP else (80 if FUSE else 64))
```

```python
from gen_common import *
M16 = 'v_mfma_f32_16x16x32_bf16'
FL_A, FL_B, FL_C, FL_U = 0, 2048, 4096, 6144
SC = 'sc1'
sX, sOUT, sW2, sWO, sW1, sWS, sWAVE = 64, 66, 54, 60, 62, 10, 14
sIDX, sTB, sNT, sLB, sROT = 68, 69, 70, 71, 72
sT = [73, 74, 75]
SW_, SA_, SF_ = 24, 28, 32
SX_, SM_, SO2, SO3 = 16, 20, 36, 40
ACC = lambda nb, tb: (nb*4+tb)*4
AF = lambda buf, nb: 64 + buf*16 + nb*4
BSL = [96, 112, 128, 160, 176, 192, 208, 224]
BF = lambda slot, tb: BSL[slot] + tb*4
WV = lambda m: 144 + m
RA = lambda nb: 148 + nb
BV = lambda tb: 152 + tb
LANE, GG, T0, T1 = 156, 157, 158, 159
E0 = 240
X1A = 120
D = 8; PF = 7
E4F = int(os.environ.get('E4F', 2))
IROT = int(os.environ.get('IROT', 1))
EPI = int(os.environ.get('EPI', 0))
DYN = int(os.environ.get('DYN', 1))
LATE = int(os.environ.get('LATE', 1))
PSL = int(os.environ.get('PSL', 2))
FL_M = 8192
NPRE = int(os.environ.get('NPRE', 2))
BSC = os.environ.get('BSC', SC)

def xlane(a, op, r, t):
    for sw in ('v_permlane32_swap_b32', 'v_permlane16_swap_b32'):
        a(f'v_mov_b32 v{t}, v{r}'); a('s_nop 1'); a(f'{sw} v{r}, v{t}'); a('s_nop 1')
        a(f'{op} v{r}, v{r}, v{t}')
def lane_id(a, r):
    a(f'v_mbcnt_lo_u32_b32 v{r}, -1, 0'); a(f'v_mbcnt_hi_u32_b32 v{r}, -1, v{r}')

def roles(a):
    a(f's_and_b32 s{sT[0]}, s2, 7'); a(f's_lshr_b32 s{sIDX}, s2, 3')
    a(f's_mul_i32 s{sTB}, s{sIDX}, 37'); a(f's_lshr_b32 s{sTB}, s{sTB}, 8')
    a(f's_mul_i32 s{sNT}, s{sTB}, 7'); a(f's_sub_u32 s{sNT}, s{sIDX}, s{sNT}')
    a(f's_lshl_b32 s{sT[1]}, s{sT[0]}, 2'); a(f's_add_u32 s{sTB}, s{sTB}, s{sT[1]}')
def roles2(a):
    a(f's_lshl_b32 s{sLB}, s{sWAVE}, 15'); a(f's_cmp_eq_u32 s{sWAVE}, 3'); a(f's_cselect_b32 s{sLB}, 0x20000, s{sLB}')

NONCE = int(os.environ.get('NONCE', 1))
sNON = 75
def flag_srd(a): srd(a, SF_, sWS, WS_FLAG, 16384)
def set_flag(a, tag, offreg, vt):
    a(f's_cmp_lg_u32 s{sWAVE}, 0'); a(f's_cbranch_scc1 {tag}_nf')
    a(f'v_mov_b32 v{vt}, 0'); a(f'v_mov_b32 v{vt+1}, ' + (f's{sNON}' if NONCE else '1'))
    a(f's_mov_b64 exec, 1')
    a(f'buffer_store_dword v{vt+1}, v{vt}, s[{SF_}:{SF_+3}], s{offreg} offen {SC}')
    a(f's_mov_b64 exec, -1')
    a.label(f'{tag}_nf')
def poll(a, tag, vaddr, vt, mask, extra=None):
    a(f's_mov_b32 s{sT[1]}, 0x8000')
    a.label(f'{tag}_pl')
    a(f'buffer_load_dword v{vt}, v{vaddr}, s[{SF_}:{SF_+3}], 0 offen {SC}')
    if extra: a(f'buffer_load_dword v{extra[1]}, v{extra[0]}, s[{SF_}:{SF_+3}], 0 offen {SC}')
    a('s_waitcnt vmcnt(0)')
    a(f'v_cmp_eq_u32 vcc, s{sNON}, v{vt}' if NONCE else f'v_cmp_ne_u32 vcc, 0, v{vt}')
    a('s_nop 1')
    a(f's_and_b32 s{sT[0]}, vcc_lo, {hex(mask)}')
    if extra:
        a(f'v_cmp_eq_u32 vcc, s{sNON}, v{extra[1]}'); a('s_nop 1'); a('s_bcnt1_i32_b64 s46, vcc')
        a(f's_cmp_ge_u32 s46, {extra[2]}'); a(f's_cselect_b32 s{sT[0]}, s{sT[0]}, 0')
    a(f's_cmp_eq_u32 s{sT[0]}, {hex(mask)}'); a(f's_cbranch_scc1 {tag}_pd')
    a(f's_sleep {PSL}')
    a(f's_sub_u32 s{sT[1]}, s{sT[1]}, 1'); a(f's_cmp_lg_u32 s{sT[1]}, 0'); a(f's_cbranch_scc1 {tag}_pl')
    a.label(f'{tag}_pd')
    a.vm = 0

class Gemm:
    X1MEM = False
    def __init__(self, a, kid):
        self.a = a; self.kid = kid
        self.KS = 32 if kid == 3 else 14
        self.tB = {}; self.tW = {}
    def w_setup(self):
        a = self.a; KS = self.KS
        l, t0, t1 = RA(0), RA(1), RA(2)
        lane_id(a, l)
        a(f'v_bfe_u32 v{t0}, v{l}, 4, 2'); a(f'v_lshlrev_b32 v{t0}, 1, v{t0}'); a(f'v_and_b32 v{t1}, 7, v{l}'); a(f'v_xor_b32 v{t0}, v{t0}, v{t1}')
        a(f'v_lshlrev_b32 v{t0}, 4, v{t0}')
        a(f'v_lshrrev_b32 v{t1}, 3, v{l}'); a(f'v_mul_u32_u24 v{t1}, 896, v{t1}'); a(f'v_add_u32 v{WV(0)}, v{t0}, v{t1}')
        for m in range(1, 4): a(f'v_add_u32 v{WV(m)}, {6144*m}, v{WV(0)}')
        self.dyn = DYN and self.kid == 3
        self.nw0 = 4 if (self.dyn and DYN != 1) else PF
        a(f's_mul_i32 s{sT[0]}, s{sWAVE}, {(4 if self.dyn else KS)*32*896}'); a(f's_lshl_b32 s{sT[1]}, s{sNT}, 7'); a(f's_add_u32 s{sT[0]}, s{sT[0]}, s{sT[1]}')
        srd(a, SW_, sWO if self.kid == 3 else sW2, 0, 0, sT[0]); a(f's_sub_u32 s{SW_+2}, {4*KS*32*896}, s{sT[0]}')
        RM = int(os.environ.get('RM', 0))
        if RM == 0:
            a(f's_and_b32 s{sROT}, s2, 7'); a(f's_mul_i32 s{sROT}, s{sROT}, {KS}'); a(f's_lshr_b32 s{sROT}, s{sROT}, 3')
        elif RM == 1:
            a(f's_and_b32 s{sROT}, s{sTB}, 3'); a(f's_lshl_b32 s{sT[0]}, s{sNT}, 2'); a(f's_add_u32 s{sROT}, s{sROT}, s{sT[0]}')
            a(f's_mul_i32 s{sROT}, s{sROT}, {KS*2341}'); a(f's_lshr_b32 s{sROT}, s{sROT}, 16')
        else:
            a(f's_mul_i32 s{sROT}, s{sNT}, {KS*9363}'); a(f's_lshr_b32 s{sROT}, s{sROT}, 16')
        a(f's_mov_b32 s49, s{sROT}')
        if self.dyn:
            a('s_and_b32 s49, s2, 7'); a('s_lshl_b32 s49, s49, 4')
            if IROT == 1: a(f's_add_u32 s48, s{sNT}, s{sTB}')
            if IROT == 2: a(f's_mov_b32 s48, s{sNT}')
            if IROT == 3: a(f's_mov_b32 s48, s{sTB}')
    def adv(self, reg):
        a = self.a
        a(f's_add_u32 s{reg}, s{reg}, 1'); a(f's_cmp_eq_u32 s{reg}, {self.KS}'); a(f's_cselect_b32 s{reg}, 0, s{reg}')
    def w_pre(self, ks):
        a = self.a
        def su():
            if self.dyn and DYN == 1 and 4 <= ks < PF:
                a('s_add_u32 s51, s49, 16'); a('s_and_b32 s51, s51, 127')
                a(f's_add_u32 m0, s{sLB}, {(ks % D)*4096}'); self.sub('s51', ks); a(f's_mul_i32 s50, s51, {32*896}')
                return
            if self.dyn:
                if ks and ks % 4 == 0: self.pick(ks // 4)
                a(f's_add_u32 m0, s{sLB}, {(ks % D)*4096}'); self.sub('s49', ks); a(f's_mul_i32 s50, s51, {32*896}'); a('s_lshl_b32 s51, s51, 10')
                return
            if ks: self.adv(49)
            a(f's_add_u32 m0, s{sLB}, {(ks % D)*4096}'); a(f's_mul_i32 s50, s49, {32*896}')
        def d(m):
            def f(): self.tW[ks] = a.vmem(f'buffer_load_dwordx4 v{WV(m)}, s[{SW_}:{SW_+3}], s50 offen offset:{1024*m} lds')
            return f
        return [su] + [d(m) for m in range(4)]
    def sub(self, base, ks):
        a = self.a
        if IROT:
            a(f's_add_u32 s73, s48, {ks % 4}'); a('s_and_b32 s73, s73, 3'); a(f's_add_u32 s51, {base}, s73')
        else: a(f's_add_u32 s51, {base}, {ks % 4}')
    def ready_mask(self):
        a = self.a
        a('s_lshr_b32 s73, vcc_lo, 1'); a('s_and_b32 s73, s73, vcc_lo'); a(f's_and_b32 s{sROT}, s73, 0x5555')
    def pick(self, j):
        a = self.a; T = f'K2_d{j}'
        if DYN == 1:
            a('s_add_u32 s49, s49, 16'); a('s_and_b32 s49, s49, 127'); a('s_lshr_b32 s73, s49, 3'); a('s_lshl_b32 s43, 1, s73')
            test = f's_and_b32 s73, s{sROT}, s43'
        else:
            test = f's_andn2_b32 s73, s{sROT}, s43'
        a(f's_mov_b32 s{sT[1]}, 0x8000')
        a.label(f'{T}_l')
        a(test); a(f's_cbranch_scc1 {T}_g')
        a(f'buffer_load_dword v{T1}, v{T0}, s[{SF_}:{SF_+3}], 0 offen {SC}')
        a('s_waitcnt vmcnt(0)')
        a(f'v_cmp_eq_u32 vcc, s{sNON}, v{T1}'); a('s_nop 1')
        self.ready_mask()
        a(test); a(f's_cbranch_scc1 {T}_g')
        a('s_sleep 4')
        a(f's_sub_u32 s{sT[1]}, s{sT[1]}, 1'); a(f's_cmp_lg_u32 s{sT[1]}, 0'); a(f's_cbranch_scc1 {T}_l')
        a(f's_mov_b32 s{sROT}, 0x5555'); a(f's_branch {T}_l')
        a.label(f'{T}_g')
        if DYN != 1: a('s_ff1_i32_b32 s73, s73'); a('s_bitset1_b32 s43, s73'); a('s_lshl_b32 s49, s73, 3')
    def b_setup(self):
        a = self.a; KS = self.KS; NKS = 4*KS
        lane_id(a, LANE)
        a(f'v_bfe_u32 v{GG}, v{LANE}, 4, 2')
        a(f'v_lshlrev_b32 v{BV(0)}, 4, v{LANE}')
        for tb in range(1, 4): a(f'v_add_u32 v{BV(tb)}, {tb*NKS*1024}, v{BV(0)}')
        a(f's_mul_i32 s45, s{sTB}, {4*NKS*1024}'); a(f's_mul_i32 s46, s{sWAVE}, {(4 if self.dyn else KS)*1024}'); a('s_add_u32 s45, s45, s46')
        srd(a, SA_, sWS, WS_O if self.kid == 3 else WS_H, 0, 45); a(f's_sub_u32 s{SA_+2}, {128*NKS*1024}, s45')
        a(f'v_bfe_u32 v{T0}, v{LANE}, 2, 4'); a(f'v_bfe_u32 v{T1}, v{T0}, 1, 2')
        a(f'v_lshlrev_b32 v{T0}, 7, v{T0}'); a(f'v_and_b32 v{E0}, 3, v{LANE}'); a(f'v_lshl_add_u32 v{T0}, v{E0}, 3, v{T0}'); a(f'v_add_u32 v{T0}, s{sLB}, v{T0}')
        for nb in range(4):
            a(f'v_xor_b32 v{E0}, {nb}, v{T1}'); a(f'v_lshl_add_u32 v{RA(nb)}, v{E0}, 5, v{T0}')
        if not self.dyn: a(f's_mov_b32 s48, s{sROT}')
    def b_load(self, ks, m):
        a = self.a
        if m == 0 and self.dyn:
            if ks == 4 and DYN == 1: self.pick(1)
            if ks < self.nw0: self.sub('s49', ks); a('s_lshl_b32 s51, s51, 10')
        elif m == 0:
            if ks: self.adv(48)
            a('s_lshl_b32 s51, s48, 10')
        self.tB[ks] = a.vmem(f'buffer_load_dwordx4 {vr(BF(ks % D, m),4)}, v{BV(m)}, s[{SA_}:{SA_+3}], s51 offen {BSC}')
    def areads(self, ks):
        return [f'ds_read_b64_tr_b16 {vr(AF(ks&1,nb)+2*h,2)}, v{RA(nb)} offset:{(ks % D)*4096 + h*2048}' for nb in range(4) for h in range(2)]
    def main(self, sp):
        a = self.a; KS = self.KS; kid = self.kid
        NW0 = self.nw0
        for ks in range(PF):
            wq = self.w_pre(ks) if ks >= NW0 else None
            if wq: wq[0]()
            for m in range(4):
                if wq: wq[1+m]()
                self.b_load(ks, m)
            if ks == 0:
                for x in self.areads(0): a(x)
        EP = {}
        for ks in range(KS):
            nxt = []
            if ks + 1 < KS:
                t = self.tB[ks+1] if ks + 1 < NW0 else max(self.tB[ks+1], self.tW[ks+1])
                a.wait_vm(max(t, self.tB[ks]), ' lgkmcnt(0)'); nxt = self.areads(ks+1)
            else: a('s_waitcnt lgkmcnt(0)')
            pf = ks + PF; i = 0
            wp = self.w_pre(pf) if pf < KS else []
            for nb in range(4):
                for tb in range(4):
                    c = vr(ACC(nb, tb), 4)
                    a(f'{M16} {c}, {vr(AF(ks&1,nb),4)}, {vr(BF(ks % D, tb),4)}, {c if ks else 0}')
                    if i < 8 and nxt: a(nxt.pop(0))
                    if wp:
                        if i == 0: wp[0]()
                        if i >= 8:
                            m = (i - 8) >> 1
                            if i & 1: self.b_load(pf, m)
                            else: wp[1+m]()
                    i += 1
            if ks == KS - PF:
                EPB = BF((ks + PF) % D, 0); EP['B'] = EPB
                a(f'v_and_b32 v{E0+5}, 15, v{LANE}')
                a(f's_lshl_b32 s52, s{sTB}, 6'); a(f's_lshl_b32 s53, s{sWAVE}, 4'); a('s_add_u32 s52, s52, s53')
                a(f's_lshl_b32 s44, s{sNT}, 8')
                srd(a, SM_, sWS, WS_MOD, 6*448*4)
                a(f'v_lshlrev_b32 v{E0+6}, 4, v{GG}')
                a(f's_add_u32 s47, s44, {(2 if kid == 3 else 5)*1792}')
                for nb in range(4): a.vmem(f'buffer_load_dwordx4 {vr(EPB+4*nb,4)}, v{E0+6}, s[{SM_}:{SM_+3}], s47 offen offset:{64*nb} {SC}')
            if ks == KS - PF + 1 and kid == 3:
                EPC = BF((ks + PF) % D, 0); EP['C'] = EPC
                a(f's_add_u32 s47, s44, {4*1792}')
                for nb in range(4): a.vmem(f'buffer_load_dwordx4 {vr(EPC+4*nb,4)}, v{E0+6}, s[{SM_}:{SM_+3}], s47 offen offset:{64*nb} {SC}')
            if ks == KS - PF + 2:
                EPX = BF((ks + PF) % D, 0); EP['X'] = EPX
                a('s_lshr_b32 s56, s52, 4'); a(f's_mul_i32 s56, s56, {14*1024}'); a(f's_lshl_b32 s57, s{sNT}, 11'); a('s_add_u32 s56, s56, s57')
                a('s_mul_i32 s58, s52, 896'); a(f's_lshl_b32 s57, s{sNT}, 7'); a('s_add_u32 s58, s58, s57')
                a(f'v_mul_u32_u24 v{E0+7}, 896, v{E0+5}')
                if kid == 3: a(f'v_lshl_add_u32 v{E0+7}, v{GG}, 3, v{E0+7}')
                else:
                    a(f'v_and_b32 v{E0+4}, 1, v{GG}'); a(f'v_lshl_add_u32 v{E0+7}, v{E0+4}, 5, v{E0+7}')
                    a(f'v_lshrrev_b32 v{E0+4}, 1, v{GG}'); a(f'v_lshl_add_u32 v{E0+7}, v{E0+4}, 4, v{E0+7}')
                srd(a, SX_, sX if kid == 3 else sOUT, 0, 2048*896)
                if kid == 3:
                    for nb in range(4): a.vmem(f'buffer_load_dwordx2 {vr(EPX+2*nb,2)}, v{E0+7}, s[{SX_}:{SX_+3}], s58 offen offset:{32*nb}')
                    srd(a, SO2, sWS, WS_Y, 128*14*1024); srd(a, SO3, sWS, WS_STAT, 7*2048*8)
                elif self.X1MEM:
                    srd(a, SO2, sWS, WS_X1, 128*14*1024)
                    for hh in range(2): a.vmem(f'buffer_load_dwordx4 {vr(EPX+4*hh,4)}, v{BV(0)}, s[{SO2}:{SO2+3}], s56 offen offset:{1024*hh} {SC}')
        sp.stamp()
        a(f'v_add_u32 v{E0+8}, s{sLB}, v{BV(0)}')
        a(f's_lshl_b32 s59, s{sWAVE}, 12')
        a(f'v_add_u32 v{E0+9}, s59, v{BV(0)}'); a(f'v_add_u32 v{E0+10}, 65536, v{E0+9}'); a(f'v_add_u32 v{E0+11}, 131072, v{E0+9}')
        a.nop(3)
        for tb in range(4):
            for nb in range(4): a(f'ds_write_b128 v{E0+8}, {vr(ACC(nb,tb),4)} offset:{(tb*4+nb)*1024}')
        a('s_waitcnt lgkmcnt(0)'); a('s_barrier')
        for src in range(4):
            for nb in range(4):
                a(f'ds_read_b128 {vr((src*4+nb)*4,4)}, v{E0+9+max(0,src-1)} offset:{(32768 if src == 1 else 0) + nb*1024}')
        a('s_waitcnt lgkmcnt(8)')
        for i in range(16): a(f'v_add_f32 v{i}, v{i}, v{16+i}')
        a('s_waitcnt lgkmcnt(0)')
        if kid == 3: a('s_barrier')
        for i in range(16): a(f'v_add_f32 v{32+i}, v{32+i}, v{48+i}')
        for i in range(16): a(f'v_add_f32 v{i}, v{i}, v{32+i}')
        sp.stamp()
        EPB = EP['B']
        a('s_waitcnt vmcnt(0)')
        for i in range(0, 16, 2): a(f'v_cvt_pk_bf16_f32 v{16+i//2}, v{i}, v{i+1}')
        for i in range(8): unpack(a, 2*i, 2*i+1, 16+i)
        for i in range(16): a(f'v_mul_f32 v{i}, v{i}, v{EPB+i}')
        for i in range(0, 16, 2): a(f'v_cvt_pk_bf16_f32 v{16+i//2}, v{i}, v{i+1}')
        if kid == 5 and not self.X1MEM:
            for i in range(8): a(f'v_accvgpr_read_b32 v{24+i}, a{X1A+i}')
            EPX = 24
        else: EPX = EP['X']
        for i in range(8): unpack(a, 2*i, 2*i+1, 16+i)
        for i in range(8): unpack(a, 32+2*i, 33+2*i, EPX+i)
        for i in range(16): a(f'v_add_f32 v{i}, v{i}, v{32+i}')
        for i in range(0, 16, 2): a(f'v_cvt_pk_bf16_f32 v{16+i//2}, v{i}, v{i+1}')
        if kid == 5:
            a('s_nop 0')
            for p in range(2):
                for d in range(2): a(f'v_permlane16_swap_b32 v{16+4*p+d}, v{18+4*p+d}')
            for p in range(2): a(f'buffer_store_dwordx4 {vr(16+4*p,4)}, v{E0+7}, s[{SX_}:{SX_+3}], s58 offen offset:{64*p}')
            return
        EPC = EP['C']
        for i in range(8): unpack(a, 2*i, 2*i+1, 16+i)
        for i in range(16): a(f'v_mul_f32 v{32+i}, v{i}, v{EPC+i}')
        for i in range(0, 16, 2): a(f'v_cvt_pk_bf16_f32 v{24+i//2}, v{32+i}, v{33+i}')
        for hh in range(2): a.vmem(f'buffer_store_dwordx4 {vr(24+4*hh,4)}, v{BV(0)}, s[{SO2}:{SO2+3}], s56 offen offset:{1024*hh} {SC}')
        a('v_add_f32 v48, v0, v1'); a('v_mul_f32 v49, v0, v0'); a('v_add_f32 v50, v2, v3'); a('v_mul_f32 v51, v2, v2')
        a('v_fmac_f32 v49, v1, v1'); a('v_fmac_f32 v51, v3, v3')
        for i in range(4, 16, 2):
            a(f'v_add_f32 v48, v48, v{i}'); a(f'v_fmac_f32 v49, v{i}, v{i}'); a(f'v_add_f32 v50, v50, v{i+1}'); a(f'v_fmac_f32 v51, v{i+1}, v{i+1}')
        a('v_add_f32 v48, v48, v50'); a('v_add_f32 v49, v49, v51')
        for sw in ('v_permlane32_swap_b32', 'v_permlane16_swap_b32'):
            a('v_mov_b32 v50, v48'); a('v_mov_b32 v51, v49'); a('s_nop 0'); a(f'{sw} v48, v50'); a(f'{sw} v49, v51'); a('s_nop 0')
            a('v_add_f32 v48, v48, v50'); a('v_add_f32 v49, v49, v51')
        a(f'v_lshlrev_b32 v50, 3, v{E0+5}')
        a(f's_lshl_b32 s57, s{sNT}, 14'); a('s_lshl_b32 s59, s52, 3'); a('s_add_u32 s57, s57, s59')
        self.tlast = a.vmem(f'buffer_store_dwordx2 v[48:49], v50, s[{SO3}:{SO3+3}], s57 offen {SC}')
        for i in range(8): a(f'v_accvgpr_write_b32 a{X1A+i}, v{16+i}')

def uw_phase(a, T):
    a(f's_sub_u32 s13, s{sIDX}, 28'); a('s_lshl_b32 s13, s13, 3'); a('s_and_b32 s12, s2, 7'); a('s_add_u32 s13, s13, s12')
    a('s_cmp_ge_u32 s13, 28'); a(f's_cbranch_scc1 {T}_end')
    lane_id(a, 0); a(f's_lshl_b32 s12, s{sWAVE}, 6'); a('v_add_u32 v0, s12, v0')
    if LATE:
        lane_id(a, 1); a('v_lshlrev_b32 v1, 4, v1'); a(f'v_add_u32 v1, {FL_M+448}, v1')
        poll(a, f'{T}_u', 1, 2, 0xffffffff, (1, 3, 56))
    a('v_and_b32 v1, 7, v0'); a('v_lshrrev_b32 v2, 3, v0')
    a('v_mul_u32_u24 v3, 3584, v2'); a('v_lshl_add_u32 v3, v1, 4, v3'); a('v_lshlrev_b32 v4, 2, v2')
    a('s_lshl_b32 s44, s13, 7'); a('s_lshl_b32 s45, s13, 8')
    srd(a, 16, sW1, 0, 448*3584); srd(a, 20, sWS, WS_MOD + 3*1792, 2*1792); srd(a, 24, sWS, WS_U, 0x4000)
    CS, CC, Wr = 8, 24, 40
    for i in range(14):
        a(f'buffer_load_dword v{CS+i}, v4, s[20:23], 0 offen offset:{128*i} {SC}')
        a(f'buffer_load_dword v{CC+i}, v4, s[20:23], 0 offen offset:{1792+128*i} {SC}')
    for i in range(14):
        a(f's_add_u32 s46, s44, {32*3584*i}')
        a(f'buffer_load_dwordx4 {vr(Wr+4*i,4)}, v3, s[16:19], s46 offen')
    AU, AW = 96, 104
    for i in range(14):
        a(f's_waitcnt vmcnt({13-i})')
        for j in range(4):
            unpack(a, 112, 113, Wr+4*i+j)
            op = 'v_mul_f32' if i == 0 else 'v_fmac_f32'
            a(f'{op} v{AU+2*j}, v112, v{CC+i}'); a(f'{op} v{AU+2*j+1}, v113, v{CC+i}')
            a(f'{op} v{AW+2*j}, v112, v{CS+i}'); a(f'{op} v{AW+2*j+1}, v113, v{CS+i}')
    a('v_lshlrev_b32 v5, 8, v2'); a('v_lshl_add_u32 v5, v1, 5, v5')
    a(f'ds_write_b128 v5, {vr(AU,4)}'); a(f'ds_write_b128 v5, {vr(AU+4,4)} offset:16')
    a(f'ds_write_b128 v5, {vr(AW,4)} offset:8192'); a(f'ds_write_b128 v5, {vr(AW+4,4)} offset:8208')
    a('v_and_b32 v6, 63, v0'); a('v_lshlrev_b32 v6, 2, v6'); a('v_bfe_u32 v7, v0, 6, 1'); a('v_lshl_add_u32 v8, v7, 13, v6')
    a('s_waitcnt lgkmcnt(0)'); a('s_barrier')
    for i in range(32): a(f'ds_read_b32 v{40+i}, v8 offset:{256*i}')
    a('s_waitcnt lgkmcnt(0)')
    n = 32
    while n > 1:
        n //= 2
        for i in range(n): a(f'v_add_f32 v{40+i}, v{40+i}, v{40+n+i}')
    a(f'v_mov_b32 v41, {f32(LOG2E)}'); a('v_cmp_eq_u32 vcc, 0, v7'); a('s_nop 1'); a('v_cndmask_b32 v41, v41, 1.0, vcc'); a('v_mul_f32 v40, v40, v41')
    a(f'buffer_store_dword v40, v8, s[24:27], s45 offen {SC}')
    a('s_waitcnt vmcnt(0)'); a('s_barrier')
    a(f's_lshl_b32 s46, s13, 2'); a(f's_add_u32 s46, s46, {FL_U}')
    set_flag(a, f'{T}_u', 46, 1)

class Mlp1:
    NS = 14
    ACC = staticmethod(lambda fb, tb: (fb*2+tb)*4)
    BF = staticmethod(lambda ks, tb: 64 + (ks*2+tb)*4)
    U_ = staticmethod(lambda fb: 176 + 4*fb)
    W_ = staticmethod(lambda fb: 208 + 4*fb)
    RA = staticmethod(lambda i: 240 + i)
    WV = staticmethod(lambda m: 248 + m)
    BV = staticmethod(lambda tb: 250 + tb)
    E0 = 252
    AF = staticmethod(lambda fb: 4*fb)
    ST = staticmethod(lambda tb, nt: 32 + (tb*7+nt)*2)
    SW, SY, SU, SS, SH = 24, 28, 16, 20, 36
    sTB4, sFT = 76, 77
    V2 = False
    NPART = 7
    def __init__(self, a): self.a = a
    def w_issue(self):
        a = self.a; WV = self.WV
        l, t0, t1, t2 = 244, 245, 246, 247
        a(f's_cmp_ge_u32 s{sIDX}, 14'); a(f's_cselect_b32 s{self.sTB4}, 1, 0'); a(f's_mul_i32 s{self.sFT}, s{self.sTB4}, 14'); a(f's_sub_u32 s{self.sFT}, s{sIDX}, s{self.sFT}')
        a('s_and_b32 s44, s2, 7'); a('s_lshl_b32 s44, s44, 1'); a(f's_add_u32 s{self.sTB4}, s{self.sTB4}, s44')
        lane_id(a, l)
        a(f'v_and_b32 v{t2}, 15, v{l}')
        a(f's_mul_i32 s45, s{sWAVE}, {8*3584}')
        for m in range(2):
            a(f'v_lshrrev_b32 v{t0}, 4, v{l}')
            if m: a(f'v_add_u32 v{t0}, 4, v{t0}')
            a(f'v_lshlrev_b32 v{t1}, 1, v{t0}'); a(f'v_xor_b32 v{t1}, v{t1}, v{t2}'); a(f'v_lshlrev_b32 v{t1}, 4, v{t1}')
            a(f'v_mul_u32_u24 v{t0}, 3584, v{t0}'); a(f'v_add3_u32 v{WV(m)}, v{t0}, v{t1}, s45')
            if m: a(f'v_subrev_u32 v{WV(m)}, 1024, v{WV(m)}')
        a(f's_lshl_b32 s46, s{self.sFT}, 8'); a(f's_lshl_b32 s48, s{sWAVE}, 11')
        srd(a, self.SW, sW1, 0, 0, 46); a(f's_sub_u32 s{self.SW+2}, {448*3584}, s46')
        self.w_more(0, 2*NPRE)
    def w_more(self, k0, k1):
        a = self.a; WV = self.WV
        for ks in range(k0, k1):
            a(f's_add_u32 m0, s48, {ks*8192}'); a(f's_mov_b32 s50, {ks*32*3584}')
            for m in range(2): a.vmem(f'buffer_load_dwordx4 v{WV(m)}, s[{self.SW}:{self.SW+3}], s50 offen offset:{1024*m} lds')
    def setup(self):
        a = self.a; RA = self.RA; BV = self.BV; E0 = self.E0
        L, t0, t1, t2 = 1, 2, 3, 4
        lane_id(a, L)
        a(f'v_bfe_u32 v{t0}, v{L}, 2, 4'); a(f'v_and_b32 v{t1}, 7, v{t0}'); a(f'v_lshlrev_b32 v{t0}, 8, v{t0}')
        a(f'v_and_b32 v{t2}, 3, v{L}'); a(f'v_lshl_add_u32 v{t0}, v{t2}, 3, v{t0}')
        for i in range(8):
            a(f'v_xor_b32 v{t2}, {i}, v{t1}'); a(f'v_lshl_add_u32 v{RA(i)}, v{t2}, 5, v{t0}')
        a(f's_mul_i32 s44, s{sWAVE}, {2*14336}'); a(f'v_lshlrev_b32 v{t0}, 4, v{L}')
        a(f'v_add_u32 v{BV(0)}, s44, v{t0}'); a(f'v_add_u32 v{BV(1)}, 14336, v{BV(0)}')
        a(f'v_lshrrev_b32 v{t1}, 4, v{L}'); a(f'v_lshlrev_b32 v{E0}, 4, v{t1}')
        a(f's_lshl_b32 s44, s{sWAVE}, 8'); a(f'v_and_b32 v{t2}, 15, v{L}'); a(f'v_lshlrev_b32 v{t2}, 3, v{t2}'); a(f'v_add_u32 v{E0+1}, s44, v{t2}')
        a(f's_mul_i32 s44, s{sWAVE}, {2*56*1024}'); a(f'v_add_u32 v{E0+2}, s44, v{t0}'); a(f'v_add_u32 v{E0+3}, {56*1024}, v{E0+2}')
        a(f's_mul_i32 s45, s{self.sTB4}, {8*14336}')
        srd(a, self.SY, sWS, WS_Y, 8*14336, 45)
        srd(a, self.SU, sWS, WS_U, 0x4000); srd(a, self.SS, sWS, WS_STAT, 8*2048*8)
        a(f's_mul_i32 s52, s{self.sTB4}, {8*56*1024}'); a(f's_lshl_b32 s53, s{self.sFT}, 12'); a('s_add_u32 s52, s52, s53')
        srd(a, self.SH, sWS, WS_H, 0, 52); a(f's_sub_u32 s{self.SH+2}, {128*56*1024}, s52')
        a(f's_lshl_b32 s44, s{self.sFT}, 9'); a('s_add_u32 s45, s44, 0x2000'); a(f's_lshl_b32 s56, s{self.sTB4}, 10')
        a(f's_lshl_b32 s46, s{self.sTB4}, 7'); a(f's_add_u32 s46, s46, {FL_B}')
        if self.V2:
            a(f'v_lshlrev_b32 v{t0}, 2, v{L}'); a(f'v_add_u32 v{t0}, s46, v{t0}')
            return t0
        a(f's_lshl_b32 s47, s{self.sFT}, 3'); a(f's_add_u32 s47, s47, {FL_U - 56}')
        a(f'v_mov_b32 v{t0}, s46'); a(f'v_mov_b32 v{t1}, s47'); a(f'v_cmp_gt_u32 vcc, 14, v{L}'); a('s_nop 1')
        a(f'v_cndmask_b32 v{t0}, v{t1}, v{t0}, vcc'); a(f'v_lshl_add_u32 v{t0}, v{L}, 2, v{t0}')
        return t0
    def main(self, sp, w2pre):
        a = self.a; NS = self.NS
        ACC, BF, U_, W_, RA, BV, E0, AF, ST = self.ACC, self.BF, self.U_, self.W_, self.RA, self.BV, self.E0, self.AF, self.ST
        tk = {}
        LA = 5
        def ld(ks, m):
            if m == 0: a(f's_mov_b32 s51, {ks*1024}')
            tk[ks] = a.vmem(f'buffer_load_dwordx4 {vr(BF(ks,m),4)}, v{BV(m)}, s[{self.SY}:{self.SY+3}], s51 offen {SC}')
        def aread(ks, fb, h): return f'ds_read_b64_tr_b16 {ar(AF(fb)+2*h,2)}, v{RA(fb)} offset:{(ks % 8)*8192 + h*4096}'
        for ks in range(LA):
            for m in range(2): ld(ks, m)
        if not self.V2: a('s_barrier')
        for fb in range(8):
            for h in range(2): a(aread(0, fb, h))
        extra = []
        for nt in range(self.NPART):
            for tb in range(2):
                def f(nt=nt, tb=tb):
                    a(f's_add_u32 s57, s56, {nt*16384 + tb*128}')
                    a.vmem(f'buffer_load_dwordx2 {ar(ST(tb,nt),2)}, v{E0+1}, s[{self.SS}:{self.SS+3}], s57 offen {SC}')
                extra.append(f)
        for fb in range(0 if self.V2 else 8):
            extra.append(lambda fb=fb: a.vmem(f'buffer_load_dwordx4 {vr(U_(fb),4)}, v{E0}, s[{self.SU}:{self.SU+3}], s44 offen offset:{64*fb} {SC}'))
            extra.append(lambda fb=fb: a.vmem(f'buffer_load_dwordx4 {vr(W_(fb),4)}, v{E0}, s[{self.SU}:{self.SU+3}], s45 offen offset:{64*fb} {SC}'))
        a.wait_vm(tk[0], ' lgkmcnt(0)')
        for ks in range(NS):
            G_ = [[] for _ in range(16)]
            if ks >= 1:
                G_[0].append(aread(ks, 7, 0)); G_[1].append(aread(ks, 7, 1))
            G_[5].insert(0, 's_waitcnt lgkmcnt(4)'); G_[13].insert(0, 's_waitcnt lgkmcnt(4)')
            if ks + 1 < NS:
                G_[15].append(lambda ks=ks: a.wait_vm(tk[ks+1]))
                if ks + 1 == 8:
                    for i in range(7): G_[1].append(f'v_add_u32 v{RA(i)}, 65536, v{RA(i)}')
                for k in range(14): G_[k+2].append(aread(ks+1, k >> 1, k & 1))
            if ks == 7: G_[15].append(f'v_add_u32 v{RA(7)}, 65536, v{RA(7)}')
            slots = [3, 7, 11, 14]
            if ks + LA < NS:
                for m in range(2): G_[slots.pop(0)].append(lambda ks=ks, m=m: ld(ks + LA, m))
            for k in slots:
                if extra: G_[k].append(extra.pop(0))
            for fb in range(8):
                for tb in range(2):
                    k = fb*2 + tb
                    c = vr(ACC(fb, tb), 4)
                    a(f'{M16} {c}, {ar(AF(fb),4)}, {vr(BF(ks,tb),4)}, {c if ks else 0}')
                    for x in G_[k]: x() if callable(x) else a(x)
        assert not extra
        sp.stamp()
        a('s_waitcnt vmcnt(0)'); a('s_barrier')
        B0 = 64
        MEAN = lambda tb: B0 + 32 + tb
        RS = lambda tb: B0 + 34 + tb
        pre = list(w2pre)
        def fill(n=1):
            for _ in range(n):
                if pre: pre.pop(0)()
        NP = self.NPART
        if self.V2:
            for fb in range(8):
                a(f'ds_read_b128 {vr(U_(fb),4)}, v{E0} offset:{64*fb}'); a(f'ds_read_b128 {vr(W_(fb),4)}, v{E0} offset:{512+64*fb}')
        fill(1)
        for tb in range(2):
            for i in range(2*NP): a(f'v_accvgpr_read_b32 v{B0+tb*16+i}, a{ST(tb,0)+i}')
        fill(2)
        for tb in range(2):
            b = B0 + tb*16
            for nt in range(1, NP):
                a(f'v_add_f32 v{b}, v{b}, v{b+2*nt}'); a(f'v_add_f32 v{b+1}, v{b+1}, v{b+2*nt+1}')
        fill(1)
        for tb in range(2):
            b = B0 + tb*16
            a(f'v_mul_f32 v{b}, {f32(1/448)}, v{b}'); a(f'v_mul_f32 v{b+1}, {f32(1/448)}, v{b+1}')
            a(f'v_fma_f32 v{b+1}, -v{b}, v{b}, v{b+1}'); a(f'v_max_f32 v{b+1}, 0, v{b+1}')
            rbf(a, b+1, b+1); a(f'v_add_f32 v{b+1}, {f32(1e-5)}, v{b+1}'); rbf(a, b+1, b+1)
            a(f'v_sqrt_f32 v{b+1}, v{b+1}'); rbf(a, MEAN(tb), b)
            rbf(a, b+1, b+1); a(f'v_rcp_f32 v{RS(tb)}, v{b+1}')
            a(f'v_sub_f32 v{MEAN(tb)}, 0, v{MEAN(tb)}')
            fill(1)
        TT = B0 + 40; LP = B0 + 38
        a(f'v_mov_b32 v{LP}, {f32(LOG2E)}')
        if self.V2: a('s_waitcnt lgkmcnt(0)')
        for tb in range(2): a(f'v_mul_f32 v{RS(tb)}, {f32(LOG2E)}, v{RS(tb)}')
        if not EPI:
            for sq in range(4):
                for tb in range(2):
                    rg = [(ACC(2*sq+e, tb)+r, U_(2*sq+e)+r, W_(2*sq+e)+r) for e in range(2) for r in range(4)]
                    tm = [TT + ((sq*2+tb) % 2)*8 + i for i in range(8)]
                    for (x, u, w) in rg: a(f'v_fma_f32 v{x}, v{MEAN(tb)}, v{u}, v{x}')
                    if E4F > 0: fill()
                    for (x, u, w) in rg: a(f'v_fma_f32 v{x}, v{RS(tb)}, v{x}, v{w}')
                    for (x, u, w), t in zip(rg, tm): a(f'v_exp_f32 v{t}, -v{x}')
                    if E4F > 1: fill()
                    for t in tm: a(f'v_fma_f32 v{t}, v{t}, v{LP}, v{LP}')
                    for t in tm: a(f'v_rcp_f32 v{t}, v{t}')
                    if E4F > 2: fill()
                    for (x, u, w), t in zip(rg, tm): a(f'v_mul_f32 v{x}, v{x}, v{t}')
                    d = ACC(2*sq, tb); xs = [r[0] for r in rg]
                    for i in range(4): a(f'v_cvt_pk_bf16_f32 v{d+i}, v{xs[2*i]}, v{xs[2*i+1]}')
                    self.tlast = a.vmem(f'buffer_store_dwordx4 {vr(d,4)}, v{E0+2+tb}, s[{self.SH}:{self.SH+3}], 0 offen offset:{1024*sq} {SC}')
        else:
            grp = [(sq, tb) for sq in range(4) for tb in range(2)]
            def st(gi):
                sq, tb = grp[gi]
                rg = [(ACC(2*sq+e, tb)+r, U_(2*sq+e)+r, W_(2*sq+e)+r) for e in range(2) for r in range(4)]
                tm = [TT + (gi % 3)*8 + i for i in range(8)]
                A = [f'v_fma_f32 v{x}, v{MEAN(tb)}, v{u}, v{x}' for (x, u, w) in rg] + [f'v_fma_f32 v{x}, v{RS(tb)}, v{x}, v{w}' for (x, u, w) in rg]
                B = [f'v_exp_f32 v{t}, -v{x}' for (x, u, w), t in zip(rg, tm)]
                C = [f'v_fma_f32 v{t}, v{t}, v{LP}, v{LP}' for t in tm]
                Dd = [f'v_rcp_f32 v{t}, v{t}' for t in tm]
                d = ACC(2*sq, tb); xs = [r[0] for r in rg]
                E = [f'v_mul_f32 v{x}, v{x}, v{t}' for (x, u, w), t in zip(rg, tm)] + [f'v_cvt_pk_bf16_f32 v{d+i}, v{xs[2*i]}, v{xs[2*i+1]}' for i in range(4)]
                S = f'buffer_store_dwordx4 {vr(d,4)}, v{E0+2+tb}, s[{self.SH}:{self.SH+3}], 0 offen offset:{1024*sq} {SC}'
                return A, B, C, Dd, E, S
            G = [st(i) for i in range(8)]
            for x in G[0][0]: a(x)
            for ph in range(10):
                T1_ = G[ph][1] if ph < 8 else []
                T2_ = G[ph-1][3] if 1 <= ph < 9 else []
                V1 = (G[ph-1][2] if 1 <= ph < 9 else []) + (G[ph-2][4] if 2 <= ph else [])
                V2 = (G[ph+1][0] if ph + 1 < 8 else [])
                for Ts, Vs in ((T1_, V1), (T2_, V2)):
                    Ts = list(Ts); Vs = list(Vs); n = max(len(Ts), 1); k = 0
                    per = -(-len(Vs) // n)
                    while Ts or Vs:
                        if Ts: a(Ts.pop(0))
                        for _ in range(per):
                            if Vs: a(Vs.pop(0))
                    if Vs is not None and Ts is not None and (Ts, Vs) == ([], []) and Vs is not V2: pass
                if ph >= 2:
                    self.tlast = a.vmem(G[ph-2][5])
                if E4F > 0: fill()
                if E4F > 1: fill()
        self.rest = pre

def post(a, T):
    sp = Stamper(a, 80, 3); sp.stamp(True); sp.stamp()
    g3 = a.g3
    for ks in range(NPRE, g3.nw0):
        for f in g3.w_pre(ks): f()
    g3.b_setup()
    a(f's_lshr_b32 s44, s{sTB}, 1'); a('s_lshl_b32 s44, s44, 7'); a(f'v_lshlrev_b32 v{T0}, 2, v{LANE}'); a(f'v_add_u32 v{T0}, s44, v{T0}')
    a(f'v_add_u32 v0, {FL_M+448}, v{BV(0)}')
    if g3.dyn:
        a('s_and_b32 s45, s2, 7'); a('s_lshl_b32 s45, s45, 1'); a('s_lshl_b32 s43, 1, s45')
        a(f's_mov_b32 s{sT[1]}, 0x8000')
        a.label(f'{T}_a_pl')
        a(f'buffer_load_dword v{T1}, v{T0}, s[{SF_}:{SF_+3}], 0 offen {SC}')
        a(f'buffer_load_dword v1, v0, s[{SF_}:{SF_+3}], 0 offen {SC}')
        a('s_waitcnt vmcnt(0)')
        a(f'v_cmp_eq_u32 vcc, s{sNON}, v1'); a('s_nop 1'); a('s_bcnt1_i32_b64 s46, vcc')
        a(f'v_cmp_eq_u32 vcc, s{sNON}, v{T1}'); a('s_nop 1')
        g3.ready_mask()
        a('s_cmp_ge_u32 s46, 56'); a(f's_cselect_b32 s73, s{sROT}, 0'); a('s_and_b32 s73, s73, s43'); a(f's_cbranch_scc1 {T}_a_pd')
        a(f's_sleep {PSL}')
        a(f's_sub_u32 s{sT[1]}, s{sT[1]}, 1'); a(f's_cmp_lg_u32 s{sT[1]}, 0'); a(f's_cbranch_scc1 {T}_a_pl')
        a.label(f'{T}_a_pd')
        a.vm = 0
    else:
        poll(a, f'{T}_a', T0, T1, 0xffff, (0, 1, 56) if LATE else None)
    sp.stamp()
    g3.main(sp)
    m = Mlp1(a)
    m.w_issue()
    a.wait_vm(g3.tlast); a('s_barrier')
    a(f's_lshr_b32 s44, s{sTB}, 1'); a('s_lshl_b32 s44, s44, 7'); a(f's_and_b32 s45, s{sTB}, 1'); a('s_mul_i32 s45, s45, 7'); a(f's_add_u32 s45, s45, s{sNT}')
    a('s_lshl_b32 s45, s45, 2'); a('s_add_u32 s44, s44, s45'); a(f's_add_u32 s44, s44, {FL_B}')
    set_flag(a, f'{T}_b', 44, 8)
    sp.stamp(); sp.stamp(True); sp.dump(sWS, sWAVE, 8)
    sp = Stamper(a, 80, 4); sp.stamp(True); sp.stamp()
    m.w_more(2*NPRE, 14)
    pa = m.setup()
    poll(a, f'{T}_b', pa, pa + 1, 0xffff)
    sp.stamp()
    g5 = Gemm(a, 5)
    pre = [g5.w_setup]
    for ks in range(PF): pre += g5.w_pre(ks)
    m.main(sp, pre)
    sp.stamp()
    a.wait_vm(m.tlast); a('s_barrier')
    a(f's_lshl_b32 s44, s{m.sTB4}, 7'); a(f's_lshl_b32 s45, s{m.sFT}, 2'); a('s_add_u32 s44, s44, s45'); a(f's_add_u32 s44, s44, {FL_C}')
    set_flag(a, f'{T}_c', 44, 8)
    sp.stamp(); sp.stamp(True); sp.dump(sWS, sWAVE, 8)
    sp = Stamper(a, 80, 5); sp.stamp(True); sp.stamp()
    for f in m.rest: f()
    g5.b_setup()
    a(f's_lshr_b32 s44, s{sTB}, 1'); a('s_lshl_b32 s44, s44, 7'); a(f's_add_u32 s44, s44, {FL_C}'); a(f'v_lshlrev_b32 v{T0}, 2, v{LANE}'); a(f'v_add_u32 v{T0}, s44, v{T0}')
    poll(a, f'{T}_c', T0, T1, 0x3fff)
    sp.stamp()
    g5.main(sp)
    sp.stamp()
    if STAMP: a('s_waitcnt vmcnt(0)')
    sp.stamp(True); sp.dump(sWS, sWAVE, 60)
```

```python
from gen_k2 import *
import gen_post2 as GP2
X3 = int(os.environ.get('X3', 0))
if X3: LFLAG = 131072
XR = lambda s, qb: (s*2+qb)*4
NA = lambda s, qb: 132 + (s*2+qb)*4
WAL = lambda i: 132 + i
WAH = lambda i: 200 + i
TID = 143
SDBG = 28
LSCR = 136*1024
WLATE = int(os.environ.get('WLATE', 2))
LNFAST = int(os.environ.get('LNFAST', 0))
HP = int(os.environ.get('HP', 0))
WS_MODG = 0x28000
HSL = [208, 216, 224, 144, 152, 232, 240, 248, 160]
HR = lambda s, qb: HSL[s % 9] + 4*qb
W8 = int(os.environ.get('W8', 0))
TLBW = int(os.environ.get('TLBW', 0))
WMID = int(os.environ.get('WMID', 0))
RNT = os.environ.get('RNT', 'nt')
NWP = int(os.environ.get('NWP', 5))
QS2 = eval(os.environ.get('QS2', '()'))
NPROD = 84
FL_M, FL_N = 8192, 10240
P1 = int(os.environ.get('P1', 1)); SLP = int(os.environ.get('SLP', 2))
def gen_one():
    a = Asm()
    N = 'adaLN_cond__mha_block_cached__dense_activation_silu__prompt_kernel'
    head(a, N)
    a('s_cmp_ge_u32 s2, 256'); a('s_cbranch_scc1 K2_end')
    sp = Stamper(a, 80, 1)
    _st = sp.stamp; scnt = [0]
    def lim(real=False):
        scnt[0] += 1
        if scnt[0] in SEL: _st(real)
    SEL = eval(os.environ.get('SEL', '(1, 2, 6, 8, 9, 11, 12, 13)'))
    sp.stamp = lim
    XS = os.environ.get('XS', '')
    def xs(t):
        if t in XS: _st()
    QS = None
    sp.stamp(True); sp.stamp()
    sNON = 75
    a(f's_load_dwordx2 s[{SDBG}:{SDBG+1}], s[0:1], {KA["dbg"]}')
    a(f's_load_dwordx2 s[64:65], s[0:1], {KA["x"]}')
    a(f's_load_dwordx4 s[16:19], s[0:1], {KA["c"]}')
    a(f's_load_dwordx2 s[8:9], s[0:1], {KA["wq"]}')
    a(f's_load_dwordx2 s[10:11], s[0:1], {KA["ws"]}')
    a('s_memrealtime s[44:45]')
    NCL = 4
    a('v_lshrrev_b32 v1, 6, v0'); a('s_getpc_b64 s[56:57]'); a.label('K2_pc')
    a('v_readfirstlane_b32 s14, v1'); a('s_lshr_b32 s58, s2, 3'); a('s_lshl_b32 s58, s58, 2'); a('s_nop 1'); a('s_add_u32 s58, s58, s14')
    a('s_lshl_b32 s58, s58, 6')
    for i in range(NCL):
        a(f's_add_u32 s59, s58, {i*8192}'); a('s_min_u32 s59, s59, K2_tail-K2_pc-4'); a(f's_load_dword s{76+i}, s[56:57], s59')
    GP.roles(a)
    a('s_and_b32 s12, s2, 7'); a('s_lshl_b32 s12, s12, 1'); a('s_bfe_u32 s13, s2, 0x10003'); a('s_add_u32 s12, s12, s13')
    a('s_lshr_b32 s13, s2, 4')
    T = 208
    L, W, Qv, G, R, C4, Hh, Pp = T, T+1, T+2, T+3, T+4, T+5, T+6, T+7
    X, Y = 112, 113
    a(f'v_mov_b32 v{TID}, v0')
    a(f'v_and_b32 v{L}, 63, v0'); a(f'v_lshrrev_b32 v{W}, 6, v0'); a(f'v_and_b32 v{Qv}, 15, v0'); a(f'v_bfe_u32 v{G}, v0, 4, 2')
    a(f'v_bfe_u32 v{R}, v0, 2, 2'); a(f'v_and_b32 v{C4}, 3, v0'); a(f'v_bfe_u32 v{Hh}, v0, 5, 1'); a(f'v_and_b32 v{Pp}, 31, v0')
    GW, GC, XV = 114, 115, 116
    a(f'v_lshrrev_b32 v{GC}, 2, v0'); a(f'v_mul_u32_u24 v{GW}, 5376, v{GC}'); a(f'v_lshl_add_u32 v{GW}, v{C4}, 4, v{GW}'); a(f'v_lshlrev_b32 v{GC}, 1, v{GC}')
    a(f'v_mul_u32_u24 v{XV}, 896, v{Qv}'); a(f'v_lshl_add_u32 v{XV}, v{G}, 4, v{XV}'); a(f'v_lshl_add_u32 v{XV}, v{W}, 6, v{XV}')
    for n in range(4):
        a(f'v_lshl_add_u32 v{Y}, v{W}, 3, v{Hh}'); a(f'v_add_u32 v{Y}, {2*n}, v{Y}')
        a(f'v_and_b32 v{X}, 3, v{Y}'); a(f'v_bfe_u32 v{X+5}, v{Y}, 3, 1'); a(f'v_lshl_add_u32 v{X}, v{X+5}, 2, v{X}')
        a(f'v_lshlrev_b32 v{X}, 1, v{X}'); a(f'v_xor_b32 v{X}, v{X}, v{Pp}'); a(f'v_lshlrev_b32 v{X}, 4, v{X}')
        a(f'v_lshl_add_u32 v{WD_(n)}, v{Y}, 13, v{X}')
        if n: a(f'v_subrev_u32 v{WD_(n)}, {n*1024}, v{WD_(n)}')
    a('s_lshl_b32 s40, s14, 12'); a('s_lshl_b32 s50, s12, 20'); a('s_lshl_b32 s51, s12, 9')
    a('s_lshl_b32 s48, s13, 20'); a('s_lshl_b32 s49, s12, 13'); a('s_add_u32 s48, s48, s49')
    a('s_lshl_b32 s52, s13, 3'); a('s_and_b32 s53, s2, 7'); a('s_add_u32 s52, s52, s53')
    a('s_waitcnt lgkmcnt(0)')
    sp.stamp()
    a(f's_and_b32 s{SDBG+1}, s{SDBG+1}, 0xffff'); a(f's_mov_b32 s{SDBG+2}, 256'); a(f's_mov_b32 s{SDBG+3}, 0x20000')
    a('s_or_b32 s46, s2, s14'); a('s_cmp_lg_u32 s46, 0'); a('s_cbranch_scc1 K2_n0')
    a('s_or_b32 s44, s44, 1'); a('v_mov_b32 v1, 0'); a('v_mov_b32 v2, s44'); a('s_mov_b64 exec, 1')
    a(f'buffer_store_dword v2, v1, s[{SDBG}:{SDBG+3}], 0 offen sc1'); a('s_mov_b64 exec, -1')
    a.label('K2_n0')
    CV, CT_, GA, WR = 16, 24, 64, 32
    XRW = 0
    a('s_mov_b32 s47, 0')
    a('s_bitcmp1_b32 s2, 3'); a('s_cbranch_scc0 K2_ln0')
    a(f's_cmp_ge_u32 s52, {NPROD}'); a('s_cbranch_scc1 K2_g0')
    a('s_mov_b32 s47, 1')
    srd(a, 20, 16, 0, 896); srd(a, 36, 18, 0, 448*5376)
    for i in range(7): tC = a.vmem(f'buffer_load_ushort v{CV+i}, v{GC}, s[20:23], 0 offen offset:{128*i} {RNT}')
    tG = {}
    a('s_lshl_b32 s46, s52, 6')
    for i in range(7):
        a(f's_add_u32 s53, s46, {64*5376*i}')
        tG[i] = a.vmem(f'buffer_load_dwordx4 {vr(WR+4*i,4)}, v{GW}, s[36:39], s53 offen {RNT}')
    a('s_branch K2_g0')
    a.label('K2_ln0')
    a('s_mov_b32 s47, 2')
    a(f's_mul_i32 s46, s52, {16*896}')
    srd(a, 36, 64, 0, 16*896, 46)
    a('s_cmp_lt_u32 s14, 2'); a('s_cselect_b32 s53, 0, 0x100000')
    for i in range(4):
        a(f'buffer_load_dwordx4 {vr(XRW+4*i,4)}, v{XV}, s[36:39], {"s53" if i == 3 else "0"} offen offset:{256*i} {RNT}')
    a.label('K2_g0')
    a(f's_load_dwordx4 s[4:7], s[0:1], {KA["k"]}')
    a(f's_load_dwordx2 s[66:67], s[0:1], {KA["out"]}')
    a(f's_load_dwordx2 s[60:61], s[0:1], {KA["wo"]}'); a(f's_load_dwordx2 s[62:63], s[0:1], {KA["w1"]}'); a(f's_load_dwordx2 s[54:55], s[0:1], {KA["w2"]}')
    srd(a, SWQ, 8, 0, 0, 51); a(f's_sub_u32 s{SWQ+2}, {448*8192}, s51')
    a(f's_mov_b32 s8, s{SDBG}'); a(f's_mov_b32 s9, s{SDBG+1}')
    WSLOT = [LK+2*TILE, LV, LK+3*TILE, LV+TILE, LV+2*TILE, LV+3*TILE, LK, LK+TILE]
    wslot = lambda t: WSLOT[t % 8]
    tW = {}; tN = {}
    def wload(t):
        a(setm0(wslot(t))); a(f's_mov_b32 s{sT0}, {hex(t*32*8192)}')
        for n in range(4): tW[t] = a.vmem(dma(WD_(n), SWQ, f's{sT0}', n))
    if WLATE < 2: wload(0); wload(1)
    v_after = a.vm + (8 if WLATE >= 2 else 0)
    srd(a, SMOD, 10, WS_MOD, 6*448*4)
    if TLBW: srd(a, 40, 10, 0, 0x200000)
    srd(a, 16, 10, WS_FLAG, 16384)
    if TLBW:
        a(f'v_lshlrev_b32 v117, 18, v{C4}'); a.vmem('buffer_load_dword v116, v117, s[40:43], 0 offen')
    a('v_mov_b32 v118, 0'); a.vmem(f'buffer_load_dword v119, v118, s[{SDBG}:{SDBG+3}], 0 offen sc1')
    xs('a')
    a('s_cmp_eq_u32 s47, 1'); a('s_cbranch_scc1 K2_gv')
    a('s_cmp_eq_u32 s47, 2'); a('s_cbranch_scc1 K2_ln1')
    vm0 = a.vm
    if not WLATE: wload(2); wload(3); wload(4)
    a('s_branch K2_g8')
    a.label('K2_gv')
    a.vm = vm0
    def nonce_wait(T, n0=0):
        a('s_mov_b32 s45, 0x8000')
        a(f's_waitcnt vmcnt({n0})')
        a.label(f'{T}_pl')
        a(f'v_readfirstlane_b32 s{sNON}, v119'); a('s_nop 3')
        a(f's_cmp_lg_u32 s{sNON}, 0'); a(f's_cbranch_scc1 {T}_pd')
        a(f'buffer_load_dword v119, v118, s[{SDBG}:{SDBG+3}], 0 offen sc1'); a('s_waitcnt vmcnt(0)')
        a('s_sub_u32 s45, s45, 1'); a('s_cmp_lg_u32 s45, 0'); a(f's_cbranch_scc1 {T}_pl')
        a.label(f'{T}_pd')
    a.wait_vm(tC)
    for i in range(7): a(f'v_lshlrev_b32 v{CV+i}, 16, v{CV+i}')
    for i in range(7): a(f'v_mul_f32 v{CT_+i}, {f32(-LOG2E)}, v{CV+i}')
    for i in range(7): a(f'v_exp_f32 v{CT_+i}, v{CT_+i}')
    for i in range(7): a(f'v_add_f32 v{CT_+i}, 1.0, v{CT_+i}')
    for i in range(7): a(f'v_rcp_f32 v{CT_+i}, v{CT_+i}')
    for i in range(7): a(f'v_mul_f32 v{CV+i}, v{CV+i}, v{CT_+i}')
    for i in range(7): rbf(a, CV+i, CV+i)
    for i in range(7):
        a.wait_vm(tG[i])
        for j in range(4):
            u0, u1 = 72 + 2*(j & 1), 73 + 2*(j & 1)
            unpack(a, u0, u1, WR+4*i+j)
            op = 'v_mul_f32' if i == 0 else 'v_fmac_f32'
            a(f'{op} v{GA+2*j}, v{u0}, v{CV+i}'); a(f'{op} v{GA+2*j+1}, v{u1}, v{CV+i}')
    if not WLATE: wload(2)
    a(f'v_lshlrev_b32 v76, 5, v{TID}'); a(f'v_add_u32 v76, {LSCR}, v76')
    a(f'ds_write_b128 v76, {vr(GA,4)}'); a(f'ds_write_b128 v76, {vr(GA+4,4)} offset:16')
    a(f'v_lshrrev_b32 v77, 5, v{TID}'); a(f'v_lshlrev_b32 v78, 2, v{Pp}'); a(f'v_add_u32 v78, {LSCR}, v78')
    a('v_lshl_add_u32 v79, v77, 10, v78'); a('v_lshl_add_u32 v80, v77, 7, v78')
    a('s_waitcnt lgkmcnt(0)'); a('s_barrier')
    for i in range(8): a(f'ds_read_b32 v{GA+i}, v79 offset:{128*i}')
    if not WLATE: wload(3)
    a('s_waitcnt lgkmcnt(0)')
    for n in (4, 2, 1):
        for i in range(n): a(f'v_add_f32 v{GA+i}, v{GA+i}, v{GA+n+i}')
    a(f'ds_write_b32 v80, v{GA} offset:8192')
    a('s_waitcnt lgkmcnt(0)'); a('s_barrier')
    for i in range(8): a(f'ds_read_b32 v{GA+i}, v78 offset:{8192+128*i}')
    if not WLATE: wload(4)
    a('s_waitcnt lgkmcnt(0)')
    for n in (4, 2, 1):
        for i in range(n): a(f'v_add_f32 v{GA+i}, v{GA+i}, v{GA+n+i}')
    rbf(a, GA, GA)
    a('s_sub_u32 s53, s52, 14'); a('s_cmp_lt_u32 s53, 14'); a('s_cbranch_scc1 K2_g1')
    a('s_sub_u32 s53, s52, 56'); a('s_cmp_lt_u32 s53, 14'); a('s_cbranch_scc0 K2_g2')
    a.label('K2_g1')
    a(f'v_add_f32 v{GA}, 1.0, v{GA}'); rbf(a, GA, GA)
    a.label('K2_g2')
    a('s_cmp_lt_u32 s52, 28'); a('s_cbranch_scc0 K2_g3')
    a(f'v_mul_f32 v{GA}, {f32(LOG2E/16)}, v{GA}')
    a.label('K2_g3')
    a(f's_lshl_b32 s46, s52, 4'); a(f's_add_u32 s46, s46, {FL_M}')
    a('s_cmp_lg_u32 s14, 0'); a('s_cbranch_scc1 K2_g8')
    if HP:
        a('s_cmp_lt_u32 s52, 28'); a('s_cbranch_scc0 K2_g4')
        srd(a, 36, 10, WS_MODG, 896*8)
        nonce_wait('K2_q')
        a(f'v_mov_b32 v{GA+1}, v119'); a(f'v_lshlrev_b32 v77, 3, v{Pp}'); a('s_lshl_b32 s53, s52, 8')
        a(f'buffer_store_dwordx2 {vr(GA,2)}, v77, s[36:39], s53 offen sc1')
        a('s_mov_b32 s47, 0')
        a('s_branch K2_g9')
        a.label('K2_g4')
    a(f'v_lshlrev_b32 v77, 2, v{Pp}'); a('s_lshl_b32 s53, s52, 7')
    a(f'buffer_store_dword v{GA}, v77, s[{SMOD}:{SMOD+3}], s53 offen sc1')
    a.label('K2_g8')
    for t in range(WMID): wload(t)
    a('s_branch K2_g9')
    a.label('K2_ln1')
    F = 16
    a(f's_mul_i32 s46, s52, 14336'); srd(a, 36, 10, WS_N, 14336, 46)
    a('v_lshl_add_u32 v48, v{W}, 2, v{G}'.format(W=W, G=G)); a(f'v_lshlrev_b32 v49, 7, v{Qv}'); a(f'v_add_u32 v49, {LSCR}, v49'); a('v_lshl_add_u32 v48, v48, 3, v49')
    a(f'v_lshlrev_b32 v50, 4, v{L}'); a(f'v_lshl_add_u32 v50, v{W}, 10, v50')
    a(f's_waitcnt vmcnt({vm0 - (v_after - 8)})')
    for i in range(16): unpack(a, F+2*i, F+2*i+1, XRW+i)
    if not WLATE: wload(2)
    a(f'v_add_f32 v52, v{F}, v{F+1}'); a(f'v_mul_f32 v53, v{F}, v{F}'); a(f'v_add_f32 v54, v{F+2}, v{F+3}'); a(f'v_mul_f32 v55, v{F+2}, v{F+2}')
    a(f'v_fmac_f32 v53, v{F+1}, v{F+1}'); a(f'v_fmac_f32 v55, v{F+3}, v{F+3}')
    for i in range(4, 32, 2):
        a(f'v_add_f32 v52, v52, v{F+i}'); a(f'v_fmac_f32 v53, v{F+i}, v{F+i}'); a(f'v_add_f32 v54, v54, v{F+i+1}'); a(f'v_fmac_f32 v55, v{F+i+1}, v{F+i+1}')
    a('v_add_f32 v52, v52, v54'); a('v_add_f32 v53, v53, v55')
    a('ds_write_b64 v48, v[52:53]')
    a('s_waitcnt lgkmcnt(0)'); a('s_barrier')
    for i in range(8): a(f'ds_read_b128 {vr(56+4*i,4)}, v49 offset:{16*i}')
    if not WLATE: wload(3)
    a('s_waitcnt lgkmcnt(0)')
    n = 16
    while n > 1:
        n //= 2
        for i in range(n):
            a(f'v_add_f32 v{56+2*i}, v{56+2*i}, v{56+2*(n+i)}'); a(f'v_add_f32 v{57+2*i}, v{57+2*i}, v{57+2*(n+i)}')
    m, v = 56, 57
    a(f'v_mul_f32 v{m}, {f32(1/448)}, v{m}'); a(f'v_mul_f32 v{v}, {f32(1/448)}, v{v}')
    a(f'v_fma_f32 v{v}, -v{m}, v{m}, v{v}'); a(f'v_max_f32 v{v}, 0, v{v}')
    rbf(a, v, v); a(f'v_add_f32 v{v}, {f32(1e-5)}, v{v}'); rbf(a, v, v)
    a(f'v_sqrt_f32 v{v}, v{v}'); rbf(a, m, m)
    rbf(a, v, v); a(f'v_rcp_f32 v{v}, v{v}')
    if LNFAST:
        a('s_nop 0'); a(f'v_mul_f32 v{m}, v{m}, v{v}')
        for i in range(32): a(f'v_fma_f32 v{F+i}, v{F+i}, v{v}, -v{m}')
        for i in range(16): a(f'v_cvt_pk_bf16_f32 v{XRW+i}, v{F+2*i}, v{F+2*i+1}')
    else:
        for i in range(32): a(f'v_sub_f32 v{F+i}, v{F+i}, v{m}')
        if not WLATE: wload(4)
        for i in range(16): a(f'v_cvt_pk_bf16_f32 v{XRW+i}, v{F+2*i}, v{F+2*i+1}')
        for i in range(16): unpack(a, F+2*i, F+2*i+1, XRW+i)
        for i in range(32): a(f'v_mul_f32 v{F+i}, v{F+i}, v{v}')
        for i in range(16): a(f'v_cvt_pk_bf16_f32 v{XRW+i}, v{F+2*i}, v{F+2*i+1}')
    if HP:
        for i in range(16): unpack(a, F+2*i, F+2*i+1, XRW+i)
        srd(a, 20, 10, WS_MODG, 896*8)
        a(f'v_lshlrev_b32 v48, 4, v{TID}'); a(f'v_lshlrev_b32 v49, 3, v{TID}'); a(f'v_add_u32 v49, {LMOD}, v49')
        a(f'v_lshlrev_b32 v51, 5, v{G}'); a(f'v_lshl_add_u32 v51, v{W}, 7, v51'); a(f'v_add_u32 v51, {LMOD}, v51')
        a(f's_mov_b32 s53, 4096'); a('s_cmp_lt_u32 s14, 3'); a('s_cselect_b32 s45, 128, 64')
        nonce_wait('K2_r')
        a('s_mov_b32 s44, 0x8000')
        a.label('K2_h_pl')
        a('buffer_load_dwordx4 v[52:55], v48, s[20:23], 0 offen sc1'); a('buffer_load_dwordx4 v[56:59], v48, s[20:23], s53 offen sc1')
        a('s_waitcnt vmcnt(0)')
        a('v_xor_b32 v60, v53, v55'); a('v_xor_b32 v61, v57, v59'); a(f'v_xor_b32 v62, s{sNON}, v53'); a(f'v_xor_b32 v63, s{sNON}, v57')
        a('v_or_b32 v60, v60, v62'); a('v_or_b32 v61, v61, v63')
        a('v_cmp_eq_u32 vcc, 0, v60'); a('v_cmp_eq_u32 s[72:73], 0, v61'); a('s_nop 1')
        a('s_bcnt1_i32_b64 s46, vcc'); a('s_bcnt1_i32_b64 s74, s[72:73]'); a('s_add_u32 s46, s46, s74')
        a('s_cmp_eq_u32 s46, s45'); a('s_cbranch_scc1 K2_h_pd')
        a('s_sleep 1')
        a('s_sub_u32 s44, s44, 1'); a('s_cmp_lg_u32 s44, 0'); a('s_cbranch_scc1 K2_h_pl')
        a.label('K2_h_pd')
        a('v_mov_b32 v53, v54'); a('v_mov_b32 v57, v58')
        a('ds_write_b64 v49, v[52:53]'); a('ds_write_b64 v49, v[56:57] offset:2048')
        a('s_waitcnt lgkmcnt(0)'); a('s_barrier')
        for i in range(4):
            for j, off in enumerate((1792, 1792+16, 0, 16)): a(f'ds_read_b128 {vr(52+16*i+4*j,4)}, v51 offset:{off + 512*i}')
        for i in range(4):
            a(f's_waitcnt lgkmcnt({12-4*i})')
            for e in range(8): a(f'v_fma_f32 v{F+8*i+e}, v{F+8*i+e}, v{52+16*i+e}, v{52+16*i+8+e}')
            for e in range(4): a(f'v_cvt_pk_bf16_f32 v{XRW+4*i+e}, v{F+8*i+2*e}, v{F+8*i+2*e+1}')
    for i in range(4):
        a(f's_mov_b32 s53, {4096*i}')
        a(f'buffer_store_dwordx4 {vr(XRW+4*i,4)}, v50, s[36:39], s53 offen sc1')
    for t in range(WMID): wload(t)
    a(f's_waitcnt vmcnt({4*WMID})'); a('s_barrier')
    a('s_lshl_b32 s46, s13, 7'); a('s_and_b32 s53, s2, 7'); a('s_lshl_b32 s53, s53, 2'); a('s_add_u32 s46, s46, s53'); a(f's_add_u32 s46, s46, {FL_N}')
    a.label('K2_g9')
    xs('A')
    nonce_wait('K2_o', 4*WMID)
    a('s_cmp_eq_u32 s47, 0'); a('s_cbranch_scc1 K2_p9')
    a('s_cmp_lg_u32 s14, 0'); a('s_cbranch_scc1 K2_p9')
    a('s_mov_b64 exec, 1')
    a('buffer_store_dword v119, v118, s[16:19], s46 offen sc1')
    a('s_mov_b64 exec, -1')
    a.label('K2_p9')
    xs('B')
    a.vm = 0
    if TLBW: a('s_lshl_b32 s40, s14, 12')
    for t in range(WMID, NWP): wload(t)
    if W8: W8P = 1
    for t in range(8 if W8 else 5): tW[t] = 0
    t0, t1, t2 = 112, 113, 117
    for n in range(4):
        a(f'v_lshl_add_u32 v{t0}, v{W}, 3, v{Hh}'); a(f'v_add_u32 v{t1}, {2*n}, v{t0}')
        a(f'v_and_b32 v{t2}, 7, v{t1}'); a(f'v_lshlrev_b32 v{t2}, 1, v{t2}'); a(f'v_xor_b32 v{t2}, v{t2}, v{Pp}'); a(f'v_lshlrev_b32 v{t2}, 4, v{t2}')
        a(f'v_lshl_add_u32 v{VD_(n)}, v{t0}, 9, v{t2}')
        a(f'v_and_b32 v{t2}, 15, v{t1}'); a(f'v_xor_b32 v{t2}, v{t2}, v{Pp}'); a(f'v_lshlrev_b32 v{t2}, 4, v{t2}')
        a(f'v_lshl_add_u32 v{KD_(n)}, v{t0}, 9, v{t2}')
    for i in range(4):
        a(f'v_add_u32 v{t0}, {4*i}, v{G}'); a(f'v_xor_b32 v{t0}, v{t0}, v{Qv}'); a(f'v_lshlrev_b32 v{t0}, 4, v{t0}')
        a(f'v_lshl_add_u32 v{KA_(i)}, v{Qv}, 9, v{t0}')
    a(f'v_lshl_add_u32 v{t1}, v{G}, 2, v{R}')
    a(f'v_lshlrev_b32 v{t2}, 3, v{C4}'); a(f'v_lshl_add_u32 v{t2}, v{t1}, 9, v{t2}'); a(f'v_add_u32 v{t2}, {LV}, v{t2}')
    a(f'v_and_b32 v{t1}, 7, v{t1}')
    for i in range(8):
        a(f'v_xor_b32 v{t0}, {i}, v{t1}'); a(f'v_lshl_add_u32 v{VA_(i)}, v{t0}, 5, v{t2}')
    a(f'v_lshl_add_u32 v{t1}, v{G}, 3, v{R}')
    a(f'v_lshlrev_b32 v{t2}, 3, v{C4}'); a(f'v_lshl_add_u32 v{t2}, v{t1}, 9, v{t2}')
    a(f'v_and_b32 v{t1}, 1, v{G}'); a(f'v_lshl_add_u32 v{t1}, v{t1}, 2, v{R}')
    for i in range(8):
        a(f'v_xor_b32 v{t0}, {i}, v{t1}'); a(f'v_lshl_add_u32 v{WAL(i)}, v{t0}, 5, v{t2}'); a(f'v_add_u32 v{WAH(i)}, {LV}, v{WAL(i)}')
    a(f'v_lshlrev_b32 v{MA}, 5, v{G}'); a(f'v_add_u32 v{MA}, {LMOD}, v{MA}')
    a(f'v_lshlrev_b32 v{t0}, 18, v{W}'); a(f'v_lshl_add_u32 v{ST_(0)}, v{L}, 4, v{t0}'); a(f'v_add_u32 v{ST_(1)}, {1<<17}, v{ST_(0)}')
    a(f'v_mul_u32_u24 v{t0}, {2*14336}, v{W}'); a(f'v_lshl_add_u32 v{NV_(0)}, v{L}, 4, v{t0}'); a(f'v_add_u32 v{NV_(1)}, 14336, v{NV_(0)}')
    a('s_waitcnt lgkmcnt(0)')
    a(f's_mov_b32 s{sATT}, 0'); a(f's_mov_b32 s{s4K}, 4096')
    srd(a, SV, 6, 0, 1 << 20, 50)
    srd(a, SO, 10, WS_O, 0, 48); a(f's_sub_u32 s{SO+2}, {1<<20}, s49')
    a('s_lshl_b32 s52, s2, 2'); a('s_add_u32 s52, s52, s14')
    if not WOL2:
        a('s_mov_b32 s56, s60'); a('s_mov_b32 s57, s61'); a('s_sub_u32 s53, s52, 392')
        a('s_cmp_ge_u32 s52, 392'); a('s_cbranch_scc1 K2_pf')
    a('s_mov_b32 s56, s54'); a('s_mov_b32 s57, s55'); a('s_mov_b32 s53, s52')
    a('s_cmp_lt_u32 s52, 196'); a('s_cbranch_scc1 K2_pf')
    a('s_mov_b32 s56, s62'); a('s_mov_b32 s57, s63'); a('s_sub_u32 s53, s52, 196')
    a.label('K2_pf')
    a('s_lshl_b32 s53, s53, 13'); a('s_add_u32 s56, s56, s53'); a('s_addc_u32 s57, s57, 0')
    a('s_lshl_b32 s53, s14, 18'); a('s_sub_u32 s56, s56, s53'); a('s_subb_u32 s57, s57, 0')
    a('s_and_b32 s57, s57, 0xffff'); a('s_mov_b32 s59, 0x20000')
    a('s_add_u32 s53, s53, 8192'); a(f's_cmp_lt_u32 s52, {392 if WOL2 else 840}'); a('s_cselect_b32 s58, s53, 0')
    a('s_mov_b32 s53, 0xfffffc00')
    GP.roles2(a)
    a('s_lshr_b32 s47, s2, 3'); a('s_lshl_b32 s47, s47, 2'); a('s_add_u32 s47, s47, s14'); a(f's_mul_i32 s47, s47, {7168 if X3 else 28672}')
    if X3: a('s_bfe_u32 s73, s2, 0x20001'); a(f's_mul_i32 s73, s73, {1024*896}'); a('s_add_u32 s47, s47, s73')
    a('s_add_u32 s76, s60, s47'); a('s_addc_u32 s77, s61, 0'); a('s_lshl_b32 s47, s14, 18'); a('s_sub_u32 s76, s76, s47'); a('s_subb_u32 s77, s77, 0')
    a('s_and_b32 s77, s77, 0xffff'); a(f's_add_u32 s78, s47, {7168 if X3 else 28672}'); a('s_mov_b32 s79, 0x20000')
    a(f's_mul_i32 s47, s13, {8*14336}'); srd(a, SN, 10, WS_N, 8*14336, 47)
    a(f's_mov_b32 s47, {(63-WOS)*1024}')
    if W8:
        wload(5); wload(6); wload(7)
        for t in range(8): tW[t] = 0
    sp.stamp()
    if HP:
        a('s_lshl_b32 s44, s13, 7'); a(f's_add_u32 s44, s44, {FL_N}'); a(f'v_lshlrev_b32 v0, 2, v{Pp}'); a('v_add_u32 v0, s44, v0')
    else:
        a(f'v_lshlrev_b32 v0, 4, v{L}'); a(f'v_add_u32 v0, {FL_M}, v0')
        a('s_lshl_b32 s44, s13, 7'); a(f's_add_u32 s44, s44, {FL_N - 28*4}'); a(f'v_lshlrev_b32 v1, 2, v{L}'); a('v_add_u32 v1, s44, v1')
        a(f'v_cmp_gt_u32 vcc, 28, v{L}'); a('s_nop 1'); a('v_cndmask_b32 v0, v1, v0, vcc')
        a(f'v_lshlrev_b32 v2, 4, v{TID}'); a(f'v_add_u32 v3, {LMOD}, v2')
    a('s_mov_b32 s44, 0x8000')
    if P1: a('s_cmp_lg_u32 s14, 0'); a('s_cbranch_scc1 K2_m_pd')
    a.label('K2_m_pl')
    a('buffer_load_dword v1, v0, s[16:19], 0 offen sc1')
    a('s_waitcnt vmcnt(0)')
    a(f'v_cmp_eq_u32 vcc, s{sNON}, v1'); a('s_nop 1')
    a('s_and_b32 vcc_hi, vcc_hi, 15'); a('s_bcnt1_i32_b64 s73, vcc' if not HP else 's_bcnt1_i32_b32 s73, vcc_lo'); a(f's_cmp_eq_u32 s73, {8 if HP else 36}'); a('s_cbranch_scc1 K2_m_pd')
    a(f's_sleep {SLP}')
    a('s_sub_u32 s44, s44, 1'); a('s_cmp_lg_u32 s44, 0'); a('s_cbranch_scc1 K2_m_pl')
    a.label('K2_m_pd')
    if P1: a('s_waitcnt vmcnt(0)'); a('s_barrier')
    xs('D')
    def hload(s, qb):
        if qb == 0: a(f's_mov_b32 s{sT1}, {s*1024}')
        tN[s] = a.vmem(f'buffer_load_dwordx4 {vr(HR(s,qb),4)}, v{NV_(qb)}, s[{SN}:{SN+3}], s{sT1} offen sc1')
    if HP:
        a.vm = 0
        for s_ in range(8):
            for qb in range(2): hload(s_, qb)
    else:
        tM = a.vmem(f'buffer_load_dwordx4 v[4:7], v2, s[{SMOD}:{SMOD+3}], 0 offen sc1')
        def nload(s):
            a(f's_mov_b32 s{sT1}, {s*1024}')
            for qb in range(2):
                tN[s] = a.vmem(f'buffer_load_dwordx4 {vr(NR_(s,qb),4)}, v{NV_(qb)}, s[{SN}:{SN+3}], s{sT1} offen sc1')
        nload(0); nload(1); nload(2)
        for t in range(NWP, 5): wload(t)
    srd(a, SK, 4, 0, 1 << 20, 50)
    def wread(t, db, h):
        b = wslot(t); A = WAL if b < LV else WAH
        return f'ds_read_b64_tr_b16 {ar(VF_(db)+2*h,2)}, v{A(db&7)} offset:{(b % LV) + h*2048 + (db>>3)*256}'
    def modreads(s):
        m = MC_(s & 1)
        return [f'ds_read_b128 {vr(m,4)}, v{MA} offset:{1792+128*s}', f'ds_read_b128 {vr(m+4,4)}, v{MA} offset:{1792+128*s+16}',
                f'ds_read_b128 {vr(m+8,4)}, v{MA} offset:{128*s}', f'ds_read_b128 {vr(m+12,4)}, v{MA} offset:{128*s+16}']
    def modvalu(s):
        m = MC_(s & 1); out = []
        for qb in range(2):
            for i in range(4):
                k = (qb*4+i) % 4
                ta, tb = TMP + 2*k, TMP + 2*k + 1
                raw = NR_(s, qb) + i
                out.append([f'v_lshlrev_b32 v{ta}, 16, v{raw}', f'v_and_b32 v{tb}, 0xffff0000, v{raw}',
                            f'v_fma_f32 v{ta}, v{ta}, v{m+2*i}, v{m+8+2*i}', f'v_fma_f32 v{tb}, v{tb}, v{m+2*i+1}, v{m+8+2*i+1}',
                            f'v_cvt_pk_bf16_f32 v{H_(s&1,qb)+i}, v{ta}, v{tb}'])
        return out
    if HP:
        sp.stamp()
        for db in range(16):
            for h in range(2): a(wread(0, db, h))
        a.wait_vm(tN[0], ' lgkmcnt(0)')
        sp.stamp()
    else:
        a.wait_vm(tM)
        a('ds_write_b128 v3, v[4:7]')
        a('s_waitcnt lgkmcnt(0)'); a('s_barrier')
        sp.stamp()
        for x in modreads(0): a(x)
        for db in range(16):
            for h in range(2): a(wread(0, db, h))
        a.wait_vm(tN[0], ' lgkmcnt(15)')
        for grp in modvalu(0):
            for x in grp: a(x)
        for x in modreads(1): a(x)
        a('s_waitcnt lgkmcnt(0)')
        sp.stamp()
    NS = 14
    tok = {}
    kv_at = {8: ('K', 0), 9: ('K', 1), 10: ('K', 2), 11: ('V', 0), 12: ('K', 3), 13: ('V', 1)}
    def tile_items(key):
        if key[0] == 'W':
            t = key[1]; base, so, vo, sd = wslot(t), t*32*8192, WD_, SWQ
        else:
            kind, tt = key
            base, so, vo, sd = (LK if kind == 'K' else LV) + tt*TILE, tt*TILE, (KD_ if kind == 'K' else VD_), (SK if kind == 'K' else SV)
        def mk(n):
            def f():
                tk = a.vmem(dma(vo(n), sd, f's{sT0}', n))
                if key[0] == 'W': tW[key[1]] = tk
                else: tok[key] = tk
            return f
        return [setm0(base), f's_mov_b32 s{sT0}, {hex(so)}'], [mk(n) for n in range(4)]
    def conv_ops(st, qb):
        Xb, Yb, q = O_(2*st, qb), O_(2*st+1, qb), Q_(st, qb)
        return ([f'v_cvt_pk_bf16_f32 v{q}, v{Xb}, v{Xb+1}', f'v_cvt_pk_bf16_f32 v{q+1}, v{Xb+2}, v{Xb+3}',
                 f'v_cvt_pk_bf16_f32 v{q+2}, v{Yb}, v{Yb+1}', f'v_cvt_pk_bf16_f32 v{q+3}, v{Yb+2}, v{Yb+3}'],
                [f'v_permlane32_swap_b32 v{q}, v{q+2}', f'v_permlane32_swap_b32 v{q+1}, v{q+3}'],
                [f'v_permlane16_swap_b32 v{q}, v{q+2}', f'v_permlane16_swap_b32 v{q+1}, v{q+3}'],
                [f'v_mov_b64 v[{Xb}:{Xb+1}], 0', f'v_mov_b64 v[{Xb+2}:{Xb+3}], 0', f'v_mov_b64 v[{Yb}:{Yb+1}], 0', f'v_mov_b64 v[{Yb+2}:{Yb+3}], 0'])
    for s in range(NS):
        if QS2 and s in QS2: _st()
        G_ = [[] for _ in range(32)]
        Vv = [[] for _ in range(32)]
        cap = [1]*32
        bar = (s % 2 == 0)
        if s >= 1:
            G_[0].append(wread(s, 15, 0)); G_[1].append(wread(s, 15, 1))
        for k in (4, 12, 20, 28): G_[k].insert(0, 's_waitcnt lgkmcnt(8)'); cap[k] = 0
        tiles = []
        if W8:
            if 2 <= s and s + 6 < NS: tiles.append(('W', s + 6))
        elif s + 5 < NS: tiles.append(('W', s + 5))
        if s in kv_at: tiles.append(kv_at[s])
        if s + 1 < NS:
            def w(s=s, bar=bar):
                t = 0 if HP else tN[s+1]
                if bar and s >= 2:
                    t = max(t, tW[s+1], tW[min(s+2, NS-1)])
                    if s == 12: t = max(t, tok['K', 1])
                a.wait_vm(t)
                if bar and s >= 2: a('s_barrier')
            if HP:
                G_[31].append(lambda s=s: a.wait_vm(tN[s+1]))
                if bar and s >= 2: G_[1].append(w)
            else: G_[1].append(w)
            for k in range(30): G_[k+2].append(wread(s+1, k >> 1, k & 1))
            if s + 2 < NS and not HP:
                for i, x in enumerate(modreads(s+2)): G_[3+2*i].append(x); cap[3+2*i] = 0
            if HP and s + 8 < NS:
                G_[2].append(lambda s=s: hload(s+8, 0)); G_[6].append(lambda s=s: hload(s+8, 1))
            if s + 3 < NS and not HP:
                def nl(qb, s=s):
                    def f():
                        if qb == 0: a(f's_mov_b32 s{sT1}, {(s+3)*1024}')
                        tN[s+3] = a.vmem(f'buffer_load_dwordx4 {vr(NR_(s+3,qb),4)}, v{NV_(qb)}, s[{SN}:{SN+3}], s{sT1} offen sc1')
                    return f
                G_[2].append(nl(0)); G_[6].append(nl(1)); cap[2] = cap[6] = 0
        else:
            ks = [kread(0, kb, st) for kb in range(2) for st in range(8)]
            for i, x in enumerate(ks): G_[2+i].append(x)
        pos = [10, 14, 18, 22] if len(tiles) == 1 else [8, 11, 14, 17, 21, 24, 27, 30]
        for ti, key in enumerate(tiles):
            su, ds = tile_items(key)
            pp = pos[4*ti:4*ti+4]
            G_[pp[0]-1] = su + G_[pp[0]-1]; cap[pp[0]-1] = 0
            for p, d in zip(pp, ds): G_[p].append(d); cap[p] = 0
        if HP and s + 1 < NS: pass
        elif s + 1 < NS:
            grps = modvalu(s+1); seq = []
            for gi in range(10):
                if gi < 8: seq += grps[gi][0:2]
                if 1 <= gi < 9: seq += grps[gi-1][2:4]
                if gi >= 2: seq.append(grps[gi-2][4])
            lo = 10 if (bar and s >= 2) else 2
            rng = list(range(lo, 30))
            tot = len(seq); base = sum(cap[k] for k in rng); extra = tot - base
            cnt = {k: cap[k] for k in rng}
            order = [k for k in rng if cap[k]] + [k for k in rng if not cap[k]]
            i = 0
            while extra > 0:
                cnt[order[i % len(order)]] += 1; extra -= 1; i += 1
            p = 0
            for k in rng:
                Vv[k] = seq[p:p+cnt[k]]; p += cnt[k]
        else:
            pend = []; zero = []
            for st in range(8):
                A_, B_ = conv_ops(st, 0), conv_ops(st, 1)
                g = 4*st + 3 + 5
                for part in range(3): pend += [(g, st, x) for x in A_[part] + B_[part]]
                zero += A_[3] + B_[3]
            for k in range(32):
                n = 1 if G_[k] else 2
                if k >= 18: n = 3
                while n and pend and pend[0][0] <= k:
                    Vv[k].append(pend.pop(0)[2]); n -= 1
        for db in range(16):
            for qb in range(2):
                k = db*2 + qb
                c = vr(O_(db, qb), 4)
                a(f'{M16} {c}, {ar(VF_(db),4)}, {vr(HR(s,qb) if HP else H_(s&1,qb),4)}, {c if s else 0}')
                for x in G_[k] + Vv[k]:
                    x() if callable(x) else a(x)
    if QS: sq_.stamp()
    a('s_waitcnt lgkmcnt(0)'); a('s_barrier')
    sp.stamp()
    conv = pend
    mem = []
    for key in (('V', 2), ('K', 4)):
        kind, tt = key
        base = (LK if kind == 'K' else LV) + (tt & 3)*TILE
        mem.append([setm0(base), f's_mov_b32 s{sT0}, {hex(tt*TILE)}'])
        for n in range(4):
            mem.append([lambda n=n, kind=kind: a.vmem(dma((KD_ if kind == 'K' else VD_)(n), SK if kind == 'K' else SV, f's{sT0}', n))])
    first_left = conv[0][1] if conv else 8
    a.nop(2)
    for st in range(8):
        for c in range(4):
            if c == 0 and any(x[1] <= st for x in conv):
                while any(x[1] <= st for x in conv): a(conv.pop(0)[2])
                a('s_nop 1')
            q0 = qk_mfma(c, st, '0')
            a(q0)
            n = 3
            if c & 1: a(kread(1, c >> 1, st)); n = 2
            elif mem:
                for x in mem.pop(0): x() if callable(x) else a(x)
                n = 1
            while n and conv: a(conv.pop(0)[2]); n -= 1
            while n and zero and not conv: a(zero.pop(0)); n -= 1
    assert not mem
    for x in zero: a(x)
    softmax0(a, True, max(0, 8 - len(zero)))
    GP.flag_srd(a)
    if not GP.LATE:
        a('s_mov_b32 s44, 0x8000'); a(f'v_and_b32 v{S_(0)}, 0x3ff, v{ST_(0)}'); a(f'v_add_u32 v{S_(0)}, {FL_M+448}, v{S_(0)}')
        a.label('K2_n_pl')
        a(f'buffer_load_dword v{S_(0)+1}, v{S_(0)}, s[{GP.SF_}:{GP.SF_+3}], 0 offen sc1')
        a('s_waitcnt vmcnt(0)')
        a(f'v_cmp_eq_u32 vcc, s{sNON}, v{S_(0)+1}'); a('s_nop 1')
        a('s_bcnt1_i32_b64 s73, vcc'); a('s_cmp_ge_u32 s73, 56'); a('s_cbranch_scc1 K2_n_pd')
        a('s_sleep 8')
        a('s_sub_u32 s44, s44, 1'); a('s_cmp_lg_u32 s44, 0'); a('s_cbranch_scc1 K2_n_pl')
        a.label('K2_n_pd')
    a(f's_mov_b32 s{sVO}, {3*TILE}'); a(f's_mov_b32 s{sKO}, {5*TILE}')
    if FUSE:
        a(WOPF)
        a('s_getpc_b64 s[24:25]'); a.label('K2_pc2')
        a('s_add_u32 s24, s24, K2_tail-K2_pc2'); a('s_addc_u32 s25, s25, 0'); a('s_and_b32 s25, s25, 0xffff')
        a('s_mov_b32 s26, K2_fb-K2_tail'); a('s_mov_b32 s27, 0x20000')
        a(f'v_and_b32 v{S_(0)}, 0x3ff, v{ST_(0)}'); a(f'v_lshlrev_b32 v{S_(0)}, 3, v{S_(0)}'); a(f's_lshl_b32 s{sT0}, s14, 13')
        a(f'buffer_load_dword a128, v{S_(0)}, s[24:27], s{sT0} offen')
    sp.stamp()
    if STAMP and not QS and not FUSE: a('s_memrealtime s[90:91]'); a('s_waitcnt lgkmcnt(0)')
    a('.p2align 6')
    a.label('K2_loop')
    pre_len = len(a.L)
    for u in range(4):
        a(f's_waitcnt vmcnt({VMW}) lgkmcnt(0)'); a('s_barrier')
        loop_body(a, u, verbose=bool(os.environ.get('V')))
        if u == 2:
            a('s_cbranch_scc1 K2_tail')
    a('s_branch K2_loop')
    body = a.L[pre_len:]
    for p in check_text(body + body, 'k2 loop wrap'): print('HAZARD', p)
    a.label('K2_tail')
    a(f's_waitcnt vmcnt({0 if FUSE else 16}) lgkmcnt(0)'); a('s_barrier')
    sp.stamp()
    if STAMP and not QS and not FUSE: a('s_memrealtime s[92:93]'); a('s_waitcnt lgkmcnt(0)'); a('s_sub_u32 s92, s92, s90')
    for db in range(16):
        for h in range(2): a(vread(3, db, h))
    for qb in range(2): xlane(a, 'v_add_f32', L_(qb), S_(qb))
    a(f's_mov_b32 s{sT0}, {f32(THRESH)}')
    a(f'v_add_f32 v{S_(0)+1}, v{L_(0)}, v{L_(1)}')
    a(f'v_cmp_ngt_f32 vcc, s{sT0}, v{S_(0)+1}')
    a(f'v_rcp_f32 v{L_(0)}, v{L_(0)}'); a(f'v_rcp_f32 v{L_(1)}, v{L_(1)}')
    a(f's_cmp_lg_u64 vcc, 0'); a(f's_cselect_b32 s{sT1}, 1, 0')
    a(f'v_mov_b32 v{S_(0)+2}, s{sT1}')
    a(f's_lshl_b32 s{sT0}, s14, 2'); a(f's_add_u32 s{sT0}, s{sT0}, {LFLAG}'); a(f'v_mov_b32 v{S_(0)+3}, s{sT0}')
    a(f'ds_write_b32 v{S_(0)+3}, v{S_(0)+2}')
    def ep_ops(sq, qb, pk):
        Xb, Yb = O_(2*sq, qb), O_(2*sq+1, qb)
        o = []
        if pk:
            LP = L_(0)
            sel = 'op_sel:[0,0] op_sel_hi:[1,0]' if qb == 0 else 'op_sel:[0,1] op_sel_hi:[1,1]'
            for b in (Xb, Xb+2, Yb, Yb+2): o.append(f'v_pk_mul_f32 v[{b}:{b+1}], v[{b}:{b+1}], v[{LP}:{LP+1}] {sel}')
        else:
            for i in range(4):
                o += [f'v_mul_f32 v{Xb+i}, v{Xb+i}, v{L_(qb)}', f'v_mul_f32 v{Yb+i}, v{Yb+i}, v{L_(qb)}']
        o += [f'v_cvt_pk_bf16_f32 v{Xb}, v{Xb}, v{Xb+1}', f'v_cvt_pk_bf16_f32 v{Xb+1}, v{Xb+2}, v{Xb+3}',
              f'v_cvt_pk_bf16_f32 v{Xb+2}, v{Yb}, v{Yb+1}', f'v_cvt_pk_bf16_f32 v{Xb+3}, v{Yb+2}, v{Yb+3}',
              f'buffer_store_dwordx4 {vr(Xb,4)}, v{ST_(qb)}, s[{SO}:{SO+3}], {"0" if sq < 4 else f"s{s4K}"} offen offset:{(sq&3)*1024} {OFLAG}']
        return o
    pend = []
    NOV = 3
    for sq in range(NOV):
        for qb in range(2): pend += [(4*sq + 2 + qb + 8, x) for x in ep_ops(sq, qb, False)]
    for db in range(16):
        if db % 4 == 0: a(f's_waitcnt lgkmcnt({min(15, 33 - 2*db - 8)})')
        for qb in range(2):
            k = 2*db + qb
            a(pv_mfma(db, qb, 1))
            n = 2
            while n and pend and pend[0][0] <= k:
                x = pend.pop(0)[1]; a(x); n -= 1
                if 'store' in x: n = 0
    sp.stamp()
    for x in pend: a(x[1])
    for sq in range(NOV, 8):
        for qb in range(2):
            for x in ep_ops(sq, qb, True): a(x)
    sp.stamp()
    if not FUSE:
        if STAMP: a('s_waitcnt vmcnt(0)')
        sp.stamp(); sp.stamp(True); sp.dump(10, 14, S_(2))
        if STAMP and not QS: a(f'v_mov_b32 v{S_(2)+1}, s92'); a(f'buffer_store_dword v{S_(2)+1}, v{S_(2)}, s[96:99], s100 offen offset:60')
        a(f's_cmp_lg_u32 s{sATT}, 0'); a('s_cbranch_scc1 K2_end')
        a(f'v_mov_b32 v{S_(0)+3}, {LFLAG}')
        a('s_waitcnt lgkmcnt(0)'); a('s_barrier')
    else:
        if X3:
            a.g3 = g3 = GP2.Oproj(a)
            g3.w_setup()
            for ks in range(2*GP.NPRE):
                for f in g3.w_tile(ks): f()
            a(f's_waitcnt vmcnt({4*GP.NPRE})')
        else:
            a.g3 = g3 = GP.Gemm(a, 3)
            a(f's_cmp_ge_u32 s{GP.sIDX}, 28'); a('s_cbranch_scc1 K2_np')
            if GP.EARLY and GP.DYN: g3.early()
            else: g3.w_setup()
            for ks in range(GP.NPRE):
                for f in g3.w_pre(ks): f()
            a(f's_waitcnt vmcnt({4*GP.NPRE})'); a('s_branch K2_nj')
            a.label('K2_np')
            a('s_waitcnt vmcnt(0)')
            a.label('K2_nj')
        a(f'v_mov_b32 v{S_(0)+3}, {LFLAG}')
        a('s_waitcnt lgkmcnt(0)'); a('s_barrier')
        a(f's_cmp_lg_u32 s{sATT}, 0'); a('s_cbranch_scc1 K2_go')
    a(f'ds_read_b128 {vr(S_(1),4)}, v{S_(0)+3}')
    a('s_waitcnt lgkmcnt(0)')
    a(f'v_or3_b32 v{S_(1)}, v{S_(1)}, v{S_(1)+1}, v{S_(1)+2}'); a(f'v_or_b32 v{S_(1)}, v{S_(1)}, v{S_(1)+3}')
    a('s_nop 0')
    a(f'v_readfirstlane_b32 s{sT0}, v{S_(1)}')
    a('s_nop 3')
    if not FUSE:
        a(f's_cmp_eq_u32 s{sT0}, 0'); a('s_cbranch_scc1 K2_end')
    else:
        a(f's_cmp_lg_u32 s{sT0}, 0'); a('s_cbranch_scc1 K2_fb')
        a.label('K2_go')
        a(f's_lshl_b32 s44, s13, 7'); a('s_lshl_b32 s45, s12, 2'); a('s_add_u32 s44, s44, s45')
        GP.set_flag(a, 'K2_a', 44, 8)
        sp.stamp(); sp.stamp(True); sp.dump(10, 14, 8)
        if X3:
            GP2.post2(a, 'K2')
            a('s_endpgm')
        else:
            a(f's_cmp_ge_u32 s{GP.sIDX}, 28'); a('s_cbranch_scc1 K2_uw')
            GP.post(a, 'K2')
            a('s_endpgm')
            a.label('K2_uw')
            GP.uw_phase(a, 'K2')
            a('s_endpgm')
    a.label('K2_fb')
    a(f's_mov_b32 s{sATT}, 1')
    a('s_waitcnt vmcnt(0)'); a('s_barrier')
    for qb in range(2): a(f'v_mov_b32 v{NM_(qb)}, 0xff800000')
    a(f's_mov_b32 s{sKO}, 0')
    a.label('K2_mx')
    a(setm0(LK)); a('s_nop 0')
    for n in range(4): a(dma(KD_(n), SK, f's{sKO}', n))
    a('s_waitcnt vmcnt(0)'); a('s_barrier')
    for kb in range(2):
        for st in range(8): a(kread(0, kb, st))
    a('s_waitcnt lgkmcnt(0)'); a('s_barrier')
    for c in range(4):
        for st in range(8): a(qk_mfma(c, st, '0'))
    a.nop(8)
    for c in range(4):
        t = NM_(c & 1)
        a(f'v_max3_f32 v{t}, v{S_(c)}, v{S_(c)+1}, v{t}'); a(f'v_max3_f32 v{t}, v{S_(c)+2}, v{S_(c)+3}, v{t}')
    a(f's_add_u32 s{sKO}, s{sKO}, {TILE}'); a(f's_cmp_lt_u32 s{sKO}, {1<<20}'); a('s_cbranch_scc1 K2_mx')
    for qb in range(2): xlane(a, 'v_max_f32', NM_(qb), NM_(qb)+1)
    for qb in range(2):
        t = NM_(qb)
        a(f'v_sub_f32 v{t}, 0, v{t}')
        for i in range(1, 4): a(f'v_mov_b32 v{t+i}, v{t}')
    for i in range(0, 128, 2): a(f'v_mov_b64 v[{i}:{i+1}], 0')
    k0 = load_tile(a, 'K', 0); k1 = load_tile(a, 'K', 1)
    for kind, t in (('K', 2), ('V', 0), ('K', 3), ('V', 1), ('V', 2)): load_tile(a, kind, t)
    preamble(a, False, k0, k1)
    a(f's_mov_b32 s{sVO}, {3*TILE}'); a(f's_mov_b32 s{sKO}, {5*TILE}')
    if FUSE: a(WOPF); a(WOPF)
    a('s_branch K2_loop')
    a.label('K2_end')
    a('s_endpgm')
    return a, f'; @launch {"" if os.environ.get("PLAIN") else "kernel="+N+" "}grid=(256,1,1) block=(256,1,1) lds=163840', kd(N, 256, 132, sgpr=102 if STAMP else (80 if FUSE else 64))
```

```python
from gen_common import *
M16 = 'v_mfma_f32_16x16x32_bf16'
FL_A, FL_B, FL_C, FL_U = 0, 2048, 4096, 6144
SC = 'sc1'
sX, sOUT, sW2, sWO, sW1, sWS, sWAVE = 64, 66, 54, 60, 62, 10, 14
sIDX, sTB, sNT, sLB, sROT = 68, 69, 70, 71, 72
sT = [73, 74, 75]
SW_, SA_, SF_ = 24, 28, 32
SX_, SM_, SO2, SO3 = 16, 20, 36, 40
ACC = lambda nb, tb: (nb*4+tb)*4
AF = lambda buf, nb: 64 + buf*16 + nb*4
BSL = [96, 112, 128, 160, 176, 192, 208, 224]
BF = lambda slot, tb: BSL[slot] + tb*4
WV = lambda m: 144 + m
RA = lambda nb: 148 + nb
BV = lambda tb: 152 + tb
LANE, GG, T0, T1 = 156, 157, 158, 159
E0 = 240
L16 = 243
X1A = 120
D = 8; PF = 7
E4F = int(os.environ.get('E4F', 2))
IROT = int(os.environ.get('IROT', 1))
EARLY = int(os.environ.get('EARLY', 0))
SPF = int(os.environ.get('SPF', 0)); SPW = int(os.environ.get('SPW', 0))
SP2 = int(os.environ.get('SP2', 0))
PW0 = int(os.environ.get('PW0', 1))
RED3 = int(os.environ.get('RED3', 1))
EPI = int(os.environ.get('EPI', 0))
DYN = int(os.environ.get('DYN', 1))
LATE = int(os.environ.get('LATE', 1))
PSL = int(os.environ.get('PSL', 2))
FL_M = 8192
NPRE = int(os.environ.get('NPRE', 2))
BSC = os.environ.get('BSC', SC)

def xlane(a, op, r, t):
    for sw in ('v_permlane32_swap_b32', 'v_permlane16_swap_b32'):
        a(f'v_mov_b32 v{t}, v{r}'); a('s_nop 1'); a(f'{sw} v{r}, v{t}'); a('s_nop 1')
        a(f'{op} v{r}, v{r}, v{t}')
def lane_id(a, r):
    a(f'v_mbcnt_lo_u32_b32 v{r}, -1, 0'); a(f'v_mbcnt_hi_u32_b32 v{r}, -1, v{r}')

def roles(a):
    a(f's_and_b32 s{sT[0]}, s2, 7'); a(f's_lshr_b32 s{sIDX}, s2, 3')
    a(f's_mul_i32 s{sTB}, s{sIDX}, 37'); a(f's_lshr_b32 s{sTB}, s{sTB}, 8')
    a(f's_mul_i32 s{sNT}, s{sTB}, 7'); a(f's_sub_u32 s{sNT}, s{sIDX}, s{sNT}')
    a(f's_lshl_b32 s{sT[1]}, s{sT[0]}, 2'); a(f's_add_u32 s{sTB}, s{sTB}, s{sT[1]}')
def roles2(a):
    a(f's_lshl_b32 s{sLB}, s{sWAVE}, 15'); a(f's_cmp_eq_u32 s{sWAVE}, 3'); a(f's_cselect_b32 s{sLB}, 0x20000, s{sLB}')

NONCE = int(os.environ.get('NONCE', 1))
sNON = 75
def flag_srd(a): srd(a, SF_, sWS, WS_FLAG, 16384)
def set_flag(a, tag, offreg, vt):
    a(f's_cmp_lg_u32 s{sWAVE}, 0'); a(f's_cbranch_scc1 {tag}_nf')
    a(f'v_mov_b32 v{vt}, 0'); a(f'v_mov_b32 v{vt+1}, ' + (f's{sNON}' if NONCE else '1'))
    a(f's_mov_b64 exec, 1')
    a(f'buffer_store_dword v{vt+1}, v{vt}, s[{SF_}:{SF_+3}], s{offreg} offen {SC}')
    a(f's_mov_b64 exec, -1')
    a.label(f'{tag}_nf')
def poll(a, tag, vaddr, vt, mask, extra=None, one=False):
    a(f's_mov_b32 s{sT[1]}, 0x8000')
    if one: a(f's_cmp_lg_u32 s{sWAVE}, {PW0-1}'); a(f's_cbranch_scc1 {tag}_pd')
    a.label(f'{tag}_pl')
    a(f'buffer_load_dword v{vt}, v{vaddr}, s[{SF_}:{SF_+3}], 0 offen {SC}')
    if extra: a(f'buffer_load_dword v{extra[1]}, v{extra[0]}, s[{SF_}:{SF_+3}], 0 offen {SC}')
    a('s_waitcnt vmcnt(0)')
    a(f'v_cmp_eq_u32 vcc, s{sNON}, v{vt}' if NONCE else f'v_cmp_ne_u32 vcc, 0, v{vt}')
    a('s_nop 1')
    a(f's_and_b32 s{sT[0]}, vcc_lo, {hex(mask)}')
    if extra:
        a(f'v_cmp_eq_u32 vcc, s{sNON}, v{extra[1]}'); a('s_nop 1'); a('s_bcnt1_i32_b64 s46, vcc')
        a(f's_cmp_ge_u32 s46, {extra[2]}'); a(f's_cselect_b32 s{sT[0]}, s{sT[0]}, 0')
    a(f's_cmp_eq_u32 s{sT[0]}, {hex(mask)}'); a(f's_cbranch_scc1 {tag}_pd')
    a(f's_sleep {PSL}')
    a(f's_sub_u32 s{sT[1]}, s{sT[1]}, 1'); a(f's_cmp_lg_u32 s{sT[1]}, 0'); a(f's_cbranch_scc1 {tag}_pl')
    a.label(f'{tag}_pd')
    if one: a('s_waitcnt vmcnt(0)'); a('s_barrier')
    a.vm = 0

class Gemm:
    X1MEM = False
    def __init__(self, a, kid):
        self.a = a; self.kid = kid
        self.KS = 32 if kid == 3 else 14
        self.tB = {}; self.tW = {}
    def w_setup(self):
        a = self.a; KS = self.KS
        l, t0, t1 = RA(0), RA(1), RA(2)
        lane_id(a, l)
        a(f'v_bfe_u32 v{t0}, v{l}, 4, 2'); a(f'v_lshlrev_b32 v{t0}, 1, v{t0}'); a(f'v_and_b32 v{t1}, 7, v{l}'); a(f'v_xor_b32 v{t0}, v{t0}, v{t1}')
        a(f'v_lshlrev_b32 v{t0}, 4, v{t0}')
        a(f'v_lshrrev_b32 v{t1}, 3, v{l}'); a(f'v_mul_u32_u24 v{t1}, 896, v{t1}'); a(f'v_add_u32 v{WV(0)}, v{t0}, v{t1}')
        for m in range(1, 4): a(f'v_add_u32 v{WV(m)}, {6144*m}, v{WV(0)}')
        self.dyn = DYN and self.kid == 3
        self.nw0 = NPRE if (self.dyn and EARLY) else 4 if (self.dyn and DYN != 1) else PF
        a(f's_mul_i32 s{sT[0]}, s{sWAVE}, {(4 if self.dyn else KS)*32*896}'); a(f's_lshl_b32 s{sT[1]}, s{sNT}, 7'); a(f's_add_u32 s{sT[0]}, s{sT[0]}, s{sT[1]}')
        srd(a, SW_, sWO if self.kid == 3 else sW2, 0, 0, sT[0]); a(f's_sub_u32 s{SW_+2}, {4*KS*32*896}, s{sT[0]}')
        RM = int(os.environ.get('RM', 0))
        if RM == 0:
            a(f's_and_b32 s{sROT}, s2, 7'); a(f's_mul_i32 s{sROT}, s{sROT}, {KS}'); a(f's_lshr_b32 s{sROT}, s{sROT}, 3')
        elif RM == 1:
            a(f's_and_b32 s{sROT}, s{sTB}, 3'); a(f's_lshl_b32 s{sT[0]}, s{sNT}, 2'); a(f's_add_u32 s{sROT}, s{sROT}, s{sT[0]}')
            a(f's_mul_i32 s{sROT}, s{sROT}, {KS*2341}'); a(f's_lshr_b32 s{sROT}, s{sROT}, 16')
        else:
            a(f's_mul_i32 s{sROT}, s{sNT}, {KS*9363}'); a(f's_lshr_b32 s{sROT}, s{sROT}, 16')
        a(f's_mov_b32 s49, s{sROT}')
        if self.dyn:
            if EARLY: a('s_add_u32 s49, s2, 1'); a('s_and_b32 s49, s49, 7'); a('s_lshl_b32 s49, s49, 4')
            else: a('s_and_b32 s49, s2, 7'); a('s_lshl_b32 s49, s49, 4')
            if IROT == 1: a(f's_add_u32 s48, s{sNT}, s{sTB}')
            if IROT == 2: a(f's_mov_b32 s48, s{sNT}')
            if IROT == 3: a(f's_mov_b32 s48, s{sTB}')
    def adv(self, reg):
        a = self.a
        a(f's_add_u32 s{reg}, s{reg}, 1'); a(f's_cmp_eq_u32 s{reg}, {self.KS}'); a(f's_cselect_b32 s{reg}, 0, s{reg}')
    def w_pre(self, ks):
        a = self.a
        def su():
            if self.dyn and DYN == 1 and 4 <= ks < self.nw0:
                a('s_add_u32 s51, s49, 16'); a('s_and_b32 s51, s51, 127')
                a(f's_add_u32 m0, s{sLB}, {(ks % D)*4096}'); self.sub('s51', ks); a(f's_mul_i32 s50, s51, {32*896}')
                return
            if self.dyn:
                if ks and ks % 4 == 0: self.pick(ks // 4)
                a(f's_add_u32 m0, s{sLB}, {(ks % D)*4096}'); self.sub('s49', ks); a(f's_mul_i32 s50, s51, {32*896}'); a('s_lshl_b32 s51, s51, 10')
                return
            if ks: self.adv(49)
            a(f's_add_u32 m0, s{sLB}, {(ks % D)*4096}'); a(f's_mul_i32 s50, s49, {32*896}')
        def d(m):
            def f(): self.tW[ks] = a.vmem(f'buffer_load_dwordx4 v{WV(m)}, s[{SW_}:{SW_+3}], s50 offen offset:{1024*m} lds')
            return f
        return [su] + [d(m) for m in range(4)]
    def sub(self, base, ks):
        a = self.a
        if IROT:
            a(f's_add_u32 s73, s48, {ks % 4}'); a('s_and_b32 s73, s73, 3'); a(f's_add_u32 s51, {base}, s73')
        else: a(f's_add_u32 s51, {base}, {ks % 4}')
    def ready_mask(self):
        a = self.a
        a('s_lshr_b32 s73, vcc_lo, 1'); a('s_and_b32 s73, s73, vcc_lo'); a(f's_and_b32 s{sROT}, s73, 0x5555')
    def pick(self, j):
        a = self.a; T = f'K2_d{j}'
        if DYN == 1:
            a('s_add_u32 s49, s49, 16'); a('s_and_b32 s49, s49, 127'); a('s_lshr_b32 s73, s49, 3'); a('s_lshl_b32 s43, 1, s73')
            test = f's_and_b32 s73, s{sROT}, s43'
        else:
            test = f's_andn2_b32 s73, s{sROT}, s43'
        SMP = E0 + 12 + (j & 1)
        if EARLY and j >= 3:
            a(f'v_cmp_eq_u32 vcc, s{sNON}, v{SMP}'); a('s_nop 1')
            a('s_lshr_b32 s73, vcc_lo, 1'); a('s_and_b32 s73, s73, vcc_lo'); a('s_and_b32 s73, s73, 0x5555'); a(f's_or_b32 s{sROT}, s{sROT}, s73')
        if EARLY and j <= 5: a.vmem(f'buffer_load_dword v{SMP}, v{T0}, s[{SF_}:{SF_+3}], 0 offen {SC}')
        a(f's_mov_b32 s{sT[1]}, 0x8000')
        a.label(f'{T}_l')
        a(test); a(f's_cbranch_scc1 {T}_g')
        a(f'buffer_load_dword v{T1}, v{T0}, s[{SF_}:{SF_+3}], 0 offen {SC}')
        a('s_waitcnt vmcnt(0)')
        a(f'v_cmp_eq_u32 vcc, s{sNON}, v{T1}'); a('s_nop 1')
        self.ready_mask()
        a(test); a(f's_cbranch_scc1 {T}_g')
        a('s_sleep 4')
        a(f's_sub_u32 s{sT[1]}, s{sT[1]}, 1'); a(f's_cmp_lg_u32 s{sT[1]}, 0'); a(f's_cbranch_scc1 {T}_l')
        a(f's_mov_b32 s{sROT}, 0x5555'); a(f's_branch {T}_l')
        a.label(f'{T}_g')
        if DYN != 1: a('s_ff1_i32_b32 s73, s73'); a('s_bitset1_b32 s43, s73'); a('s_lshl_b32 s49, s73, 3')
    def b_setup(self):
        a = self.a; KS = self.KS; NKS = 4*KS; TE = 136
        lane_id(a, LANE)
        a(f'v_bfe_u32 v{GG}, v{LANE}, 4, 2')
        a(f'v_lshlrev_b32 v{BV(0)}, 4, v{LANE}')
        if RED3:
            a(f'v_mov_b32 v{L16}, v{BV(0)}')
            for tb in range(4):
                a(f's_add_u32 s73, s{sWAVE}, {tb}'); a('s_and_b32 s73, s73, 3'); a(f's_mul_i32 s73, s73, {NKS*1024}'); a(f'v_add_u32 v{BV(tb)}, s73, v{L16}')
        else:
            a(f'v_mov_b32 v{L16}, v{BV(0)}')
            for tb in range(1, 4): a(f'v_add_u32 v{BV(tb)}, {tb*NKS*1024}, v{BV(0)}')
        a(f's_mul_i32 s73, s{sTB}, {4*NKS*1024}'); a(f's_mul_i32 s74, s{sWAVE}, {(4 if self.dyn else KS)*1024}'); a('s_add_u32 s73, s73, s74')
        srd(a, SA_, sWS, WS_O if self.kid == 3 else WS_H, 0, 73); a(f's_sub_u32 s{SA_+2}, {128*NKS*1024}, s73')
        a(f'v_bfe_u32 v{T0}, v{LANE}, 2, 4'); a(f'v_bfe_u32 v{T1}, v{T0}, 1, 2')
        a(f'v_lshlrev_b32 v{T0}, 7, v{T0}'); a(f'v_and_b32 v{TE}, 3, v{LANE}'); a(f'v_lshl_add_u32 v{T0}, v{TE}, 3, v{T0}'); a(f'v_add_u32 v{T0}, s{sLB}, v{T0}')
        for nb in range(4):
            a(f'v_xor_b32 v{TE}, {nb}, v{T1}'); a(f'v_lshl_add_u32 v{RA(nb)}, v{TE}, 5, v{T0}')
        if not self.dyn: a(f's_mov_b32 s48, s{sROT}')
    def early(self):
        a = self.a
        self.w_setup(); self.b_setup()
        a(f's_lshr_b32 s73, s{sTB}, 1'); a('s_lshl_b32 s73, s73, 7'); a(f'v_lshlrev_b32 v{T0}, 2, v{LANE}'); a(f'v_add_u32 v{T0}, s73, v{T0}')
        a(f'v_add_u32 v136, {FL_M+448}, v{BV(0)}')
        a(f'buffer_load_dword v{T1}, v{T0}, s[{SF_}:{SF_+3}], 0 offen {SC}')
        a(f'buffer_load_dword v137, v136, s[{SF_}:{SF_+3}], 0 offen {SC}')
    def b_load(self, ks, m):
        a = self.a
        if m == 0 and self.dyn:
            if ks == 4 and DYN == 1 and self.nw0 > 4: self.pick(1)
            if ks < self.nw0: self.sub('s49', ks); a('s_lshl_b32 s51, s51, 10')
        elif m == 0:
            if ks: self.adv(48)
            a('s_lshl_b32 s51, s48, 10')
        self.tB[ks] = a.vmem(f'buffer_load_dwordx4 {vr(BF(ks % D, m),4)}, v{BV(m)}, s[{SA_}:{SA_+3}], s51 offen {BSC}')
    def areads(self, ks):
        return [f'ds_read_b64_tr_b16 {vr(AF(ks&1,nb)+2*h,2)}, v{RA(nb)} offset:{(ks % D)*4096 + h*2048}' for nb in range(4) for h in range(2)]
    def main(self, sp):
        a = self.a; KS = self.KS; kid = self.kid
        NW0 = self.nw0
        for ks in range(PF):
            wq = self.w_pre(ks) if ks >= NW0 else None
            if wq: wq[0]()
            for m in range(4):
                if wq: wq[1+m]()
                self.b_load(ks, m)
            if ks == (1 if self.nw0 < 4 else 0):
                if self.nw0 < 4: a.wait_vm(self.tW[0])
                for x in self.areads(0): a(x)
        EP = {}
        for ks in range(KS):
            nxt = []
            if ks + 1 < KS:
                t = self.tB[ks+1] if ks + 1 < NW0 else max(self.tB[ks+1], self.tW[ks+1])
                a.wait_vm(max(t, self.tB[ks]), ' lgkmcnt(0)'); nxt = self.areads(ks+1)
            else: a('s_waitcnt lgkmcnt(0)')
            pf = ks + PF; i = 0
            wp = self.w_pre(pf) if pf < KS else []
            for nb in range(4):
                for tb in range(4):
                    c = vr(ACC(nb, tb), 4)
                    a(f'{M16} {c}, {vr(AF(ks&1,nb),4)}, {vr(BF(ks % D, tb),4)}, {c if ks else 0}')
                    if i < 8 and nxt: a(nxt.pop(0))
                    if wp:
                        if i == 0: wp[0]()
                        if i >= 8:
                            m = (i - 8) >> 1
                            if i & 1: self.b_load(pf, m)
                            else: wp[1+m]()
                    i += 1
            if ks == KS - PF:
                EPB = BF((ks + PF) % D, 0); EP['B'] = EPB
                a(f'v_and_b32 v{E0+5}, 15, v{LANE}')
                a(f's_lshl_b32 s52, s{sTB}, 6'); a(f's_lshl_b32 s53, s{sWAVE}, 4'); a('s_add_u32 s52, s52, s53')
                a(f's_lshl_b32 s44, s{sNT}, 8')
                srd(a, SM_, sWS, WS_MOD, 6*448*4)
                a(f'v_lshlrev_b32 v{E0+6}, 4, v{GG}')
                a(f's_add_u32 s47, s44, {(2 if kid == 3 else 5)*1792}')
                for nb in range(4): a.vmem(f'buffer_load_dwordx4 {vr(EPB+4*nb,4)}, v{E0+6}, s[{SM_}:{SM_+3}], s47 offen offset:{64*nb} {SC}')
            if ks == KS - PF + 1 and kid == 3:
                EPC = BF((ks + PF) % D, 0); EP['C'] = EPC
                a(f's_add_u32 s47, s44, {4*1792}')
                for nb in range(4): a.vmem(f'buffer_load_dwordx4 {vr(EPC+4*nb,4)}, v{E0+6}, s[{SM_}:{SM_+3}], s47 offen offset:{64*nb} {SC}')
            if ks == KS - PF + 2:
                EPX = BF((ks + PF) % D, 0); EP['X'] = EPX
                a('s_lshr_b32 s56, s52, 4'); a(f's_mul_i32 s56, s56, {14*1024}'); a(f's_lshl_b32 s57, s{sNT}, 11'); a('s_add_u32 s56, s56, s57')
                a('s_mul_i32 s58, s52, 896'); a(f's_lshl_b32 s57, s{sNT}, 7'); a('s_add_u32 s58, s58, s57')
                a(f'v_mul_u32_u24 v{E0+7}, 896, v{E0+5}')
                if kid == 3: a(f'v_lshl_add_u32 v{E0+7}, v{GG}, 3, v{E0+7}')
                else:
                    a(f'v_and_b32 v{E0+4}, 1, v{GG}'); a(f'v_lshl_add_u32 v{E0+7}, v{E0+4}, 5, v{E0+7}')
                    a(f'v_lshrrev_b32 v{E0+4}, 1, v{GG}'); a(f'v_lshl_add_u32 v{E0+7}, v{E0+4}, 4, v{E0+7}')
                srd(a, SX_, sX if kid == 3 else sOUT, 0, 2048*896)
                if kid == 3:
                    for nb in range(4): a.vmem(f'buffer_load_dwordx2 {vr(EPX+2*nb,2)}, v{E0+7}, s[{SX_}:{SX_+3}], s58 offen offset:{32*nb}')
                    srd(a, SO2, sWS, WS_Y, 128*14*1024); srd(a, SO3, sWS, WS_STAT, 7*2048*8)
                elif self.X1MEM:
                    srd(a, SO2, sWS, WS_X1, 128*14*1024)
                    for hh in range(2): a.vmem(f'buffer_load_dwordx4 {vr(EPX+4*hh,4)}, v{L16}, s[{SO2}:{SO2+3}], s56 offen offset:{1024*hh} {SC}')
        sp.stamp()
        if RED3:
            a(f'v_add_u32 v{E0+8}, s{sLB}, v{L16}')
            for t in range(1, 4):
                a(f's_sub_u32 s59, s{sWAVE}, {t}'); a('s_and_b32 s59, s59, 3'); a('s_lshl_b32 s73, s59, 15'); a('s_cmp_eq_u32 s59, 3'); a('s_cselect_b32 s73, 0x20000, s73')
                a(f'v_add_u32 v{E0+8+t}, s73, v{L16}')
            for t in range(1, 4):
                for nb in range(4): a(f'ds_write_b128 v{E0+8}, {vr(ACC(nb,t),4)} offset:{((t-1)*4+nb)*1024}')
            a('s_waitcnt lgkmcnt(0)'); a('s_barrier')
            R_ = lambda t, nb: ACC(nb, t)
            for t in range(1, 4):
                for nb in range(4): a(f'ds_read_b128 {vr(R_(t,nb),4)}, v{E0+8+t} offset:{((t-1)*4+nb)*1024}')
            a('s_waitcnt lgkmcnt(8)')
            for nb in range(4):
                for i in range(4): a(f'v_add_f32 v{64+4*nb+i}, v{ACC(nb,0)+i}, v{R_(1,nb)+i}')
            a('s_waitcnt lgkmcnt(0)')
            if kid == 3: a('s_barrier')
            for nb in range(4):
                for i in range(4): a(f'v_add_f32 v{ACC(nb,2)+i}, v{ACC(nb,2)+i}, v{ACC(nb,3)+i}')
            for nb in range(4):
                for i in range(4): a(f'v_add_f32 v{4*nb+i}, v{64+4*nb+i}, v{ACC(nb,2)+i}')
        else:
            a(f'v_add_u32 v{E0+8}, s{sLB}, v{L16}')
            a(f's_lshl_b32 s59, s{sWAVE}, 12')
            a(f'v_add_u32 v{E0+9}, s59, v{L16}'); a(f'v_add_u32 v{E0+10}, 65536, v{E0+9}'); a(f'v_add_u32 v{E0+11}, 131072, v{E0+9}')
            a.nop(3)
            for tb in range(4):
                for nb in range(4): a(f'ds_write_b128 v{E0+8}, {vr(ACC(nb,tb),4)} offset:{(tb*4+nb)*1024}')
            a('s_waitcnt lgkmcnt(0)'); a('s_barrier')
            for src in range(4):
                for nb in range(4):
                    a(f'ds_read_b128 {vr((src*4+nb)*4,4)}, v{E0+9+max(0,src-1)} offset:{(32768 if src == 1 else 0) + nb*1024}')
            a('s_waitcnt lgkmcnt(8)')
            for i in range(16): a(f'v_add_f32 v{i}, v{i}, v{16+i}')
            a('s_waitcnt lgkmcnt(0)')
            if kid == 3: a('s_barrier')
            for i in range(16): a(f'v_add_f32 v{32+i}, v{32+i}, v{48+i}')
            for i in range(16): a(f'v_add_f32 v{i}, v{i}, v{32+i}')
        sp.stamp()
        EPB = EP['B']
        a('s_waitcnt vmcnt(0)')
        for i in range(0, 16, 2): a(f'v_cvt_pk_bf16_f32 v{16+i//2}, v{i}, v{i+1}')
        for i in range(8): unpack(a, 2*i, 2*i+1, 16+i)
        for i in range(16): a(f'v_mul_f32 v{i}, v{i}, v{EPB+i}')
        for i in range(0, 16, 2): a(f'v_cvt_pk_bf16_f32 v{16+i//2}, v{i}, v{i+1}')
        if kid == 5 and not self.X1MEM:
            for i in range(8): a(f'v_accvgpr_read_b32 v{24+i}, a{X1A+i}')
            EPX = 24
        else: EPX = EP['X']
        for i in range(8): unpack(a, 2*i, 2*i+1, 16+i)
        for i in range(8): unpack(a, 32+2*i, 33+2*i, EPX+i)
        for i in range(16): a(f'v_add_f32 v{i}, v{i}, v{32+i}')
        for i in range(0, 16, 2): a(f'v_cvt_pk_bf16_f32 v{16+i//2}, v{i}, v{i+1}')
        if kid == 5:
            a('s_nop 0')
            for p in range(2):
                for d in range(2): a(f'v_permlane16_swap_b32 v{16+4*p+d}, v{18+4*p+d}')
            for p in range(2): a(f'buffer_store_dwordx4 {vr(16+4*p,4)}, v{E0+7}, s[{SX_}:{SX_+3}], s58 offen offset:{64*p}')
            return
        EPC = EP['C']
        for i in range(8): unpack(a, 2*i, 2*i+1, 16+i)
        for i in range(16): a(f'v_mul_f32 v{32+i}, v{i}, v{EPC+i}')
        for i in range(0, 16, 2): a(f'v_cvt_pk_bf16_f32 v{24+i//2}, v{32+i}, v{33+i}')
        for hh in range(2): a.vmem(f'buffer_store_dwordx4 {vr(24+4*hh,4)}, v{L16}, s[{SO2}:{SO2+3}], s56 offen offset:{1024*hh} {SC}')
        a('v_add_f32 v48, v0, v1'); a('v_mul_f32 v49, v0, v0'); a('v_add_f32 v50, v2, v3'); a('v_mul_f32 v51, v2, v2')
        a('v_fmac_f32 v49, v1, v1'); a('v_fmac_f32 v51, v3, v3')
        for i in range(4, 16, 2):
            a(f'v_add_f32 v48, v48, v{i}'); a(f'v_fmac_f32 v49, v{i}, v{i}'); a(f'v_add_f32 v50, v50, v{i+1}'); a(f'v_fmac_f32 v51, v{i+1}, v{i+1}')
        a('v_add_f32 v48, v48, v50'); a('v_add_f32 v49, v49, v51')
        for sw in ('v_permlane32_swap_b32', 'v_permlane16_swap_b32'):
            a('v_mov_b32 v50, v48'); a('v_mov_b32 v51, v49'); a('s_nop 0'); a(f'{sw} v48, v50'); a(f'{sw} v49, v51'); a('s_nop 0')
            a('v_add_f32 v48, v48, v50'); a('v_add_f32 v49, v49, v51')
        a(f'v_lshlrev_b32 v50, 3, v{E0+5}')
        a(f's_lshl_b32 s57, s{sNT}, 14'); a('s_lshl_b32 s59, s52, 3'); a('s_add_u32 s57, s57, s59')
        self.tlast = a.vmem(f'buffer_store_dwordx2 v[48:49], v50, s[{SO3}:{SO3+3}], s57 offen {SC}')
        for i in range(8): a(f'v_accvgpr_write_b32 a{X1A+i}, v{16+i}')

def uw_phase(a, T):
    if SPF:
        a(f's_sub_u32 s44, s{sIDX}, 28'); a('s_lshl_b32 s44, s44, 2'); a(f's_add_u32 s44, s44, s{sWAVE}'); a('s_mul_i32 s44, s44, 28672')
        srd(a, 16, sWO, 0, 4096*896)
        lane_id(a, 0); a('v_lshlrev_b32 v0, 7, v0')
        for i in range(1, 4): a(f'v_add_u32 v{i}, {8192*i}, v0')
        a('s_and_b32 s45, s2, 7')
        for j in range(8):
            a(f's_mul_i32 s46, s45, {16*28672}'); a('s_add_u32 s46, s46, s44')
            for i in range(4): a(f'buffer_load_dword v{8+i}, v{i}, s[16:19], s46 offen')
            a('s_add_u32 s45, s45, 1'); a('s_and_b32 s45, s45, 7')
            a(f's_waitcnt vmcnt({SPW})')
    a(f's_sub_u32 s13, s{sIDX}, 28'); a('s_lshl_b32 s13, s13, 3'); a('s_and_b32 s12, s2, 7'); a('s_add_u32 s13, s13, s12')
    a('s_cmp_ge_u32 s13, 28'); a(f's_cbranch_scc1 {T}_{"w2" if SP2 else "end"}')
    lane_id(a, 0); a(f's_lshl_b32 s12, s{sWAVE}, 6'); a('v_add_u32 v0, s12, v0')
    if LATE:
        lane_id(a, 1); a('v_lshlrev_b32 v1, 4, v1'); a(f'v_add_u32 v1, {FL_M+448}, v1')
        poll(a, f'{T}_u', 1, 2, 0xffffffff, (1, 3, 56))
    a('v_and_b32 v1, 7, v0'); a('v_lshrrev_b32 v2, 3, v0')
    a('v_mul_u32_u24 v3, 3584, v2'); a('v_lshl_add_u32 v3, v1, 4, v3'); a('v_lshlrev_b32 v4, 2, v2')
    a('s_lshl_b32 s44, s13, 7'); a('s_lshl_b32 s45, s13, 8')
    srd(a, 16, sW1, 0, 448*3584); srd(a, 20, sWS, WS_MOD + 3*1792, 2*1792); srd(a, 24, sWS, WS_U, 0x4000)
    CS, CC, Wr = 8, 24, 40
    for i in range(14):
        a(f'buffer_load_dword v{CS+i}, v4, s[20:23], 0 offen offset:{128*i} {SC}')
        a(f'buffer_load_dword v{CC+i}, v4, s[20:23], 0 offen offset:{1792+128*i} {SC}')
    for i in range(14):
        a(f's_add_u32 s46, s44, {32*3584*i}')
        a(f'buffer_load_dwordx4 {vr(Wr+4*i,4)}, v3, s[16:19], s46 offen')
    AU, AW = 96, 104
    for i in range(14):
        a(f's_waitcnt vmcnt({13-i})')
        for j in range(4):
            unpack(a, 112, 113, Wr+4*i+j)
            op = 'v_mul_f32' if i == 0 else 'v_fmac_f32'
            a(f'{op} v{AU+2*j}, v112, v{CC+i}'); a(f'{op} v{AU+2*j+1}, v113, v{CC+i}')
            a(f'{op} v{AW+2*j}, v112, v{CS+i}'); a(f'{op} v{AW+2*j+1}, v113, v{CS+i}')
    a('v_lshlrev_b32 v5, 8, v2'); a('v_lshl_add_u32 v5, v1, 5, v5')
    a(f'ds_write_b128 v5, {vr(AU,4)}'); a(f'ds_write_b128 v5, {vr(AU+4,4)} offset:16')
    a(f'ds_write_b128 v5, {vr(AW,4)} offset:8192'); a(f'ds_write_b128 v5, {vr(AW+4,4)} offset:8208')
    a('v_and_b32 v6, 63, v0'); a('v_lshlrev_b32 v6, 2, v6'); a('v_bfe_u32 v7, v0, 6, 1'); a('v_lshl_add_u32 v8, v7, 13, v6')
    a('s_waitcnt lgkmcnt(0)'); a('s_barrier')
    for i in range(32): a(f'ds_read_b32 v{40+i}, v8 offset:{256*i}')
    a('s_waitcnt lgkmcnt(0)')
    n = 32
    while n > 1:
        n //= 2
        for i in range(n): a(f'v_add_f32 v{40+i}, v{40+i}, v{40+n+i}')
    a(f'v_mov_b32 v41, {f32(LOG2E)}'); a('v_cmp_eq_u32 vcc, 0, v7'); a('s_nop 1'); a('v_cndmask_b32 v41, v41, 1.0, vcc'); a('v_mul_f32 v40, v40, v41')
    a(f'buffer_store_dword v40, v8, s[24:27], s45 offen {SC}')
    a('s_waitcnt vmcnt(0)'); a('s_barrier')
    a(f's_lshl_b32 s46, s13, 2'); a(f's_add_u32 s46, s46, {FL_U}')
    set_flag(a, f'{T}_u', 46, 1)
    if SP2:
        a.label(f'{T}_w2')
        lane_id(a, 0); a('s_and_b32 s44, s2, 7'); a('s_lshl_b32 s44, s44, 8'); a(f's_add_u32 s44, s44, {FL_B}')
        a('v_lshlrev_b32 v1, 2, v0'); a('v_add_u32 v1, s44, v1')
        poll(a, f'{T}_v', 1, 2, 0x3fff)
        srd(a, 16, sW2, 0, 1792*896)
        a(f's_sub_u32 s44, s{sIDX}, 28'); a('s_lshl_b32 s44, s44, 2'); a(f's_add_u32 s44, s44, s{sWAVE}'); a('s_lshl_b32 s44, s44, 13')
        a('v_lshlrev_b32 v0, 7, v0')
        for i in range(13):
            a(f'buffer_load_dword v{8+(i&3)}, v0, s[16:19], s44 offen'); a(f's_add_u32 s44, s44, {16*8192}')

class Mlp1:
    NS = 14
    ACC = staticmethod(lambda fb, tb: (fb*2+tb)*4)
    BF = staticmethod(lambda ks, tb: 64 + (ks*2+tb)*4)
    U_ = staticmethod(lambda fb: 176 + 4*fb)
    W_ = staticmethod(lambda fb: 208 + 4*fb)
    RA = staticmethod(lambda i: 240 + i)
    WV = staticmethod(lambda m: 248 + m)
    BV = staticmethod(lambda tb: 250 + tb)
    E0 = 252
    AF = staticmethod(lambda fb: 4*fb)
    ST = staticmethod(lambda tb, nt: 32 + (tb*7+nt)*2)
    SW, SY, SU, SS, SH = 24, 28, 16, 20, 36
    sTB4, sFT = 76, 77
    V2 = False
    NPART = 7
    def __init__(self, a): self.a = a
    def w_issue(self):
        a = self.a; WV = self.WV
        l, t0, t1, t2 = 244, 245, 246, 247
        a(f's_cmp_ge_u32 s{sIDX}, 14'); a(f's_cselect_b32 s{self.sTB4}, 1, 0'); a(f's_mul_i32 s{self.sFT}, s{self.sTB4}, 14'); a(f's_sub_u32 s{self.sFT}, s{sIDX}, s{self.sFT}')
        a('s_and_b32 s44, s2, 7'); a('s_lshl_b32 s44, s44, 1'); a(f's_add_u32 s{self.sTB4}, s{self.sTB4}, s44')
        lane_id(a, l)
        a(f'v_and_b32 v{t2}, 15, v{l}')
        a(f's_mul_i32 s45, s{sWAVE}, {8*3584}')
        for m in range(2):
            a(f'v_lshrrev_b32 v{t0}, 4, v{l}')
            if m: a(f'v_add_u32 v{t0}, 4, v{t0}')
            a(f'v_lshlrev_b32 v{t1}, 1, v{t0}'); a(f'v_xor_b32 v{t1}, v{t1}, v{t2}'); a(f'v_lshlrev_b32 v{t1}, 4, v{t1}')
            a(f'v_mul_u32_u24 v{t0}, 3584, v{t0}'); a(f'v_add3_u32 v{WV(m)}, v{t0}, v{t1}, s45')
            if m: a(f'v_subrev_u32 v{WV(m)}, 1024, v{WV(m)}')
        a(f's_lshl_b32 s46, s{self.sFT}, 8'); a(f's_lshl_b32 s48, s{sWAVE}, 11')
        srd(a, self.SW, sW1, 0, 0, 46); a(f's_sub_u32 s{self.SW+2}, {448*3584}, s46')
        self.w_more(0, 2*NPRE)
    def w_more(self, k0, k1):
        a = self.a; WV = self.WV
        for ks in range(k0, k1):
            a(f's_add_u32 m0, s48, {ks*8192}'); a(f's_mov_b32 s50, {ks*32*3584}')
            for m in range(2): a.vmem(f'buffer_load_dwordx4 v{WV(m)}, s[{self.SW}:{self.SW+3}], s50 offen offset:{1024*m} lds')
    def setup(self):
        a = self.a; RA = self.RA; BV = self.BV; E0 = self.E0
        L, t0, t1, t2 = 1, 2, 3, 4
        lane_id(a, L)
        a(f'v_bfe_u32 v{t0}, v{L}, 2, 4'); a(f'v_and_b32 v{t1}, 7, v{t0}'); a(f'v_lshlrev_b32 v{t0}, 8, v{t0}')
        a(f'v_and_b32 v{t2}, 3, v{L}'); a(f'v_lshl_add_u32 v{t0}, v{t2}, 3, v{t0}')
        for i in range(8):
            a(f'v_xor_b32 v{t2}, {i}, v{t1}'); a(f'v_lshl_add_u32 v{RA(i)}, v{t2}, 5, v{t0}')
        a(f's_mul_i32 s44, s{sWAVE}, {2*14336}'); a(f'v_lshlrev_b32 v{t0}, 4, v{L}')
        a(f'v_add_u32 v{BV(0)}, s44, v{t0}'); a(f'v_add_u32 v{BV(1)}, 14336, v{BV(0)}')
        a(f'v_lshrrev_b32 v{t1}, 4, v{L}'); a(f'v_lshlrev_b32 v{E0}, 4, v{t1}')
        a(f's_lshl_b32 s44, s{sWAVE}, 8'); a(f'v_and_b32 v{t2}, 15, v{L}'); a(f'v_lshlrev_b32 v{t2}, 3, v{t2}'); a(f'v_add_u32 v{E0+1}, s44, v{t2}')
        a(f's_mul_i32 s44, s{sWAVE}, {2*56*1024}'); a(f'v_add_u32 v{E0+2}, s44, v{t0}'); a(f'v_add_u32 v{E0+3}, {56*1024}, v{E0+2}')
        a(f's_mul_i32 s45, s{self.sTB4}, {8*14336}')
        srd(a, self.SY, sWS, WS_Y, 8*14336, 45)
        srd(a, self.SU, sWS, WS_U, 0x4000); srd(a, self.SS, sWS, WS_STAT, 8*2048*8)
        a(f's_mul_i32 s52, s{self.sTB4}, {8*56*1024}'); a(f's_lshl_b32 s53, s{self.sFT}, 12'); a('s_add_u32 s52, s52, s53')
        srd(a, self.SH, sWS, WS_H, 0, 52); a(f's_sub_u32 s{self.SH+2}, {128*56*1024}, s52')
        a(f's_lshl_b32 s44, s{self.sFT}, 9'); a('s_add_u32 s45, s44, 0x2000'); a(f's_lshl_b32 s56, s{self.sTB4}, 10')
        a(f's_lshl_b32 s46, s{self.sTB4}, 7'); a(f's_add_u32 s46, s46, {FL_B}')
        if self.V2:
            a(f'v_lshlrev_b32 v{t0}, 2, v{L}'); a(f'v_add_u32 v{t0}, s46, v{t0}')
            return t0
        a(f's_lshl_b32 s47, s{self.sFT}, 3'); a(f's_add_u32 s47, s47, {FL_U - 56}')
        a(f'v_mov_b32 v{t0}, s46'); a(f'v_mov_b32 v{t1}, s47'); a(f'v_cmp_gt_u32 vcc, 14, v{L}'); a('s_nop 1')
        a(f'v_cndmask_b32 v{t0}, v{t1}, v{t0}, vcc'); a(f'v_lshl_add_u32 v{t0}, v{L}, 2, v{t0}')
        return t0
    def main(self, sp, w2pre):
        a = self.a; NS = self.NS
        ACC, BF, U_, W_, RA, BV, E0, AF, ST = self.ACC, self.BF, self.U_, self.W_, self.RA, self.BV, self.E0, self.AF, self.ST
        tk = {}
        LA = 5
        def ld(ks, m):
            if m == 0: a(f's_mov_b32 s51, {ks*1024}')
            tk[ks] = a.vmem(f'buffer_load_dwordx4 {vr(BF(ks,m),4)}, v{BV(m)}, s[{self.SY}:{self.SY+3}], s51 offen {SC}')
        def aread(ks, fb, h): return f'ds_read_b64_tr_b16 {ar(AF(fb)+2*h,2)}, v{RA(fb)} offset:{(ks % 8)*8192 + h*4096}'
        for ks in range(LA):
            for m in range(2): ld(ks, m)
        if not self.V2 and not getattr(self, 'nobar', False): a('s_barrier')
        for fb in range(8):
            for h in range(2): a(aread(0, fb, h))
        extra = []
        for nt in range(self.NPART):
            for tb in range(2):
                def f(nt=nt, tb=tb):
                    a(f's_add_u32 s57, s56, {nt*16384 + tb*128}')
                    a.vmem(f'buffer_load_dwordx2 {ar(ST(tb,nt),2)}, v{E0+1}, s[{self.SS}:{self.SS+3}], s57 offen {SC}')
                extra.append(f)
        for fb in range(0 if self.V2 else 8):
            extra.append(lambda fb=fb: a.vmem(f'buffer_load_dwordx4 {vr(U_(fb),4)}, v{E0}, s[{self.SU}:{self.SU+3}], s44 offen offset:{64*fb} {SC}'))
            extra.append(lambda fb=fb: a.vmem(f'buffer_load_dwordx4 {vr(W_(fb),4)}, v{E0}, s[{self.SU}:{self.SU+3}], s45 offen offset:{64*fb} {SC}'))
        a.wait_vm(tk[0], ' lgkmcnt(0)')
        for ks in range(NS):
            G_ = [[] for _ in range(16)]
            if ks >= 1:
                G_[0].append(aread(ks, 7, 0)); G_[1].append(aread(ks, 7, 1))
            G_[5].insert(0, 's_waitcnt lgkmcnt(4)'); G_[13].insert(0, 's_waitcnt lgkmcnt(4)')
            if ks + 1 < NS:
                G_[15].append(lambda ks=ks: a.wait_vm(tk[ks+1]))
                if ks + 1 == 8:
                    for i in range(7): G_[1].append(f'v_add_u32 v{RA(i)}, 65536, v{RA(i)}')
                for k in range(14): G_[k+2].append(aread(ks+1, k >> 1, k & 1))
            if ks == 7: G_[15].append(f'v_add_u32 v{RA(7)}, 65536, v{RA(7)}')
            slots = [3, 7, 11, 14]
            if ks + LA < NS:
                for m in range(2): G_[slots.pop(0)].append(lambda ks=ks, m=m: ld(ks + LA, m))
            for k in slots:
                if extra: G_[k].append(extra.pop(0))
            for fb in range(8):
                for tb in range(2):
                    k = fb*2 + tb
                    c = vr(ACC(fb, tb), 4)
                    a(f'{M16} {c}, {ar(AF(fb),4)}, {vr(BF(ks,tb),4)}, {c if ks else 0}')
                    for x in G_[k]: x() if callable(x) else a(x)
        assert not extra
        sp.stamp()
        a('s_waitcnt vmcnt(0)'); a('s_barrier')
        B0 = 64
        MEAN = lambda tb: B0 + 32 + tb
        RS = lambda tb: B0 + 34 + tb
        pre = list(w2pre)
        def fill(n=1):
            for _ in range(n):
                if pre: pre.pop(0)()
        NP = self.NPART
        if self.V2:
            for fb in range(8):
                a(f'ds_read_b128 {vr(U_(fb),4)}, v{E0} offset:{64*fb}'); a(f'ds_read_b128 {vr(W_(fb),4)}, v{E0} offset:{512+64*fb}')
        fill(1)
        for tb in range(2):
            for i in range(2*NP): a(f'v_accvgpr_read_b32 v{B0+tb*16+i}, a{ST(tb,0)+i}')
        fill(2)
        for tb in range(2):
            b = B0 + tb*16
            for nt in range(1, NP):
                a(f'v_add_f32 v{b}, v{b}, v{b+2*nt}'); a(f'v_add_f32 v{b+1}, v{b+1}, v{b+2*nt+1}')
        fill(1)
        for tb in range(2):
            b = B0 + tb*16
            a(f'v_mul_f32 v{b}, {f32(1/448)}, v{b}'); a(f'v_mul_f32 v{b+1}, {f32(1/448)}, v{b+1}')
            a(f'v_fma_f32 v{b+1}, -v{b}, v{b}, v{b+1}'); a(f'v_max_f32 v{b+1}, 0, v{b+1}')
            rbf(a, b+1, b+1); a(f'v_add_f32 v{b+1}, {f32(1e-5)}, v{b+1}'); rbf(a, b+1, b+1)
            a(f'v_sqrt_f32 v{b+1}, v{b+1}'); rbf(a, MEAN(tb), b)
            rbf(a, b+1, b+1); a(f'v_rcp_f32 v{RS(tb)}, v{b+1}')
            a(f'v_sub_f32 v{MEAN(tb)}, 0, v{MEAN(tb)}')
            fill(1)
        TT = B0 + 40; LP = B0 + 38
        a(f'v_mov_b32 v{LP}, {f32(LOG2E)}')
        if self.V2: a('s_waitcnt lgkmcnt(0)')
        for tb in range(2): a(f'v_mul_f32 v{RS(tb)}, {f32(LOG2E)}, v{RS(tb)}')
        if not EPI:
            for sq in range(4):
                for tb in range(2):
                    rg = [(ACC(2*sq+e, tb)+r, U_(2*sq+e)+r, W_(2*sq+e)+r) for e in range(2) for r in range(4)]
                    tm = [TT + ((sq*2+tb) % 2)*8 + i for i in range(8)]
                    for (x, u, w) in rg: a(f'v_fma_f32 v{x}, v{MEAN(tb)}, v{u}, v{x}')
                    if E4F > 0: fill()
                    for (x, u, w) in rg: a(f'v_fma_f32 v{x}, v{RS(tb)}, v{x}, v{w}')
                    for (x, u, w), t in zip(rg, tm): a(f'v_exp_f32 v{t}, -v{x}')
                    if E4F > 1: fill()
                    for t in tm: a(f'v_fma_f32 v{t}, v{t}, v{LP}, v{LP}')
                    for t in tm: a(f'v_rcp_f32 v{t}, v{t}')
                    if E4F > 2: fill()
                    for (x, u, w), t in zip(rg, tm): a(f'v_mul_f32 v{x}, v{x}, v{t}')
                    d = ACC(2*sq, tb); xs = [r[0] for r in rg]
                    for i in range(4): a(f'v_cvt_pk_bf16_f32 v{d+i}, v{xs[2*i]}, v{xs[2*i+1]}')
                    self.tlast = a.vmem(f'buffer_store_dwordx4 {vr(d,4)}, v{E0+2+tb}, s[{self.SH}:{self.SH+3}], 0 offen offset:{1024*sq} {SC}')
        else:
            grp = [(sq, tb) for sq in range(4) for tb in range(2)]
            def st(gi):
                sq, tb = grp[gi]
                rg = [(ACC(2*sq+e, tb)+r, U_(2*sq+e)+r, W_(2*sq+e)+r) for e in range(2) for r in range(4)]
                tm = [TT + (gi % 3)*8 + i for i in range(8)]
                A = [f'v_fma_f32 v{x}, v{MEAN(tb)}, v{u}, v{x}' for (x, u, w) in rg] + [f'v_fma_f32 v{x}, v{RS(tb)}, v{x}, v{w}' for (x, u, w) in rg]
                B = [f'v_exp_f32 v{t}, -v{x}' for (x, u, w), t in zip(rg, tm)]
                C = [f'v_fma_f32 v{t}, v{t}, v{LP}, v{LP}' for t in tm]
                Dd = [f'v_rcp_f32 v{t}, v{t}' for t in tm]
                d = ACC(2*sq, tb); xs = [r[0] for r in rg]
                E = [f'v_mul_f32 v{x}, v{x}, v{t}' for (x, u, w), t in zip(rg, tm)] + [f'v_cvt_pk_bf16_f32 v{d+i}, v{xs[2*i]}, v{xs[2*i+1]}' for i in range(4)]
                S = f'buffer_store_dwordx4 {vr(d,4)}, v{E0+2+tb}, s[{self.SH}:{self.SH+3}], 0 offen offset:{1024*sq} {SC}'
                return A, B, C, Dd, E, S
            G = [st(i) for i in range(8)]
            for x in G[0][0]: a(x)
            for ph in range(10):
                T1_ = G[ph][1] if ph < 8 else []
                T2_ = G[ph-1][3] if 1 <= ph < 9 else []
                V1 = (G[ph-1][2] if 1 <= ph < 9 else []) + (G[ph-2][4] if 2 <= ph else [])
                V2 = (G[ph+1][0] if ph + 1 < 8 else [])
                for Ts, Vs in ((T1_, V1), (T2_, V2)):
                    Ts = list(Ts); Vs = list(Vs); n = max(len(Ts), 1); k = 0
                    per = -(-len(Vs) // n)
                    while Ts or Vs:
                        if Ts: a(Ts.pop(0))
                        for _ in range(per):
                            if Vs: a(Vs.pop(0))
                    if Vs is not None and Ts is not None and (Ts, Vs) == ([], []) and Vs is not V2: pass
                if ph >= 2:
                    self.tlast = a.vmem(G[ph-2][5])
                if E4F > 0: fill()
                if E4F > 1: fill()
        self.rest = pre

def post(a, T):
    sp = Stamper(a, 80, 3); sp.stamp(True); sp.stamp()
    g3 = a.g3
    if g3.dyn and EARLY:
        a('s_lshr_b32 s45, s49, 3'); a('s_lshl_b32 s43, 1, s45')
        a(f's_mov_b32 s{sT[1]}, 0x8000')
        a.label(f'{T}_a_pl')
        a(f'v_cmp_eq_u32 vcc, s{sNON}, v137'); a('s_nop 1'); a('s_bcnt1_i32_b64 s46, vcc')
        a(f'v_cmp_eq_u32 vcc, s{sNON}, v{T1}'); a('s_nop 1')
        g3.ready_mask()
        a('s_cmp_ge_u32 s46, 56'); a(f's_cselect_b32 s73, s{sROT}, 0'); a('s_and_b32 s73, s73, s43'); a(f's_cbranch_scc1 {T}_a_pd')
        a(f's_sleep {PSL}')
        a(f'buffer_load_dword v{T1}, v{T0}, s[{SF_}:{SF_+3}], 0 offen {SC}')
        a(f'buffer_load_dword v137, v136, s[{SF_}:{SF_+3}], 0 offen {SC}')
        a('s_waitcnt vmcnt(0)')
        a(f's_sub_u32 s{sT[1]}, s{sT[1]}, 1'); a(f's_cmp_lg_u32 s{sT[1]}, 0'); a(f's_cbranch_scc1 {T}_a_pl')
        a.label(f'{T}_a_pd')
    elif True:
        for ks in range(NPRE, g3.nw0):
            for f in g3.w_pre(ks): f()
        g3.b_setup()
        a(f's_lshr_b32 s44, s{sTB}, 1'); a('s_lshl_b32 s44, s44, 7'); a(f'v_lshlrev_b32 v{T0}, 2, v{LANE}'); a(f'v_add_u32 v{T0}, s44, v{T0}')
        a(f'v_add_u32 v0, {FL_M+448}, v{L16}')
    if g3.dyn and EARLY: pass
    elif g3.dyn:
        a('s_and_b32 s45, s2, 7'); a('s_lshl_b32 s45, s45, 1'); a('s_lshl_b32 s43, 1, s45')
        a(f's_mov_b32 s{sT[1]}, 0x8000')
        a.label(f'{T}_a_pl')
        a(f'buffer_load_dword v{T1}, v{T0}, s[{SF_}:{SF_+3}], 0 offen {SC}')
        a(f'buffer_load_dword v1, v0, s[{SF_}:{SF_+3}], 0 offen {SC}')
        a('s_waitcnt vmcnt(0)')
        a(f'v_cmp_eq_u32 vcc, s{sNON}, v1'); a('s_nop 1'); a('s_bcnt1_i32_b64 s46, vcc')
        a(f'v_cmp_eq_u32 vcc, s{sNON}, v{T1}'); a('s_nop 1')
        g3.ready_mask()
        a('s_cmp_ge_u32 s46, 56'); a(f's_cselect_b32 s73, s{sROT}, 0'); a('s_and_b32 s73, s73, s43'); a(f's_cbranch_scc1 {T}_a_pd')
        a(f's_sleep {PSL}')
        a(f's_sub_u32 s{sT[1]}, s{sT[1]}, 1'); a(f's_cmp_lg_u32 s{sT[1]}, 0'); a(f's_cbranch_scc1 {T}_a_pl')
        a.label(f'{T}_a_pd')
        a.vm = 0
    else:
        poll(a, f'{T}_a', T0, T1, 0xffff, (0, 1, 56) if LATE else None)
    sp.stamp()
    g3.main(sp)
    m = Mlp1(a)
    m.w_issue()
    a.wait_vm(g3.tlast); a('s_barrier')
    a(f's_lshr_b32 s44, s{sTB}, 1'); a('s_lshl_b32 s44, s44, 7'); a(f's_and_b32 s45, s{sTB}, 1'); a('s_mul_i32 s45, s45, 7'); a(f's_add_u32 s45, s45, s{sNT}')
    a('s_lshl_b32 s45, s45, 2'); a('s_add_u32 s44, s44, s45'); a(f's_add_u32 s44, s44, {FL_B}')
    set_flag(a, f'{T}_b', 44, 8)
    sp.stamp(); sp.stamp(True); sp.dump(sWS, sWAVE, 8)
    sp = Stamper(a, 80, 4); sp.stamp(True); sp.stamp()
    m.w_more(2*NPRE, 14)
    pa = m.setup()
    poll(a, f'{T}_b', pa, pa + 1, 0xffff, one=bool(PW0))
    m.nobar = bool(PW0)
    sp.stamp()
    g5 = Gemm(a, 5)
    pre = [g5.w_setup]
    for ks in range(PF): pre += g5.w_pre(ks)
    m.main(sp, pre)
    sp.stamp()
    a.wait_vm(m.tlast); a('s_barrier')
    a(f's_lshl_b32 s44, s{m.sTB4}, 7'); a(f's_lshl_b32 s45, s{m.sFT}, 2'); a('s_add_u32 s44, s44, s45'); a(f's_add_u32 s44, s44, {FL_C}')
    set_flag(a, f'{T}_c', 44, 8)
    sp.stamp(); sp.stamp(True); sp.dump(sWS, sWAVE, 8)
    sp = Stamper(a, 80, 5); sp.stamp(True); sp.stamp()
    for f in m.rest: f()
    g5.b_setup()
    a(f's_lshr_b32 s44, s{sTB}, 1'); a('s_lshl_b32 s44, s44, 7'); a(f's_add_u32 s44, s44, {FL_C}'); a(f'v_lshlrev_b32 v{T0}, 2, v{LANE}'); a(f'v_add_u32 v{T0}, s44, v{T0}')
    poll(a, f'{T}_c', T0, T1, 0x3fff, one=bool(PW0))
    sp.stamp()
    g5.main(sp)
    sp.stamp()
    if STAMP: a('s_waitcnt vmcnt(0)')
    sp.stamp(True); sp.dump(sWS, sWAVE, 60)
```

```python
from gen_common import *
M16 = 'v_mfma_f32_16x16x32_bf16'
FL_A, FL_B, FL_C, FL_U = 0, 2048, 4096, 6144
SC = 'sc1'
sX, sOUT, sW2, sWO, sW1, sWS, sWAVE = 64, 66, 54, 60, 62, 10, 14
sIDX, sTB, sNT, sLB, sROT = 68, 69, 70, 71, 72
sT = [73, 74, 75]
SW_, SA_, SF_ = 24, 28, 32
SX_, SM_, SO2, SO3 = 16, 20, 36, 40
ACC = lambda nb, tb: (nb*4+tb)*4
AF = lambda buf, nb: 64 + buf*16 + nb*4
BSL = [96, 112, 128, 160, 176, 192, 208, 224]
BF = lambda slot, tb: BSL[slot] + tb*4
WV = lambda m: 144 + m
RA = lambda nb: 148 + nb
BV = lambda tb: 152 + tb
LANE, GG, T0, T1 = 156, 157, 158, 159
E0 = 240
L16 = 243
X1A = 120
D = 8; PF = 7
E4F = int(os.environ.get('E4F', 2))
IROT = int(os.environ.get('IROT', 1))
EARLY = int(os.environ.get('EARLY', 0))
SPF = int(os.environ.get('SPF', 0)); SPW = int(os.environ.get('SPW', 0))
SP2 = int(os.environ.get('SP2', 0))
PW0 = int(os.environ.get('PW0', 1))
RED3 = int(os.environ.get('RED3', 1))
EPI = int(os.environ.get('EPI', 0))
DYN = int(os.environ.get('DYN', 1))
LATE = int(os.environ.get('LATE', 1))
PSL = int(os.environ.get('PSL', 2))
FL_M = 8192
NPRE = int(os.environ.get('NPRE', 2))
BSC = os.environ.get('BSC', SC)

def xlane(a, op, r, t):
    for sw in ('v_permlane32_swap_b32', 'v_permlane16_swap_b32'):
        a(f'v_mov_b32 v{t}, v{r}'); a('s_nop 1'); a(f'{sw} v{r}, v{t}'); a('s_nop 1')
        a(f'{op} v{r}, v{r}, v{t}')
def lane_id(a, r):
    a(f'v_mbcnt_lo_u32_b32 v{r}, -1, 0'); a(f'v_mbcnt_hi_u32_b32 v{r}, -1, v{r}')

def roles(a):
    a(f's_and_b32 s{sT[0]}, s2, 7'); a(f's_lshr_b32 s{sIDX}, s2, 3')
    a(f's_mul_i32 s{sTB}, s{sIDX}, 37'); a(f's_lshr_b32 s{sTB}, s{sTB}, 8')
    a(f's_mul_i32 s{sNT}, s{sTB}, 7'); a(f's_sub_u32 s{sNT}, s{sIDX}, s{sNT}')
    a(f's_lshl_b32 s{sT[1]}, s{sT[0]}, 2'); a(f's_add_u32 s{sTB}, s{sTB}, s{sT[1]}')
def roles2(a):
    a(f's_lshl_b32 s{sLB}, s{sWAVE}, 15'); a(f's_cmp_eq_u32 s{sWAVE}, 3'); a(f's_cselect_b32 s{sLB}, 0x20000, s{sLB}')

NONCE = int(os.environ.get('NONCE', 1))
sNON = 75
def flag_srd(a): srd(a, SF_, sWS, WS_FLAG, 16384)
def set_flag(a, tag, offreg, vt):
    a(f's_cmp_lg_u32 s{sWAVE}, 0'); a(f's_cbranch_scc1 {tag}_nf')
    a(f'v_mov_b32 v{vt}, 0'); a(f'v_mov_b32 v{vt+1}, ' + (f's{sNON}' if NONCE else '1'))
    a(f's_mov_b64 exec, 1')
    a(f'buffer_store_dword v{vt+1}, v{vt}, s[{SF_}:{SF_+3}], s{offreg} offen {SC}')
    a(f's_mov_b64 exec, -1')
    a.label(f'{tag}_nf')
def poll(a, tag, vaddr, vt, mask, extra=None, one=False):
    a(f's_mov_b32 s{sT[1]}, 0x8000')
    if one: a(f's_cmp_lg_u32 s{sWAVE}, {PW0-1}'); a(f's_cbranch_scc1 {tag}_pd')
    a.label(f'{tag}_pl')
    a(f'buffer_load_dword v{vt}, v{vaddr}, s[{SF_}:{SF_+3}], 0 offen {SC}')
    if extra: a(f'buffer_load_dword v{extra[1]}, v{extra[0]}, s[{SF_}:{SF_+3}], 0 offen {SC}')
    a('s_waitcnt vmcnt(0)')
    a(f'v_cmp_eq_u32 vcc, s{sNON}, v{vt}' if NONCE else f'v_cmp_ne_u32 vcc, 0, v{vt}')
    a('s_nop 1')
    a(f's_and_b32 s{sT[0]}, vcc_lo, {hex(mask)}')
    if extra:
        a(f'v_cmp_eq_u32 vcc, s{sNON}, v{extra[1]}'); a('s_nop 1'); a('s_bcnt1_i32_b64 s46, vcc')
        a(f's_cmp_ge_u32 s46, {extra[2]}'); a(f's_cselect_b32 s{sT[0]}, s{sT[0]}, 0')
    a(f's_cmp_eq_u32 s{sT[0]}, {hex(mask)}'); a(f's_cbranch_scc1 {tag}_pd')
    a(f's_sleep {PSL}')
    a(f's_sub_u32 s{sT[1]}, s{sT[1]}, 1'); a(f's_cmp_lg_u32 s{sT[1]}, 0'); a(f's_cbranch_scc1 {tag}_pl')
    a.label(f'{tag}_pd')
    if one: a('s_waitcnt vmcnt(0)'); a('s_barrier')
    a.vm = 0

class Gemm:
    X1MEM = False
    def __init__(self, a, kid):
        self.a = a; self.kid = kid
        self.KS = 32 if kid == 3 else 14
        self.tB = {}; self.tW = {}
    def w_setup(self):
        a = self.a; KS = self.KS
        l, t0, t1 = RA(0), RA(1), RA(2)
        lane_id(a, l)
        a(f'v_bfe_u32 v{t0}, v{l}, 4, 2'); a(f'v_lshlrev_b32 v{t0}, 1, v{t0}'); a(f'v_and_b32 v{t1}, 7, v{l}'); a(f'v_xor_b32 v{t0}, v{t0}, v{t1}')
        a(f'v_lshlrev_b32 v{t0}, 4, v{t0}')
        a(f'v_lshrrev_b32 v{t1}, 3, v{l}'); a(f'v_mul_u32_u24 v{t1}, 896, v{t1}'); a(f'v_add_u32 v{WV(0)}, v{t0}, v{t1}')
        for m in range(1, 4): a(f'v_add_u32 v{WV(m)}, {6144*m}, v{WV(0)}')
        self.dyn = DYN and self.kid == 3
        self.nw0 = NPRE if (self.dyn and EARLY) else 4 if (self.dyn and DYN != 1) else PF
        a(f's_mul_i32 s{sT[0]}, s{sWAVE}, {(4 if self.dyn else KS)*32*896}'); a(f's_lshl_b32 s{sT[1]}, s{sNT}, 7'); a(f's_add_u32 s{sT[0]}, s{sT[0]}, s{sT[1]}')
        srd(a, SW_, sWO if self.kid == 3 else sW2, 0, 0, sT[0]); a(f's_sub_u32 s{SW_+2}, {4*KS*32*896}, s{sT[0]}')
        RM = int(os.environ.get('RM', 0))
        if RM == 0:
            a(f's_and_b32 s{sROT}, s2, 7'); a(f's_mul_i32 s{sROT}, s{sROT}, {KS}'); a(f's_lshr_b32 s{sROT}, s{sROT}, 3')
        elif RM == 1:
            a(f's_and_b32 s{sROT}, s{sTB}, 3'); a(f's_lshl_b32 s{sT[0]}, s{sNT}, 2'); a(f's_add_u32 s{sROT}, s{sROT}, s{sT[0]}')
            a(f's_mul_i32 s{sROT}, s{sROT}, {KS*2341}'); a(f's_lshr_b32 s{sROT}, s{sROT}, 16')
        else:
            a(f's_mul_i32 s{sROT}, s{sNT}, {KS*9363}'); a(f's_lshr_b32 s{sROT}, s{sROT}, 16')
        a(f's_mov_b32 s49, s{sROT}')
        if self.dyn:
            if EARLY: a('s_add_u32 s49, s2, 1'); a('s_and_b32 s49, s49, 7'); a('s_lshl_b32 s49, s49, 4')
            else: a('s_and_b32 s49, s2, 7'); a('s_lshl_b32 s49, s49, 4')
            if IROT == 1: a(f's_add_u32 s48, s{sNT}, s{sTB}')
            if IROT == 2: a(f's_mov_b32 s48, s{sNT}')
            if IROT == 3: a(f's_mov_b32 s48, s{sTB}')
    def adv(self, reg):
        a = self.a
        a(f's_add_u32 s{reg}, s{reg}, 1'); a(f's_cmp_eq_u32 s{reg}, {self.KS}'); a(f's_cselect_b32 s{reg}, 0, s{reg}')
    def w_pre(self, ks):
        a = self.a
        def su():
            if self.dyn and DYN == 1 and 4 <= ks < self.nw0:
                a('s_add_u32 s51, s49, 16'); a('s_and_b32 s51, s51, 127')
                a(f's_add_u32 m0, s{sLB}, {(ks % D)*4096}'); self.sub('s51', ks); a(f's_mul_i32 s50, s51, {32*896}')
                return
            if self.dyn:
                if ks and ks % 4 == 0: self.pick(ks // 4)
                a(f's_add_u32 m0, s{sLB}, {(ks % D)*4096}'); self.sub('s49', ks); a(f's_mul_i32 s50, s51, {32*896}'); a('s_lshl_b32 s51, s51, 10')
                return
            if ks: self.adv(49)
            a(f's_add_u32 m0, s{sLB}, {(ks % D)*4096}'); a(f's_mul_i32 s50, s49, {32*896}')
        def d(m):
            def f(): self.tW[ks] = a.vmem(f'buffer_load_dwordx4 v{WV(m)}, s[{SW_}:{SW_+3}], s50 offen offset:{1024*m} lds')
            return f
        return [su] + [d(m) for m in range(4)]
    def sub(self, base, ks):
        a = self.a
        if IROT:
            a(f's_add_u32 s73, s48, {ks % 4}'); a('s_and_b32 s73, s73, 3'); a(f's_add_u32 s51, {base}, s73')
        else: a(f's_add_u32 s51, {base}, {ks % 4}')
    def ready_mask(self):
        a = self.a
        a('s_lshr_b32 s73, vcc_lo, 1'); a('s_and_b32 s73, s73, vcc_lo'); a(f's_and_b32 s{sROT}, s73, 0x5555')
    def pick(self, j):
        a = self.a; T = f'K2_d{j}'
        if DYN == 1:
            a('s_add_u32 s49, s49, 16'); a('s_and_b32 s49, s49, 127'); a('s_lshr_b32 s73, s49, 3'); a('s_lshl_b32 s43, 1, s73')
            test = f's_and_b32 s73, s{sROT}, s43'
        else:
            test = f's_andn2_b32 s73, s{sROT}, s43'
        SMP = E0 + 12 + (j & 1)
        if EARLY and j >= 3:
            a(f'v_cmp_eq_u32 vcc, s{sNON}, v{SMP}'); a('s_nop 1')
            a('s_lshr_b32 s73, vcc_lo, 1'); a('s_and_b32 s73, s73, vcc_lo'); a('s_and_b32 s73, s73, 0x5555'); a(f's_or_b32 s{sROT}, s{sROT}, s73')
        if EARLY and j <= 5: a.vmem(f'buffer_load_dword v{SMP}, v{T0}, s[{SF_}:{SF_+3}], 0 offen {SC}')
        a(f's_mov_b32 s{sT[1]}, 0x8000')
        a.label(f'{T}_l')
        a(test); a(f's_cbranch_scc1 {T}_g')
        a(f'buffer_load_dword v{T1}, v{T0}, s[{SF_}:{SF_+3}], 0 offen {SC}')
        a('s_waitcnt vmcnt(0)')
        a(f'v_cmp_eq_u32 vcc, s{sNON}, v{T1}'); a('s_nop 1')
        self.ready_mask()
        a(test); a(f's_cbranch_scc1 {T}_g')
        a('s_sleep 4')
        a(f's_sub_u32 s{sT[1]}, s{sT[1]}, 1'); a(f's_cmp_lg_u32 s{sT[1]}, 0'); a(f's_cbranch_scc1 {T}_l')
        a(f's_mov_b32 s{sROT}, 0x5555'); a(f's_branch {T}_l')
        a.label(f'{T}_g')
        if DYN != 1: a('s_ff1_i32_b32 s73, s73'); a('s_bitset1_b32 s43, s73'); a('s_lshl_b32 s49, s73, 3')
    def b_setup(self):
        a = self.a; KS = self.KS; NKS = 4*KS; TE = 136
        lane_id(a, LANE)
        a(f'v_bfe_u32 v{GG}, v{LANE}, 4, 2')
        a(f'v_lshlrev_b32 v{BV(0)}, 4, v{LANE}')
        if RED3:
            a(f'v_mov_b32 v{L16}, v{BV(0)}')
            for tb in range(4):
                a(f's_add_u32 s73, s{sWAVE}, {tb}'); a('s_and_b32 s73, s73, 3'); a(f's_mul_i32 s73, s73, {NKS*1024}'); a(f'v_add_u32 v{BV(tb)}, s73, v{L16}')
        else:
            a(f'v_mov_b32 v{L16}, v{BV(0)}')
            for tb in range(1, 4): a(f'v_add_u32 v{BV(tb)}, {tb*NKS*1024}, v{BV(0)}')
        a(f's_mul_i32 s73, s{sTB}, {4*NKS*1024}'); a(f's_mul_i32 s74, s{sWAVE}, {(4 if self.dyn else KS)*1024}'); a('s_add_u32 s73, s73, s74')
        srd(a, SA_, sWS, WS_O if self.kid == 3 else WS_H, 0, 73); a(f's_sub_u32 s{SA_+2}, {128*NKS*1024}, s73')
        a(f'v_bfe_u32 v{T0}, v{LANE}, 2, 4'); a(f'v_bfe_u32 v{T1}, v{T0}, 1, 2')
        a(f'v_lshlrev_b32 v{T0}, 7, v{T0}'); a(f'v_and_b32 v{TE}, 3, v{LANE}'); a(f'v_lshl_add_u32 v{T0}, v{TE}, 3, v{T0}'); a(f'v_add_u32 v{T0}, s{sLB}, v{T0}')
        for nb in range(4):
            a(f'v_xor_b32 v{TE}, {nb}, v{T1}'); a(f'v_lshl_add_u32 v{RA(nb)}, v{TE}, 5, v{T0}')
        if not self.dyn: a(f's_mov_b32 s48, s{sROT}')
    def early(self):
        a = self.a
        self.w_setup(); self.b_setup()
        a(f's_lshr_b32 s73, s{sTB}, 1'); a('s_lshl_b32 s73, s73, 7'); a(f'v_lshlrev_b32 v{T0}, 2, v{LANE}'); a(f'v_add_u32 v{T0}, s73, v{T0}')
        a(f'v_add_u32 v136, {FL_M+448}, v{BV(0)}')
        a(f'buffer_load_dword v{T1}, v{T0}, s[{SF_}:{SF_+3}], 0 offen {SC}')
        a(f'buffer_load_dword v137, v136, s[{SF_}:{SF_+3}], 0 offen {SC}')
    def b_load(self, ks, m):
        a = self.a
        if m == 0 and self.dyn:
            if ks == 4 and DYN == 1 and self.nw0 > 4: self.pick(1)
            if ks < self.nw0: self.sub('s49', ks); a('s_lshl_b32 s51, s51, 10')
        elif m == 0:
            if ks: self.adv(48)
            a('s_lshl_b32 s51, s48, 10')
        self.tB[ks] = a.vmem(f'buffer_load_dwordx4 {vr(BF(ks % D, m),4)}, v{BV(m)}, s[{SA_}:{SA_+3}], s51 offen {BSC}')
    def areads(self, ks):
        return [f'ds_read_b64_tr_b16 {vr(AF(ks&1,nb)+2*h,2)}, v{RA(nb)} offset:{(ks % D)*4096 + h*2048}' for nb in range(4) for h in range(2)]
    def main(self, sp):
        a = self.a; KS = self.KS; kid = self.kid
        NW0 = self.nw0
        for ks in range(PF):
            wq = self.w_pre(ks) if ks >= NW0 else None
            if wq: wq[0]()
            for m in range(4):
                if wq: wq[1+m]()
                self.b_load(ks, m)
            if ks == (1 if self.nw0 < 4 else 0):
                if self.nw0 < 4: a.wait_vm(self.tW[0])
                for x in self.areads(0): a(x)
        EP = {}
        for ks in range(KS):
            nxt = []
            if ks + 1 < KS:
                t = self.tB[ks+1] if ks + 1 < NW0 else max(self.tB[ks+1], self.tW[ks+1])
                a.wait_vm(max(t, self.tB[ks]), ' lgkmcnt(0)'); nxt = self.areads(ks+1)
            else: a('s_waitcnt lgkmcnt(0)')
            pf = ks + PF; i = 0
            wp = self.w_pre(pf) if pf < KS else []
            for nb in range(4):
                for tb in range(4):
                    c = vr(ACC(nb, tb), 4)
                    a(f'{M16} {c}, {vr(AF(ks&1,nb),4)}, {vr(BF(ks % D, tb),4)}, {c if ks else 0}')
                    if i < 8 and nxt: a(nxt.pop(0))
                    if wp:
                        if i == 0: wp[0]()
                        if i >= 8:
                            m = (i - 8) >> 1
                            if i & 1: self.b_load(pf, m)
                            else: wp[1+m]()
                    i += 1
            if ks == KS - PF:
                EPB = BF((ks + PF) % D, 0); EP['B'] = EPB
                a(f'v_and_b32 v{E0+5}, 15, v{LANE}')
                a(f's_lshl_b32 s52, s{sTB}, 6'); a(f's_lshl_b32 s53, s{sWAVE}, 4'); a('s_add_u32 s52, s52, s53')
                a(f's_lshl_b32 s44, s{sNT}, 8')
                srd(a, SM_, sWS, WS_MOD, 6*448*4)
                a(f'v_lshlrev_b32 v{E0+6}, 4, v{GG}')
                a(f's_add_u32 s47, s44, {(2 if kid == 3 else 5)*1792}')
                for nb in range(4): a.vmem(f'buffer_load_dwordx4 {vr(EPB+4*nb,4)}, v{E0+6}, s[{SM_}:{SM_+3}], s47 offen offset:{64*nb} {SC}')
            if ks == KS - PF + 1 and kid == 3:
                EPC = BF((ks + PF) % D, 0); EP['C'] = EPC
                a(f's_add_u32 s47, s44, {4*1792}')
                for nb in range(4): a.vmem(f'buffer_load_dwordx4 {vr(EPC+4*nb,4)}, v{E0+6}, s[{SM_}:{SM_+3}], s47 offen offset:{64*nb} {SC}')
            if ks == KS - PF + 2:
                EPX = BF((ks + PF) % D, 0); EP['X'] = EPX
                a('s_lshr_b32 s56, s52, 4'); a(f's_mul_i32 s56, s56, {14*1024}'); a(f's_lshl_b32 s57, s{sNT}, 11'); a('s_add_u32 s56, s56, s57')
                a('s_mul_i32 s58, s52, 896'); a(f's_lshl_b32 s57, s{sNT}, 7'); a('s_add_u32 s58, s58, s57')
                a(f'v_mul_u32_u24 v{E0+7}, 896, v{E0+5}')
                if kid == 3: a(f'v_lshl_add_u32 v{E0+7}, v{GG}, 3, v{E0+7}')
                else:
                    a(f'v_and_b32 v{E0+4}, 1, v{GG}'); a(f'v_lshl_add_u32 v{E0+7}, v{E0+4}, 5, v{E0+7}')
                    a(f'v_lshrrev_b32 v{E0+4}, 1, v{GG}'); a(f'v_lshl_add_u32 v{E0+7}, v{E0+4}, 4, v{E0+7}')
                srd(a, SX_, sX if kid == 3 else sOUT, 0, 2048*896)
                if kid == 3:
                    for nb in range(4): a.vmem(f'buffer_load_dwordx2 {vr(EPX+2*nb,2)}, v{E0+7}, s[{SX_}:{SX_+3}], s58 offen offset:{32*nb}')
                    srd(a, SO2, sWS, WS_Y, 128*14*1024); srd(a, SO3, sWS, WS_STAT, 7*2048*8)
                elif self.X1MEM:
                    srd(a, SO2, sWS, WS_X1, 128*14*1024)
                    for hh in range(2): a.vmem(f'buffer_load_dwordx4 {vr(EPX+4*hh,4)}, v{L16}, s[{SO2}:{SO2+3}], s56 offen offset:{1024*hh} {SC}')
        sp.stamp()
        if RED3:
            a(f'v_add_u32 v{E0+8}, s{sLB}, v{L16}')
            for t in range(1, 4):
                a(f's_sub_u32 s59, s{sWAVE}, {t}'); a('s_and_b32 s59, s59, 3'); a('s_lshl_b32 s73, s59, 15'); a('s_cmp_eq_u32 s59, 3'); a('s_cselect_b32 s73, 0x20000, s73')
                a(f'v_add_u32 v{E0+8+t}, s73, v{L16}')
            for t in range(1, 4):
                for nb in range(4): a(f'ds_write_b128 v{E0+8}, {vr(ACC(nb,t),4)} offset:{((t-1)*4+nb)*1024}')
            a('s_waitcnt lgkmcnt(0)'); a('s_barrier')
            R_ = lambda t, nb: ACC(nb, t)
            for t in range(1, 4):
                for nb in range(4): a(f'ds_read_b128 {vr(R_(t,nb),4)}, v{E0+8+t} offset:{((t-1)*4+nb)*1024}')
            a('s_waitcnt lgkmcnt(8)')
            for nb in range(4):
                for i in range(4): a(f'v_add_f32 v{64+4*nb+i}, v{ACC(nb,0)+i}, v{R_(1,nb)+i}')
            a('s_waitcnt lgkmcnt(0)')
            if kid == 3: a('s_barrier')
            for nb in range(4):
                for i in range(4): a(f'v_add_f32 v{ACC(nb,2)+i}, v{ACC(nb,2)+i}, v{ACC(nb,3)+i}')
            for nb in range(4):
                for i in range(4): a(f'v_add_f32 v{4*nb+i}, v{64+4*nb+i}, v{ACC(nb,2)+i}')
        else:
            a(f'v_add_u32 v{E0+8}, s{sLB}, v{L16}')
            a(f's_lshl_b32 s59, s{sWAVE}, 12')
            a(f'v_add_u32 v{E0+9}, s59, v{L16}'); a(f'v_add_u32 v{E0+10}, 65536, v{E0+9}'); a(f'v_add_u32 v{E0+11}, 131072, v{E0+9}')
            a.nop(3)
            for tb in range(4):
                for nb in range(4): a(f'ds_write_b128 v{E0+8}, {vr(ACC(nb,tb),4)} offset:{(tb*4+nb)*1024}')
            a('s_waitcnt lgkmcnt(0)'); a('s_barrier')
            for src in range(4):
                for nb in range(4):
                    a(f'ds_read_b128 {vr((src*4+nb)*4,4)}, v{E0+9+max(0,src-1)} offset:{(32768 if src == 1 else 0) + nb*1024}')
            a('s_waitcnt lgkmcnt(8)')
            for i in range(16): a(f'v_add_f32 v{i}, v{i}, v{16+i}')
            a('s_waitcnt lgkmcnt(0)')
            if kid == 3: a('s_barrier')
            for i in range(16): a(f'v_add_f32 v{32+i}, v{32+i}, v{48+i}')
            for i in range(16): a(f'v_add_f32 v{i}, v{i}, v{32+i}')
        sp.stamp()
        EPB = EP['B']
        a('s_waitcnt vmcnt(0)')
        for i in range(0, 16, 2): a(f'v_cvt_pk_bf16_f32 v{16+i//2}, v{i}, v{i+1}')
        for i in range(8): unpack(a, 2*i, 2*i+1, 16+i)
        for i in range(16): a(f'v_mul_f32 v{i}, v{i}, v{EPB+i}')
        for i in range(0, 16, 2): a(f'v_cvt_pk_bf16_f32 v{16+i//2}, v{i}, v{i+1}')
        if kid == 5 and not self.X1MEM:
            for i in range(8): a(f'v_accvgpr_read_b32 v{24+i}, a{X1A+i}')
            EPX = 24
        else: EPX = EP['X']
        for i in range(8): unpack(a, 2*i, 2*i+1, 16+i)
        for i in range(8): unpack(a, 32+2*i, 33+2*i, EPX+i)
        for i in range(16): a(f'v_add_f32 v{i}, v{i}, v{32+i}')
        for i in range(0, 16, 2): a(f'v_cvt_pk_bf16_f32 v{16+i//2}, v{i}, v{i+1}')
        if kid == 5:
            a('s_nop 0')
            for p in range(2):
                for d in range(2): a(f'v_permlane16_swap_b32 v{16+4*p+d}, v{18+4*p+d}')
            for p in range(2): a(f'buffer_store_dwordx4 {vr(16+4*p,4)}, v{E0+7}, s[{SX_}:{SX_+3}], s58 offen offset:{64*p}')
            return
        EPC = EP['C']
        for i in range(8): unpack(a, 2*i, 2*i+1, 16+i)
        for i in range(16): a(f'v_mul_f32 v{32+i}, v{i}, v{EPC+i}')
        for i in range(0, 16, 2): a(f'v_cvt_pk_bf16_f32 v{24+i//2}, v{32+i}, v{33+i}')
        for hh in range(2): a.vmem(f'buffer_store_dwordx4 {vr(24+4*hh,4)}, v{L16}, s[{SO2}:{SO2+3}], s56 offen offset:{1024*hh} {SC}')
        a('v_add_f32 v48, v0, v1'); a('v_mul_f32 v49, v0, v0'); a('v_add_f32 v50, v2, v3'); a('v_mul_f32 v51, v2, v2')
        a('v_fmac_f32 v49, v1, v1'); a('v_fmac_f32 v51, v3, v3')
        for i in range(4, 16, 2):
            a(f'v_add_f32 v48, v48, v{i}'); a(f'v_fmac_f32 v49, v{i}, v{i}'); a(f'v_add_f32 v50, v50, v{i+1}'); a(f'v_fmac_f32 v51, v{i+1}, v{i+1}')
        a('v_add_f32 v48, v48, v50'); a('v_add_f32 v49, v49, v51')
        for sw in ('v_permlane32_swap_b32', 'v_permlane16_swap_b32'):
            a('v_mov_b32 v50, v48'); a('v_mov_b32 v51, v49'); a('s_nop 0'); a(f'{sw} v48, v50'); a(f'{sw} v49, v51'); a('s_nop 0')
            a('v_add_f32 v48, v48, v50'); a('v_add_f32 v49, v49, v51')
        a(f'v_lshlrev_b32 v50, 3, v{E0+5}')
        a(f's_lshl_b32 s57, s{sNT}, 14'); a('s_lshl_b32 s59, s52, 3'); a('s_add_u32 s57, s57, s59')
        self.tlast = a.vmem(f'buffer_store_dwordx2 v[48:49], v50, s[{SO3}:{SO3+3}], s57 offen {SC}')
        for i in range(8): a(f'v_accvgpr_write_b32 a{X1A+i}, v{16+i}')

def uw_phase(a, T):
    if SPF:
        a(f's_sub_u32 s44, s{sIDX}, 28'); a('s_lshl_b32 s44, s44, 2'); a(f's_add_u32 s44, s44, s{sWAVE}'); a('s_mul_i32 s44, s44, 28672')
        srd(a, 16, sWO, 0, 4096*896)
        lane_id(a, 0); a('v_lshlrev_b32 v0, 7, v0')
        for i in range(1, 4): a(f'v_add_u32 v{i}, {8192*i}, v0')
        a('s_and_b32 s45, s2, 7')
        for j in range(8):
            a(f's_mul_i32 s46, s45, {16*28672}'); a('s_add_u32 s46, s46, s44')
            for i in range(4): a(f'buffer_load_dword v{8+i}, v{i}, s[16:19], s46 offen')
            a('s_add_u32 s45, s45, 1'); a('s_and_b32 s45, s45, 7')
            a(f's_waitcnt vmcnt({SPW})')
    a(f's_sub_u32 s13, s{sIDX}, 28'); a('s_lshl_b32 s13, s13, 3'); a('s_and_b32 s12, s2, 7'); a('s_add_u32 s13, s13, s12')
    a('s_cmp_ge_u32 s13, 28'); a(f's_cbranch_scc1 {T}_{"w2" if SP2 else "end"}')
    lane_id(a, 0); a(f's_lshl_b32 s12, s{sWAVE}, 6'); a('v_add_u32 v0, s12, v0')
    if LATE:
        lane_id(a, 1); a('v_lshlrev_b32 v1, 4, v1'); a(f'v_add_u32 v1, {FL_M+448}, v1')
        poll(a, f'{T}_u', 1, 2, 0xffffffff, (1, 3, 56))
    a('v_and_b32 v1, 7, v0'); a('v_lshrrev_b32 v2, 3, v0')
    a('v_mul_u32_u24 v3, 3584, v2'); a('v_lshl_add_u32 v3, v1, 4, v3'); a('v_lshlrev_b32 v4, 2, v2')
    a('s_lshl_b32 s44, s13, 7'); a('s_lshl_b32 s45, s13, 8')
    srd(a, 16, sW1, 0, 448*3584); srd(a, 20, sWS, WS_MOD + 3*1792, 2*1792); srd(a, 24, sWS, WS_U, 0x4000)
    CS, CC, Wr = 8, 24, 40
    for i in range(14):
        a(f'buffer_load_dword v{CS+i}, v4, s[20:23], 0 offen offset:{128*i} {SC}')
        a(f'buffer_load_dword v{CC+i}, v4, s[20:23], 0 offen offset:{1792+128*i} {SC}')
    for i in range(14):
        a(f's_add_u32 s46, s44, {32*3584*i}')
        a(f'buffer_load_dwordx4 {vr(Wr+4*i,4)}, v3, s[16:19], s46 offen')
    AU, AW = 96, 104
    for i in range(14):
        a(f's_waitcnt vmcnt({13-i})')
        for j in range(4):
            unpack(a, 112, 113, Wr+4*i+j)
            op = 'v_mul_f32' if i == 0 else 'v_fmac_f32'
            a(f'{op} v{AU+2*j}, v112, v{CC+i}'); a(f'{op} v{AU+2*j+1}, v113, v{CC+i}')
            a(f'{op} v{AW+2*j}, v112, v{CS+i}'); a(f'{op} v{AW+2*j+1}, v113, v{CS+i}')
    a('v_lshlrev_b32 v5, 8, v2'); a('v_lshl_add_u32 v5, v1, 5, v5')
    a(f'ds_write_b128 v5, {vr(AU,4)}'); a(f'ds_write_b128 v5, {vr(AU+4,4)} offset:16')
    a(f'ds_write_b128 v5, {vr(AW,4)} offset:8192'); a(f'ds_write_b128 v5, {vr(AW+4,4)} offset:8208')
    a('v_and_b32 v6, 63, v0'); a('v_lshlrev_b32 v6, 2, v6'); a('v_bfe_u32 v7, v0, 6, 1'); a('v_lshl_add_u32 v8, v7, 13, v6')
    a('s_waitcnt lgkmcnt(0)'); a('s_barrier')
    for i in range(32): a(f'ds_read_b32 v{40+i}, v8 offset:{256*i}')
    a('s_waitcnt lgkmcnt(0)')
    n = 32
    while n > 1:
        n //= 2
        for i in range(n): a(f'v_add_f32 v{40+i}, v{40+i}, v{40+n+i}')
    a(f'v_mov_b32 v41, {f32(LOG2E)}'); a('v_cmp_eq_u32 vcc, 0, v7'); a('s_nop 1'); a('v_cndmask_b32 v41, v41, 1.0, vcc'); a('v_mul_f32 v40, v40, v41')
    a(f'buffer_store_dword v40, v8, s[24:27], s45 offen {SC}')
    a('s_waitcnt vmcnt(0)'); a('s_barrier')
    a(f's_lshl_b32 s46, s13, 2'); a(f's_add_u32 s46, s46, {FL_U}')
    set_flag(a, f'{T}_u', 46, 1)
    if SP2:
        a.label(f'{T}_w2')
        lane_id(a, 0); a('s_and_b32 s44, s2, 7'); a('s_lshl_b32 s44, s44, 8'); a(f's_add_u32 s44, s44, {FL_B}')
        a('v_lshlrev_b32 v1, 2, v0'); a('v_add_u32 v1, s44, v1')
        poll(a, f'{T}_v', 1, 2, 0x3fff)
        srd(a, 16, sW2, 0, 1792*896)
        a(f's_sub_u32 s44, s{sIDX}, 28'); a('s_lshl_b32 s44, s44, 2'); a(f's_add_u32 s44, s44, s{sWAVE}'); a('s_lshl_b32 s44, s44, 13')
        a('v_lshlrev_b32 v0, 7, v0')
        for i in range(13):
            a(f'buffer_load_dword v{8+(i&3)}, v0, s[16:19], s44 offen'); a(f's_add_u32 s44, s44, {16*8192}')

class Mlp1:
    NS = 14
    ACC = staticmethod(lambda fb, tb: (fb*2+tb)*4)
    BF = staticmethod(lambda ks, tb: 64 + (ks*2+tb)*4)
    U_ = staticmethod(lambda fb: 176 + 4*fb)
    W_ = staticmethod(lambda fb: 208 + 4*fb)
    RA = staticmethod(lambda i: 240 + i)
    WV = staticmethod(lambda m: 248 + m)
    BV = staticmethod(lambda tb: 250 + tb)
    E0 = 252
    AF = staticmethod(lambda fb: 4*fb)
    ST = staticmethod(lambda tb, nt: 32 + (tb*7+nt)*2)
    SW, SY, SU, SS, SH = 24, 28, 16, 20, 36
    sTB4, sFT = 76, 77
    V2 = False
    NPART = 7
    def __init__(self, a): self.a = a
    def w_issue(self):
        a = self.a; WV = self.WV
        l, t0, t1, t2 = 244, 245, 246, 247
        a(f's_cmp_ge_u32 s{sIDX}, 14'); a(f's_cselect_b32 s{self.sTB4}, 1, 0'); a(f's_mul_i32 s{self.sFT}, s{self.sTB4}, 14'); a(f's_sub_u32 s{self.sFT}, s{sIDX}, s{self.sFT}')
        a('s_and_b32 s44, s2, 7'); a('s_lshl_b32 s44, s44, 1'); a(f's_add_u32 s{self.sTB4}, s{self.sTB4}, s44')
        lane_id(a, l)
        a(f'v_and_b32 v{t2}, 15, v{l}')
        a(f's_mul_i32 s45, s{sWAVE}, {8*3584}')
        for m in range(2):
            a(f'v_lshrrev_b32 v{t0}, 4, v{l}')
            if m: a(f'v_add_u32 v{t0}, 4, v{t0}')
            a(f'v_lshlrev_b32 v{t1}, 1, v{t0}'); a(f'v_xor_b32 v{t1}, v{t1}, v{t2}'); a(f'v_lshlrev_b32 v{t1}, 4, v{t1}')
            a(f'v_mul_u32_u24 v{t0}, 3584, v{t0}'); a(f'v_add3_u32 v{WV(m)}, v{t0}, v{t1}, s45')
            if m: a(f'v_subrev_u32 v{WV(m)}, 1024, v{WV(m)}')
        a(f's_lshl_b32 s46, s{self.sFT}, 8'); a(f's_lshl_b32 s48, s{sWAVE}, 11')
        srd(a, self.SW, sW1, 0, 0, 46); a(f's_sub_u32 s{self.SW+2}, {448*3584}, s46')
        self.w_more(0, 2*NPRE)
    def w_more(self, k0, k1):
        a = self.a; WV = self.WV
        for ks in range(k0, k1):
            a(f's_add_u32 m0, s48, {ks*8192}'); a(f's_mov_b32 s50, {ks*32*3584}')
            for m in range(2): a.vmem(f'buffer_load_dwordx4 v{WV(m)}, s[{self.SW}:{self.SW+3}], s50 offen offset:{1024*m} lds')
    def setup(self):
        a = self.a; RA = self.RA; BV = self.BV; E0 = self.E0
        L, t0, t1, t2 = 1, 2, 3, 4
        lane_id(a, L)
        a(f'v_bfe_u32 v{t0}, v{L}, 2, 4'); a(f'v_and_b32 v{t1}, 7, v{t0}'); a(f'v_lshlrev_b32 v{t0}, 8, v{t0}')
        a(f'v_and_b32 v{t2}, 3, v{L}'); a(f'v_lshl_add_u32 v{t0}, v{t2}, 3, v{t0}')
        for i in range(8):
            a(f'v_xor_b32 v{t2}, {i}, v{t1}'); a(f'v_lshl_add_u32 v{RA(i)}, v{t2}, 5, v{t0}')
        a(f's_mul_i32 s44, s{sWAVE}, {2*14336}'); a(f'v_lshlrev_b32 v{t0}, 4, v{L}')
        a(f'v_add_u32 v{BV(0)}, s44, v{t0}'); a(f'v_add_u32 v{BV(1)}, 14336, v{BV(0)}')
        a(f'v_lshrrev_b32 v{t1}, 4, v{L}'); a(f'v_lshlrev_b32 v{E0}, 4, v{t1}')
        a(f's_lshl_b32 s44, s{sWAVE}, 8'); a(f'v_and_b32 v{t2}, 15, v{L}'); a(f'v_lshlrev_b32 v{t2}, 3, v{t2}'); a(f'v_add_u32 v{E0+1}, s44, v{t2}')
        a(f's_mul_i32 s44, s{sWAVE}, {2*56*1024}'); a(f'v_add_u32 v{E0+2}, s44, v{t0}'); a(f'v_add_u32 v{E0+3}, {56*1024}, v{E0+2}')
        a(f's_mul_i32 s45, s{self.sTB4}, {8*14336}')
        srd(a, self.SY, sWS, WS_Y, 8*14336, 45)
        srd(a, self.SU, sWS, WS_U, 0x4000); srd(a, self.SS, sWS, WS_STAT, 8*2048*8)
        a(f's_mul_i32 s52, s{self.sTB4}, {8*56*1024}'); a(f's_lshl_b32 s53, s{self.sFT}, 12'); a('s_add_u32 s52, s52, s53')
        srd(a, self.SH, sWS, WS_H, 0, 52); a(f's_sub_u32 s{self.SH+2}, {128*56*1024}, s52')
        a(f's_lshl_b32 s44, s{self.sFT}, 9'); a('s_add_u32 s45, s44, 0x2000'); a(f's_lshl_b32 s56, s{self.sTB4}, 10')
        a(f's_lshl_b32 s46, s{self.sTB4}, 7'); a(f's_add_u32 s46, s46, {FL_B}')
        if self.V2:
            a(f'v_lshlrev_b32 v{t0}, 2, v{L}'); a(f'v_add_u32 v{t0}, s46, v{t0}')
            return t0
        a(f's_lshl_b32 s47, s{self.sFT}, 3'); a(f's_add_u32 s47, s47, {FL_U - 56}')
        a(f'v_mov_b32 v{t0}, s46'); a(f'v_mov_b32 v{t1}, s47'); a(f'v_cmp_gt_u32 vcc, 14, v{L}'); a('s_nop 1')
        a(f'v_cndmask_b32 v{t0}, v{t1}, v{t0}, vcc'); a(f'v_lshl_add_u32 v{t0}, v{L}, 2, v{t0}')
        return t0
    def main(self, sp, w2pre):
        a = self.a; NS = self.NS
        ACC, BF, U_, W_, RA, BV, E0, AF, ST = self.ACC, self.BF, self.U_, self.W_, self.RA, self.BV, self.E0, self.AF, self.ST
        tk = {}
        LA = 5
        def ld(ks, m):
            if m == 0: a(f's_mov_b32 s51, {ks*1024}')
            tk[ks] = a.vmem(f'buffer_load_dwordx4 {vr(BF(ks,m),4)}, v{BV(m)}, s[{self.SY}:{self.SY+3}], s51 offen {SC}')
        def aread(ks, fb, h): return f'ds_read_b64_tr_b16 {ar(AF(fb)+2*h,2)}, v{RA(fb)} offset:{(ks % 8)*8192 + h*4096}'
        for ks in range(LA):
            for m in range(2): ld(ks, m)
        if not self.V2 and not getattr(self, 'nobar', False): a('s_barrier')
        for fb in range(8):
            for h in range(2): a(aread(0, fb, h))
        extra = []
        for nt in range(self.NPART):
            for tb in range(2):
                def f(nt=nt, tb=tb):
                    a(f's_add_u32 s57, s56, {nt*16384 + tb*128}')
                    a.vmem(f'buffer_load_dwordx2 {ar(ST(tb,nt),2)}, v{E0+1}, s[{self.SS}:{self.SS+3}], s57 offen {SC}')
                extra.append(f)
        for fb in range(0 if self.V2 else 8):
            extra.append(lambda fb=fb: a.vmem(f'buffer_load_dwordx4 {vr(U_(fb),4)}, v{E0}, s[{self.SU}:{self.SU+3}], s44 offen offset:{64*fb} {SC}'))
            extra.append(lambda fb=fb: a.vmem(f'buffer_load_dwordx4 {vr(W_(fb),4)}, v{E0}, s[{self.SU}:{self.SU+3}], s45 offen offset:{64*fb} {SC}'))
        a.wait_vm(tk[0], ' lgkmcnt(0)')
        for ks in range(NS):
            G_ = [[] for _ in range(16)]
            if ks >= 1:
                G_[0].append(aread(ks, 7, 0)); G_[1].append(aread(ks, 7, 1))
            G_[5].insert(0, 's_waitcnt lgkmcnt(4)'); G_[13].insert(0, 's_waitcnt lgkmcnt(4)')
            if ks + 1 < NS:
                G_[15].append(lambda ks=ks: a.wait_vm(tk[ks+1]))
                if ks + 1 == 8:
                    for i in range(7): G_[1].append(f'v_add_u32 v{RA(i)}, 65536, v{RA(i)}')
                for k in range(14): G_[k+2].append(aread(ks+1, k >> 1, k & 1))
            if ks == 7: G_[15].append(f'v_add_u32 v{RA(7)}, 65536, v{RA(7)}')
            slots = [3, 7, 11, 14]
            if ks + LA < NS:
                for m in range(2): G_[slots.pop(0)].append(lambda ks=ks, m=m: ld(ks + LA, m))
            for k in slots:
                if extra: G_[k].append(extra.pop(0))
            for fb in range(8):
                for tb in range(2):
                    k = fb*2 + tb
                    c = vr(ACC(fb, tb), 4)
                    a(f'{M16} {c}, {ar(AF(fb),4)}, {vr(BF(ks,tb),4)}, {c if ks else 0}')
                    for x in G_[k]: x() if callable(x) else a(x)
        assert not extra
        sp.stamp()
        a('s_waitcnt vmcnt(0)'); a('s_barrier')
        B0 = 64
        MEAN = lambda tb: B0 + 32 + tb
        RS = lambda tb: B0 + 34 + tb
        pre = list(w2pre)
        def fill(n=1):
            for _ in range(n):
                if pre: pre.pop(0)()
        NP = self.NPART
        if self.V2:
            for fb in range(8):
                a(f'ds_read_b128 {vr(U_(fb),4)}, v{E0} offset:{64*fb}'); a(f'ds_read_b128 {vr(W_(fb),4)}, v{E0} offset:{512+64*fb}')
        fill(1)
        for tb in range(2):
            for i in range(2*NP): a(f'v_accvgpr_read_b32 v{B0+tb*16+i}, a{ST(tb,0)+i}')
        fill(2)
        for tb in range(2):
            b = B0 + tb*16
            for nt in range(1, NP):
                a(f'v_add_f32 v{b}, v{b}, v{b+2*nt}'); a(f'v_add_f32 v{b+1}, v{b+1}, v{b+2*nt+1}')
        fill(1)
        for tb in range(2):
            b = B0 + tb*16
            a(f'v_mul_f32 v{b}, {f32(1/448)}, v{b}'); a(f'v_mul_f32 v{b+1}, {f32(1/448)}, v{b+1}')
            a(f'v_fma_f32 v{b+1}, -v{b}, v{b}, v{b+1}'); a(f'v_max_f32 v{b+1}, 0, v{b+1}')
            rbf(a, b+1, b+1); a(f'v_add_f32 v{b+1}, {f32(1e-5)}, v{b+1}'); rbf(a, b+1, b+1)
            a(f'v_sqrt_f32 v{b+1}, v{b+1}'); rbf(a, MEAN(tb), b)
            rbf(a, b+1, b+1); a(f'v_rcp_f32 v{RS(tb)}, v{b+1}')
            a(f'v_sub_f32 v{MEAN(tb)}, 0, v{MEAN(tb)}')
            fill(1)
        TT = B0 + 40; LP = B0 + 38
        a(f'v_mov_b32 v{LP}, {f32(LOG2E)}')
        if self.V2: a('s_waitcnt lgkmcnt(0)')
        for tb in range(2): a(f'v_mul_f32 v{RS(tb)}, {f32(LOG2E)}, v{RS(tb)}')
        if not EPI:
            for sq in range(4):
                for tb in range(2):
                    rg = [(ACC(2*sq+e, tb)+r, U_(2*sq+e)+r, W_(2*sq+e)+r) for e in range(2) for r in range(4)]
                    tm = [TT + ((sq*2+tb) % 2)*8 + i for i in range(8)]
                    for (x, u, w) in rg: a(f'v_fma_f32 v{x}, v{MEAN(tb)}, v{u}, v{x}')
                    if E4F > 0: fill()
                    for (x, u, w) in rg: a(f'v_fma_f32 v{x}, v{RS(tb)}, v{x}, v{w}')
                    for (x, u, w), t in zip(rg, tm): a(f'v_exp_f32 v{t}, -v{x}')
                    if E4F > 1: fill()
                    for t in tm: a(f'v_fma_f32 v{t}, v{t}, v{LP}, v{LP}')
                    for t in tm: a(f'v_rcp_f32 v{t}, v{t}')
                    if E4F > 2: fill()
                    for (x, u, w), t in zip(rg, tm): a(f'v_mul_f32 v{x}, v{x}, v{t}')
                    d = ACC(2*sq, tb); xs = [r[0] for r in rg]
                    for i in range(4): a(f'v_cvt_pk_bf16_f32 v{d+i}, v{xs[2*i]}, v{xs[2*i+1]}')
                    self.tlast = a.vmem(f'buffer_store_dwordx4 {vr(d,4)}, v{E0+2+tb}, s[{self.SH}:{self.SH+3}], 0 offen offset:{1024*sq} {SC}')
        else:
            grp = [(sq, tb) for sq in range(4) for tb in range(2)]
            def st(gi):
                sq, tb = grp[gi]
                rg = [(ACC(2*sq+e, tb)+r, U_(2*sq+e)+r, W_(2*sq+e)+r) for e in range(2) for r in range(4)]
                tm = [TT + (gi % 3)*8 + i for i in range(8)]
                A = [f'v_fma_f32 v{x}, v{MEAN(tb)}, v{u}, v{x}' for (x, u, w) in rg] + [f'v_fma_f32 v{x}, v{RS(tb)}, v{x}, v{w}' for (x, u, w) in rg]
                B = [f'v_exp_f32 v{t}, -v{x}' for (x, u, w), t in zip(rg, tm)]
                C = [f'v_fma_f32 v{t}, v{t}, v{LP}, v{LP}' for t in tm]
                Dd = [f'v_rcp_f32 v{t}, v{t}' for t in tm]
                d = ACC(2*sq, tb); xs = [r[0] for r in rg]
                E = [f'v_mul_f32 v{x}, v{x}, v{t}' for (x, u, w), t in zip(rg, tm)] + [f'v_cvt_pk_bf16_f32 v{d+i}, v{xs[2*i]}, v{xs[2*i+1]}' for i in range(4)]
                S = f'buffer_store_dwordx4 {vr(d,4)}, v{E0+2+tb}, s[{self.SH}:{self.SH+3}], 0 offen offset:{1024*sq} {SC}'
                return A, B, C, Dd, E, S
            G = [st(i) for i in range(8)]
            for x in G[0][0]: a(x)
            for ph in range(10):
                T1_ = G[ph][1] if ph < 8 else []
                T2_ = G[ph-1][3] if 1 <= ph < 9 else []
                V1 = (G[ph-1][2] if 1 <= ph < 9 else []) + (G[ph-2][4] if 2 <= ph else [])
                V2 = (G[ph+1][0] if ph + 1 < 8 else [])
                for Ts, Vs in ((T1_, V1), (T2_, V2)):
                    Ts = list(Ts); Vs = list(Vs); n = max(len(Ts), 1); k = 0
                    per = -(-len(Vs) // n)
                    while Ts or Vs:
                        if Ts: a(Ts.pop(0))
                        for _ in range(per):
                            if Vs: a(Vs.pop(0))
                    if Vs is not None and Ts is not None and (Ts, Vs) == ([], []) and Vs is not V2: pass
                if ph >= 2:
                    self.tlast = a.vmem(G[ph-2][5])
                if E4F > 0: fill()
                if E4F > 1: fill()
        self.rest = pre

def nonce_reset(a, T):
    a(f's_or_b32 s44, s2, s{sWAVE}'); a('s_cmp_lg_u32 s44, 0'); a(f's_cbranch_scc1 {T}_end')
    a(f's_load_dwordx2 s[44:45], s[0:1], {KA["dbg"]}'); a('v_mov_b32 v0, 0'); a('s_mov_b32 s46, 256'); a('s_mov_b32 s47, 0x20000')
    a('s_waitcnt lgkmcnt(0)'); a('s_and_b32 s45, s45, 0xffff')
    a('s_mov_b64 exec, 1')
    a(f'buffer_store_dword v0, v0, s[44:47], 0 offen {SC}')

def post(a, T):
    sp = Stamper(a, 80, 3); sp.stamp(True); sp.stamp()
    g3 = a.g3
    if g3.dyn and EARLY:
        a('s_lshr_b32 s45, s49, 3'); a('s_lshl_b32 s43, 1, s45')
        a(f's_mov_b32 s{sT[1]}, 0x8000')
        a.label(f'{T}_a_pl')
        a(f'v_cmp_eq_u32 vcc, s{sNON}, v137'); a('s_nop 1'); a('s_bcnt1_i32_b64 s46, vcc')
        a(f'v_cmp_eq_u32 vcc, s{sNON}, v{T1}'); a('s_nop 1')
        g3.ready_mask()
        a('s_cmp_ge_u32 s46, 56'); a(f's_cselect_b32 s73, s{sROT}, 0'); a('s_and_b32 s73, s73, s43'); a(f's_cbranch_scc1 {T}_a_pd')
        a(f's_sleep {PSL}')
        a(f'buffer_load_dword v{T1}, v{T0}, s[{SF_}:{SF_+3}], 0 offen {SC}')
        a(f'buffer_load_dword v137, v136, s[{SF_}:{SF_+3}], 0 offen {SC}')
        a('s_waitcnt vmcnt(0)')
        a(f's_sub_u32 s{sT[1]}, s{sT[1]}, 1'); a(f's_cmp_lg_u32 s{sT[1]}, 0'); a(f's_cbranch_scc1 {T}_a_pl')
        a.label(f'{T}_a_pd')
    elif True:
        for ks in range(NPRE, g3.nw0):
            for f in g3.w_pre(ks): f()
        g3.b_setup()
        a(f's_lshr_b32 s44, s{sTB}, 1'); a('s_lshl_b32 s44, s44, 7'); a(f'v_lshlrev_b32 v{T0}, 2, v{LANE}'); a(f'v_add_u32 v{T0}, s44, v{T0}')
        a(f'v_add_u32 v0, {FL_M+448}, v{L16}')
    if g3.dyn and EARLY: pass
    elif g3.dyn:
        a('s_and_b32 s45, s2, 7'); a('s_lshl_b32 s45, s45, 1'); a('s_lshl_b32 s43, 1, s45')
        a(f's_mov_b32 s{sT[1]}, 0x8000')
        a.label(f'{T}_a_pl')
        a(f'buffer_load_dword v{T1}, v{T0}, s[{SF_}:{SF_+3}], 0 offen {SC}')
        a(f'buffer_load_dword v1, v0, s[{SF_}:{SF_+3}], 0 offen {SC}')
        a('s_waitcnt vmcnt(0)')
        a(f'v_cmp_eq_u32 vcc, s{sNON}, v1'); a('s_nop 1'); a('s_bcnt1_i32_b64 s46, vcc')
        a(f'v_cmp_eq_u32 vcc, s{sNON}, v{T1}'); a('s_nop 1')
        g3.ready_mask()
        a('s_cmp_ge_u32 s46, 56'); a(f's_cselect_b32 s73, s{sROT}, 0'); a('s_and_b32 s73, s73, s43'); a(f's_cbranch_scc1 {T}_a_pd')
        a(f's_sleep {PSL}')
        a(f's_sub_u32 s{sT[1]}, s{sT[1]}, 1'); a(f's_cmp_lg_u32 s{sT[1]}, 0'); a(f's_cbranch_scc1 {T}_a_pl')
        a.label(f'{T}_a_pd')
        a.vm = 0
    else:
        poll(a, f'{T}_a', T0, T1, 0xffff, (0, 1, 56) if LATE else None)
    sp.stamp()
    g3.main(sp)
    m = Mlp1(a)
    m.w_issue()
    a.wait_vm(g3.tlast); a('s_barrier')
    a(f's_lshr_b32 s44, s{sTB}, 1'); a('s_lshl_b32 s44, s44, 7'); a(f's_and_b32 s45, s{sTB}, 1'); a('s_mul_i32 s45, s45, 7'); a(f's_add_u32 s45, s45, s{sNT}')
    a('s_lshl_b32 s45, s45, 2'); a('s_add_u32 s44, s44, s45'); a(f's_add_u32 s44, s44, {FL_B}')
    set_flag(a, f'{T}_b', 44, 8)
    sp.stamp(); sp.stamp(True); sp.dump(sWS, sWAVE, 8)
    sp = Stamper(a, 80, 4); sp.stamp(True); sp.stamp()
    m.w_more(2*NPRE, 14)
    pa = m.setup()
    poll(a, f'{T}_b', pa, pa + 1, 0xffff, one=bool(PW0))
    m.nobar = bool(PW0)
    sp.stamp()
    g5 = Gemm(a, 5)
    pre = [g5.w_setup]
    for ks in range(PF): pre += g5.w_pre(ks)
    m.main(sp, pre)
    sp.stamp()
    a.wait_vm(m.tlast); a('s_barrier')
    a(f's_lshl_b32 s44, s{m.sTB4}, 7'); a(f's_lshl_b32 s45, s{m.sFT}, 2'); a('s_add_u32 s44, s44, s45'); a(f's_add_u32 s44, s44, {FL_C}')
    set_flag(a, f'{T}_c', 44, 8)
    sp.stamp(); sp.stamp(True); sp.dump(sWS, sWAVE, 8)
    sp = Stamper(a, 80, 5); sp.stamp(True); sp.stamp()
    for f in m.rest: f()
    g5.b_setup()
    a(f's_lshr_b32 s44, s{sTB}, 1'); a('s_lshl_b32 s44, s44, 7'); a(f's_add_u32 s44, s44, {FL_C}'); a(f'v_lshlrev_b32 v{T0}, 2, v{LANE}'); a(f'v_add_u32 v{T0}, s44, v{T0}')
    poll(a, f'{T}_c', T0, T1, 0x3fff, one=bool(PW0))
    sp.stamp()
    g5.main(sp)
    sp.stamp()
    if STAMP: a('s_waitcnt vmcnt(0)')
    sp.stamp(True); sp.dump(sWS, sWAVE, 60)
    if NONCE: nonce_reset(a, T)
```

```python
from gen_common import *
M16 = 'v_mfma_f32_16x16x32_bf16'
FL_A, FL_B, FL_C, FL_U = 0, 2048, 4096, 6144
SC = 'sc1'
sX, sOUT, sW2, sWO, sW1, sWS, sWAVE = 64, 66, 54, 60, 62, 10, 14
sIDX, sTB, sNT, sLB, sROT = 68, 69, 70, 71, 72
sT = [73, 74, 75]
SW_, SA_, SF_ = 24, 28, 32
SX_, SM_, SO2, SO3 = 16, 20, 36, 40
ACC = lambda nb, tb: (nb*4+tb)*4
AF = lambda buf, nb: 64 + buf*16 + nb*4
BSL = [96, 112, 128, 160, 176, 192, 208, 224]
BF = lambda slot, tb: BSL[slot] + tb*4
WV = lambda m: 144 + m
RA = lambda nb: 148 + nb
BV = lambda tb: 152 + tb
LANE, GG, T0, T1 = 156, 157, 158, 159
E0 = 240
L16 = 243
X1A = 120
D = 8; PF = 7
E4F = int(os.environ.get('E4F', 3))
IROT = int(os.environ.get('IROT', 1))
EARLY = int(os.environ.get('EARLY', 0))
SPF = int(os.environ.get('SPF', 0)); SPW = int(os.environ.get('SPW', 0))
SP2 = int(os.environ.get('SP2', 0))
PW0 = int(os.environ.get('PW0', 1))
RED3 = int(os.environ.get('RED3', 1))
DW5 = int(os.environ.get('DW5', 10))
EPI = int(os.environ.get('EPI', 0))
DYN = int(os.environ.get('DYN', 1))
LATE = int(os.environ.get('LATE', 1))
PSL = int(os.environ.get('PSL', 2))
FL_M = 8192
NPRE = int(os.environ.get('NPRE', 2))
BSC = os.environ.get('BSC', SC)

def xlane(a, op, r, t):
    for sw in ('v_permlane32_swap_b32', 'v_permlane16_swap_b32'):
        a(f'v_mov_b32 v{t}, v{r}'); a('s_nop 1'); a(f'{sw} v{r}, v{t}'); a('s_nop 1')
        a(f'{op} v{r}, v{r}, v{t}')
def lane_id(a, r):
    a(f'v_mbcnt_lo_u32_b32 v{r}, -1, 0'); a(f'v_mbcnt_hi_u32_b32 v{r}, -1, v{r}')

def roles(a):
    a(f's_and_b32 s{sT[0]}, s2, 7'); a(f's_lshr_b32 s{sIDX}, s2, 3')
    a(f's_mul_i32 s{sTB}, s{sIDX}, 37'); a(f's_lshr_b32 s{sTB}, s{sTB}, 8')
    a(f's_mul_i32 s{sNT}, s{sTB}, 7'); a(f's_sub_u32 s{sNT}, s{sIDX}, s{sNT}')
    a(f's_lshl_b32 s{sT[1]}, s{sT[0]}, 2'); a(f's_add_u32 s{sTB}, s{sTB}, s{sT[1]}')
def roles2(a):
    a(f's_lshl_b32 s{sLB}, s{sWAVE}, 15'); a(f's_cmp_eq_u32 s{sWAVE}, 3'); a(f's_cselect_b32 s{sLB}, 0x20000, s{sLB}')

NONCE = int(os.environ.get('NONCE', 1))
sNON = 75
def flag_srd(a): srd(a, SF_, sWS, WS_FLAG, 16384)
def set_flag(a, tag, offreg, vt):
    a(f's_cmp_lg_u32 s{sWAVE}, 0'); a(f's_cbranch_scc1 {tag}_nf')
    a(f'v_mov_b32 v{vt}, 0'); a(f'v_mov_b32 v{vt+1}, ' + (f's{sNON}' if NONCE else '1'))
    a(f's_mov_b64 exec, 1')
    a(f'buffer_store_dword v{vt+1}, v{vt}, s[{SF_}:{SF_+3}], s{offreg} offen {SC}')
    a(f's_mov_b64 exec, -1')
    a.label(f'{tag}_nf')
def poll(a, tag, vaddr, vt, mask, extra=None, one=False):
    a(f's_mov_b32 s{sT[1]}, 0x8000')
    if one: a(f's_cmp_lg_u32 s{sWAVE}, {PW0-1}'); a(f's_cbranch_scc1 {tag}_pd')
    a.label(f'{tag}_pl')
    a(f'buffer_load_dword v{vt}, v{vaddr}, s[{SF_}:{SF_+3}], 0 offen {SC}')
    if extra: a(f'buffer_load_dword v{extra[1]}, v{extra[0]}, s[{SF_}:{SF_+3}], 0 offen {SC}')
    a('s_waitcnt vmcnt(0)')
    a(f'v_cmp_eq_u32 vcc, s{sNON}, v{vt}' if NONCE else f'v_cmp_ne_u32 vcc, 0, v{vt}')
    a('s_nop 1')
    a(f's_and_b32 s{sT[0]}, vcc_lo, {hex(mask)}')
    if extra:
        a(f'v_cmp_eq_u32 vcc, s{sNON}, v{extra[1]}'); a('s_nop 1'); a('s_bcnt1_i32_b64 s46, vcc')
        a(f's_cmp_ge_u32 s46, {extra[2]}'); a(f's_cselect_b32 s{sT[0]}, s{sT[0]}, 0')
    a(f's_cmp_eq_u32 s{sT[0]}, {hex(mask)}'); a(f's_cbranch_scc1 {tag}_pd')
    a(f's_sleep {PSL}')
    a(f's_sub_u32 s{sT[1]}, s{sT[1]}, 1'); a(f's_cmp_lg_u32 s{sT[1]}, 0'); a(f's_cbranch_scc1 {tag}_pl')
    a.label(f'{tag}_pd')
    if one: a('s_waitcnt vmcnt(0)'); a('s_barrier')
    a.vm = 0

class Gemm:
    X1MEM = False
    def __init__(self, a, kid):
        self.a = a; self.kid = kid
        self.KS = 32 if kid == 3 else 14
        self.tB = {}; self.tW = {}
        self.DW = DW5 if kid == 5 else D
    def w_setup(self):
        a = self.a; KS = self.KS
        l, t0, t1 = RA(0), RA(1), RA(2)
        lane_id(a, l)
        a(f'v_bfe_u32 v{t0}, v{l}, 4, 2'); a(f'v_lshlrev_b32 v{t0}, 1, v{t0}'); a(f'v_and_b32 v{t1}, 7, v{l}'); a(f'v_xor_b32 v{t0}, v{t0}, v{t1}')
        a(f'v_lshlrev_b32 v{t0}, 4, v{t0}')
        a(f'v_lshrrev_b32 v{t1}, 3, v{l}'); a(f'v_mul_u32_u24 v{t1}, 896, v{t1}'); a(f'v_add_u32 v{WV(0)}, v{t0}, v{t1}')
        for m in range(1, 4): a(f'v_add_u32 v{WV(m)}, {6144*m}, v{WV(0)}')
        self.dyn = DYN and self.kid == 3
        self.nw0 = NPRE if (self.dyn and EARLY) else 4 if (self.dyn and DYN != 1) else PF
        a(f's_mul_i32 s{sT[0]}, s{sWAVE}, {(4 if self.dyn else KS)*32*896}'); a(f's_lshl_b32 s{sT[1]}, s{sNT}, 7'); a(f's_add_u32 s{sT[0]}, s{sT[0]}, s{sT[1]}')
        srd(a, SW_, sWO if self.kid == 3 else sW2, 0, 0, sT[0]); a(f's_sub_u32 s{SW_+2}, {4*KS*32*896}, s{sT[0]}')
        if self.DW != D:
            a(f's_mul_i32 s{sLB}, s{sWAVE}, {self.DW*4096}'); self.nw0 = self.DW
        RM = int(os.environ.get('RM', 0))
        if RM == 0:
            a(f's_and_b32 s{sROT}, s2, 7'); a(f's_mul_i32 s{sROT}, s{sROT}, {KS}'); a(f's_lshr_b32 s{sROT}, s{sROT}, 3')
        elif RM == 1:
            a(f's_and_b32 s{sROT}, s{sTB}, 3'); a(f's_lshl_b32 s{sT[0]}, s{sNT}, 2'); a(f's_add_u32 s{sROT}, s{sROT}, s{sT[0]}')
            a(f's_mul_i32 s{sROT}, s{sROT}, {KS*2341}'); a(f's_lshr_b32 s{sROT}, s{sROT}, 16')
        else:
            a(f's_mul_i32 s{sROT}, s{sNT}, {KS*9363}'); a(f's_lshr_b32 s{sROT}, s{sROT}, 16')
        a(f's_mov_b32 s49, s{sROT}')
        if self.dyn:
            if EARLY: a('s_add_u32 s49, s2, 1'); a('s_and_b32 s49, s49, 7'); a('s_lshl_b32 s49, s49, 4')
            else: a('s_and_b32 s49, s2, 7'); a('s_lshl_b32 s49, s49, 4')
            if IROT == 1: a(f's_add_u32 s48, s{sNT}, s{sTB}')
            if IROT == 2: a(f's_mov_b32 s48, s{sNT}')
            if IROT == 3: a(f's_mov_b32 s48, s{sTB}')
    def adv(self, reg):
        a = self.a
        a(f's_add_u32 s{reg}, s{reg}, 1'); a(f's_cmp_eq_u32 s{reg}, {self.KS}'); a(f's_cselect_b32 s{reg}, 0, s{reg}')
    def w_pre(self, ks):
        a = self.a
        def su():
            if self.dyn and DYN == 1 and 4 <= ks < self.nw0:
                a('s_add_u32 s51, s49, 16'); a('s_and_b32 s51, s51, 127')
                a(f's_add_u32 m0, s{sLB}, {(ks % D)*4096}'); self.sub('s51', ks); a(f's_mul_i32 s50, s51, {32*896}')
                return
            if self.dyn:
                if ks and ks % 4 == 0: self.pick(ks // 4)
                a(f's_add_u32 m0, s{sLB}, {(ks % D)*4096}'); self.sub('s49', ks); a(f's_mul_i32 s50, s51, {32*896}'); a('s_lshl_b32 s51, s51, 10')
                return
            if ks: self.adv(49)
            a(f's_add_u32 m0, s{sLB}, {(ks % self.DW)*4096}'); a(f's_mul_i32 s50, s49, {32*896}')
        def d(m):
            def f(): self.tW[ks] = a.vmem(f'buffer_load_dwordx4 v{WV(m)}, s[{SW_}:{SW_+3}], s50 offen offset:{1024*m} lds')
            return f
        return [su] + [d(m) for m in range(4)]
    def sub(self, base, ks):
        a = self.a
        if IROT:
            a(f's_add_u32 s73, s48, {ks % 4}'); a('s_and_b32 s73, s73, 3'); a(f's_add_u32 s51, {base}, s73')
        else: a(f's_add_u32 s51, {base}, {ks % 4}')
    def ready_mask(self):
        a = self.a
        a('s_lshr_b32 s73, vcc_lo, 1'); a('s_and_b32 s73, s73, vcc_lo'); a(f's_and_b32 s{sROT}, s73, 0x5555')
    def pick(self, j):
        a = self.a; T = f'K2_d{j}'
        if DYN == 1:
            a('s_add_u32 s49, s49, 16'); a('s_and_b32 s49, s49, 127'); a('s_lshr_b32 s73, s49, 3'); a('s_lshl_b32 s43, 1, s73')
            test = f's_and_b32 s73, s{sROT}, s43'
        else:
            test = f's_andn2_b32 s73, s{sROT}, s43'
        SMP = E0 + 12 + (j & 1)
        if EARLY and j >= 3:
            a(f'v_cmp_eq_u32 vcc, s{sNON}, v{SMP}'); a('s_nop 1')
            a('s_lshr_b32 s73, vcc_lo, 1'); a('s_and_b32 s73, s73, vcc_lo'); a('s_and_b32 s73, s73, 0x5555'); a(f's_or_b32 s{sROT}, s{sROT}, s73')
        if EARLY and j <= 5: a.vmem(f'buffer_load_dword v{SMP}, v{T0}, s[{SF_}:{SF_+3}], 0 offen {SC}')
        a(f's_mov_b32 s{sT[1]}, 0x8000')
        a.label(f'{T}_l')
        a(test); a(f's_cbranch_scc1 {T}_g')
        a(f'buffer_load_dword v{T1}, v{T0}, s[{SF_}:{SF_+3}], 0 offen {SC}')
        a('s_waitcnt vmcnt(0)')
        a(f'v_cmp_eq_u32 vcc, s{sNON}, v{T1}'); a('s_nop 1')
        self.ready_mask()
        a(test); a(f's_cbranch_scc1 {T}_g')
        a('s_sleep 4')
        a(f's_sub_u32 s{sT[1]}, s{sT[1]}, 1'); a(f's_cmp_lg_u32 s{sT[1]}, 0'); a(f's_cbranch_scc1 {T}_l')
        a(f's_mov_b32 s{sROT}, 0x5555'); a(f's_branch {T}_l')
        a.label(f'{T}_g')
        if DYN != 1: a('s_ff1_i32_b32 s73, s73'); a('s_bitset1_b32 s43, s73'); a('s_lshl_b32 s49, s73, 3')
    def b_setup(self):
        a = self.a; KS = self.KS; NKS = 4*KS; TE = 136
        lane_id(a, LANE)
        a(f'v_bfe_u32 v{GG}, v{LANE}, 4, 2')
        a(f'v_lshlrev_b32 v{BV(0)}, 4, v{LANE}')
        if RED3:
            a(f'v_mov_b32 v{L16}, v{BV(0)}')
            for tb in range(4):
                a(f's_add_u32 s73, s{sWAVE}, {tb}'); a('s_and_b32 s73, s73, 3'); a(f's_mul_i32 s73, s73, {NKS*1024}'); a(f'v_add_u32 v{BV(tb)}, s73, v{L16}')
        else:
            a(f'v_mov_b32 v{L16}, v{BV(0)}')
            for tb in range(1, 4): a(f'v_add_u32 v{BV(tb)}, {tb*NKS*1024}, v{BV(0)}')
        a(f's_mul_i32 s73, s{sTB}, {4*NKS*1024}'); a(f's_mul_i32 s74, s{sWAVE}, {(4 if self.dyn else KS)*1024}'); a('s_add_u32 s73, s73, s74')
        srd(a, SA_, sWS, WS_O if self.kid == 3 else WS_H, 0, 73); a(f's_sub_u32 s{SA_+2}, {128*NKS*1024}, s73')
        a(f'v_bfe_u32 v{T0}, v{LANE}, 2, 4'); a(f'v_bfe_u32 v{T1}, v{T0}, 1, 2')
        a(f'v_lshlrev_b32 v{T0}, 7, v{T0}'); a(f'v_and_b32 v{TE}, 3, v{LANE}'); a(f'v_lshl_add_u32 v{T0}, v{TE}, 3, v{T0}'); a(f'v_add_u32 v{T0}, s{sLB}, v{T0}')
        for nb in range(4):
            a(f'v_xor_b32 v{TE}, {nb}, v{T1}'); a(f'v_lshl_add_u32 v{RA(nb)}, v{TE}, 5, v{T0}')
        if not self.dyn: a(f's_mov_b32 s48, s{sROT}')
    def early(self):
        a = self.a
        self.w_setup(); self.b_setup()
        a(f's_lshr_b32 s73, s{sTB}, 1'); a('s_lshl_b32 s73, s73, 7'); a(f'v_lshlrev_b32 v{T0}, 2, v{LANE}'); a(f'v_add_u32 v{T0}, s73, v{T0}')
        a(f'v_add_u32 v136, {FL_M+448}, v{BV(0)}')
        a(f'buffer_load_dword v{T1}, v{T0}, s[{SF_}:{SF_+3}], 0 offen {SC}')
        a(f'buffer_load_dword v137, v136, s[{SF_}:{SF_+3}], 0 offen {SC}')
    def b_load(self, ks, m):
        a = self.a
        if m == 0 and self.dyn:
            if ks == 4 and DYN == 1 and self.nw0 > 4: self.pick(1)
            if ks < self.nw0: self.sub('s49', ks); a('s_lshl_b32 s51, s51, 10')
        elif m == 0:
            if ks: self.adv(48)
            a('s_lshl_b32 s51, s48, 10')
        self.tB[ks] = a.vmem(f'buffer_load_dwordx4 {vr(BF(ks % D, m),4)}, v{BV(m)}, s[{SA_}:{SA_+3}], s51 offen {BSC}')
    def areads(self, ks):
        return [f'ds_read_b64_tr_b16 {vr(AF(ks&1,nb)+2*h,2)}, v{RA(nb)} offset:{(ks % self.DW)*4096 + h*2048}' for nb in range(4) for h in range(2)]
    def main(self, sp):
        a = self.a; KS = self.KS; kid = self.kid
        NW0 = self.nw0
        for ks in range(PF):
            wq = self.w_pre(ks) if ks >= NW0 else None
            if wq: wq[0]()
            for m in range(4):
                if wq: wq[1+m]()
                self.b_load(ks, m)
            if ks == (1 if self.nw0 < 4 else 0):
                if self.nw0 < 4: a.wait_vm(self.tW[0])
                for x in self.areads(0): a(x)
        EP = {}
        for ks in range(KS):
            nxt = []
            if ks + 1 < KS:
                t = self.tB[ks+1] if ks + 1 < NW0 else max(self.tB[ks+1], self.tW[ks+1])
                a.wait_vm(max(t, self.tB[ks]), ' lgkmcnt(0)'); nxt = self.areads(ks+1)
            else: a('s_waitcnt lgkmcnt(0)')
            pf = ks + PF; i = 0
            wp = self.w_pre(pf) if pf < KS else []
            if self.DW != D:
                pw = ks + self.DW - 1
                wp = self.w_pre(pw) if (ks >= 1 and pw < KS) else []
            for nb in range(4):
                for tb in range(4):
                    c = vr(ACC(nb, tb), 4)
                    a(f'{M16} {c}, {vr(AF(ks&1,nb),4)}, {vr(BF(ks % D, tb),4)}, {c if ks else 0}')
                    if i < 8 and nxt: a(nxt.pop(0))
                    if wp and i == 0: wp[0]()
                    if i >= 8:
                        m = (i - 8) >> 1
                        if i & 1:
                            if pf < KS: self.b_load(pf, m)
                        elif wp: wp[1+m]()
                    i += 1
            if ks == KS - PF:
                EPB = BF((ks + PF) % D, 0); EP['B'] = EPB
                a(f'v_and_b32 v{E0+5}, 15, v{LANE}')
                a(f's_lshl_b32 s52, s{sTB}, 6'); a(f's_lshl_b32 s53, s{sWAVE}, 4'); a('s_add_u32 s52, s52, s53')
                a(f's_lshl_b32 s44, s{sNT}, 8')
                srd(a, SM_, sWS, WS_MOD, 6*448*4)
                a(f'v_lshlrev_b32 v{E0+6}, 4, v{GG}')
                a(f's_add_u32 s47, s44, {(2 if kid == 3 else 5)*1792}')
                for nb in range(4): a.vmem(f'buffer_load_dwordx4 {vr(EPB+4*nb,4)}, v{E0+6}, s[{SM_}:{SM_+3}], s47 offen offset:{64*nb} {SC}')
            if ks == KS - PF + 1 and kid == 3:
                EPC = BF((ks + PF) % D, 0); EP['C'] = EPC
                a(f's_add_u32 s47, s44, {4*1792}')
                for nb in range(4): a.vmem(f'buffer_load_dwordx4 {vr(EPC+4*nb,4)}, v{E0+6}, s[{SM_}:{SM_+3}], s47 offen offset:{64*nb} {SC}')
            if ks == KS - PF + 2:
                EPX = BF((ks + PF) % D, 0); EP['X'] = EPX
                a('s_lshr_b32 s56, s52, 4'); a(f's_mul_i32 s56, s56, {14*1024}'); a(f's_lshl_b32 s57, s{sNT}, 11'); a('s_add_u32 s56, s56, s57')
                a('s_mul_i32 s58, s52, 896'); a(f's_lshl_b32 s57, s{sNT}, 7'); a('s_add_u32 s58, s58, s57')
                a(f'v_mul_u32_u24 v{E0+7}, 896, v{E0+5}')
                if kid == 3: a(f'v_lshl_add_u32 v{E0+7}, v{GG}, 3, v{E0+7}')
                else:
                    a(f'v_and_b32 v{E0+4}, 1, v{GG}'); a(f'v_lshl_add_u32 v{E0+7}, v{E0+4}, 5, v{E0+7}')
                    a(f'v_lshrrev_b32 v{E0+4}, 1, v{GG}'); a(f'v_lshl_add_u32 v{E0+7}, v{E0+4}, 4, v{E0+7}')
                srd(a, SX_, sX if kid == 3 else sOUT, 0, 2048*896)
                if kid == 3:
                    for nb in range(4): a.vmem(f'buffer_load_dwordx2 {vr(EPX+2*nb,2)}, v{E0+7}, s[{SX_}:{SX_+3}], s58 offen offset:{32*nb}')
                    srd(a, SO2, sWS, WS_Y, 128*14*1024); srd(a, SO3, sWS, WS_STAT, 7*2048*8)
                elif self.X1MEM:
                    srd(a, SO2, sWS, WS_X1, 128*14*1024)
                    for hh in range(2): a.vmem(f'buffer_load_dwordx4 {vr(EPX+4*hh,4)}, v{L16}, s[{SO2}:{SO2+3}], s56 offen offset:{1024*hh} {SC}')
        sp.stamp()
        if RED3:
            a(f'v_add_u32 v{E0+8}, s{sLB}, v{L16}')
            for t in range(1, 4):
                a(f's_sub_u32 s59, s{sWAVE}, {t}'); a('s_and_b32 s59, s59, 3')
                if self.DW != D: a(f's_mul_i32 s73, s59, {self.DW*4096}')
                else: a('s_lshl_b32 s73, s59, 15'); a('s_cmp_eq_u32 s59, 3'); a('s_cselect_b32 s73, 0x20000, s73')
                a(f'v_add_u32 v{E0+8+t}, s73, v{L16}')
            for t in range(1, 4):
                for nb in range(4): a(f'ds_write_b128 v{E0+8}, {vr(ACC(nb,t),4)} offset:{((t-1)*4+nb)*1024}')
            a('s_waitcnt lgkmcnt(0)'); a('s_barrier')
            R_ = lambda t, nb: ACC(nb, t)
            for t in range(1, 4):
                for nb in range(4): a(f'ds_read_b128 {vr(R_(t,nb),4)}, v{E0+8+t} offset:{((t-1)*4+nb)*1024}')
            a('s_waitcnt lgkmcnt(8)')
            for nb in range(4):
                for i in range(4): a(f'v_add_f32 v{64+4*nb+i}, v{ACC(nb,0)+i}, v{R_(1,nb)+i}')
            a('s_waitcnt lgkmcnt(0)')
            if kid == 3: a('s_barrier')
            for nb in range(4):
                for i in range(4): a(f'v_add_f32 v{ACC(nb,2)+i}, v{ACC(nb,2)+i}, v{ACC(nb,3)+i}')
            for nb in range(4):
                for i in range(4): a(f'v_add_f32 v{4*nb+i}, v{64+4*nb+i}, v{ACC(nb,2)+i}')
        else:
            a(f'v_add_u32 v{E0+8}, s{sLB}, v{L16}')
            a(f's_lshl_b32 s59, s{sWAVE}, 12')
            a(f'v_add_u32 v{E0+9}, s59, v{L16}'); a(f'v_add_u32 v{E0+10}, 65536, v{E0+9}'); a(f'v_add_u32 v{E0+11}, 131072, v{E0+9}')
            a.nop(3)
            for tb in range(4):
                for nb in range(4): a(f'ds_write_b128 v{E0+8}, {vr(ACC(nb,tb),4)} offset:{(tb*4+nb)*1024}')
            a('s_waitcnt lgkmcnt(0)'); a('s_barrier')
            for src in range(4):
                for nb in range(4):
                    a(f'ds_read_b128 {vr((src*4+nb)*4,4)}, v{E0+9+max(0,src-1)} offset:{(32768 if src == 1 else 0) + nb*1024}')
            a('s_waitcnt lgkmcnt(8)')
            for i in range(16): a(f'v_add_f32 v{i}, v{i}, v{16+i}')
            a('s_waitcnt lgkmcnt(0)')
            if kid == 3: a('s_barrier')
            for i in range(16): a(f'v_add_f32 v{32+i}, v{32+i}, v{48+i}')
            for i in range(16): a(f'v_add_f32 v{i}, v{i}, v{32+i}')
        sp.stamp()
        EPB = EP['B']
        a('s_waitcnt vmcnt(0)')
        for i in range(0, 16, 2): a(f'v_cvt_pk_bf16_f32 v{16+i//2}, v{i}, v{i+1}')
        for i in range(8): unpack(a, 2*i, 2*i+1, 16+i)
        for i in range(16): a(f'v_mul_f32 v{i}, v{i}, v{EPB+i}')
        for i in range(0, 16, 2): a(f'v_cvt_pk_bf16_f32 v{16+i//2}, v{i}, v{i+1}')
        if kid == 5 and not self.X1MEM:
            for i in range(8): a(f'v_accvgpr_read_b32 v{24+i}, a{X1A+i}')
            EPX = 24
        else: EPX = EP['X']
        for i in range(8): unpack(a, 2*i, 2*i+1, 16+i)
        for i in range(8): unpack(a, 32+2*i, 33+2*i, EPX+i)
        for i in range(16): a(f'v_add_f32 v{i}, v{i}, v{32+i}')
        for i in range(0, 16, 2): a(f'v_cvt_pk_bf16_f32 v{16+i//2}, v{i}, v{i+1}')
        if kid == 5:
            a('s_nop 0')
            for p in range(2):
                for d in range(2): a(f'v_permlane16_swap_b32 v{16+4*p+d}, v{18+4*p+d}')
            for p in range(2): a(f'buffer_store_dwordx4 {vr(16+4*p,4)}, v{E0+7}, s[{SX_}:{SX_+3}], s58 offen offset:{64*p}')
            return
        EPC = EP['C']
        for i in range(8): unpack(a, 2*i, 2*i+1, 16+i)
        for i in range(16): a(f'v_mul_f32 v{32+i}, v{i}, v{EPC+i}')
        for i in range(0, 16, 2): a(f'v_cvt_pk_bf16_f32 v{24+i//2}, v{32+i}, v{33+i}')
        for hh in range(2): a.vmem(f'buffer_store_dwordx4 {vr(24+4*hh,4)}, v{L16}, s[{SO2}:{SO2+3}], s56 offen offset:{1024*hh} {SC}')
        a('v_add_f32 v48, v0, v1'); a('v_mul_f32 v49, v0, v0'); a('v_add_f32 v50, v2, v3'); a('v_mul_f32 v51, v2, v2')
        a('v_fmac_f32 v49, v1, v1'); a('v_fmac_f32 v51, v3, v3')
        for i in range(4, 16, 2):
            a(f'v_add_f32 v48, v48, v{i}'); a(f'v_fmac_f32 v49, v{i}, v{i}'); a(f'v_add_f32 v50, v50, v{i+1}'); a(f'v_fmac_f32 v51, v{i+1}, v{i+1}')
        a('v_add_f32 v48, v48, v50'); a('v_add_f32 v49, v49, v51')
        for sw in ('v_permlane32_swap_b32', 'v_permlane16_swap_b32'):
            a('v_mov_b32 v50, v48'); a('v_mov_b32 v51, v49'); a('s_nop 0'); a(f'{sw} v48, v50'); a(f'{sw} v49, v51'); a('s_nop 0')
            a('v_add_f32 v48, v48, v50'); a('v_add_f32 v49, v49, v51')
        a(f'v_lshlrev_b32 v50, 3, v{E0+5}')
        a(f's_lshl_b32 s57, s{sNT}, 14'); a('s_lshl_b32 s59, s52, 3'); a('s_add_u32 s57, s57, s59')
        self.tlast = a.vmem(f'buffer_store_dwordx2 v[48:49], v50, s[{SO3}:{SO3+3}], s57 offen {SC}')
        for i in range(8): a(f'v_accvgpr_write_b32 a{X1A+i}, v{16+i}')

def uw_phase(a, T):
    if SPF:
        a(f's_sub_u32 s44, s{sIDX}, 28'); a('s_lshl_b32 s44, s44, 2'); a(f's_add_u32 s44, s44, s{sWAVE}'); a('s_mul_i32 s44, s44, 28672')
        srd(a, 16, sWO, 0, 4096*896)
        lane_id(a, 0); a('v_lshlrev_b32 v0, 7, v0')
        for i in range(1, 4): a(f'v_add_u32 v{i}, {8192*i}, v0')
        a('s_and_b32 s45, s2, 7')
        for j in range(8):
            a(f's_mul_i32 s46, s45, {16*28672}'); a('s_add_u32 s46, s46, s44')
            for i in range(4): a(f'buffer_load_dword v{8+i}, v{i}, s[16:19], s46 offen')
            a('s_add_u32 s45, s45, 1'); a('s_and_b32 s45, s45, 7')
            a(f's_waitcnt vmcnt({SPW})')
    a(f's_sub_u32 s13, s{sIDX}, 28'); a('s_lshl_b32 s13, s13, 3'); a('s_and_b32 s12, s2, 7'); a('s_add_u32 s13, s13, s12')
    a('s_cmp_ge_u32 s13, 28'); a(f's_cbranch_scc1 {T}_{"w2" if SP2 else "end"}')
    lane_id(a, 0); a(f's_lshl_b32 s12, s{sWAVE}, 6'); a('v_add_u32 v0, s12, v0')
    if LATE:
        lane_id(a, 1); a('v_lshlrev_b32 v1, 4, v1'); a(f'v_add_u32 v1, {FL_M+448}, v1')
        poll(a, f'{T}_u', 1, 2, 0xffffffff, (1, 3, 56))
    a('v_and_b32 v1, 7, v0'); a('v_lshrrev_b32 v2, 3, v0')
    a('v_mul_u32_u24 v3, 3584, v2'); a('v_lshl_add_u32 v3, v1, 4, v3'); a('v_lshlrev_b32 v4, 2, v2')
    a('s_lshl_b32 s44, s13, 7'); a('s_lshl_b32 s45, s13, 8')
    srd(a, 16, sW1, 0, 448*3584); srd(a, 20, sWS, WS_MOD + 3*1792, 2*1792); srd(a, 24, sWS, WS_U, 0x4000)
    CS, CC, Wr = 8, 24, 40
    for i in range(14):
        a(f'buffer_load_dword v{CS+i}, v4, s[20:23], 0 offen offset:{128*i} {SC}')
        a(f'buffer_load_dword v{CC+i}, v4, s[20:23], 0 offen offset:{1792+128*i} {SC}')
    for i in range(14):
        a(f's_add_u32 s46, s44, {32*3584*i}')
        a(f'buffer_load_dwordx4 {vr(Wr+4*i,4)}, v3, s[16:19], s46 offen')
    AU, AW = 96, 104
    for i in range(14):
        a(f's_waitcnt vmcnt({13-i})')
        for j in range(4):
            unpack(a, 112, 113, Wr+4*i+j)
            op = 'v_mul_f32' if i == 0 else 'v_fmac_f32'
            a(f'{op} v{AU+2*j}, v112, v{CC+i}'); a(f'{op} v{AU+2*j+1}, v113, v{CC+i}')
            a(f'{op} v{AW+2*j}, v112, v{CS+i}'); a(f'{op} v{AW+2*j+1}, v113, v{CS+i}')
    a('v_lshlrev_b32 v5, 8, v2'); a('v_lshl_add_u32 v5, v1, 5, v5')
    a(f'ds_write_b128 v5, {vr(AU,4)}'); a(f'ds_write_b128 v5, {vr(AU+4,4)} offset:16')
    a(f'ds_write_b128 v5, {vr(AW,4)} offset:8192'); a(f'ds_write_b128 v5, {vr(AW+4,4)} offset:8208')
    a('v_and_b32 v6, 63, v0'); a('v_lshlrev_b32 v6, 2, v6'); a('v_bfe_u32 v7, v0, 6, 1'); a('v_lshl_add_u32 v8, v7, 13, v6')
    a('s_waitcnt lgkmcnt(0)'); a('s_barrier')
    for i in range(32): a(f'ds_read_b32 v{40+i}, v8 offset:{256*i}')
    a('s_waitcnt lgkmcnt(0)')
    n = 32
    while n > 1:
        n //= 2
        for i in range(n): a(f'v_add_f32 v{40+i}, v{40+i}, v{40+n+i}')
    a(f'v_mov_b32 v41, {f32(LOG2E)}'); a('v_cmp_eq_u32 vcc, 0, v7'); a('s_nop 1'); a('v_cndmask_b32 v41, v41, 1.0, vcc'); a('v_mul_f32 v40, v40, v41')
    a(f'buffer_store_dword v40, v8, s[24:27], s45 offen {SC}')
    a('s_waitcnt vmcnt(0)'); a('s_barrier')
    a(f's_lshl_b32 s46, s13, 2'); a(f's_add_u32 s46, s46, {FL_U}')
    set_flag(a, f'{T}_u', 46, 1)
    if SP2:
        a.label(f'{T}_w2')
        lane_id(a, 0); a('s_and_b32 s44, s2, 7'); a('s_lshl_b32 s44, s44, 8'); a(f's_add_u32 s44, s44, {FL_B}')
        a('v_lshlrev_b32 v1, 2, v0'); a('v_add_u32 v1, s44, v1')
        poll(a, f'{T}_v', 1, 2, 0x3fff)
        srd(a, 16, sW2, 0, 1792*896)
        a(f's_sub_u32 s44, s{sIDX}, 28'); a('s_lshl_b32 s44, s44, 2'); a(f's_add_u32 s44, s44, s{sWAVE}'); a('s_lshl_b32 s44, s44, 13')
        a('v_lshlrev_b32 v0, 7, v0')
        for i in range(13):
            a(f'buffer_load_dword v{8+(i&3)}, v0, s[16:19], s44 offen'); a(f's_add_u32 s44, s44, {16*8192}')

class Mlp1:
    NS = 14
    ACC = staticmethod(lambda fb, tb: (fb*2+tb)*4)
    BF = staticmethod(lambda ks, tb: 64 + (ks*2+tb)*4)
    U_ = staticmethod(lambda fb: 176 + 4*fb)
    W_ = staticmethod(lambda fb: 208 + 4*fb)
    RA = staticmethod(lambda i: 240 + i)
    WV = staticmethod(lambda m: 248 + m)
    BV = staticmethod(lambda tb: 250 + tb)
    E0 = 252
    AF = staticmethod(lambda fb: 4*fb)
    ST = staticmethod(lambda tb, nt: 32 + (tb*7+nt)*2)
    SW, SY, SU, SS, SH = 24, 28, 16, 20, 36
    sTB4, sFT = 76, 77
    V2 = False
    NPART = 7
    def __init__(self, a): self.a = a
    def w_issue(self):
        a = self.a; WV = self.WV
        l, t0, t1, t2 = 244, 245, 246, 247
        a(f's_cmp_ge_u32 s{sIDX}, 14'); a(f's_cselect_b32 s{self.sTB4}, 1, 0'); a(f's_mul_i32 s{self.sFT}, s{self.sTB4}, 14'); a(f's_sub_u32 s{self.sFT}, s{sIDX}, s{self.sFT}')
        a('s_and_b32 s44, s2, 7'); a('s_lshl_b32 s44, s44, 1'); a(f's_add_u32 s{self.sTB4}, s{self.sTB4}, s44')
        lane_id(a, l)
        a(f'v_and_b32 v{t2}, 15, v{l}')
        a(f's_mul_i32 s45, s{sWAVE}, {8*3584}')
        for m in range(2):
            a(f'v_lshrrev_b32 v{t0}, 4, v{l}')
            if m: a(f'v_add_u32 v{t0}, 4, v{t0}')
            a(f'v_lshlrev_b32 v{t1}, 1, v{t0}'); a(f'v_xor_b32 v{t1}, v{t1}, v{t2}'); a(f'v_lshlrev_b32 v{t1}, 4, v{t1}')
            a(f'v_mul_u32_u24 v{t0}, 3584, v{t0}'); a(f'v_add3_u32 v{WV(m)}, v{t0}, v{t1}, s45')
            if m: a(f'v_subrev_u32 v{WV(m)}, 1024, v{WV(m)}')
        a(f's_lshl_b32 s46, s{self.sFT}, 8'); a(f's_lshl_b32 s48, s{sWAVE}, 11')
        srd(a, self.SW, sW1, 0, 0, 46); a(f's_sub_u32 s{self.SW+2}, {448*3584}, s46')
        self.w_more(0, 2*NPRE)
    def w_more(self, k0, k1):
        a = self.a; WV = self.WV
        for ks in range(k0, k1 if not os.environ.get('NOW1') else k0):
            a(f's_add_u32 m0, s48, {ks*8192}'); a(f's_mov_b32 s50, {ks*32*3584}')
            for m in range(2): a.vmem(f'buffer_load_dwordx4 v{WV(m)}, s[{self.SW}:{self.SW+3}], s50 offen offset:{1024*m} lds')
    def setup(self):
        a = self.a; RA = self.RA; BV = self.BV; E0 = self.E0
        L, t0, t1, t2 = 1, 2, 3, 4
        lane_id(a, L)
        a(f'v_bfe_u32 v{t0}, v{L}, 2, 4'); a(f'v_and_b32 v{t1}, 7, v{t0}'); a(f'v_lshlrev_b32 v{t0}, 8, v{t0}')
        a(f'v_and_b32 v{t2}, 3, v{L}'); a(f'v_lshl_add_u32 v{t0}, v{t2}, 3, v{t0}')
        for i in range(8):
            a(f'v_xor_b32 v{t2}, {i}, v{t1}'); a(f'v_lshl_add_u32 v{RA(i)}, v{t2}, 5, v{t0}')
        a(f's_mul_i32 s44, s{sWAVE}, {2*14336}'); a(f'v_lshlrev_b32 v{t0}, 4, v{L}')
        a(f'v_add_u32 v{BV(0)}, s44, v{t0}'); a(f'v_add_u32 v{BV(1)}, 14336, v{BV(0)}')
        a(f'v_lshrrev_b32 v{t1}, 4, v{L}'); a(f'v_lshlrev_b32 v{E0}, 4, v{t1}')
        a(f's_lshl_b32 s44, s{sWAVE}, 8'); a(f'v_and_b32 v{t2}, 15, v{L}'); a(f'v_lshlrev_b32 v{t2}, 3, v{t2}'); a(f'v_add_u32 v{E0+1}, s44, v{t2}')
        a(f's_mul_i32 s44, s{sWAVE}, {2*56*1024}'); a(f'v_add_u32 v{E0+2}, s44, v{t0}'); a(f'v_add_u32 v{E0+3}, {56*1024}, v{E0+2}')
        a(f's_mul_i32 s45, s{self.sTB4}, {8*14336}')
        srd(a, self.SY, sWS, WS_Y, 8*14336, 45)
        srd(a, self.SU, sWS, WS_U, 0x4000); srd(a, self.SS, sWS, WS_STAT, 8*2048*8)
        a(f's_mul_i32 s52, s{self.sTB4}, {8*56*1024}'); a(f's_lshl_b32 s53, s{self.sFT}, 12'); a('s_add_u32 s52, s52, s53')
        srd(a, self.SH, sWS, WS_H, 0, 52); a(f's_sub_u32 s{self.SH+2}, {128*56*1024}, s52')
        a(f's_lshl_b32 s44, s{self.sFT}, 9'); a('s_add_u32 s45, s44, 0x2000'); a(f's_lshl_b32 s56, s{self.sTB4}, 10')
        a(f's_lshl_b32 s46, s{self.sTB4}, 7'); a(f's_add_u32 s46, s46, {FL_B}')
        if self.V2:
            a(f'v_lshlrev_b32 v{t0}, 2, v{L}'); a(f'v_add_u32 v{t0}, s46, v{t0}')
            return t0
        a(f's_lshl_b32 s47, s{self.sFT}, 3'); a(f's_add_u32 s47, s47, {FL_U - 56}')
        a(f'v_mov_b32 v{t0}, s46'); a(f'v_mov_b32 v{t1}, s47'); a(f'v_cmp_gt_u32 vcc, 14, v{L}'); a('s_nop 1')
        a(f'v_cndmask_b32 v{t0}, v{t1}, v{t0}, vcc'); a(f'v_lshl_add_u32 v{t0}, v{L}, 2, v{t0}')
        return t0
    def main(self, sp, w2pre):
        a = self.a; NS = self.NS
        ACC, BF, U_, W_, RA, BV, E0, AF, ST = self.ACC, self.BF, self.U_, self.W_, self.RA, self.BV, self.E0, self.AF, self.ST
        tk = {}
        LA = 5
        def ld(ks, m):
            if m == 0: a(f's_mov_b32 s51, {ks*1024}')
            tk[ks] = a.vmem(f'buffer_load_dwordx4 {vr(BF(ks,m),4)}, v{BV(m)}, s[{self.SY}:{self.SY+3}], s51 offen {SC}')
        def aread(ks, fb, h): return f'ds_read_b64_tr_b16 {ar(AF(fb)+2*h,2)}, v{RA(fb)} offset:{(ks % 8)*8192 + h*4096}'
        for ks in range(LA):
            for m in range(2): ld(ks, m)
        if not self.V2 and not getattr(self, 'nobar', False): a('s_barrier')
        for fb in range(8):
            for h in range(2): a(aread(0, fb, h))
        extra = []
        for nt in range(self.NPART):
            for tb in range(2):
                def f(nt=nt, tb=tb):
                    a(f's_add_u32 s57, s56, {nt*16384 + tb*128}')
                    a.vmem(f'buffer_load_dwordx2 {ar(ST(tb,nt),2)}, v{E0+1}, s[{self.SS}:{self.SS+3}], s57 offen {SC}')
                extra.append(f)
        for fb in range(0 if self.V2 else 8):
            extra.append(lambda fb=fb: a.vmem(f'buffer_load_dwordx4 {vr(U_(fb),4)}, v{E0}, s[{self.SU}:{self.SU+3}], s44 offen offset:{64*fb} {SC}'))
            extra.append(lambda fb=fb: a.vmem(f'buffer_load_dwordx4 {vr(W_(fb),4)}, v{E0}, s[{self.SU}:{self.SU+3}], s45 offen offset:{64*fb} {SC}'))
        a.wait_vm(tk[0], ' lgkmcnt(0)')
        for ks in range(NS):
            G_ = [[] for _ in range(16)]
            if ks >= 1:
                G_[0].append(aread(ks, 7, 0)); G_[1].append(aread(ks, 7, 1))
            G_[5].insert(0, 's_waitcnt lgkmcnt(4)'); G_[13].insert(0, 's_waitcnt lgkmcnt(4)')
            if ks + 1 < NS:
                G_[15].append(lambda ks=ks: a.wait_vm(tk[ks+1]))
                if ks + 1 == 8:
                    for i in range(7): G_[1].append(f'v_add_u32 v{RA(i)}, 65536, v{RA(i)}')
                for k in range(14): G_[k+2].append(aread(ks+1, k >> 1, k & 1))
            if ks == 7: G_[15].append(f'v_add_u32 v{RA(7)}, 65536, v{RA(7)}')
            slots = [3, 7, 11, 14]
            if ks + LA < NS:
                for m in range(2): G_[slots.pop(0)].append(lambda ks=ks, m=m: ld(ks + LA, m))
            for k in slots:
                if extra: G_[k].append(extra.pop(0))
            for fb in range(8):
                for tb in range(2):
                    k = fb*2 + tb
                    c = vr(ACC(fb, tb), 4)
                    a(f'{M16} {c}, {ar(AF(fb),4)}, {vr(BF(ks,tb),4)}, {c if ks else 0}')
                    for x in G_[k]: x() if callable(x) else a(x)
        assert not extra
        sp.stamp()
        a('s_waitcnt vmcnt(0)'); a('s_barrier')
        B0 = 64
        MEAN = lambda tb: B0 + 32 + tb
        RS = lambda tb: B0 + 34 + tb
        pre = list(w2pre)
        def fill(n=1):
            for _ in range(n):
                if pre: pre.pop(0)()
        NP = self.NPART
        if self.V2:
            for fb in range(8):
                a(f'ds_read_b128 {vr(U_(fb),4)}, v{E0} offset:{64*fb}'); a(f'ds_read_b128 {vr(W_(fb),4)}, v{E0} offset:{512+64*fb}')
        fill(1)
        for tb in range(2):
            for i in range(2*NP): a(f'v_accvgpr_read_b32 v{B0+tb*16+i}, a{ST(tb,0)+i}')
        fill(2)
        for tb in range(2):
            b = B0 + tb*16
            for nt in range(1, NP):
                a(f'v_add_f32 v{b}, v{b}, v{b+2*nt}'); a(f'v_add_f32 v{b+1}, v{b+1}, v{b+2*nt+1}')
        fill(1)
        for tb in range(2):
            b = B0 + tb*16
            a(f'v_mul_f32 v{b}, {f32(1/448)}, v{b}'); a(f'v_mul_f32 v{b+1}, {f32(1/448)}, v{b+1}')
            a(f'v_fma_f32 v{b+1}, -v{b}, v{b}, v{b+1}'); a(f'v_max_f32 v{b+1}, 0, v{b+1}')
            rbf(a, b+1, b+1); a(f'v_add_f32 v{b+1}, {f32(1e-5)}, v{b+1}'); rbf(a, b+1, b+1)
            a(f'v_sqrt_f32 v{b+1}, v{b+1}'); rbf(a, MEAN(tb), b)
            rbf(a, b+1, b+1); a(f'v_rcp_f32 v{RS(tb)}, v{b+1}')
            a(f'v_sub_f32 v{MEAN(tb)}, 0, v{MEAN(tb)}')
            fill(1)
        TT = B0 + 40; LP = B0 + 38
        a(f'v_mov_b32 v{LP}, {f32(LOG2E)}')
        if self.V2: a('s_waitcnt lgkmcnt(0)')
        for tb in range(2): a(f'v_mul_f32 v{RS(tb)}, {f32(LOG2E)}, v{RS(tb)}')
        if not EPI:
            for sq in range(4):
                for tb in range(2):
                    rg = [(ACC(2*sq+e, tb)+r, U_(2*sq+e)+r, W_(2*sq+e)+r) for e in range(2) for r in range(4)]
                    tm = [TT + ((sq*2+tb) % 2)*8 + i for i in range(8)]
                    for (x, u, w) in rg: a(f'v_fma_f32 v{x}, v{MEAN(tb)}, v{u}, v{x}')
                    if E4F > 0: fill()
                    for (x, u, w) in rg: a(f'v_fma_f32 v{x}, v{RS(tb)}, v{x}, v{w}')
                    for (x, u, w), t in zip(rg, tm): a(f'v_exp_f32 v{t}, -v{x}')
                    if E4F > 1: fill()
                    for t in tm: a(f'v_fma_f32 v{t}, v{t}, v{LP}, v{LP}')
                    for t in tm: a(f'v_rcp_f32 v{t}, v{t}')
                    if E4F > 2: fill()
                    for (x, u, w), t in zip(rg, tm): a(f'v_mul_f32 v{x}, v{x}, v{t}')
                    d = ACC(2*sq, tb); xs = [r[0] for r in rg]
                    for i in range(4): a(f'v_cvt_pk_bf16_f32 v{d+i}, v{xs[2*i]}, v{xs[2*i+1]}')
                    self.tlast = a.vmem(f'buffer_store_dwordx4 {vr(d,4)}, v{E0+2+tb}, s[{self.SH}:{self.SH+3}], 0 offen offset:{1024*sq} {SC}')
        else:
            grp = [(sq, tb) for sq in range(4) for tb in range(2)]
            def st(gi):
                sq, tb = grp[gi]
                rg = [(ACC(2*sq+e, tb)+r, U_(2*sq+e)+r, W_(2*sq+e)+r) for e in range(2) for r in range(4)]
                tm = [TT + (gi % 3)*8 + i for i in range(8)]
                A = [f'v_fma_f32 v{x}, v{MEAN(tb)}, v{u}, v{x}' for (x, u, w) in rg] + [f'v_fma_f32 v{x}, v{RS(tb)}, v{x}, v{w}' for (x, u, w) in rg]
                B = [f'v_exp_f32 v{t}, -v{x}' for (x, u, w), t in zip(rg, tm)]
                C = [f'v_fma_f32 v{t}, v{t}, v{LP}, v{LP}' for t in tm]
                Dd = [f'v_rcp_f32 v{t}, v{t}' for t in tm]
                d = ACC(2*sq, tb); xs = [r[0] for r in rg]
                E = [f'v_mul_f32 v{x}, v{x}, v{t}' for (x, u, w), t in zip(rg, tm)] + [f'v_cvt_pk_bf16_f32 v{d+i}, v{xs[2*i]}, v{xs[2*i+1]}' for i in range(4)]
                S = f'buffer_store_dwordx4 {vr(d,4)}, v{E0+2+tb}, s[{self.SH}:{self.SH+3}], 0 offen offset:{1024*sq} {SC}'
                return A, B, C, Dd, E, S
            G = [st(i) for i in range(8)]
            for x in G[0][0]: a(x)
            for ph in range(10):
                T1_ = G[ph][1] if ph < 8 else []
                T2_ = G[ph-1][3] if 1 <= ph < 9 else []
                V1 = (G[ph-1][2] if 1 <= ph < 9 else []) + (G[ph-2][4] if 2 <= ph else [])
                V2 = (G[ph+1][0] if ph + 1 < 8 else [])
                for Ts, Vs in ((T1_, V1), (T2_, V2)):
                    Ts = list(Ts); Vs = list(Vs); n = max(len(Ts), 1); k = 0
                    per = -(-len(Vs) // n)
                    while Ts or Vs:
                        if Ts: a(Ts.pop(0))
                        for _ in range(per):
                            if Vs: a(Vs.pop(0))
                    if Vs is not None and Ts is not None and (Ts, Vs) == ([], []) and Vs is not V2: pass
                if ph >= 2:
                    self.tlast = a.vmem(G[ph-2][5])
                if E4F > 0: fill()
                if E4F > 1: fill()
        self.rest = pre

def nonce_reset(a, T):
    a(f's_or_b32 s44, s2, s{sWAVE}'); a('s_cmp_lg_u32 s44, 0'); a(f's_cbranch_scc1 {T}_end')
    a('v_mov_b32 v0, 0'); a('s_mov_b32 s10, 256'); a('s_mov_b32 s11, 0x20000')
    a('s_mov_b64 exec, 1')
    a(f'buffer_store_dword v0, v0, s[8:11], 0 offen {SC}')

def post(a, T):
    sp = Stamper(a, 80, 3); sp.stamp(True); sp.stamp()
    g3 = a.g3
    if g3.dyn and EARLY:
        a('s_lshr_b32 s45, s49, 3'); a('s_lshl_b32 s43, 1, s45')
        a(f's_mov_b32 s{sT[1]}, 0x8000')
        a.label(f'{T}_a_pl')
        a(f'v_cmp_eq_u32 vcc, s{sNON}, v137'); a('s_nop 1'); a('s_bcnt1_i32_b64 s46, vcc')
        a(f'v_cmp_eq_u32 vcc, s{sNON}, v{T1}'); a('s_nop 1')
        g3.ready_mask()
        a('s_cmp_ge_u32 s46, 56'); a(f's_cselect_b32 s73, s{sROT}, 0'); a('s_and_b32 s73, s73, s43'); a(f's_cbranch_scc1 {T}_a_pd')
        a(f's_sleep {PSL}')
        a(f'buffer_load_dword v{T1}, v{T0}, s[{SF_}:{SF_+3}], 0 offen {SC}')
        a(f'buffer_load_dword v137, v136, s[{SF_}:{SF_+3}], 0 offen {SC}')
        a('s_waitcnt vmcnt(0)')
        a(f's_sub_u32 s{sT[1]}, s{sT[1]}, 1'); a(f's_cmp_lg_u32 s{sT[1]}, 0'); a(f's_cbranch_scc1 {T}_a_pl')
        a.label(f'{T}_a_pd')
    elif True:
        for ks in range(NPRE, g3.nw0):
            for f in g3.w_pre(ks): f()
        g3.b_setup()
        a(f's_lshr_b32 s44, s{sTB}, 1'); a('s_lshl_b32 s44, s44, 7'); a(f'v_lshlrev_b32 v{T0}, 2, v{LANE}'); a(f'v_add_u32 v{T0}, s44, v{T0}')
        a(f'v_add_u32 v0, {FL_M+448}, v{L16}')
    if g3.dyn and EARLY: pass
    elif g3.dyn:
        a('s_and_b32 s45, s2, 7'); a('s_lshl_b32 s45, s45, 1'); a('s_lshl_b32 s43, 1, s45')
        a(f's_mov_b32 s{sT[1]}, 0x8000')
        a.label(f'{T}_a_pl')
        a(f'buffer_load_dword v{T1}, v{T0}, s[{SF_}:{SF_+3}], 0 offen {SC}')
        a(f'buffer_load_dword v1, v0, s[{SF_}:{SF_+3}], 0 offen {SC}')
        a('s_waitcnt vmcnt(0)')
        a(f'v_cmp_eq_u32 vcc, s{sNON}, v1'); a('s_nop 1'); a('s_bcnt1_i32_b64 s46, vcc')
        a(f'v_cmp_eq_u32 vcc, s{sNON}, v{T1}'); a('s_nop 1')
        g3.ready_mask()
        a('s_cmp_ge_u32 s46, 56'); a(f's_cselect_b32 s73, s{sROT}, 0'); a('s_and_b32 s73, s73, s43'); a(f's_cbranch_scc1 {T}_a_pd')
        a(f's_sleep {PSL}')
        a(f's_sub_u32 s{sT[1]}, s{sT[1]}, 1'); a(f's_cmp_lg_u32 s{sT[1]}, 0'); a(f's_cbranch_scc1 {T}_a_pl')
        a.label(f'{T}_a_pd')
        a.vm = 0
    else:
        poll(a, f'{T}_a', T0, T1, 0xffff, (0, 1, 56) if LATE else None)
    sp.stamp()
    g3.main(sp)
    m = Mlp1(a)
    m.w_issue()
    a.wait_vm(g3.tlast); a('s_barrier')
    a(f's_lshr_b32 s44, s{sTB}, 1'); a('s_lshl_b32 s44, s44, 7'); a(f's_and_b32 s45, s{sTB}, 1'); a('s_mul_i32 s45, s45, 7'); a(f's_add_u32 s45, s45, s{sNT}')
    a('s_lshl_b32 s45, s45, 2'); a('s_add_u32 s44, s44, s45'); a(f's_add_u32 s44, s44, {FL_B}')
    set_flag(a, f'{T}_b', 44, 8)
    sp.stamp(); sp.stamp(True); sp.dump(sWS, sWAVE, 8)
    sp = Stamper(a, 80, 4); sp.stamp(True); sp.stamp()
    m.w_more(2*NPRE, 14)
    pa = m.setup()
    poll(a, f'{T}_b', pa, pa + 1, 0xffff, one=bool(PW0))
    m.nobar = bool(PW0)
    sp.stamp()
    g5 = Gemm(a, 5)
    pre = [g5.w_setup]
    for ks in range(g5.DW if g5.DW != D else PF): pre += g5.w_pre(ks)
    m.main(sp, pre)
    sp.stamp()
    a.wait_vm(m.tlast); a('s_barrier')
    a(f's_lshl_b32 s44, s{m.sTB4}, 7'); a(f's_lshl_b32 s45, s{m.sFT}, 2'); a('s_add_u32 s44, s44, s45'); a(f's_add_u32 s44, s44, {FL_C}')
    set_flag(a, f'{T}_c', 44, 8)
    sp.stamp(); sp.stamp(True); sp.dump(sWS, sWAVE, 8)
    sp = Stamper(a, 80, 5); sp.stamp(True); sp.stamp()
    for f in m.rest: f()
    g5.b_setup()
    a(f's_lshr_b32 s44, s{sTB}, 1'); a('s_lshl_b32 s44, s44, 7'); a(f's_add_u32 s44, s44, {FL_C}'); a(f'v_lshlrev_b32 v{T0}, 2, v{LANE}'); a(f'v_add_u32 v{T0}, s44, v{T0}')
    poll(a, f'{T}_c', T0, T1, 0x3fff, one=bool(PW0))
    sp.stamp()
    g5.main(sp)
    sp.stamp()
    if STAMP: a('s_waitcnt vmcnt(0)')
    sp.stamp(True); sp.dump(sWS, sWAVE, 60)
    if NONCE: nonce_reset(a, T)
```

```python
from gen_common import *
from sched import *
import os
import gen_post as GP
FUSE = int(os.environ.get('FUSE', 1))
WOS = int(os.environ.get('WOS', 32))
M16 = 'v_mfma_f32_16x16x32_bf16'
O_ = lambda db, qb: (db*2+qb)*4
S_ = lambda c: 128 + 4*c
P_ = lambda buf, qb: 144 + buf*8 + qb*4
NM_ = lambda qb: 160 + 4*qb
L_ = lambda qb: 168 + qb
KA_ = lambda i: 170 + i
VA_ = lambda i: 174 + i
KD_ = lambda i: 182 + i
VD_ = lambda i: 186 + i
ST_ = lambda qb: 190 + qb
Q_ = lambda st, qb: 192 + (st*2+qb)*4
WD_ = lambda i: 128 + i
VA2_ = lambda i: 132 + i
MA = 140
NV_ = lambda qb: 141 + qb
MC_ = lambda buf: (144 if buf == 0 else 240)
H_ = lambda buf, qb: (192 if buf == 0 else 160) + qb*4
TMP = 208
NR_ = lambda s, qb: 216 + ((s % 3)*2 + qb)*4
KF_ = lambda kb, st: (kb*8+st)*4
VF_ = lambda db: 64 + 4*db
SK, SV, SWQ, SN, SMOD, SO = 16, 20, 24, 28, 32, 36
sWB, sKO, sVO, sATT, sT0, sT1, s4K = 40, 41, 42, 43, 44, 45, 46
LK, LV, LMOD, LFLAG = 0, 65536, 131072, (0x18000 if FUSE else 135168)
WOL2 = int(os.environ.get('WOL2', 0))
VMW = 18 if (FUSE and WOL2) else 16
TILE = 16384
THRESH = 2.0**80
OFLAG = os.environ.get('OFLAG', 'sc1' if FUSE else '')
PFW = int(os.environ.get('PFW', 1))

def kread(slot, kb, st):
    return f'ds_read_b128 {ar(KF_(kb,st),4)}, v{KA_(st&3)} offset:{slot*TILE + kb*8192 + (st>>2)*256}'
def vread(slot, db, half, alt=False):
    A = VA2_ if alt else VA_
    return f'ds_read_b64_tr_b16 {ar(VF_(db)+2*half,2)}, v{A(db&7)} offset:{slot*TILE + half*8192 + (db>>3)*256}'
def setm0(ldsbase): return f's_add_u32 m0, s{sWB}, {hex(ldsbase)}'
DFLAG = os.environ.get('DFLAG', 'nt')
def dma(vo, srdb, soff, n): return f'buffer_load_dwordx4 v{vo}, s[{srdb}:{srdb+3}], {soff} offen offset:{n*1024}{" "+DFLAG if DFLAG else ""} lds'
def qk_mfma(c, st, C=None):
    kb, qb = c >> 1, c & 1
    if st == 0: cc = C if C is not None else vr(NM_(qb), 4)
    else: cc = vr(S_(c), 4)
    return f'{M16} {vr(S_(c),4)}, {ar(KF_(kb,st),4)}, {vr(Q_(st,qb),4)}, {cc}'
def pv_mfma(db, qb, buf):
    return f'{M16} {vr(O_(db,qb),4)}, {ar(VF_(db),4)}, {vr(P_(buf,qb),4)}, {vr(O_(db,qb),4)}'

def xlane(a, op, r, t):
    for sw in ('v_permlane32_swap_b32', 'v_permlane16_swap_b32'):
        a(f'v_mov_b32 v{t}, v{r}'); a('s_nop 1'); a(f'{sw} v{r}, v{t}'); a('s_nop 1')
        a(f'{op} v{r}, v{r}, v{t}')

def load_tile(a, kind, t):
    base = (LK if kind == 'K' else LV) + (t & 3)*TILE
    a(setm0(base)); a(f's_mov_b32 s{sT0}, {hex(t*TILE)}')
    for n in range(4):
        tok = a.vmem(dma((KD_ if kind == 'K' else VD_)(n), SK if kind == 'K' else SV, f's{sT0}', n))
    return tok

def softmax0(a, first, nops=8):
    a.nop(nops)
    if first:
        for qb in range(2):
            c0, c1 = S_(qb), S_(2+qb)
            t = NM_(qb)
            a(f'v_max3_f32 v{t}, v{c0}, v{c0+1}, v{c0+2}')
            a(f'v_max3_f32 v{t+1}, v{c0+3}, v{c1}, v{c1+1}')
            a(f'v_max3_f32 v{t}, v{t}, v{c1+2}, v{c1+3}')
            a(f'v_max_f32 v{t}, v{t}, v{t+1}')
        for qb in range(2): xlane(a, 'v_max_f32', NM_(qb), NM_(qb)+1)
        for qb in range(2):
            t = NM_(qb)
            a(f'v_sub_f32 v{t}, 0, v{t}')
            for i in range(1, 4): a(f'v_mov_b32 v{t+i}, v{t}')
    for c in range(4):
        for r in range(4): a(f'v_add_f32 v{S_(c)+r}, v{S_(c)+r}, v{NM_(c&1)+((r+1)&3)}')
    for c in range(4):
        for r in range(4): a(f'v_exp_f32 v{S_(c)+r}, v{S_(c)+r}')
    for qb in range(2): a(f'v_add_f32 v{L_(qb)}, v{S_(qb)}, v{S_(qb)+1}')
    for c in range(4):
        for r in range(4):
            if c < 2 and r < 2: continue
            a(f'v_add_f32 v{L_(c&1)}, v{S_(c)+r}, v{L_(c&1)}')
    for c in range(4):
        kb, qb = c >> 1, c & 1
        for p in range(2): a(f'v_cvt_pk_bf16_f32 v{P_(0,qb)+kb*2+p}, v{S_(c)+2*p}, v{S_(c)+2*p+1}')

def preamble(a, first, tokK0, tokK1):
    a.wait_vm(tokK0); a('s_barrier')
    for kb in range(2):
        for st in range(8): a(kread(0, kb, st))
    a.wait_vm(tokK1, ' lgkmcnt(0)'); a('s_barrier')
    load_tile(a, 'K', 4)
    for c in range(4):
        for st in range(8):
            a(qk_mfma(c, st, '0'))
            if c & 1: a(kread(1, c >> 1, st))
    softmax0(a, first)

EG = [12,14,17,20, 23,26,29,32, 34,37,40,42, 45,48,50,53]
DG = [3,11,19,27, 35,43,51,59]
TG = [0,0,1,2,2,4,4,5,5,6,7,7,8,9,9,10,10, 15,15,21,21,25,25,31,31,38,38,44,44,49,49,52]
RG = [13,16,18,22,24,28,30,33, 36,39,41,46,47,54,55,56]
VG = [13,16,18,22,24,28,30,33,36,39,41,46,47,52,54,55,56, 57,57,58,60,61,61,62]
WOPF = f'buffer_load_dwordx4 a[128:131], v{ST_(0)}, s[76:79], s47 offen'
def loop_body(a, u, verbose=False):
    mf = [qk_mfma(c, st) for c in range(4) for st in range(8)]
    mf += [pv_mfma(db, qb, u & 1) for db in range(16) for qb in range(2)]
    it = []
    F = lambda text, typ, g: it.append(Item(text, typ, g, g)) or it[-1]
    vs = u; ks = (u + 2) & 3
    VR = {}
    for k in range(32):
        db, h = k >> 1, k & 1
        assert TG[k] <= 32 + 2*db - 8
        VR[db, h] = F(vread(vs, db, h), 't', TG[k])
    for (d0, d1, g) in ((0, 4, 26), (4, 8, 37), (8, 12, 45), (12, 14, 53), (14, 16, 58)):
        assert g < 32 + 2*d0
        F(('WAITLG', [VR[db, h] for db in range(d0, d1) for h in range(2)]), 's', g)
    for kb in range(2):
        for st in range(8):
            assert RG[kb*8+st] >= 8 + 16*kb + st
            F(kread(ks, kb, st), 'r', RG[kb*8+st])
    nb = (u + 1) & 1
    va = []
    for c in range(4):
        kb, qb = c >> 1, c & 1
        for r in range(4):
            g = EG[4*c+r]; assert g >= 8*c + 12
            F(f'v_exp_f32 v{S_(c)+r}, v{S_(c)+r}', 'e', g)
            va.append((g + 1, f'v_add_f32 v{L_(qb)}, v{S_(c)+r}, v{L_(qb)}'))
            if r & 1:
                p = r >> 1
                va.append((g + 1, f'v_cvt_pk_bf16_f32 v{P_(nb,qb)+kb*2+p}, v{S_(c)+2*p}, v{S_(c)+2*p+1}'))
    for g, (av, tx) in zip(VG, va):
        assert av <= g, (av, g)
        F(tx, 'v', g)
    for gi, (kind, slot, gm, ga) in enumerate((('V', (u + 3) & 3, 1, 34), ('K', (u + 1) & 3, 29, 60))):
        base = (LK if kind == 'K' else LV) + slot*TILE
        so = sKO if kind == 'K' else sVO
        F(setm0(base), 's', gm)
        for n in range(4):
            F(dma((KD_ if kind == 'K' else VD_)(n), SK if kind == 'K' else SV, f's{so}', n), 'd', DG[gi*4+n])
        F(f's_add_u32 s{so}, s{so}, {TILE}', 's', ga)
    if u == 3 and PFW:
        F(f'buffer_load_dwordx4 a[128:131], v{ST_(0)}, s[56:59], s53 offen', 'd', 62 if (FUSE and WOL2) else 63); F('s_add_u32 s53, s53, 1024', 's', 62 if (FUSE and WOL2) else 63)
    if FUSE and WOL2:
        F(WOPF, 'd', 63); F('s_add_u32 s47, s47, 1024', 's', 48); F('s_and_b32 s47, s47, 0xffff', 's', 50)
    if u == 2: F(f's_cmp_eq_u32 s{sVO}, {hex(66*TILE)}', 's', 62)
    ABL = os.environ.get('ABL', '')
    if 'h' in ABL:
        keep = []; n = 0
        for x in it:
            if x.typ in 'tr':
                n += 1
                if (n // 2) % 2:
                    x.text = 's_nop 0'; x.typ = 's2'
            keep.append(x)
        for x in keep:
            if isinstance(x.text, tuple): x.text = ('WAITLG', [y for y in x.text[1] if y.typ in ('t', 'r')] or None)
        it = [x for x in keep if x.typ != 's2' and not (isinstance(x.text, tuple) and x.text[1] is None)]
    if 'd' in ABL: it = [x for x in it if x.typ != 'd']
    if 'v' in ABL: it = [x for x in it if x.typ not in 'ev']
    if 'e' in ABL: it = [x for x in it if x.typ not in 'e']
    if 'l' in ABL: it = [x for x in it if x.typ not in 'tr' and not isinstance(x.text, tuple)]
    if 't' in ABL: it = [x for x in it if x.typ not in 't' and not isinstance(x.text, tuple)]
    gaps = schedule(64, it, novalu=range(0, 8), verbose=verbose)
    emit(a, mf, gaps)

def gen_k2():
    a = Asm()
    N = 'k2_kernel'
    head(a, N)
    a('s_cmp_ge_u32 s2, 256'); a('s_cbranch_scc1 K2_end')
    sp = Stamper(a, 80 if FUSE else 64, 1)
    if FUSE:
        _st = sp.stamp; scnt = [0]
        def lim(real=False):
            scnt[0] += 1
            if scnt[0] in (1, 2, 5, 7, 8, 10, 11, 12): _st(real)
        sp.stamp = lim
    QS = os.environ.get('QSTAMP')
    if QS:
        sq_ = sp; sp = Stamper(a, 64, 1); sp.stamp = lambda *x: None; sp.dump = lambda *x: sq_.dump(*x)
    sp.stamp(True); sp.stamp()
    a(f's_load_dwordx4 s[4:7], s[0:1], {KA["k"]}')
    a(f's_load_dwordx2 s[8:9], s[0:1], {KA["wq"]}')
    a(f's_load_dwordx2 s[10:11], s[0:1], {KA["ws"]}')
    if FUSE:
        a(f's_load_dwordx2 s[64:65], s[0:1], {KA["x"]}'); a(f's_load_dwordx2 s[66:67], s[0:1], {KA["out"]}'); GP.roles(a)
    if PFW:
        a(f's_load_dwordx2 s[60:61], s[0:1], {KA["wo"]}'); a(f's_load_dwordx2 s[62:63], s[0:1], {KA["w1"]}'); a(f's_load_dwordx2 s[54:55], s[0:1], {KA["w2"]}')
    code_touch(a, 'K2', 1, 'a1', 56, 4, 'K2_fb', 1)
    a('s_and_b32 s12, s2, 7'); a('s_lshl_b32 s12, s12, 1'); a('s_bfe_u32 s13, s2, 0x10003'); a('s_add_u32 s12, s12, s13')
    a('s_lshr_b32 s13, s2, 4')
    T = 208
    L, W, Qv, G, R, C4, Hh, Pp = T, T+1, T+2, T+3, T+4, T+5, T+6, T+7
    X, Y = 216, 217
    a(f'v_and_b32 v{L}, 63, v0'); a(f'v_lshrrev_b32 v{W}, 6, v0'); a(f'v_and_b32 v{Qv}, 15, v0'); a(f'v_bfe_u32 v{G}, v0, 4, 2')
    a(f'v_bfe_u32 v{R}, v0, 2, 2'); a(f'v_and_b32 v{C4}, 3, v0'); a(f'v_bfe_u32 v{Hh}, v0, 5, 1'); a(f'v_and_b32 v{Pp}, 31, v0')
    a(f'v_readfirstlane_b32 s14, v{W}'); a('v_mov_b32 v143, v0')
    for n in range(4):
        a(f'v_lshl_add_u32 v{X}, v{W}, 3, v{Hh}')
        a(f'v_add_u32 v{Y}, {2*n}, v{X}')
        a(f'v_and_b32 v{X+2}, 7, v{Y}'); a(f'v_lshlrev_b32 v{X+2}, 1, v{X+2}'); a(f'v_xor_b32 v{X+2}, v{X+2}, v{Pp}')
        a(f'v_lshlrev_b32 v{X+2}, 4, v{X+2}')
        a(f'v_lshl_add_u32 v{VD_(n)}, v{X}, 9, v{X+2}')
        a(f'v_lshl_add_u32 v{WD_(n)}, v{Y}, 13, v{X+2}')
        if n: a(f'v_subrev_u32 v{WD_(n)}, {n*1024}, v{WD_(n)}')
        a(f'v_and_b32 v{X+2}, 15, v{Y}'); a(f'v_xor_b32 v{X+2}, v{X+2}, v{Pp}'); a(f'v_lshlrev_b32 v{X+2}, 4, v{X+2}')
        a(f'v_lshl_add_u32 v{KD_(n)}, v{X}, 9, v{X+2}')
    a(f'v_mul_u32_u24 v{X}, {2*14336}, v{W}'); a(f'v_lshl_add_u32 v{NV_(0)}, v{L}, 4, v{X}'); a(f'v_add_u32 v{NV_(1)}, 14336, v{NV_(0)}')
    a(f'v_lshlrev_b32 v{X+3}, 4, v0')
    a('s_lshl_b32 s40, s14, 12')
    a('s_lshl_b32 s50, s12, 20')
    a('s_lshl_b32 s51, s12, 9')
    a(f's_mul_i32 s47, s13, {8*14336}')
    a('s_lshl_b32 s48, s13, 20'); a('s_lshl_b32 s49, s12, 13'); a('s_add_u32 s48, s48, s49')
    a('s_waitcnt lgkmcnt(0)')
    sp.stamp()
    srd(a, SMOD, 10, WS_MOD, 4096)
    srd(a, SN, 10, WS_N, 8*14336, 47)
    srd(a, SWQ, 8, 0, 0, 51); a(f's_sub_u32 s{SWQ+2}, {448*8192}, s51')
    a(f's_lshl_b32 s{sT0}, s14, 10'); a(f's_add_u32 m0, s{sT0}, {hex(LMOD)}'); a('s_nop 0')
    tMOD = a.vmem(f'buffer_load_dwordx4 v{X+3}, s[{SMOD}:{SMOD+3}], 0 offen lds')
    WSLOT = [LK+2*TILE, LV, LK+3*TILE, LV+TILE, LV+2*TILE, LV+3*TILE, LK, LK+TILE]
    wslot = lambda t: WSLOT[t % 8]
    tN = {}; tW = {}
    def nload(s):
        a(f's_mov_b32 s{sT1}, {s*1024}')
        for qb in range(2):
            tN[s] = a.vmem(f'buffer_load_dwordx4 {vr(NR_(s,qb),4)}, v{NV_(qb)}, s[{SN}:{SN+3}], s{sT1} offen')
    def wload(t):
        a(setm0(wslot(t))); a(f's_mov_b32 s{sT0}, {hex(t*32*8192)}')
        for n in range(4): tW[t] = a.vmem(dma(WD_(n), SWQ, f's{sT0}', n))
    nload(0); wload(0); nload(1); wload(1)
    srd(a, SK, 4, 0, 1 << 20, 50); srd(a, SV, 6, 0, 1 << 20, 50)
    srd(a, SO, 10, WS_O, 0, 48); a(f's_sub_u32 s{SO+2}, {1<<20}, s49')
    a(f's_mov_b32 s{sATT}, 0'); a(f's_mov_b32 s{s4K}, 4096')
    t0, t1, t2 = 1, 2, 3
    for i in range(4):
        a(f'v_add_u32 v{t0}, {4*i}, v{G}'); a(f'v_xor_b32 v{t0}, v{t0}, v{Qv}'); a(f'v_lshlrev_b32 v{t0}, 4, v{t0}')
        a(f'v_lshl_add_u32 v{KA_(i)}, v{Qv}, 9, v{t0}')
    a(f'v_lshl_add_u32 v{t1}, v{G}, 2, v{R}')
    a(f'v_lshlrev_b32 v{t2}, 3, v{C4}'); a(f'v_lshl_add_u32 v{t2}, v{t1}, 9, v{t2}')
    a(f'v_and_b32 v{t1}, 7, v{t1}')
    for i in range(8):
        a(f'v_xor_b32 v{t0}, {i}, v{t1}'); a(f'v_lshl_add_u32 v{VA2_(i)}, v{t0}, 5, v{t2}')
        a(f'v_add_u32 v{VA_(i)}, {LV}, v{VA2_(i)}')
    a(f'v_lshlrev_b32 v{MA}, 4, v{G}'); a(f'v_add_u32 v{MA}, {LMOD}, v{MA}')
    a(f'v_lshlrev_b32 v{t0}, 18, v{W}'); a(f'v_lshl_add_u32 v{ST_(0)}, v{L}, 4, v{t0}'); a(f'v_add_u32 v{ST_(1)}, {1<<17}, v{ST_(0)}')
    TN = int(os.environ.get('TN', 0))
    if TN:
        a(f'v_lshlrev_b32 v{t0}, 7, v143')
        for i in range(4):
            if i: a(f'v_add_u32 v{t0}, 32768, v{t0}')
            a.vmem(f'buffer_load_dword a{2+i}, v{t0}, s[{SN}:{SN+3}], 0 offen')
        a(f's_mul_i32 s52, s13, 112')
        a(f'v_add_u32 v{t0}, s52, v143'); a(f'v_lshrrev_b32 v{t1}, 2, v{t0}'); a(f'v_and_b32 v{t0}, 3, v{t0}')
        a(f'v_lshlrev_b32 v{t0}, 7, v{t0}'); a(f'v_lshl_add_u32 v{t0}, v{t1}, 13, v{t0}')
        a('s_cmp_ge_u32 s14, 2'); a('s_cbranch_scc1 K2_tq')
        a(f'buffer_load_dword a6, v{t0}, s[{SWQ}:{SWQ+3}], 0 offen')
        a.label('K2_tq')
    wload(2); nload(2); wload(3); wload(4)
    if PFW:
        a('s_lshl_b32 s52, s2, 2'); a('s_add_u32 s52, s52, s14')
        if not FUSE:
            a('s_mov_b32 s56, s60'); a('s_mov_b32 s57, s61'); a('s_mov_b32 s53, s52')
            a('s_cmp_lt_u32 s52, 448'); a('s_cbranch_scc1 K2_pf')
        else: a('s_add_u32 s52, s52, 448')
        a('s_mov_b32 s56, s54'); a('s_mov_b32 s57, s55'); a('s_sub_u32 s53, s52, 448')
        a('s_cmp_lt_u32 s52, 644'); a('s_cbranch_scc1 K2_pf')
        a('s_mov_b32 s56, s62'); a('s_mov_b32 s57, s63'); a('s_sub_u32 s53, s52, 644')
        a.label('K2_pf')
        a('s_lshl_b32 s53, s53, 13'); a('s_add_u32 s56, s56, s53'); a('s_addc_u32 s57, s57, 0')
        a('s_lshl_b32 s53, s14, 18'); a('s_sub_u32 s56, s56, s53'); a('s_subb_u32 s57, s57, 0')
        a('s_and_b32 s57, s57, 0xffff'); a('s_mov_b32 s59, 0x20000')
        a('s_add_u32 s53, s53, 8192'); a('s_cmp_lt_u32 s52, 840'); a('s_cselect_b32 s58, s53, 0')
        a('s_mov_b32 s53, 0xfffffc00')
    if FUSE:
        GP.roles2(a)
        a('s_lshr_b32 s47, s2, 3'); a('s_lshl_b32 s47, s47, 2'); a('s_add_u32 s47, s47, s14'); a('s_mul_i32 s47, s47, 28672')
        a('s_add_u32 s76, s60, s47'); a('s_addc_u32 s77, s61, 0'); a('s_lshl_b32 s47, s14, 18'); a('s_sub_u32 s76, s76, s47'); a('s_subb_u32 s77, s77, 0')
        a('s_and_b32 s77, s77, 0xffff'); a('s_add_u32 s78, s47, 28672'); a('s_mov_b32 s79, 0x20000')
        a(f's_mov_b32 s47, {(63-WOS)*1024}')
    def wread(t, db, h):
        b = wslot(t); alt = b < LV
        return vread(((b - (0 if alt else LV)) // TILE), db, h, alt)
    def modreads(s):
        m = MC_(s & 1)
        return [f'ds_read_b128 {vr(m,4)}, v{MA} offset:{1792+128*s}', f'ds_read_b128 {vr(m+4,4)}, v{MA} offset:{1792+128*s+64}',
                f'ds_read_b128 {vr(m+8,4)}, v{MA} offset:{128*s}', f'ds_read_b128 {vr(m+12,4)}, v{MA} offset:{128*s+64}']
    def modvalu(s):
        m = MC_(s & 1); out = []
        for qb in range(2):
            for i in range(4):
                k = (qb*4+i) % 4
                ta, tb = TMP + 2*k, TMP + 2*k + 1
                raw = NR_(s, qb) + i
                out.append([f'v_lshlrev_b32 v{ta}, 16, v{raw}', f'v_and_b32 v{tb}, 0xffff0000, v{raw}',
                            f'v_fma_f32 v{ta}, v{ta}, v{m+2*i}, v{m+8+2*i}', f'v_fma_f32 v{tb}, v{tb}, v{m+2*i+1}, v{m+8+2*i+1}',
                            f'v_cvt_pk_bf16_f32 v{H_(s&1,qb)+i}, v{ta}, v{tb}'])
        return out
    a.wait_vm(tW[0]); a('s_barrier')
    sp.stamp()
    for x in modreads(0): a(x)
    for db in range(16):
        for h in range(2): a(wread(0, db, h))
    a('s_waitcnt lgkmcnt(15)')
    for grp in modvalu(0):
        for x in grp: a(x)
    for x in modreads(1): a(x)
    a('s_waitcnt lgkmcnt(0)')
    sp.stamp()
    NS = 14
    tok = {}
    kv_at = {8: ('K', 0), 9: ('K', 1), 10: ('K', 2), 11: ('V', 0), 12: ('K', 3), 13: ('V', 1)}
    def tile_items(key):
        if key[0] == 'W':
            t = key[1]; base, so, vo, sd = wslot(t), t*32*8192, WD_, SWQ
        else:
            kind, tt = key
            base, so, vo, sd = (LK if kind == 'K' else LV) + tt*TILE, tt*TILE, (KD_ if kind == 'K' else VD_), (SK if kind == 'K' else SV)
        def mk(n):
            def f():
                tk = a.vmem(dma(vo(n), sd, f's{sT0}', n))
                if key[0] == 'W': tW[key[1]] = tk
                else: tok[key] = tk
            return f
        return [setm0(base), f's_mov_b32 s{sT0}, {hex(so)}'], [mk(n) for n in range(4)]
    def conv_ops(st, qb):
        Xb, Yb, q = O_(2*st, qb), O_(2*st+1, qb), Q_(st, qb)
        return ([f'v_cvt_pk_bf16_f32 v{q}, v{Xb}, v{Xb+1}', f'v_cvt_pk_bf16_f32 v{q+1}, v{Xb+2}, v{Xb+3}',
                 f'v_cvt_pk_bf16_f32 v{q+2}, v{Yb}, v{Yb+1}', f'v_cvt_pk_bf16_f32 v{q+3}, v{Yb+2}, v{Yb+3}'],
                [f'v_permlane32_swap_b32 v{q}, v{q+2}', f'v_permlane32_swap_b32 v{q+1}, v{q+3}'],
                [f'v_permlane16_swap_b32 v{q}, v{q+2}', f'v_permlane16_swap_b32 v{q+1}, v{q+3}'],
                [f'v_mov_b64 v[{Xb}:{Xb+1}], 0', f'v_mov_b64 v[{Xb+2}:{Xb+3}], 0', f'v_mov_b64 v[{Yb}:{Yb+1}], 0', f'v_mov_b64 v[{Yb+2}:{Yb+3}], 0'])
    for s in range(NS):
        if QS: sq_.stamp()
        G_ = [[] for _ in range(32)]
        Vv = [[] for _ in range(32)]
        cap = [1]*32
        bar = (s % 2 == 0)
        if s >= 1:
            G_[0].append(wread(s, 15, 0)); G_[1].append(wread(s, 15, 1))
        for k in (4, 12, 20, 28): G_[k].insert(0, 's_waitcnt lgkmcnt(8)'); cap[k] = 0
        tiles = []
        if s + 5 < NS: tiles.append(('W', s + 5))
        if s in kv_at: tiles.append(kv_at[s])
        if s + 1 < NS:
            def w(s=s, bar=bar):
                t = tN[s+1]
                if bar:
                    t = max(t, tW[s+1], tW[min(s+2, NS-1)])
                    if s == 12: t = max(t, tok['K', 1])
                a.wait_vm(t)
                if bar: a('s_barrier')
            G_[1].append(w)
            for k in range(30): G_[k+2].append(wread(s+1, k >> 1, k & 1))
            if s + 2 < NS:
                for i, x in enumerate(modreads(s+2)): G_[3+2*i].append(x); cap[3+2*i] = 0
            if s + 3 < NS:
                def nl(qb, s=s):
                    def f():
                        if qb == 0: a(f's_mov_b32 s{sT1}, {(s+3)*1024}')
                        tN[s+3] = a.vmem(f'buffer_load_dwordx4 {vr(NR_(s+3,qb),4)}, v{NV_(qb)}, s[{SN}:{SN+3}], s{sT1} offen')
                    return f
                G_[2].append(nl(0)); G_[6].append(nl(1)); cap[2] = cap[6] = 0
        else:
            ks = [kread(0, kb, st) for kb in range(2) for st in range(8)]
            for i, x in enumerate(ks): G_[2+i].append(x)
        pos = [10, 14, 18, 22] if len(tiles) == 1 else [8, 11, 14, 17, 21, 24, 27, 30]
        for ti, key in enumerate(tiles):
            su, ds = tile_items(key)
            pp = pos[4*ti:4*ti+4]
            G_[pp[0]-1] = su + G_[pp[0]-1]; cap[pp[0]-1] = 0
            for p, d in zip(pp, ds): G_[p].append(d); cap[p] = 0
        if s + 1 < NS:
            grps = modvalu(s+1); seq = []
            for gi in range(10):
                if gi < 8: seq += grps[gi][0:2]
                if 1 <= gi < 9: seq += grps[gi-1][2:4]
                if gi >= 2: seq.append(grps[gi-2][4])
            lo = 10 if bar else 2
            rng = list(range(lo, 30))
            tot = len(seq); base = sum(cap[k] for k in rng); extra = tot - base
            cnt = {k: cap[k] for k in rng}
            order = [k for k in rng if cap[k]] + [k for k in rng if not cap[k]]
            i = 0
            while extra > 0:
                cnt[order[i % len(order)]] += 1; extra -= 1; i += 1
            p = 0
            for k in rng:
                Vv[k] = seq[p:p+cnt[k]]; p += cnt[k]
        else:
            pend = []
            for st in range(8):
                for qb in range(2):
                    c4, p32, p16, z = conv_ops(st, qb)
                    g = 4*st + 2 + qb + 5
                    pend += [(g, x) for x in c4] + [(g + 3, x) for x in p32] + [(g + 5, x) for x in p16] + [(g + 40, x) for x in z]
            pend.sort(key=lambda x: x[0])
            for k in range(32):
                n = 1 if G_[k] else 2
                while n and pend and pend[0][0] <= k:
                    Vv[k].append(pend.pop(0)[1]); n -= 1
        for db in range(16):
            for qb in range(2):
                k = db*2 + qb
                c = vr(O_(db, qb), 4)
                a(f'{M16} {c}, {ar(VF_(db),4)}, {vr(H_(s&1,qb),4)}, {c if s else 0}')
                for x in G_[k] + Vv[k]:
                    x() if callable(x) else a(x)
    if QS: sq_.stamp()
    a('s_waitcnt lgkmcnt(0)'); a('s_barrier')
    sp.stamp()
    conv = [x for x in pend if 'v_mov_b64' not in x[1]]
    zero = [x[1] for x in pend if 'v_mov_b64' in x[1]]
    mem = []
    for key in (('V', 2), ('K', 4)):
        kind, tt = key
        base = (LK if kind == 'K' else LV) + (tt & 3)*TILE
        mem.append([setm0(base), f's_mov_b32 s{sT0}, {hex(tt*TILE)}'])
        for n in range(4):
            mem.append([lambda n=n, kind=kind: a.vmem(dma((KD_ if kind == 'K' else VD_)(n), SK if kind == 'K' else SV, f's{sT0}', n))])
    need = lambda txt: int(txt.split()[1].strip('v,'))
    done_at = {}
    gi = 0
    order = [(c, st) for c in range(4) for st in range(8)]
    for idx, (c, st) in enumerate(order):
        q = Q_(st, c & 1)
        while any(q <= need(x[1]) < q + 4 for x in conv):
            x = conv.pop(0); a(x[1])
            if 'permlane' in x[1] or (conv and 'permlane' in conv[0][1]): a('s_nop 1')
        a(qk_mfma(c, st, '0'))
        n = 2
        if c & 1: a(kread(1, c >> 1, st)); n = 1
        elif mem and idx % 2 == 1 or (mem and idx >= 16):
            for x in mem.pop(0): x() if callable(x) else a(x)
            n = 0
        while n and conv:
            x = conv.pop(0); a(x[1]); n -= 1
            if 'permlane' in x[1] or (conv and 'permlane' in conv[0][1]): a('s_nop 1'); n = 0
        while n and zero:
            a(zero.pop(0)); n -= 1
    assert not mem
    for x in zero: a(x)
    softmax0(a, True, max(0, 8 - len(zero)))
    a(f's_mov_b32 s{sVO}, {3*TILE}'); a(f's_mov_b32 s{sKO}, {5*TILE}')
    if FUSE:
        a(WOPF)
        a('s_getpc_b64 s[24:25]'); a.label('K2_pc2')
        a('s_add_u32 s24, s24, K2_tail-K2_pc2'); a('s_addc_u32 s25, s25, 0'); a('s_and_b32 s25, s25, 0xffff')
        a('s_mov_b32 s26, K2_fb-K2_tail'); a('s_mov_b32 s27, 0x20000')
        a(f'v_and_b32 v{S_(0)}, 0x3ff, v{ST_(0)}'); a(f'v_lshlrev_b32 v{S_(0)}, 3, v{S_(0)}'); a(f's_lshl_b32 s{sT0}, s14, 13')
        a(f'buffer_load_dword a128, v{S_(0)}, s[24:27], s{sT0} offen')
    sp.stamp()
    if STAMP and not QS and not FUSE: a('s_memrealtime s[90:91]'); a('s_waitcnt lgkmcnt(0)')
    a('.p2align 6')
    a.label('K2_loop')
    pre_len = len(a.L)
    for u in range(4):
        a(f's_waitcnt vmcnt({VMW}) lgkmcnt(0)'); a('s_barrier')
        loop_body(a, u, verbose=bool(os.environ.get('V')))
        if u == 2:
            a('s_cbranch_scc1 K2_tail')
    a('s_branch K2_loop')
    body = a.L[pre_len:]
    for p in check_text(body + body, 'k2 loop wrap'): print('HAZARD', p)
    a.label('K2_tail')
    a(f's_waitcnt vmcnt({0 if FUSE else 16}) lgkmcnt(0)'); a('s_barrier')
    sp.stamp()
    if STAMP and not QS and not FUSE: a('s_memrealtime s[92:93]'); a('s_waitcnt lgkmcnt(0)'); a('s_sub_u32 s92, s92, s90')
    for db in range(16):
        for h in range(2): a(vread(3, db, h))
    for qb in range(2): xlane(a, 'v_add_f32', L_(qb), S_(qb))
    a(f's_mov_b32 s{sT0}, {f32(THRESH)}')
    a(f'v_add_f32 v{S_(0)+1}, v{L_(0)}, v{L_(1)}')
    a(f'v_cmp_ngt_f32 vcc, s{sT0}, v{S_(0)+1}')
    a(f'v_rcp_f32 v{L_(0)}, v{L_(0)}'); a(f'v_rcp_f32 v{L_(1)}, v{L_(1)}')
    a(f's_cmp_lg_u64 vcc, 0'); a(f's_cselect_b32 s{sT1}, 1, 0')
    a(f'v_mov_b32 v{S_(0)+2}, s{sT1}')
    a(f's_lshl_b32 s{sT0}, s14, 2'); a(f's_add_u32 s{sT0}, s{sT0}, {LFLAG}'); a(f'v_mov_b32 v{S_(0)+3}, s{sT0}')
    a(f'ds_write_b32 v{S_(0)+3}, v{S_(0)+2}')
    def ep_ops(sq, qb, pk):
        Xb, Yb = O_(2*sq, qb), O_(2*sq+1, qb)
        o = []
        if pk:
            LP = L_(0)
            sel = 'op_sel:[0,0] op_sel_hi:[1,0]' if qb == 0 else 'op_sel:[0,1] op_sel_hi:[1,1]'
            for b in (Xb, Xb+2, Yb, Yb+2): o.append(f'v_pk_mul_f32 v[{b}:{b+1}], v[{b}:{b+1}], v[{LP}:{LP+1}] {sel}')
        else:
            for i in range(4):
                o += [f'v_mul_f32 v{Xb+i}, v{Xb+i}, v{L_(qb)}', f'v_mul_f32 v{Yb+i}, v{Yb+i}, v{L_(qb)}']
        o += [f'v_cvt_pk_bf16_f32 v{Xb}, v{Xb}, v{Xb+1}', f'v_cvt_pk_bf16_f32 v{Xb+1}, v{Xb+2}, v{Xb+3}',
              f'v_cvt_pk_bf16_f32 v{Xb+2}, v{Yb}, v{Yb+1}', f'v_cvt_pk_bf16_f32 v{Xb+3}, v{Yb+2}, v{Yb+3}',
              f'buffer_store_dwordx4 {vr(Xb,4)}, v{ST_(qb)}, s[{SO}:{SO+3}], {"0" if sq < 4 else f"s{s4K}"} offen offset:{(sq&3)*1024} {OFLAG}']
        return o
    pend = []
    NOV = 3
    for sq in range(NOV):
        for qb in range(2): pend += [(4*sq + 2 + qb + 8, x) for x in ep_ops(sq, qb, False)]
    for db in range(16):
        if db % 4 == 0: a(f's_waitcnt lgkmcnt({min(15, 33 - 2*db - 8)})')
        for qb in range(2):
            k = 2*db + qb
            a(pv_mfma(db, qb, 1))
            n = 2
            while n and pend and pend[0][0] <= k:
                x = pend.pop(0)[1]; a(x); n -= 1
                if 'store' in x: n = 0
    sp.stamp()
    for x in pend: a(x[1])
    for sq in range(NOV, 8):
        for qb in range(2):
            for x in ep_ops(sq, qb, True): a(x)
    sp.stamp()
    if not FUSE:
        if STAMP: a('s_waitcnt vmcnt(0)')
        sp.stamp(); sp.stamp(True); sp.dump(10, 14, S_(2))
        if STAMP and not QS: a(f'v_mov_b32 v{S_(2)+1}, s92'); a(f'buffer_store_dword v{S_(2)+1}, v{S_(2)}, s[96:99], s100 offen offset:60')
        a(f's_cmp_lg_u32 s{sATT}, 0'); a('s_cbranch_scc1 K2_end')
        a(f'v_mov_b32 v{S_(0)+3}, {LFLAG}')
        a('s_waitcnt lgkmcnt(0)'); a('s_barrier')
    else:
        a.g3 = g3 = GP.Gemm(a, 3)
        GP.flag_srd(a)
        a(f's_cmp_ge_u32 s{GP.sIDX}, 28'); a('s_cbranch_scc1 K2_np')
        g3.w_setup()
        for ks in range(GP.NPRE):
            for f in g3.w_pre(ks): f()
        a(f's_waitcnt vmcnt({4*GP.NPRE})'); a('s_branch K2_nj')
        a.label('K2_np')
        a('s_waitcnt vmcnt(0)')
        a.label('K2_nj')
        a(f'v_mov_b32 v{S_(0)+3}, {LFLAG}')
        a('s_waitcnt lgkmcnt(0)'); a('s_barrier')
        a(f's_cmp_lg_u32 s{sATT}, 0'); a('s_cbranch_scc1 K2_go')
    a(f'ds_read_b128 {vr(S_(1),4)}, v{S_(0)+3}')
    a('s_waitcnt lgkmcnt(0)')
    a(f'v_or3_b32 v{S_(1)}, v{S_(1)}, v{S_(1)+1}, v{S_(1)+2}'); a(f'v_or_b32 v{S_(1)}, v{S_(1)}, v{S_(1)+3}')
    a('s_nop 0')
    a(f'v_readfirstlane_b32 s{sT0}, v{S_(1)}')
    a('s_nop 3')
    if not FUSE:
        a(f's_cmp_eq_u32 s{sT0}, 0'); a('s_cbranch_scc1 K2_end')
    else:
        a(f's_cmp_lg_u32 s{sT0}, 0'); a('s_cbranch_scc1 K2_fb')
        a.label('K2_go')
        a(f's_lshl_b32 s44, s13, 7'); a('s_lshl_b32 s45, s12, 2'); a('s_add_u32 s44, s44, s45')
        GP.set_flag(a, 'K2_a', 44, 8)
        sp.stamp(); sp.stamp(True); sp.dump(10, 14, 8)
        a(f's_cmp_ge_u32 s{GP.sIDX}, 28'); a('s_cbranch_scc1 K2_uw')
        GP.post(a, 'K2')
        a('s_endpgm')
        a.label('K2_uw')
        GP.uw_phase(a, 'K2')
        a('s_endpgm')
    a.label('K2_fb')
    a(f's_mov_b32 s{sATT}, 1')
    a('s_waitcnt vmcnt(0)'); a('s_barrier')
    for qb in range(2): a(f'v_mov_b32 v{NM_(qb)}, 0xff800000')
    a(f's_mov_b32 s{sKO}, 0')
    a.label('K2_mx')
    a(setm0(LK)); a('s_nop 0')
    for n in range(4): a(dma(KD_(n), SK, f's{sKO}', n))
    a('s_waitcnt vmcnt(0)'); a('s_barrier')
    for kb in range(2):
        for st in range(8): a(kread(0, kb, st))
    a('s_waitcnt lgkmcnt(0)'); a('s_barrier')
    for c in range(4):
        for st in range(8): a(qk_mfma(c, st, '0'))
    a.nop(8)
    for c in range(4):
        t = NM_(c & 1)
        a(f'v_max3_f32 v{t}, v{S_(c)}, v{S_(c)+1}, v{t}'); a(f'v_max3_f32 v{t}, v{S_(c)+2}, v{S_(c)+3}, v{t}')
    a(f's_add_u32 s{sKO}, s{sKO}, {TILE}'); a(f's_cmp_lt_u32 s{sKO}, {1<<20}'); a('s_cbranch_scc1 K2_mx')
    for qb in range(2): xlane(a, 'v_max_f32', NM_(qb), NM_(qb)+1)
    for qb in range(2):
        t = NM_(qb)
        a(f'v_sub_f32 v{t}, 0, v{t}')
        for i in range(1, 4): a(f'v_mov_b32 v{t+i}, v{t}')
    for i in range(0, 128, 2): a(f'v_mov_b64 v[{i}:{i+1}], 0')
    k0 = load_tile(a, 'K', 0); k1 = load_tile(a, 'K', 1)
    for kind, t in (('K', 2), ('V', 0), ('K', 3), ('V', 1), ('V', 2)): load_tile(a, kind, t)
    preamble(a, False, k0, k1)
    a(f's_mov_b32 s{sVO}, {3*TILE}'); a(f's_mov_b32 s{sKO}, {5*TILE}')
    if FUSE: a(WOPF); a(WOPF)
    a('s_branch K2_loop')
    a.label('K2_end')
    a('s_endpgm')
    return a, f'; @launch kernel={N} grid=(256,1,1) block=(256,1,1) lds={163840 if FUSE else LFLAG+64}', kd(N, 256, 132, sgpr=102 if STAMP else (80 if FUSE else 64))
```

```python
from gen_k2 import *
import gen_post2 as GP2
import gen_x2 as X2M
X2 = int(os.environ.get('X2', 0))
X3 = int(os.environ.get('X3', 0))
if X3: LFLAG = 131072
XR = lambda s, qb: (s*2+qb)*4
NA = lambda s, qb: 132 + (s*2+qb)*4
WAL = lambda i: 132 + i
WAH = lambda i: 200 + i
TID = 143
SDBG = 28
LSCR = 136*1024
WLATE = int(os.environ.get('WLATE', 2))
LNFAST = int(os.environ.get('LNFAST', 0))
HP = int(os.environ.get('HP', 0))
WS_MODG = 0x28000
HSL = [208, 216, 224, 144, 152, 232, 240, 248, 160]
HR = lambda s, qb: HSL[s % 9] + 4*qb
W8 = int(os.environ.get('W8', 0))
TLBW = int(os.environ.get('TLBW', 0))
WMID = int(os.environ.get('WMID', 0))
RNT = os.environ.get('RNT', 'nt')
NWP = int(os.environ.get('NWP', 5))
QS2 = eval(os.environ.get('QS2', '()'))
NPROD = 84
FL_M, FL_N = 8192, 10240
P1 = int(os.environ.get('P1', 1)); SLP = int(os.environ.get('SLP', 2))
def gen_one():
    a = Asm()
    N = 'adaLN_cond__mha_block_cached__dense_activation_silu__prompt_kernel'
    head(a, N)
    a('s_cmp_ge_u32 s2, 256'); a('s_cbranch_scc1 K2_end')
    sp = Stamper(a, 80, 1)
    _st = sp.stamp; scnt = [0]
    def lim(real=False):
        scnt[0] += 1
        if scnt[0] in SEL: _st(real)
    SEL = eval(os.environ.get('SEL', '(1, 2, 6, 8, 9, 11, 12, 13)'))
    sp.stamp = lim
    XS = os.environ.get('XS', '')
    def xs(t):
        if t in XS: _st()
    QS = None
    sp.stamp(True); sp.stamp()
    sNON = 75
    a(f's_load_dwordx2 s[{SDBG}:{SDBG+1}], s[0:1], {KA["dbg"]}')
    a(f's_load_dwordx2 s[64:65], s[0:1], {KA["x"]}')
    a(f's_load_dwordx4 s[16:19], s[0:1], {KA["c"]}')
    a(f's_load_dwordx2 s[8:9], s[0:1], {KA["wq"]}')
    a(f's_load_dwordx2 s[10:11], s[0:1], {KA["ws"]}')
    a('s_memrealtime s[44:45]')
    NCL = 4
    a('v_lshrrev_b32 v1, 6, v0'); a('s_getpc_b64 s[56:57]'); a.label('K2_pc')
    a('v_readfirstlane_b32 s14, v1'); a('s_lshr_b32 s58, s2, 3'); a('s_lshl_b32 s58, s58, 2'); a('s_nop 1'); a('s_add_u32 s58, s58, s14')
    a('s_lshl_b32 s58, s58, 6')
    for i in range(NCL):
        a(f's_add_u32 s59, s58, {i*8192}'); a('s_min_u32 s59, s59, K2_tail-K2_pc-4'); a(f's_load_dword s{76+i}, s[56:57], s59')
    GP.roles(a)
    a('s_and_b32 s12, s2, 7'); a('s_lshl_b32 s12, s12, 1'); a('s_bfe_u32 s13, s2, 0x10003'); a('s_add_u32 s12, s12, s13')
    a('s_lshr_b32 s13, s2, 4')
    T = 208
    L, W, Qv, G, R, C4, Hh, Pp = T, T+1, T+2, T+3, T+4, T+5, T+6, T+7
    X, Y = 112, 113
    a(f'v_mov_b32 v{TID}, v0')
    a(f'v_and_b32 v{L}, 63, v0'); a(f'v_lshrrev_b32 v{W}, 6, v0'); a(f'v_and_b32 v{Qv}, 15, v0'); a(f'v_bfe_u32 v{G}, v0, 4, 2')
    a(f'v_bfe_u32 v{R}, v0, 2, 2'); a(f'v_and_b32 v{C4}, 3, v0'); a(f'v_bfe_u32 v{Hh}, v0, 5, 1'); a(f'v_and_b32 v{Pp}, 31, v0')
    GW, GC, XV = 114, 115, 116
    a(f'v_lshrrev_b32 v{GC}, 2, v0'); a(f'v_mul_u32_u24 v{GW}, 5376, v{GC}'); a(f'v_lshl_add_u32 v{GW}, v{C4}, 4, v{GW}'); a(f'v_lshlrev_b32 v{GC}, 1, v{GC}')
    a(f'v_mul_u32_u24 v{XV}, 896, v{Qv}'); a(f'v_lshl_add_u32 v{XV}, v{G}, 4, v{XV}'); a(f'v_lshl_add_u32 v{XV}, v{W}, 6, v{XV}')
    for n in range(4):
        a(f'v_lshl_add_u32 v{Y}, v{W}, 3, v{Hh}'); a(f'v_add_u32 v{Y}, {2*n}, v{Y}')
        a(f'v_and_b32 v{X}, 3, v{Y}'); a(f'v_bfe_u32 v{X+5}, v{Y}, 3, 1'); a(f'v_lshl_add_u32 v{X}, v{X+5}, 2, v{X}')
        a(f'v_lshlrev_b32 v{X}, 1, v{X}'); a(f'v_xor_b32 v{X}, v{X}, v{Pp}'); a(f'v_lshlrev_b32 v{X}, 4, v{X}')
        a(f'v_lshl_add_u32 v{WD_(n)}, v{Y}, 13, v{X}')
        if n: a(f'v_subrev_u32 v{WD_(n)}, {n*1024}, v{WD_(n)}')
    a('s_lshl_b32 s40, s14, 12'); a('s_lshl_b32 s50, s12, 20'); a('s_lshl_b32 s51, s12, 9')
    a('s_lshl_b32 s48, s13, 20'); a('s_lshl_b32 s49, s12, 13'); a('s_add_u32 s48, s48, s49')
    a('s_lshl_b32 s52, s13, 3'); a('s_and_b32 s53, s2, 7'); a('s_add_u32 s52, s52, s53')
    a('s_waitcnt lgkmcnt(0)')
    sp.stamp()
    a(f's_and_b32 s{SDBG+1}, s{SDBG+1}, 0xffff'); a(f's_mov_b32 s{SDBG+2}, 256'); a(f's_mov_b32 s{SDBG+3}, 0x20000')
    a('s_or_b32 s46, s2, s14'); a('s_cmp_lg_u32 s46, 0'); a('s_cbranch_scc1 K2_n0')
    a('s_or_b32 s44, s44, 1'); a('v_mov_b32 v1, 0'); a('v_mov_b32 v2, s44'); a('s_mov_b64 exec, 1')
    a(f'buffer_store_dword v2, v1, s[{SDBG}:{SDBG+3}], 0 offen sc1'); a('s_mov_b64 exec, -1')
    a.label('K2_n0')
    CV, CT_, GA, WR = 16, 24, 64, 32
    XRW = 0
    a('s_mov_b32 s47, 0')
    a('s_bitcmp1_b32 s2, 3'); a('s_cbranch_scc0 K2_ln0')
    a(f's_cmp_ge_u32 s52, {NPROD}'); a('s_cbranch_scc1 K2_g0')
    a('s_mov_b32 s47, 1')
    srd(a, 20, 16, 0, 896); srd(a, 36, 18, 0, 448*5376)
    for i in range(7): tC = a.vmem(f'buffer_load_ushort v{CV+i}, v{GC}, s[20:23], 0 offen offset:{128*i} {RNT}')
    tG = {}
    a('s_lshl_b32 s46, s52, 6')
    for i in range(7):
        a(f's_add_u32 s53, s46, {64*5376*i}')
        tG[i] = a.vmem(f'buffer_load_dwordx4 {vr(WR+4*i,4)}, v{GW}, s[36:39], s53 offen {RNT}')
    a('s_branch K2_g0')
    a.label('K2_ln0')
    a('s_mov_b32 s47, 2')
    a(f's_mul_i32 s46, s52, {16*896}')
    srd(a, 36, 64, 0, 16*896, 46)
    a('s_cmp_lt_u32 s14, 2'); a('s_cselect_b32 s53, 0, 0x100000')
    for i in range(4):
        a(f'buffer_load_dwordx4 {vr(XRW+4*i,4)}, v{XV}, s[36:39], {"s53" if i == 3 else "0"} offen offset:{256*i} {RNT}')
    a.label('K2_g0')
    a(f's_load_dwordx4 s[4:7], s[0:1], {KA["k"]}')
    a(f's_load_dwordx2 s[66:67], s[0:1], {KA["out"]}')
    a(f's_load_dwordx2 s[60:61], s[0:1], {KA["wo"]}'); a(f's_load_dwordx2 s[62:63], s[0:1], {KA["w1"]}'); a(f's_load_dwordx2 s[54:55], s[0:1], {KA["w2"]}')
    srd(a, SWQ, 8, 0, 0, 51); a(f's_sub_u32 s{SWQ+2}, {448*8192}, s51')
    a(f's_mov_b32 s8, s{SDBG}'); a(f's_mov_b32 s9, s{SDBG+1}')
    WSLOT = [LK+2*TILE, LV, LK+3*TILE, LV+TILE, LV+2*TILE, LV+3*TILE, LK, LK+TILE]
    wslot = lambda t: WSLOT[t % 8]
    tW = {}; tN = {}
    def wload(t):
        a(setm0(wslot(t))); a(f's_mov_b32 s{sT0}, {hex(t*32*8192)}')
        for n in range(4): tW[t] = a.vmem(dma(WD_(n), SWQ, f's{sT0}', n))
    if WLATE < 2: wload(0); wload(1)
    v_after = a.vm + (8 if WLATE >= 2 else 0)
    srd(a, SMOD, 10, WS_MOD, 6*448*4)
    if TLBW: srd(a, 40, 10, 0, 0x200000)
    srd(a, 16, 10, WS_FLAG, 16384)
    if TLBW:
        a(f'v_lshlrev_b32 v117, 18, v{C4}'); a.vmem('buffer_load_dword v116, v117, s[40:43], 0 offen')
    a('v_mov_b32 v118, 0'); a.vmem(f'buffer_load_dword v119, v118, s[{SDBG}:{SDBG+3}], 0 offen sc1')
    xs('a')
    a('s_cmp_eq_u32 s47, 1'); a('s_cbranch_scc1 K2_gv')
    a('s_cmp_eq_u32 s47, 2'); a('s_cbranch_scc1 K2_ln1')
    vm0 = a.vm
    if not WLATE: wload(2); wload(3); wload(4)
    a('s_branch K2_g8')
    a.label('K2_gv')
    a.vm = vm0
    def nonce_wait(T, n0=0):
        a('s_mov_b32 s45, 0x8000')
        a(f's_waitcnt vmcnt({n0})')
        a.label(f'{T}_pl')
        a(f'v_readfirstlane_b32 s{sNON}, v119'); a('s_nop 3')
        a(f's_cmp_lg_u32 s{sNON}, 0'); a(f's_cbranch_scc1 {T}_pd')
        a(f'buffer_load_dword v119, v118, s[{SDBG}:{SDBG+3}], 0 offen sc1'); a('s_waitcnt vmcnt(0)')
        a('s_sub_u32 s45, s45, 1'); a('s_cmp_lg_u32 s45, 0'); a(f's_cbranch_scc1 {T}_pl')
        a.label(f'{T}_pd')
    a.wait_vm(tC)
    for i in range(7): a(f'v_lshlrev_b32 v{CV+i}, 16, v{CV+i}')
    for i in range(7): a(f'v_mul_f32 v{CT_+i}, {f32(-LOG2E)}, v{CV+i}')
    for i in range(7): a(f'v_exp_f32 v{CT_+i}, v{CT_+i}')
    for i in range(7): a(f'v_add_f32 v{CT_+i}, 1.0, v{CT_+i}')
    for i in range(7): a(f'v_rcp_f32 v{CT_+i}, v{CT_+i}')
    for i in range(7): a(f'v_mul_f32 v{CV+i}, v{CV+i}, v{CT_+i}')
    for i in range(7): rbf(a, CV+i, CV+i)
    for i in range(7):
        a.wait_vm(tG[i])
        for j in range(4):
            u0, u1 = 72 + 2*(j & 1), 73 + 2*(j & 1)
            unpack(a, u0, u1, WR+4*i+j)
            op = 'v_mul_f32' if i == 0 else 'v_fmac_f32'
            a(f'{op} v{GA+2*j}, v{u0}, v{CV+i}'); a(f'{op} v{GA+2*j+1}, v{u1}, v{CV+i}')
    if not WLATE: wload(2)
    a(f'v_lshlrev_b32 v76, 5, v{TID}'); a(f'v_add_u32 v76, {LSCR}, v76')
    a(f'ds_write_b128 v76, {vr(GA,4)}'); a(f'ds_write_b128 v76, {vr(GA+4,4)} offset:16')
    a(f'v_lshrrev_b32 v77, 5, v{TID}'); a(f'v_lshlrev_b32 v78, 2, v{Pp}'); a(f'v_add_u32 v78, {LSCR}, v78')
    a('v_lshl_add_u32 v79, v77, 10, v78'); a('v_lshl_add_u32 v80, v77, 7, v78')
    a('s_waitcnt lgkmcnt(0)'); a('s_barrier')
    for i in range(8): a(f'ds_read_b32 v{GA+i}, v79 offset:{128*i}')
    if not WLATE: wload(3)
    a('s_waitcnt lgkmcnt(0)')
    for n in (4, 2, 1):
        for i in range(n): a(f'v_add_f32 v{GA+i}, v{GA+i}, v{GA+n+i}')
    a(f'ds_write_b32 v80, v{GA} offset:8192')
    a('s_waitcnt lgkmcnt(0)'); a('s_barrier')
    for i in range(8): a(f'ds_read_b32 v{GA+i}, v78 offset:{8192+128*i}')
    if not WLATE: wload(4)
    a('s_waitcnt lgkmcnt(0)')
    for n in (4, 2, 1):
        for i in range(n): a(f'v_add_f32 v{GA+i}, v{GA+i}, v{GA+n+i}')
    rbf(a, GA, GA)
    a('s_sub_u32 s53, s52, 14'); a('s_cmp_lt_u32 s53, 14'); a('s_cbranch_scc1 K2_g1')
    a('s_sub_u32 s53, s52, 56'); a('s_cmp_lt_u32 s53, 14'); a('s_cbranch_scc0 K2_g2')
    a.label('K2_g1')
    a(f'v_add_f32 v{GA}, 1.0, v{GA}'); rbf(a, GA, GA)
    a.label('K2_g2')
    a('s_cmp_lt_u32 s52, 28'); a('s_cbranch_scc0 K2_g3')
    a(f'v_mul_f32 v{GA}, {f32(LOG2E/16)}, v{GA}')
    a.label('K2_g3')
    a(f's_lshl_b32 s46, s52, 4'); a(f's_add_u32 s46, s46, {FL_M}')
    a('s_cmp_lg_u32 s14, 0'); a('s_cbranch_scc1 K2_g8')
    if HP:
        a('s_cmp_lt_u32 s52, 28'); a('s_cbranch_scc0 K2_g4')
        srd(a, 36, 10, WS_MODG, 896*8)
        nonce_wait('K2_q')
        a(f'v_mov_b32 v{GA+1}, v119'); a(f'v_lshlrev_b32 v77, 3, v{Pp}'); a('s_lshl_b32 s53, s52, 8')
        a(f'buffer_store_dwordx2 {vr(GA,2)}, v77, s[36:39], s53 offen sc1')
        a('s_mov_b32 s47, 0')
        a('s_branch K2_g9')
        a.label('K2_g4')
    a(f'v_lshlrev_b32 v77, 2, v{Pp}'); a('s_lshl_b32 s53, s52, 7')
    a(f'buffer_store_dword v{GA}, v77, s[{SMOD}:{SMOD+3}], s53 offen sc1')
    a.label('K2_g8')
    for t in range(WMID): wload(t)
    a('s_branch K2_g9')
    a.label('K2_ln1')
    F = 16
    a(f's_mul_i32 s46, s52, 14336'); srd(a, 36, 10, WS_N, 14336, 46)
    a('v_lshl_add_u32 v48, v{W}, 2, v{G}'.format(W=W, G=G)); a(f'v_lshlrev_b32 v49, 7, v{Qv}'); a(f'v_add_u32 v49, {LSCR}, v49'); a('v_lshl_add_u32 v48, v48, 3, v49')
    a(f'v_lshlrev_b32 v50, 4, v{L}'); a(f'v_lshl_add_u32 v50, v{W}, 10, v50')
    a(f's_waitcnt vmcnt({vm0 - (v_after - 8)})')
    for i in range(16): unpack(a, F+2*i, F+2*i+1, XRW+i)
    if not WLATE: wload(2)
    a(f'v_add_f32 v52, v{F}, v{F+1}'); a(f'v_mul_f32 v53, v{F}, v{F}'); a(f'v_add_f32 v54, v{F+2}, v{F+3}'); a(f'v_mul_f32 v55, v{F+2}, v{F+2}')
    a(f'v_fmac_f32 v53, v{F+1}, v{F+1}'); a(f'v_fmac_f32 v55, v{F+3}, v{F+3}')
    for i in range(4, 32, 2):
        a(f'v_add_f32 v52, v52, v{F+i}'); a(f'v_fmac_f32 v53, v{F+i}, v{F+i}'); a(f'v_add_f32 v54, v54, v{F+i+1}'); a(f'v_fmac_f32 v55, v{F+i+1}, v{F+i+1}')
    a('v_add_f32 v52, v52, v54'); a('v_add_f32 v53, v53, v55')
    a('ds_write_b64 v48, v[52:53]')
    a('s_waitcnt lgkmcnt(0)'); a('s_barrier')
    for i in range(8): a(f'ds_read_b128 {vr(56+4*i,4)}, v49 offset:{16*i}')
    if not WLATE: wload(3)
    a('s_waitcnt lgkmcnt(0)')
    n = 16
    while n > 1:
        n //= 2
        for i in range(n):
            a(f'v_add_f32 v{56+2*i}, v{56+2*i}, v{56+2*(n+i)}'); a(f'v_add_f32 v{57+2*i}, v{57+2*i}, v{57+2*(n+i)}')
    m, v = 56, 57
    a(f'v_mul_f32 v{m}, {f32(1/448)}, v{m}'); a(f'v_mul_f32 v{v}, {f32(1/448)}, v{v}')
    a(f'v_fma_f32 v{v}, -v{m}, v{m}, v{v}'); a(f'v_max_f32 v{v}, 0, v{v}')
    rbf(a, v, v); a(f'v_add_f32 v{v}, {f32(1e-5)}, v{v}'); rbf(a, v, v)
    a(f'v_sqrt_f32 v{v}, v{v}'); rbf(a, m, m)
    rbf(a, v, v); a(f'v_rcp_f32 v{v}, v{v}')
    if LNFAST:
        a('s_nop 0'); a(f'v_mul_f32 v{m}, v{m}, v{v}')
        for i in range(32): a(f'v_fma_f32 v{F+i}, v{F+i}, v{v}, -v{m}')
        for i in range(16): a(f'v_cvt_pk_bf16_f32 v{XRW+i}, v{F+2*i}, v{F+2*i+1}')
    else:
        for i in range(32): a(f'v_sub_f32 v{F+i}, v{F+i}, v{m}')
        if not WLATE: wload(4)
        for i in range(16): a(f'v_cvt_pk_bf16_f32 v{XRW+i}, v{F+2*i}, v{F+2*i+1}')
        for i in range(16): unpack(a, F+2*i, F+2*i+1, XRW+i)
        for i in range(32): a(f'v_mul_f32 v{F+i}, v{F+i}, v{v}')
        for i in range(16): a(f'v_cvt_pk_bf16_f32 v{XRW+i}, v{F+2*i}, v{F+2*i+1}')
    if HP:
        for i in range(16): unpack(a, F+2*i, F+2*i+1, XRW+i)
        srd(a, 20, 10, WS_MODG, 896*8)
        a(f'v_lshlrev_b32 v48, 4, v{TID}'); a(f'v_lshlrev_b32 v49, 3, v{TID}'); a(f'v_add_u32 v49, {LMOD}, v49')
        a(f'v_lshlrev_b32 v51, 5, v{G}'); a(f'v_lshl_add_u32 v51, v{W}, 7, v51'); a(f'v_add_u32 v51, {LMOD}, v51')
        a(f's_mov_b32 s53, 4096'); a('s_cmp_lt_u32 s14, 3'); a('s_cselect_b32 s45, 128, 64')
        nonce_wait('K2_r')
        a('s_mov_b32 s44, 0x8000')
        a.label('K2_h_pl')
        a('buffer_load_dwordx4 v[52:55], v48, s[20:23], 0 offen sc1'); a('buffer_load_dwordx4 v[56:59], v48, s[20:23], s53 offen sc1')
        a('s_waitcnt vmcnt(0)')
        a('v_xor_b32 v60, v53, v55'); a('v_xor_b32 v61, v57, v59'); a(f'v_xor_b32 v62, s{sNON}, v53'); a(f'v_xor_b32 v63, s{sNON}, v57')
        a('v_or_b32 v60, v60, v62'); a('v_or_b32 v61, v61, v63')
        a('v_cmp_eq_u32 vcc, 0, v60'); a('v_cmp_eq_u32 s[72:73], 0, v61'); a('s_nop 1')
        a('s_bcnt1_i32_b64 s46, vcc'); a('s_bcnt1_i32_b64 s74, s[72:73]'); a('s_add_u32 s46, s46, s74')
        a('s_cmp_eq_u32 s46, s45'); a('s_cbranch_scc1 K2_h_pd')
        a('s_sleep 1')
        a('s_sub_u32 s44, s44, 1'); a('s_cmp_lg_u32 s44, 0'); a('s_cbranch_scc1 K2_h_pl')
        a.label('K2_h_pd')
        a('v_mov_b32 v53, v54'); a('v_mov_b32 v57, v58')
        a('ds_write_b64 v49, v[52:53]'); a('ds_write_b64 v49, v[56:57] offset:2048')
        a('s_waitcnt lgkmcnt(0)'); a('s_barrier')
        for i in range(4):
            for j, off in enumerate((1792, 1792+16, 0, 16)): a(f'ds_read_b128 {vr(52+16*i+4*j,4)}, v51 offset:{off + 512*i}')
        for i in range(4):
            a(f's_waitcnt lgkmcnt({12-4*i})')
            for e in range(8): a(f'v_fma_f32 v{F+8*i+e}, v{F+8*i+e}, v{52+16*i+e}, v{52+16*i+8+e}')
            for e in range(4): a(f'v_cvt_pk_bf16_f32 v{XRW+4*i+e}, v{F+8*i+2*e}, v{F+8*i+2*e+1}')
    for i in range(4):
        a(f's_mov_b32 s53, {4096*i}')
        a(f'buffer_store_dwordx4 {vr(XRW+4*i,4)}, v50, s[36:39], s53 offen sc1')
    for t in range(WMID): wload(t)
    a(f's_waitcnt vmcnt({4*WMID})'); a('s_barrier')
    a('s_lshl_b32 s46, s13, 7'); a('s_and_b32 s53, s2, 7'); a('s_lshl_b32 s53, s53, 2'); a('s_add_u32 s46, s46, s53'); a(f's_add_u32 s46, s46, {FL_N}')
    a.label('K2_g9')
    xs('A')
    nonce_wait('K2_o', 4*WMID)
    a('s_cmp_eq_u32 s47, 0'); a('s_cbranch_scc1 K2_p9')
    a('s_cmp_lg_u32 s14, 0'); a('s_cbranch_scc1 K2_p9')
    a('s_mov_b64 exec, 1')
    a('buffer_store_dword v119, v118, s[16:19], s46 offen sc1')
    a('s_mov_b64 exec, -1')
    a.label('K2_p9')
    xs('B')
    a.vm = 0
    if TLBW: a('s_lshl_b32 s40, s14, 12')
    for t in range(WMID, NWP): wload(t)
    if W8: W8P = 1
    for t in range(8 if W8 else 5): tW[t] = 0
    t0, t1, t2 = 112, 113, 117
    for n in range(4):
        a(f'v_lshl_add_u32 v{t0}, v{W}, 3, v{Hh}'); a(f'v_add_u32 v{t1}, {2*n}, v{t0}')
        a(f'v_and_b32 v{t2}, 7, v{t1}'); a(f'v_lshlrev_b32 v{t2}, 1, v{t2}'); a(f'v_xor_b32 v{t2}, v{t2}, v{Pp}'); a(f'v_lshlrev_b32 v{t2}, 4, v{t2}')
        a(f'v_lshl_add_u32 v{VD_(n)}, v{t0}, 9, v{t2}')
        a(f'v_and_b32 v{t2}, 15, v{t1}'); a(f'v_xor_b32 v{t2}, v{t2}, v{Pp}'); a(f'v_lshlrev_b32 v{t2}, 4, v{t2}')
        a(f'v_lshl_add_u32 v{KD_(n)}, v{t0}, 9, v{t2}')
    for i in range(4):
        a(f'v_add_u32 v{t0}, {4*i}, v{G}'); a(f'v_xor_b32 v{t0}, v{t0}, v{Qv}'); a(f'v_lshlrev_b32 v{t0}, 4, v{t0}')
        a(f'v_lshl_add_u32 v{KA_(i)}, v{Qv}, 9, v{t0}')
    a(f'v_lshl_add_u32 v{t1}, v{G}, 2, v{R}')
    a(f'v_lshlrev_b32 v{t2}, 3, v{C4}'); a(f'v_lshl_add_u32 v{t2}, v{t1}, 9, v{t2}'); a(f'v_add_u32 v{t2}, {LV}, v{t2}')
    a(f'v_and_b32 v{t1}, 7, v{t1}')
    for i in range(8):
        a(f'v_xor_b32 v{t0}, {i}, v{t1}'); a(f'v_lshl_add_u32 v{VA_(i)}, v{t0}, 5, v{t2}')
    a(f'v_lshl_add_u32 v{t1}, v{G}, 3, v{R}')
    a(f'v_lshlrev_b32 v{t2}, 3, v{C4}'); a(f'v_lshl_add_u32 v{t2}, v{t1}, 9, v{t2}')
    a(f'v_and_b32 v{t1}, 1, v{G}'); a(f'v_lshl_add_u32 v{t1}, v{t1}, 2, v{R}')
    for i in range(8):
        a(f'v_xor_b32 v{t0}, {i}, v{t1}'); a(f'v_lshl_add_u32 v{WAL(i)}, v{t0}, 5, v{t2}'); a(f'v_add_u32 v{WAH(i)}, {LV}, v{WAL(i)}')
    a(f'v_lshlrev_b32 v{MA}, 5, v{G}'); a(f'v_add_u32 v{MA}, {LMOD}, v{MA}')
    a(f'v_lshlrev_b32 v{t0}, 18, v{W}'); a(f'v_lshl_add_u32 v{ST_(0)}, v{L}, 4, v{t0}'); a(f'v_add_u32 v{ST_(1)}, {1<<17}, v{ST_(0)}')
    a(f'v_mul_u32_u24 v{t0}, {2*14336}, v{W}'); a(f'v_lshl_add_u32 v{NV_(0)}, v{L}, 4, v{t0}'); a(f'v_add_u32 v{NV_(1)}, 14336, v{NV_(0)}')
    if X2:
        X2M.addr_early(a)
        a(f'v_lshlrev_b32 v168, 4, v{L}'); a(f'v_lshl_add_u32 v168, v{W}, 13, v168'); a(f'v_add_u32 v168, {X2M.LQB}, v168'); a('v_xor_b32 v169, 0x2000, v168')
    a('s_waitcnt lgkmcnt(0)')
    a(f's_mov_b32 s{sATT}, 0'); a(f's_mov_b32 s{s4K}, 4096')
    srd(a, SV, 6, 0, 1 << 20, 50)
    srd(a, SO, 10, WS_O, 0, 48); a(f's_sub_u32 s{SO+2}, {1<<20}, s49')
    a('s_lshl_b32 s52, s2, 2'); a('s_add_u32 s52, s52, s14')
    if not WOL2:
        a('s_mov_b32 s56, s60'); a('s_mov_b32 s57, s61'); a('s_sub_u32 s53, s52, 392')
        a('s_cmp_ge_u32 s52, 392'); a('s_cbranch_scc1 K2_pf')
    a('s_mov_b32 s56, s54'); a('s_mov_b32 s57, s55'); a('s_mov_b32 s53, s52')
    a('s_cmp_lt_u32 s52, 196'); a('s_cbranch_scc1 K2_pf')
    a('s_mov_b32 s56, s62'); a('s_mov_b32 s57, s63'); a('s_sub_u32 s53, s52, 196')
    a.label('K2_pf')
    a('s_lshl_b32 s53, s53, 13'); a('s_add_u32 s56, s56, s53'); a('s_addc_u32 s57, s57, 0')
    a('s_lshl_b32 s53, s14, 18'); a('s_sub_u32 s56, s56, s53'); a('s_subb_u32 s57, s57, 0')
    a('s_and_b32 s57, s57, 0xffff'); a('s_mov_b32 s59, 0x20000')
    a('s_add_u32 s53, s53, 8192'); a(f's_cmp_lt_u32 s52, {392 if WOL2 else 840}'); a('s_cselect_b32 s58, s53, 0')
    a('s_mov_b32 s53, 0xfffffc00')
    GP.roles2(a)
    a('s_lshr_b32 s47, s2, 3'); a('s_lshl_b32 s47, s47, 2'); a('s_add_u32 s47, s47, s14'); a(f's_mul_i32 s47, s47, {7168 if X3 else 28672}')
    if X3: a('s_bfe_u32 s73, s2, 0x20001'); a(f's_mul_i32 s73, s73, {1024*896}'); a('s_add_u32 s47, s47, s73')
    a('s_add_u32 s76, s60, s47'); a('s_addc_u32 s77, s61, 0'); a('s_lshl_b32 s47, s14, 18'); a('s_sub_u32 s76, s76, s47'); a('s_subb_u32 s77, s77, 0')
    a('s_and_b32 s77, s77, 0xffff'); a(f's_add_u32 s78, s47, {7168 if X3 else 28672}'); a('s_mov_b32 s79, 0x20000')
    a(f's_mul_i32 s47, s13, {8*14336}'); srd(a, SN, 10, WS_N, 8*14336, 47)
    a(f's_mov_b32 s47, {(63-WOS)*1024}')
    if W8:
        wload(5); wload(6); wload(7)
        for t in range(8): tW[t] = 0
    sp.stamp()
    if HP:
        a('s_lshl_b32 s44, s13, 7'); a(f's_add_u32 s44, s44, {FL_N}'); a(f'v_lshlrev_b32 v0, 2, v{Pp}'); a('v_add_u32 v0, s44, v0')
    else:
        a(f'v_lshlrev_b32 v0, 4, v{L}'); a(f'v_add_u32 v0, {FL_M}, v0')
        a('s_lshl_b32 s44, s13, 7'); a(f's_add_u32 s44, s44, {FL_N - 28*4}'); a(f'v_lshlrev_b32 v1, 2, v{L}'); a('v_add_u32 v1, s44, v1')
        a(f'v_cmp_gt_u32 vcc, 28, v{L}'); a('s_nop 1'); a('v_cndmask_b32 v0, v1, v0, vcc')
        a(f'v_lshlrev_b32 v2, 4, v{TID}'); a(f'v_add_u32 v3, {LMOD}, v2')
    a('s_mov_b32 s44, 0x8000')
    if P1: a('s_cmp_lg_u32 s14, 0'); a('s_cbranch_scc1 K2_m_pd')
    a.label('K2_m_pl')
    a('buffer_load_dword v1, v0, s[16:19], 0 offen sc1')
    a('s_waitcnt vmcnt(0)')
    a(f'v_cmp_eq_u32 vcc, s{sNON}, v1'); a('s_nop 1')
    a('s_and_b32 vcc_hi, vcc_hi, 15'); a('s_bcnt1_i32_b64 s73, vcc' if not HP else 's_bcnt1_i32_b32 s73, vcc_lo'); a(f's_cmp_eq_u32 s73, {8 if HP else 36}'); a('s_cbranch_scc1 K2_m_pd')
    a(f's_sleep {SLP}')
    a('s_sub_u32 s44, s44, 1'); a('s_cmp_lg_u32 s44, 0'); a('s_cbranch_scc1 K2_m_pl')
    a.label('K2_m_pd')
    if P1: a('s_waitcnt vmcnt(0)'); a('s_barrier')
    xs('D')
    def hload(s, qb):
        if qb == 0: a(f's_mov_b32 s{sT1}, {s*1024}')
        tN[s] = a.vmem(f'buffer_load_dwordx4 {vr(HR(s,qb),4)}, v{NV_(qb)}, s[{SN}:{SN+3}], s{sT1} offen sc1')
    if HP:
        a.vm = 0
        for s_ in range(8):
            for qb in range(2): hload(s_, qb)
    else:
        tM = a.vmem(f'buffer_load_dwordx4 v[4:7], v2, s[{SMOD}:{SMOD+3}], 0 offen sc1')
        def nload(s):
            a(f's_mov_b32 s{sT1}, {s*1024}')
            for qb in range(2):
                tN[s] = a.vmem(f'buffer_load_dwordx4 {vr(NR_(s,qb),4)}, v{NV_(qb)}, s[{SN}:{SN+3}], s{sT1} offen sc1')
        nload(0); nload(1); nload(2)
        for t in range(NWP, 5): wload(t)
    srd(a, SK, 4, 0, 1 << 20, 50)
    def wread(t, db, h):
        b = wslot(t); A = WAL if b < LV else WAH
        return f'ds_read_b64_tr_b16 {ar(VF_(db)+2*h,2)}, v{A(db&7)} offset:{(b % LV) + h*2048 + (db>>3)*256}'
    def modreads(s):
        m = MC_(s & 1)
        return [f'ds_read_b128 {vr(m,4)}, v{MA} offset:{1792+128*s}', f'ds_read_b128 {vr(m+4,4)}, v{MA} offset:{1792+128*s+16}',
                f'ds_read_b128 {vr(m+8,4)}, v{MA} offset:{128*s}', f'ds_read_b128 {vr(m+12,4)}, v{MA} offset:{128*s+16}']
    def modvalu(s):
        m = MC_(s & 1); out = []
        for qb in range(2):
            for i in range(4):
                k = (qb*4+i) % 4
                ta, tb = TMP + 2*k, TMP + 2*k + 1
                raw = NR_(s, qb) + i
                out.append([f'v_lshlrev_b32 v{ta}, 16, v{raw}', f'v_and_b32 v{tb}, 0xffff0000, v{raw}',
                            f'v_fma_f32 v{ta}, v{ta}, v{m+2*i}, v{m+8+2*i}', f'v_fma_f32 v{tb}, v{tb}, v{m+2*i+1}, v{m+8+2*i+1}',
                            f'v_cvt_pk_bf16_f32 v{H_(s&1,qb)+i}, v{ta}, v{tb}'])
        return out
    if HP:
        sp.stamp()
        for db in range(16):
            for h in range(2): a(wread(0, db, h))
        a.wait_vm(tN[0], ' lgkmcnt(0)')
        sp.stamp()
    else:
        a.wait_vm(tM)
        a('ds_write_b128 v3, v[4:7]')
        a('s_waitcnt lgkmcnt(0)'); a('s_barrier')
        sp.stamp()
        for x in modreads(0): a(x)
        for db in range(16):
            for h in range(2): a(wread(0, db, h))
        a.wait_vm(tN[0], ' lgkmcnt(15)')
        for grp in modvalu(0):
            for x in grp: a(x)
        for x in modreads(1): a(x)
        a('s_waitcnt lgkmcnt(0)')
        sp.stamp()
    NS = 14
    tok = {}
    kv_at = {8: ('K', 0), 9: ('K', 1), 10: ('K', 2), 11: ('V', 0), 12: ('K', 3), 13: ('V', 1)}
    def tile_items(key):
        if key[0] == 'W':
            t = key[1]; base, so, vo, sd = wslot(t), t*32*8192, WD_, SWQ
        else:
            kind, tt = key
            base, so, vo, sd = (LK if kind == 'K' else LV) + tt*TILE, tt*TILE, (KD_ if kind == 'K' else VD_), (SK if kind == 'K' else SV)
        def mk(n):
            def f():
                tk = a.vmem(dma(vo(n), sd, f's{sT0}', n))
                if key[0] == 'W': tW[key[1]] = tk
                else: tok[key] = tk
            return f
        return [setm0(base), f's_mov_b32 s{sT0}, {hex(so)}'], [mk(n) for n in range(4)]
    def conv_ops(st, qb):
        Xb, Yb, q = O_(2*st, qb), O_(2*st+1, qb), Q_(st, qb)
        return ([f'v_cvt_pk_bf16_f32 v{q}, v{Xb}, v{Xb+1}', f'v_cvt_pk_bf16_f32 v{q+1}, v{Xb+2}, v{Xb+3}',
                 f'v_cvt_pk_bf16_f32 v{q+2}, v{Yb}, v{Yb+1}', f'v_cvt_pk_bf16_f32 v{q+3}, v{Yb+2}, v{Yb+3}'],
                [f'v_permlane32_swap_b32 v{q}, v{q+2}', f'v_permlane32_swap_b32 v{q+1}, v{q+3}'],
                [f'v_permlane16_swap_b32 v{q}, v{q+2}', f'v_permlane16_swap_b32 v{q+1}, v{q+3}'],
                [f'v_mov_b64 v[{Xb}:{Xb+1}], 0', f'v_mov_b64 v[{Xb+2}:{Xb+3}], 0', f'v_mov_b64 v[{Yb}:{Yb+1}], 0', f'v_mov_b64 v[{Yb+2}:{Yb+3}], 0'])
    for s in range(NS):
        if QS2 and s in QS2: _st()
        G_ = [[] for _ in range(32)]
        Vv = [[] for _ in range(32)]
        cap = [1]*32
        bar = (s % 2 == 0)
        if s >= 1:
            G_[0].append(wread(s, 15, 0)); G_[1].append(wread(s, 15, 1))
        for k in (4, 12, 20, 28): G_[k].insert(0, 's_waitcnt lgkmcnt(8)'); cap[k] = 0
        tiles = []
        if W8:
            if 2 <= s and s + 6 < NS: tiles.append(('W', s + 6))
        elif s + 5 < NS: tiles.append(('W', s + 5))
        if s in kv_at: tiles.append(kv_at[s])
        if s + 1 < NS:
            def w(s=s, bar=bar):
                t = 0 if HP else tN[s+1]
                if bar and s >= 2:
                    t = max(t, tW[s+1], tW[min(s+2, NS-1)])
                    if s == 12: t = max(t, tok['K', 1])
                a.wait_vm(t)
                if bar and s >= 2: a('s_barrier')
            if HP:
                G_[31].append(lambda s=s: a.wait_vm(tN[s+1]))
                if bar and s >= 2: G_[1].append(w)
            else: G_[1].append(w)
            for k in range(30): G_[k+2].append(wread(s+1, k >> 1, k & 1))
            if s + 2 < NS and not HP:
                for i, x in enumerate(modreads(s+2)): G_[3+2*i].append(x); cap[3+2*i] = 0
            if HP and s + 8 < NS:
                G_[2].append(lambda s=s: hload(s+8, 0)); G_[6].append(lambda s=s: hload(s+8, 1))
            if s + 3 < NS and not HP:
                def nl(qb, s=s):
                    def f():
                        if qb == 0: a(f's_mov_b32 s{sT1}, {(s+3)*1024}')
                        tN[s+3] = a.vmem(f'buffer_load_dwordx4 {vr(NR_(s+3,qb),4)}, v{NV_(qb)}, s[{SN}:{SN+3}], s{sT1} offen sc1')
                    return f
                G_[2].append(nl(0)); G_[6].append(nl(1)); cap[2] = cap[6] = 0
        else:
            ks = [kread(0, kb, st) for kb in range(2) for st in range(8)] if not X2 else [X2M.kread2(0, st) for st in range(8)]
            for i, x in enumerate(ks): G_[2+i].append(x)
        pos = [10, 14, 18, 22] if len(tiles) == 1 else [8, 11, 14, 17, 21, 24, 27, 30]
        for ti, key in enumerate(tiles):
            su, ds = tile_items(key)
            pp = pos[4*ti:4*ti+4]
            G_[pp[0]-1] = su + G_[pp[0]-1]; cap[pp[0]-1] = 0
            for p, d in zip(pp, ds): G_[p].append(d); cap[p] = 0
        if HP and s + 1 < NS: pass
        elif s + 1 < NS:
            grps = modvalu(s+1); seq = []
            for gi in range(10):
                if gi < 8: seq += grps[gi][0:2]
                if 1 <= gi < 9: seq += grps[gi-1][2:4]
                if gi >= 2: seq.append(grps[gi-2][4])
            lo = 10 if (bar and s >= 2) else 2
            rng = list(range(lo, 30))
            tot = len(seq); base = sum(cap[k] for k in rng); extra = tot - base
            cnt = {k: cap[k] for k in rng}
            order = [k for k in rng if cap[k]] + [k for k in rng if not cap[k]]
            i = 0
            while extra > 0:
                cnt[order[i % len(order)]] += 1; extra -= 1; i += 1
            p = 0
            for k in rng:
                Vv[k] = seq[p:p+cnt[k]]; p += cnt[k]
        else:
            pend = []; zero = []
            for st in range(8):
                A_, B_ = conv_ops(st, 0), conv_ops(st, 1)
                g = 4*st + 3 + 5
                for part in range(3): pend += [(g, st, x) for x in A_[part] + B_[part]]
                if X2: pend += [(g, st, f'ds_write_b128 v168, {vr(Q_(st,qb),4)} offset:{(32768 if st < 4 else 0) + ((st&3)*2+qb)*1024}') for qb in range(2)]
                zero += A_[3] + B_[3]
            for k in range(32):
                n = 1 if G_[k] else 2
                if k >= 18: n = 3
                while n and pend and pend[0][0] <= k and not (pend[0][2].startswith('ds_write') and (pend[0][1] >= 4 or Vv[k])):
                    Vv[k].append(pend.pop(0)[2]); n -= 1
        for db in range(16):
            for qb in range(2):
                k = db*2 + qb
                c = vr(O_(db, qb), 4)
                a(f'{M16} {c}, {ar(VF_(db),4)}, {vr(HR(s,qb) if HP else H_(s&1,qb),4)}, {c if s else 0}')
                for x in G_[k] + Vv[k]:
                    x() if callable(x) else a(x)
    if QS: sq_.stamp()
    a('s_waitcnt lgkmcnt(0)'); a('s_barrier')
    sp.stamp()
    if X2:
        assert all(x[1] >= 1 for x in pend)
        zs = list(zero)
        late = X2M.addr_late(a)
        for x in pend:
            a(x[2])
        for x in late: a(x)
        for _ in range(12): a(zs.pop(0))
        a('s_waitcnt lgkmcnt(0)'); a('s_barrier')
        rd = []
        for st in range(8):
            for c in range(4): rd.append(f'ds_read_b128 {ar(X2M.Q2(st,c),4)}, v{168 + (c >> 1)} offset:{(32768 if st < 4 else 0) + ((st&3)*2+(c&1))*1024}')
        for x in rd[:12]: a(x)
        rd = rd[12:]
        issued = 12
        for st in range(8):
            a(f's_waitcnt lgkmcnt({min(15, issued - 4*(st+1))})')
            for c in range(4):
                a(X2M.qk2(c, st, '0'))
                if rd: a(rd.pop(0)); issued += 1
                for _ in range(1 if rd else 2):
                    if zs: a(zs.pop(0))
        a('s_barrier')
        for st in range(8): a(X2M.kread2(1, st))
        load_tile(a, 'V', 2); load_tile(a, 'K', 4)
        for x in zs: a(x)
        a.nop(max(0, 8 - len(zs) - 8))
        M_ = 216
        X2M.rowmax(a, M_)
        X2M.xl4(a, 'v_max_f32', [M_+c for c in range(4)], [220+c for c in range(4)])
        X2M.max_exchange(a, M_)
        X2M.softmax0_2(a)
    else:
        conv = pend
        mem = []
        for key in (('V', 2), ('K', 4)):
            kind, tt = key
            base = (LK if kind == 'K' else LV) + (tt & 3)*TILE
            mem.append([setm0(base), f's_mov_b32 s{sT0}, {hex(tt*TILE)}'])
            for n in range(4):
                mem.append([lambda n=n, kind=kind: a.vmem(dma((KD_ if kind == 'K' else VD_)(n), SK if kind == 'K' else SV, f's{sT0}', n))])
        first_left = conv[0][1] if conv else 8
        a.nop(2)
        for st in range(8):
            for c in range(4):
                if c == 0 and any(x[1] <= st for x in conv):
                    while any(x[1] <= st for x in conv): a(conv.pop(0)[2])
                    a('s_nop 1')
                q0 = qk_mfma(c, st, '0')
                a(q0)
                n = 3
                if c & 1: a(kread(1, c >> 1, st)); n = 2
                elif mem:
                    for x in mem.pop(0): x() if callable(x) else a(x)
                    n = 1
                while n and conv: a(conv.pop(0)[2]); n -= 1
                while n and zero and not conv: a(zero.pop(0)); n -= 1
        assert not mem
        for x in zero: a(x)
        softmax0(a, True, max(0, 8 - len(zero)))
    GP.flag_srd(a)
    if not GP.LATE:
        a('s_mov_b32 s44, 0x8000'); a(f'v_and_b32 v{S_(0)}, 0x3ff, v{ST_(0)}'); a(f'v_add_u32 v{S_(0)}, {FL_M+448}, v{S_(0)}')
        a.label('K2_n_pl')
        a(f'buffer_load_dword v{S_(0)+1}, v{S_(0)}, s[{GP.SF_}:{GP.SF_+3}], 0 offen sc1')
        a('s_waitcnt vmcnt(0)')
        a(f'v_cmp_eq_u32 vcc, s{sNON}, v{S_(0)+1}'); a('s_nop 1')
        a('s_bcnt1_i32_b64 s73, vcc'); a('s_cmp_ge_u32 s73, 56'); a('s_cbranch_scc1 K2_n_pd')
        a('s_sleep 8')
        a('s_sub_u32 s44, s44, 1'); a('s_cmp_lg_u32 s44, 0'); a('s_cbranch_scc1 K2_n_pl')
        a.label('K2_n_pd')
    a(f's_mov_b32 s{sVO}, {3*TILE}'); a(f's_mov_b32 s{sKO}, {5*TILE}')
    if FUSE:
        if not X2: a(WOPF)
        a('s_getpc_b64 s[24:25]'); a.label('K2_pc2')
        a('s_add_u32 s24, s24, K2_tail-K2_pc2'); a('s_addc_u32 s25, s25, 0'); a('s_and_b32 s25, s25, 0xffff')
        a('s_mov_b32 s26, K2_fb-K2_tail'); a('s_mov_b32 s27, 0x20000')
        a(f'v_and_b32 v{S_(0)}, 0x3ff, v{ST_(0)}'); a(f'v_lshlrev_b32 v{S_(0)}, 3, v{S_(0)}'); a(f's_lshl_b32 s{sT0}, s14, 13')
        a(f'buffer_load_dword {"a32" if X2 else "a128"}, v{S_(0)}, s[24:27], s{sT0} offen')
    sp.stamp()
    if STAMP and not QS and not FUSE: a('s_memrealtime s[90:91]'); a('s_waitcnt lgkmcnt(0)')
    a('.p2align 6')
    a.label('K2_loop')
    pre_len = len(a.L)
    for u in range(4):
        a(f's_waitcnt vmcnt({VMW}) lgkmcnt(0)'); a('s_barrier')
        (X2M.loop_body2 if X2 else loop_body)(a, u, verbose=bool(os.environ.get('V')))
        if u == 2:
            a('s_cbranch_scc1 K2_tail')
    a('s_branch K2_loop')
    body = a.L[pre_len:]
    for p in check_text(body + body, 'k2 loop wrap'): print('HAZARD', p)
    if X2:
        a.label('K2_tail')
        Ls = [X2M.L2(c) for c in range(4)]
        X2M.xl4(a, 'v_add_f32', Ls, [S_(0)+c for c in range(4)])
        a(f'v_and_b32 v{S_(1)}, 0x3ff, v{X2M.PFV}'); a('s_lshl_b32 s73, s14, 10'); a(f's_add_u32 s73, s73, {X2M.LLX}'); a(f'v_add_u32 v{S_(1)}, s73, v{S_(1)}'); a(f'v_xor_b32 v{S_(1)+1}, 0x400, v{S_(1)}')
        a(f'ds_write_b128 v{S_(1)}, {vr(Ls[0],4)}')
        a('s_waitcnt vmcnt(0) lgkmcnt(0)'); a('s_barrier')
        sp.stamp()
        a(f'ds_read_b128 {vr(S_(2),4)}, v{S_(1)+1}')
        for c in range(4): a(X2M.pread(1, c))
        for dbl in range(8):
            for h in range(2): a(X2M.vread2(3, dbl, h))
        a('s_waitcnt lgkmcnt(15)'); a('s_waitcnt lgkmcnt(15)')
        for c in range(4): a(f'v_add_f32 v{Ls[c]}, v{Ls[c]}, v{S_(2)+(c^2)}')
        a(f's_mov_b32 s{sT0}, {f32(THRESH)}')
        a(f'v_add_f32 v{S_(0)+1}, v{Ls[0]}, v{Ls[1]}'); a(f'v_add_f32 v{S_(0)+2}, v{Ls[2]}, v{Ls[3]}'); a(f'v_add_f32 v{S_(0)+1}, v{S_(0)+1}, v{S_(0)+2}')
        a(f'v_cmp_ngt_f32 vcc, s{sT0}, v{S_(0)+1}')
        for c in range(4): a(f'v_rcp_f32 v{Ls[c]}, v{Ls[c]}')
        a(f's_cmp_lg_u64 vcc, 0'); a(f's_cselect_b32 s{sT1}, 1, 0')
        a(f'v_mov_b32 v{S_(0)+2}, s{sT1}')
        a(f's_lshl_b32 s{sT0}, s14, 2'); a(f's_add_u32 s{sT0}, s{sT0}, {LFLAG}'); a(f'v_mov_b32 v{S_(0)+3}, s{sT0}')
        a(f'ds_write_b32 v{S_(0)+3}, v{S_(0)+2}')
        def ep2(n, c, pk):
            Xb, Yb = X2M.O2(2*n, c), X2M.O2(2*n+1, c)
            o = []
            if pk:
                LP = Ls[c & 2]
                sel = 'op_sel:[0,0] op_sel_hi:[1,0]' if c % 2 == 0 else 'op_sel:[0,1] op_sel_hi:[1,1]'
                for b in (Xb, Xb+2, Yb, Yb+2): o.append(f'v_pk_mul_f32 v[{b}:{b+1}], v[{b}:{b+1}], v[{LP}:{LP+1}] {sel}')
            else:
                for i in range(4): o += [f'v_mul_f32 v{Xb+i}, v{Xb+i}, v{Ls[c]}', f'v_mul_f32 v{Yb+i}, v{Yb+i}, v{Ls[c]}']
            o += [f'v_cvt_pk_bf16_f32 v{Xb}, v{Xb}, v{Xb+1}', f'v_cvt_pk_bf16_f32 v{Xb+1}, v{Xb+2}, v{Xb+3}',
                  f'v_cvt_pk_bf16_f32 v{Xb+2}, v{Yb}, v{Yb+1}', f'v_cvt_pk_bf16_f32 v{Xb+3}, v{Yb+2}, v{Yb+3}',
                  f'buffer_store_dwordx4 {vr(Xb,4)}, v{X2M.ST2(c)}, s[{SO}:{SO+3}], 0 offen offset:{n*1024} {OFLAG}']
            return o
        pend = []
        for c in range(4): pend += [(4 + c + 8, x) for x in ep2(0, c, False)]
        for c in range(2): pend += [(12 + c + 8, x) for x in ep2(1, c, False)]
        for dbl in range(8):
            if dbl % 2 == 0: a(f's_waitcnt lgkmcnt({min(15, 17 - 2*dbl - 4)})')
            for c in range(4):
                k = 4*dbl + c
                a(X2M.pv2(dbl, c, 1))
                n = 2
                while n and pend and pend[0][0] <= k:
                    x = pend.pop(0)[1]; a(x); n -= 1
                    if 'store' in x: n = 0
        sp.stamp()
        for x in pend: a(x[1])
        for n_, c in [(1, 2), (1, 3)] + [(n_, c) for n_ in (2, 3) for c in range(4)]:
            for x in ep2(n_, c, True): a(x)
    else:
        a.label('K2_tail')
        a(f's_waitcnt vmcnt({0 if FUSE else 16}) lgkmcnt(0)'); a('s_barrier')
        sp.stamp()
        if STAMP and not QS and not FUSE: a('s_memrealtime s[92:93]'); a('s_waitcnt lgkmcnt(0)'); a('s_sub_u32 s92, s92, s90')
        for db in range(16):
            for h in range(2): a(vread(3, db, h))
        for qb in range(2): xlane(a, 'v_add_f32', L_(qb), S_(qb))
        a(f's_mov_b32 s{sT0}, {f32(THRESH)}')
        a(f'v_add_f32 v{S_(0)+1}, v{L_(0)}, v{L_(1)}')
        a(f'v_cmp_ngt_f32 vcc, s{sT0}, v{S_(0)+1}')
        a(f'v_rcp_f32 v{L_(0)}, v{L_(0)}'); a(f'v_rcp_f32 v{L_(1)}, v{L_(1)}')
        a(f's_cmp_lg_u64 vcc, 0'); a(f's_cselect_b32 s{sT1}, 1, 0')
        a(f'v_mov_b32 v{S_(0)+2}, s{sT1}')
        a(f's_lshl_b32 s{sT0}, s14, 2'); a(f's_add_u32 s{sT0}, s{sT0}, {LFLAG}'); a(f'v_mov_b32 v{S_(0)+3}, s{sT0}')
        a(f'ds_write_b32 v{S_(0)+3}, v{S_(0)+2}')
        def ep_ops(sq, qb, pk):
            Xb, Yb = O_(2*sq, qb), O_(2*sq+1, qb)
            o = []
            if pk:
                LP = L_(0)
                sel = 'op_sel:[0,0] op_sel_hi:[1,0]' if qb == 0 else 'op_sel:[0,1] op_sel_hi:[1,1]'
                for b in (Xb, Xb+2, Yb, Yb+2): o.append(f'v_pk_mul_f32 v[{b}:{b+1}], v[{b}:{b+1}], v[{LP}:{LP+1}] {sel}')
            else:
                for i in range(4):
                    o += [f'v_mul_f32 v{Xb+i}, v{Xb+i}, v{L_(qb)}', f'v_mul_f32 v{Yb+i}, v{Yb+i}, v{L_(qb)}']
            o += [f'v_cvt_pk_bf16_f32 v{Xb}, v{Xb}, v{Xb+1}', f'v_cvt_pk_bf16_f32 v{Xb+1}, v{Xb+2}, v{Xb+3}',
                  f'v_cvt_pk_bf16_f32 v{Xb+2}, v{Yb}, v{Yb+1}', f'v_cvt_pk_bf16_f32 v{Xb+3}, v{Yb+2}, v{Yb+3}',
                  f'buffer_store_dwordx4 {vr(Xb,4)}, v{ST_(qb)}, s[{SO}:{SO+3}], {"0" if sq < 4 else f"s{s4K}"} offen offset:{(sq&3)*1024} {OFLAG}']
            return o
        pend = []
        NOV = 3
        for sq in range(NOV):
            for qb in range(2): pend += [(4*sq + 2 + qb + 8, x) for x in ep_ops(sq, qb, False)]
        for db in range(16):
            if db % 4 == 0: a(f's_waitcnt lgkmcnt({min(15, 33 - 2*db - 8)})')
            for qb in range(2):
                k = 2*db + qb
                a(pv_mfma(db, qb, 1))
                n = 2
                while n and pend and pend[0][0] <= k:
                    x = pend.pop(0)[1]; a(x); n -= 1
                    if 'store' in x: n = 0
        sp.stamp()
        for x in pend: a(x[1])
        for sq in range(NOV, 8):
            for qb in range(2):
                for x in ep_ops(sq, qb, True): a(x)
    sp.stamp()
    if not FUSE:
        if STAMP: a('s_waitcnt vmcnt(0)')
        sp.stamp(); sp.stamp(True); sp.dump(10, 14, S_(2))
        if STAMP and not QS: a(f'v_mov_b32 v{S_(2)+1}, s92'); a(f'buffer_store_dword v{S_(2)+1}, v{S_(2)}, s[96:99], s100 offen offset:60')
        a(f's_cmp_lg_u32 s{sATT}, 0'); a('s_cbranch_scc1 K2_end')
        a(f'v_mov_b32 v{S_(0)+3}, {LFLAG}')
        a('s_waitcnt lgkmcnt(0)'); a('s_barrier')
    else:
        if X3:
            a.g3 = g3 = GP2.Oproj(a)
            g3.w_setup()
            for ks in range(2*GP.NPRE):
                for f in g3.w_tile(ks): f()
            a(f's_waitcnt vmcnt({4*GP.NPRE})')
        else:
            a.g3 = g3 = GP.Gemm(a, 3)
            a(f's_cmp_ge_u32 s{GP.sIDX}, 28'); a('s_cbranch_scc1 K2_np')
            if GP.EARLY and GP.DYN: g3.early()
            else: g3.w_setup()
            for ks in range(GP.NPRE):
                for f in g3.w_pre(ks): f()
            a(f's_waitcnt vmcnt({4*GP.NPRE})'); a('s_branch K2_nj')
            a.label('K2_np')
            a('s_waitcnt vmcnt(0)')
            a.label('K2_nj')
        a(f'v_mov_b32 v{S_(0)+3}, {LFLAG}')
        a('s_waitcnt lgkmcnt(0)'); a('s_barrier')
        a(f's_cmp_lg_u32 s{sATT}, 0'); a('s_cbranch_scc1 K2_go')
    a(f'ds_read_b128 {vr(S_(1),4)}, v{S_(0)+3}')
    a('s_waitcnt lgkmcnt(0)')
    a(f'v_or3_b32 v{S_(1)}, v{S_(1)}, v{S_(1)+1}, v{S_(1)+2}'); a(f'v_or_b32 v{S_(1)}, v{S_(1)}, v{S_(1)+3}')
    a('s_nop 0')
    a(f'v_readfirstlane_b32 s{sT0}, v{S_(1)}')
    a('s_nop 3')
    if not FUSE:
        a(f's_cmp_eq_u32 s{sT0}, 0'); a('s_cbranch_scc1 K2_end')
    else:
        a(f's_cmp_lg_u32 s{sT0}, 0'); a('s_cbranch_scc1 K2_fb')
        a.label('K2_go')
        a(f's_lshl_b32 s44, s13, 7'); a('s_lshl_b32 s45, s12, 2'); a('s_add_u32 s44, s44, s45')
        GP.set_flag(a, 'K2_a', 44, 8)
        sp.stamp(); sp.stamp(True); sp.dump(10, 14, 8)
        if X3:
            GP2.post2(a, 'K2')
            a('s_endpgm')
        else:
            a(f's_cmp_ge_u32 s{GP.sIDX}, 28'); a('s_cbranch_scc1 K2_uw')
            GP.post(a, 'K2')
            a('s_endpgm')
            a.label('K2_uw')
            GP.uw_phase(a, 'K2')
            a('s_endpgm')
    a.label('K2_fb')
    a(f's_mov_b32 s{sATT}, 1')
    a('s_waitcnt vmcnt(0)'); a('s_barrier')
    if X2:
        M_ = 216
        for c in range(4): a(f'v_mov_b32 v{M_+c}, 0xff800000')
        a(f's_mov_b32 s{sKO}, 0')
        a.label('K2_mx')
        a(setm0(LK)); a('s_nop 0')
        for n in range(4): a(dma(KD_(n), SK, f's{sKO}', n))
        a('s_waitcnt vmcnt(0)'); a('s_barrier')
        for st in range(8): a(X2M.kread2(0, st))
        a('s_waitcnt lgkmcnt(0)'); a('s_barrier')
        for c in range(4):
            for st in range(8): a(X2M.qk2(c, st, '0'))
        a.nop(8)
        for c in range(4):
            a(f'v_max3_f32 v{M_+c}, v{S_(c)}, v{S_(c)+1}, v{M_+c}'); a(f'v_max3_f32 v{M_+c}, v{S_(c)+2}, v{S_(c)+3}, v{M_+c}')
        a(f's_add_u32 s{sKO}, s{sKO}, {TILE}'); a(f's_cmp_lt_u32 s{sKO}, {1<<20}'); a('s_cbranch_scc1 K2_mx')
        X2M.xl4(a, 'v_max_f32', [M_+c for c in range(4)], [220+c for c in range(4)])
        X2M.max_exchange(a, M_)
        for i in range(0, 128, 2): a(f'v_mov_b64 v[{i}:{i+1}], 0')
        for kind, t in (('K', 0), ('K', 1), ('K', 2), ('V', 0), ('K', 3), ('V', 1), ('V', 2)): load_tile(a, kind, t)
        a('s_waitcnt vmcnt(0)'); a('s_barrier')
        for st in range(8): a(X2M.kread2(0, st))
        a('s_waitcnt lgkmcnt(0)'); a('s_barrier')
        load_tile(a, 'K', 4)
        for st in range(8):
            for c in range(4): a(X2M.qk2(c, st, '0'))
        for st in range(8): a(X2M.kread2(1, st))
        X2M.softmax0_2(a)
    else:
        for qb in range(2): a(f'v_mov_b32 v{NM_(qb)}, 0xff800000')
        a(f's_mov_b32 s{sKO}, 0')
        a.label('K2_mx')
        a(setm0(LK)); a('s_nop 0')
        for n in range(4): a(dma(KD_(n), SK, f's{sKO}', n))
        a('s_waitcnt vmcnt(0)'); a('s_barrier')
        for kb in range(2):
            for st in range(8): a(kread(0, kb, st))
        a('s_waitcnt lgkmcnt(0)'); a('s_barrier')
        for c in range(4):
            for st in range(8): a(qk_mfma(c, st, '0'))
        a.nop(8)
        for c in range(4):
            t = NM_(c & 1)
            a(f'v_max3_f32 v{t}, v{S_(c)}, v{S_(c)+1}, v{t}'); a(f'v_max3_f32 v{t}, v{S_(c)+2}, v{S_(c)+3}, v{t}')
        a(f's_add_u32 s{sKO}, s{sKO}, {TILE}'); a(f's_cmp_lt_u32 s{sKO}, {1<<20}'); a('s_cbranch_scc1 K2_mx')
        for qb in range(2): xlane(a, 'v_max_f32', NM_(qb), NM_(qb)+1)
        for qb in range(2):
            t = NM_(qb)
            a(f'v_sub_f32 v{t}, 0, v{t}')
            for i in range(1, 4): a(f'v_mov_b32 v{t+i}, v{t}')
        for i in range(0, 128, 2): a(f'v_mov_b64 v[{i}:{i+1}], 0')
        k0 = load_tile(a, 'K', 0); k1 = load_tile(a, 'K', 1)
        for kind, t in (('K', 2), ('V', 0), ('K', 3), ('V', 1), ('V', 2)): load_tile(a, kind, t)
        preamble(a, False, k0, k1)
    a(f's_mov_b32 s{sVO}, {3*TILE}'); a(f's_mov_b32 s{sKO}, {5*TILE}')
    if FUSE and not X2: a(WOPF); a(WOPF)
    a('s_branch K2_loop')
    a.label('K2_end')
    a('s_endpgm')
    return a, f'; @launch {"" if os.environ.get("PLAIN") else "kernel="+N+" "}grid=(256,1,1) block=(256,1,1) lds=163840', kd(N, 256, 256 if X2 else 132, sgpr=102 if STAMP else (80 if FUSE else 64))
```

```python
from gen_common import *
M16 = 'v_mfma_f32_16x16x32_bf16'
FL_A, FL_B, FL_C, FL_U = 0, 2048, 4096, 6144
SC = 'sc1'
sX, sOUT, sW2, sWO, sW1, sWS, sWAVE = 64, 66, 54, 60, 62, 10, 14
sIDX, sTB, sNT, sLB, sROT = 68, 69, 70, 71, 72
sT = [73, 74, 75]
SW_, SA_, SF_ = 24, 28, 32
SX_, SM_, SO2, SO3 = 16, 20, 36, 40
ACC = lambda nb, tb: (nb*4+tb)*4
AF = lambda buf, nb: 64 + buf*16 + nb*4
BSL = [96, 112, 128, 160, 176, 192, 208, 224]
BF = lambda slot, tb: BSL[slot] + tb*4
WV = lambda m: 144 + m
RA = lambda nb: 148 + nb
BV = lambda tb: 152 + tb
LANE, GG, T0, T1 = 156, 157, 158, 159
E0 = 240
L16 = 243
X1A = 120
D = 8; PF = 7
E4F = int(os.environ.get('E4F', 3))
IROT = int(os.environ.get('IROT', 1))
EARLY = int(os.environ.get('EARLY', 0))
SPF = int(os.environ.get('SPF', 0)); SPW = int(os.environ.get('SPW', 0))
SP2 = int(os.environ.get('SP2', 0))
PW0 = int(os.environ.get('PW0', 1))
RED3 = int(os.environ.get('RED3', 1))
DW5 = int(os.environ.get('DW5', 10))
LA4 = int(os.environ.get('LA4', 5)); Y4 = int(os.environ.get('Y4', 0))
TWOP = int(os.environ.get('TWOP', 0))
OUTF = os.environ.get('OUTF', 'sc1')
EPI = int(os.environ.get('EPI', 0))
DYN = int(os.environ.get('DYN', 1))
LATE = int(os.environ.get('LATE', 1))
PSL = int(os.environ.get('PSL', 2))
FL_M = 8192
NPRE = int(os.environ.get('NPRE', 2))
BSC = os.environ.get('BSC', SC)

def xlane(a, op, r, t):
    for sw in ('v_permlane32_swap_b32', 'v_permlane16_swap_b32'):
        a(f'v_mov_b32 v{t}, v{r}'); a('s_nop 1'); a(f'{sw} v{r}, v{t}'); a('s_nop 1')
        a(f'{op} v{r}, v{r}, v{t}')
def lane_id(a, r):
    a(f'v_mbcnt_lo_u32_b32 v{r}, -1, 0'); a(f'v_mbcnt_hi_u32_b32 v{r}, -1, v{r}')

def roles(a):
    a(f's_and_b32 s{sT[0]}, s2, 7'); a(f's_lshr_b32 s{sIDX}, s2, 3')
    a(f's_mul_i32 s{sTB}, s{sIDX}, 37'); a(f's_lshr_b32 s{sTB}, s{sTB}, 8')
    a(f's_mul_i32 s{sNT}, s{sTB}, 7'); a(f's_sub_u32 s{sNT}, s{sIDX}, s{sNT}')
    a(f's_lshl_b32 s{sT[1]}, s{sT[0]}, 2'); a(f's_add_u32 s{sTB}, s{sTB}, s{sT[1]}')
def roles2(a):
    a(f's_lshl_b32 s{sLB}, s{sWAVE}, 15'); a(f's_cmp_eq_u32 s{sWAVE}, 3'); a(f's_cselect_b32 s{sLB}, 0x20000, s{sLB}')

NONCE = int(os.environ.get('NONCE', 1))
sNON = 75
def flag_srd(a): srd(a, SF_, sWS, WS_FLAG, 16384)
def set_flag(a, tag, offreg, vt):
    a(f's_cmp_lg_u32 s{sWAVE}, 0'); a(f's_cbranch_scc1 {tag}_nf')
    a(f'v_mov_b32 v{vt}, 0'); a(f'v_mov_b32 v{vt+1}, ' + (f's{sNON}' if NONCE else '1'))
    a(f's_mov_b64 exec, 1')
    a(f'buffer_store_dword v{vt+1}, v{vt}, s[{SF_}:{SF_+3}], s{offreg} offen {SC}')
    a(f's_mov_b64 exec, -1')
    a.label(f'{tag}_nf')
def poll(a, tag, vaddr, vt, mask, extra=None, one=False):
    a(f's_mov_b32 s{sT[1]}, 0x8000')
    if one: a(f's_cmp_lg_u32 s{sWAVE}, {PW0-1}'); a(f's_cbranch_scc1 {tag}_pd')
    a.label(f'{tag}_pl')
    a(f'buffer_load_dword v{vt}, v{vaddr}, s[{SF_}:{SF_+3}], 0 offen {SC}')
    if extra: a(f'buffer_load_dword v{extra[1]}, v{extra[0]}, s[{SF_}:{SF_+3}], 0 offen {SC}')
    a('s_waitcnt vmcnt(0)')
    a(f'v_cmp_eq_u32 vcc, s{sNON}, v{vt}' if NONCE else f'v_cmp_ne_u32 vcc, 0, v{vt}')
    a('s_nop 1')
    a(f's_and_b32 s{sT[0]}, vcc_lo, {hex(mask)}')
    if extra:
        a(f'v_cmp_eq_u32 vcc, s{sNON}, v{extra[1]}'); a('s_nop 1'); a('s_bcnt1_i32_b64 s46, vcc')
        a(f's_cmp_ge_u32 s46, {extra[2]}'); a(f's_cselect_b32 s{sT[0]}, s{sT[0]}, 0')
    a(f's_cmp_eq_u32 s{sT[0]}, {hex(mask)}'); a(f's_cbranch_scc1 {tag}_pd')
    a(f's_sleep {PSL}')
    a(f's_sub_u32 s{sT[1]}, s{sT[1]}, 1'); a(f's_cmp_lg_u32 s{sT[1]}, 0'); a(f's_cbranch_scc1 {tag}_pl')
    a.label(f'{tag}_pd')
    if one: a('s_waitcnt vmcnt(0)'); a('s_barrier')
    a.vm = 0

class Gemm:
    X1MEM = False
    def __init__(self, a, kid):
        self.a = a; self.kid = kid
        self.KS = 32 if kid == 3 else 14
        self.tB = {}; self.tW = {}
        self.DW = DW5 if kid == 5 else D
    def w_setup(self):
        a = self.a; KS = self.KS
        l, t0, t1 = RA(0), RA(1), RA(2)
        lane_id(a, l)
        a(f'v_bfe_u32 v{t0}, v{l}, 4, 2'); a(f'v_lshlrev_b32 v{t0}, 1, v{t0}'); a(f'v_and_b32 v{t1}, 7, v{l}'); a(f'v_xor_b32 v{t0}, v{t0}, v{t1}')
        a(f'v_lshlrev_b32 v{t0}, 4, v{t0}')
        a(f'v_lshrrev_b32 v{t1}, 3, v{l}'); a(f'v_mul_u32_u24 v{t1}, 896, v{t1}'); a(f'v_add_u32 v{WV(0)}, v{t0}, v{t1}')
        for m in range(1, 4): a(f'v_add_u32 v{WV(m)}, {6144*m}, v{WV(0)}')
        self.dyn = DYN and self.kid == 3
        self.nw0 = NPRE if (self.dyn and EARLY) else 4 if (self.dyn and DYN != 1) else PF
        a(f's_mul_i32 s{sT[0]}, s{sWAVE}, {(4 if self.dyn else KS)*32*896}'); a(f's_lshl_b32 s{sT[1]}, s{sNT}, 7'); a(f's_add_u32 s{sT[0]}, s{sT[0]}, s{sT[1]}')
        srd(a, SW_, sWO if self.kid == 3 else sW2, 0, 0, sT[0]); a(f's_sub_u32 s{SW_+2}, {4*KS*32*896}, s{sT[0]}')
        if self.DW != D:
            a(f's_mul_i32 s{sLB}, s{sWAVE}, {self.DW*4096}'); self.nw0 = self.DW
        RM = int(os.environ.get('RM', 0))
        if RM == 0:
            a(f's_and_b32 s{sROT}, s2, 7'); a(f's_mul_i32 s{sROT}, s{sROT}, {KS}'); a(f's_lshr_b32 s{sROT}, s{sROT}, 3')
        elif RM == 1:
            a(f's_and_b32 s{sROT}, s{sTB}, 3'); a(f's_lshl_b32 s{sT[0]}, s{sNT}, 2'); a(f's_add_u32 s{sROT}, s{sROT}, s{sT[0]}')
            a(f's_mul_i32 s{sROT}, s{sROT}, {KS*2341}'); a(f's_lshr_b32 s{sROT}, s{sROT}, 16')
        else:
            a(f's_mul_i32 s{sROT}, s{sNT}, {KS*9363}'); a(f's_lshr_b32 s{sROT}, s{sROT}, 16')
        a(f's_mov_b32 s49, s{sROT}')
        if self.dyn:
            if EARLY: a('s_add_u32 s49, s2, 1'); a('s_and_b32 s49, s49, 7'); a('s_lshl_b32 s49, s49, 4')
            else: a('s_and_b32 s49, s2, 7'); a('s_lshl_b32 s49, s49, 4')
            if IROT == 1: a(f's_add_u32 s48, s{sNT}, s{sTB}')
            if IROT == 2: a(f's_mov_b32 s48, s{sNT}')
            if IROT == 3: a(f's_mov_b32 s48, s{sTB}')
    def adv(self, reg):
        a = self.a
        a(f's_add_u32 s{reg}, s{reg}, 1'); a(f's_cmp_eq_u32 s{reg}, {self.KS}'); a(f's_cselect_b32 s{reg}, 0, s{reg}')
    def w_pre(self, ks):
        a = self.a
        def su():
            if self.dyn and DYN == 1 and 4 <= ks < self.nw0:
                a('s_add_u32 s51, s49, 16'); a('s_and_b32 s51, s51, 127')
                a(f's_add_u32 m0, s{sLB}, {(ks % D)*4096}'); self.sub('s51', ks); a(f's_mul_i32 s50, s51, {32*896}')
                return
            if self.dyn:
                if ks and ks % 4 == 0: self.pick(ks // 4)
                a(f's_add_u32 m0, s{sLB}, {(ks % D)*4096}'); self.sub('s49', ks); a(f's_mul_i32 s50, s51, {32*896}'); a('s_lshl_b32 s51, s51, 10')
                return
            if ks: self.adv(49)
            a(f's_add_u32 m0, s{sLB}, {(ks % self.DW)*4096}'); a(f's_mul_i32 s50, s49, {32*896}')
        def d(m):
            def f(): self.tW[ks] = a.vmem(f'buffer_load_dwordx4 v{WV(m)}, s[{SW_}:{SW_+3}], s50 offen offset:{1024*m} lds')
            return f
        return [su] + [d(m) for m in range(4)]
    def sub(self, base, ks):
        a = self.a
        if IROT:
            a(f's_add_u32 s73, s48, {ks % 4}'); a('s_and_b32 s73, s73, 3'); a(f's_add_u32 s51, {base}, s73')
        else: a(f's_add_u32 s51, {base}, {ks % 4}')
    def ready_mask(self):
        a = self.a
        a('s_lshr_b32 s73, vcc_lo, 1'); a('s_and_b32 s73, s73, vcc_lo'); a(f's_and_b32 s{sROT}, s73, 0x5555')
    def pick(self, j):
        a = self.a; T = f'K2_d{j}'
        if DYN == 1:
            a('s_add_u32 s49, s49, 16'); a('s_and_b32 s49, s49, 127'); a('s_lshr_b32 s73, s49, 3'); a('s_lshl_b32 s43, 1, s73')
            test = f's_and_b32 s73, s{sROT}, s43'
        else:
            test = f's_andn2_b32 s73, s{sROT}, s43'
        SMP = E0 + 12 + (j & 1)
        if EARLY and j >= 3:
            a(f'v_cmp_eq_u32 vcc, s{sNON}, v{SMP}'); a('s_nop 1')
            a('s_lshr_b32 s73, vcc_lo, 1'); a('s_and_b32 s73, s73, vcc_lo'); a('s_and_b32 s73, s73, 0x5555'); a(f's_or_b32 s{sROT}, s{sROT}, s73')
        if EARLY and j <= 5: a.vmem(f'buffer_load_dword v{SMP}, v{T0}, s[{SF_}:{SF_+3}], 0 offen {SC}')
        a(f's_mov_b32 s{sT[1]}, 0x8000')
        a.label(f'{T}_l')
        a(test); a(f's_cbranch_scc1 {T}_g')
        a(f'buffer_load_dword v{T1}, v{T0}, s[{SF_}:{SF_+3}], 0 offen {SC}')
        a('s_waitcnt vmcnt(0)')
        a(f'v_cmp_eq_u32 vcc, s{sNON}, v{T1}'); a('s_nop 1')
        self.ready_mask()
        a(test); a(f's_cbranch_scc1 {T}_g')
        a('s_sleep 4')
        a(f's_sub_u32 s{sT[1]}, s{sT[1]}, 1'); a(f's_cmp_lg_u32 s{sT[1]}, 0'); a(f's_cbranch_scc1 {T}_l')
        a(f's_mov_b32 s{sROT}, 0x5555'); a(f's_branch {T}_l')
        a.label(f'{T}_g')
        if DYN != 1: a('s_ff1_i32_b32 s73, s73'); a('s_bitset1_b32 s43, s73'); a('s_lshl_b32 s49, s73, 3')
    def b_setup(self):
        a = self.a; KS = self.KS; NKS = 4*KS; TE = 136
        lane_id(a, LANE)
        a(f'v_bfe_u32 v{GG}, v{LANE}, 4, 2')
        a(f'v_lshlrev_b32 v{BV(0)}, 4, v{LANE}')
        if RED3:
            a(f'v_mov_b32 v{L16}, v{BV(0)}')
            for tb in range(4):
                a(f's_add_u32 s73, s{sWAVE}, {tb}'); a('s_and_b32 s73, s73, 3'); a(f's_mul_i32 s73, s73, {NKS*1024}'); a(f'v_add_u32 v{BV(tb)}, s73, v{L16}')
        else:
            a(f'v_mov_b32 v{L16}, v{BV(0)}')
            for tb in range(1, 4): a(f'v_add_u32 v{BV(tb)}, {tb*NKS*1024}, v{BV(0)}')
        a(f's_mul_i32 s73, s{sTB}, {4*NKS*1024}'); a(f's_mul_i32 s74, s{sWAVE}, {(4 if self.dyn else KS)*1024}'); a('s_add_u32 s73, s73, s74')
        srd(a, SA_, sWS, WS_O if self.kid == 3 else WS_H, 0, 73); a(f's_sub_u32 s{SA_+2}, {128*NKS*1024}, s73')
        a(f'v_bfe_u32 v{T0}, v{LANE}, 2, 4'); a(f'v_bfe_u32 v{T1}, v{T0}, 1, 2')
        a(f'v_lshlrev_b32 v{T0}, 7, v{T0}'); a(f'v_and_b32 v{TE}, 3, v{LANE}'); a(f'v_lshl_add_u32 v{T0}, v{TE}, 3, v{T0}'); a(f'v_add_u32 v{T0}, s{sLB}, v{T0}')
        for nb in range(4):
            a(f'v_xor_b32 v{TE}, {nb}, v{T1}'); a(f'v_lshl_add_u32 v{RA(nb)}, v{TE}, 5, v{T0}')
        if not self.dyn: a(f's_mov_b32 s48, s{sROT}')
    def early(self):
        a = self.a
        self.w_setup(); self.b_setup()
        a(f's_lshr_b32 s73, s{sTB}, 1'); a('s_lshl_b32 s73, s73, 7'); a(f'v_lshlrev_b32 v{T0}, 2, v{LANE}'); a(f'v_add_u32 v{T0}, s73, v{T0}')
        a(f'v_add_u32 v136, {FL_M+448}, v{BV(0)}')
        a(f'buffer_load_dword v{T1}, v{T0}, s[{SF_}:{SF_+3}], 0 offen {SC}')
        a(f'buffer_load_dword v137, v136, s[{SF_}:{SF_+3}], 0 offen {SC}')
    def b_load(self, ks, m):
        a = self.a
        if m == 0 and self.dyn:
            if ks == 4 and DYN == 1 and self.nw0 > 4: self.pick(1)
            if ks < self.nw0: self.sub('s49', ks); a('s_lshl_b32 s51, s51, 10')
        elif m == 0:
            if ks: self.adv(48)
            a('s_lshl_b32 s51, s48, 10')
        self.tB[ks] = a.vmem(f'buffer_load_dwordx4 {vr(BF(ks % D, m),4)}, v{BV(m)}, s[{SA_}:{SA_+3}], s51 offen {BSC}')
    def areads(self, ks):
        return [f'ds_read_b64_tr_b16 {vr(AF(ks&1,nb)+2*h,2)}, v{RA(nb)} offset:{(ks % self.DW)*4096 + h*2048}' for nb in range(4) for h in range(2)]
    def main(self, sp):
        a = self.a; KS = self.KS; kid = self.kid
        NW0 = self.nw0
        for ks in range(PF):
            wq = self.w_pre(ks) if ks >= NW0 else None
            if wq: wq[0]()
            for m in range(4):
                if wq: wq[1+m]()
                self.b_load(ks, m)
            if ks == (1 if self.nw0 < 4 else 0):
                if self.nw0 < 4: a.wait_vm(self.tW[0])
                for x in self.areads(0): a(x)
        EP = {}
        for ks in range(KS):
            nxt = []
            if ks + 1 < KS:
                t = self.tB[ks+1] if ks + 1 < NW0 else max(self.tB[ks+1], self.tW[ks+1])
                a.wait_vm(max(t, self.tB[ks]), ' lgkmcnt(0)'); nxt = self.areads(ks+1)
            else: a('s_waitcnt lgkmcnt(0)')
            pf = ks + PF; i = 0
            wp = self.w_pre(pf) if pf < KS else []
            if self.DW != D:
                pw = ks + self.DW - 1
                wp = self.w_pre(pw) if (ks >= 1 and pw < KS) else []
            for nb in range(4):
                for tb in range(4):
                    c = vr(ACC(nb, tb), 4)
                    a(f'{M16} {c}, {vr(AF(ks&1,nb),4)}, {vr(BF(ks % D, tb),4)}, {c if ks else 0}')
                    if i < 8 and nxt: a(nxt.pop(0))
                    if wp and i == 0: wp[0]()
                    if i >= 8:
                        m = (i - 8) >> 1
                        if i & 1:
                            if pf < KS: self.b_load(pf, m)
                        elif wp: wp[1+m]()
                    i += 1
            if ks == KS - PF:
                EPB = BF((ks + PF) % D, 0); EP['B'] = EPB
                a(f'v_and_b32 v{E0+5}, 15, v{LANE}')
                a(f's_lshl_b32 s52, s{sTB}, 6'); a(f's_lshl_b32 s53, s{sWAVE}, 4'); a('s_add_u32 s52, s52, s53')
                a(f's_lshl_b32 s44, s{sNT}, 8')
                srd(a, SM_, sWS, WS_MOD, 6*448*4)
                a(f'v_lshlrev_b32 v{E0+6}, 4, v{GG}')
                a(f's_add_u32 s47, s44, {(2 if kid == 3 else 5)*1792}')
                for nb in range(4): a.vmem(f'buffer_load_dwordx4 {vr(EPB+4*nb,4)}, v{E0+6}, s[{SM_}:{SM_+3}], s47 offen offset:{64*nb} {SC}')
            if ks == KS - PF + 1 and kid == 3:
                EPC = BF((ks + PF) % D, 0); EP['C'] = EPC
                a(f's_add_u32 s47, s44, {4*1792}')
                for nb in range(4): a.vmem(f'buffer_load_dwordx4 {vr(EPC+4*nb,4)}, v{E0+6}, s[{SM_}:{SM_+3}], s47 offen offset:{64*nb} {SC}')
            if ks == KS - PF + 2:
                EPX = BF((ks + PF) % D, 0); EP['X'] = EPX
                a('s_lshr_b32 s56, s52, 4'); a(f's_mul_i32 s56, s56, {14*1024}'); a(f's_lshl_b32 s57, s{sNT}, 11'); a('s_add_u32 s56, s56, s57')
                a('s_mul_i32 s58, s52, 896'); a(f's_lshl_b32 s57, s{sNT}, 7'); a('s_add_u32 s58, s58, s57')
                a(f'v_mul_u32_u24 v{E0+7}, 896, v{E0+5}')
                if kid == 3: a(f'v_lshl_add_u32 v{E0+7}, v{GG}, 3, v{E0+7}')
                else:
                    a(f'v_and_b32 v{E0+4}, 1, v{GG}'); a(f'v_lshl_add_u32 v{E0+7}, v{E0+4}, 5, v{E0+7}')
                    a(f'v_lshrrev_b32 v{E0+4}, 1, v{GG}'); a(f'v_lshl_add_u32 v{E0+7}, v{E0+4}, 4, v{E0+7}')
                srd(a, SX_, sX if kid == 3 else sOUT, 0, 2048*896)
                if kid == 3:
                    for nb in range(4): a.vmem(f'buffer_load_dwordx2 {vr(EPX+2*nb,2)}, v{E0+7}, s[{SX_}:{SX_+3}], s58 offen offset:{32*nb}')
                    srd(a, SO2, sWS, WS_Y, 128*14*1024); srd(a, SO3, sWS, WS_STAT, 7*2048*8)
                elif self.X1MEM:
                    srd(a, SO2, sWS, WS_X1, 128*14*1024)
                    for hh in range(2): a.vmem(f'buffer_load_dwordx4 {vr(EPX+4*hh,4)}, v{L16}, s[{SO2}:{SO2+3}], s56 offen offset:{1024*hh} {SC}')
        sp.stamp()
        if RED3:
            a(f'v_add_u32 v{E0+8}, s{sLB}, v{L16}')
            for t in range(1, 4):
                a(f's_sub_u32 s59, s{sWAVE}, {t}'); a('s_and_b32 s59, s59, 3')
                if self.DW != D: a(f's_mul_i32 s73, s59, {self.DW*4096}')
                else: a('s_lshl_b32 s73, s59, 15'); a('s_cmp_eq_u32 s59, 3'); a('s_cselect_b32 s73, 0x20000, s73')
                a(f'v_add_u32 v{E0+8+t}, s73, v{L16}')
            for t in range(1, 4):
                for nb in range(4): a(f'ds_write_b128 v{E0+8}, {vr(ACC(nb,t),4)} offset:{((t-1)*4+nb)*1024}')
            a('s_waitcnt lgkmcnt(0)'); a('s_barrier')
            R_ = lambda t, nb: ACC(nb, t)
            for t in range(1, 4):
                for nb in range(4): a(f'ds_read_b128 {vr(R_(t,nb),4)}, v{E0+8+t} offset:{((t-1)*4+nb)*1024}')
            a('s_waitcnt lgkmcnt(8)')
            for nb in range(4):
                for i in range(4): a(f'v_add_f32 v{64+4*nb+i}, v{ACC(nb,0)+i}, v{R_(1,nb)+i}')
            a('s_waitcnt lgkmcnt(0)')
            if kid == 3: a('s_barrier')
            for nb in range(4):
                for i in range(4): a(f'v_add_f32 v{ACC(nb,2)+i}, v{ACC(nb,2)+i}, v{ACC(nb,3)+i}')
            for nb in range(4):
                for i in range(4): a(f'v_add_f32 v{4*nb+i}, v{64+4*nb+i}, v{ACC(nb,2)+i}')
        else:
            a(f'v_add_u32 v{E0+8}, s{sLB}, v{L16}')
            a(f's_lshl_b32 s59, s{sWAVE}, 12')
            a(f'v_add_u32 v{E0+9}, s59, v{L16}'); a(f'v_add_u32 v{E0+10}, 65536, v{E0+9}'); a(f'v_add_u32 v{E0+11}, 131072, v{E0+9}')
            a.nop(3)
            for tb in range(4):
                for nb in range(4): a(f'ds_write_b128 v{E0+8}, {vr(ACC(nb,tb),4)} offset:{(tb*4+nb)*1024}')
            a('s_waitcnt lgkmcnt(0)'); a('s_barrier')
            for src in range(4):
                for nb in range(4):
                    a(f'ds_read_b128 {vr((src*4+nb)*4,4)}, v{E0+9+max(0,src-1)} offset:{(32768 if src == 1 else 0) + nb*1024}')
            a('s_waitcnt lgkmcnt(8)')
            for i in range(16): a(f'v_add_f32 v{i}, v{i}, v{16+i}')
            a('s_waitcnt lgkmcnt(0)')
            if kid == 3: a('s_barrier')
            for i in range(16): a(f'v_add_f32 v{32+i}, v{32+i}, v{48+i}')
            for i in range(16): a(f'v_add_f32 v{i}, v{i}, v{32+i}')
        sp.stamp()
        EPB = EP['B']
        a('s_waitcnt vmcnt(0)')
        for i in range(0, 16, 2): a(f'v_cvt_pk_bf16_f32 v{16+i//2}, v{i}, v{i+1}')
        for i in range(8): unpack(a, 2*i, 2*i+1, 16+i)
        for i in range(16): a(f'v_mul_f32 v{i}, v{i}, v{EPB+i}')
        for i in range(0, 16, 2): a(f'v_cvt_pk_bf16_f32 v{16+i//2}, v{i}, v{i+1}')
        if kid == 5 and not self.X1MEM:
            for i in range(8): a(f'v_accvgpr_read_b32 v{24+i}, a{X1A+i}')
            EPX = 24
        else: EPX = EP['X']
        for i in range(8): unpack(a, 2*i, 2*i+1, 16+i)
        for i in range(8): unpack(a, 32+2*i, 33+2*i, EPX+i)
        for i in range(16): a(f'v_add_f32 v{i}, v{i}, v{32+i}')
        for i in range(0, 16, 2): a(f'v_cvt_pk_bf16_f32 v{16+i//2}, v{i}, v{i+1}')
        if kid == 5:
            a('s_nop 0')
            for p in range(2):
                for d in range(2): a(f'v_permlane16_swap_b32 v{16+4*p+d}, v{18+4*p+d}')
            for p in range(2): a(f'buffer_store_dwordx4 {vr(16+4*p,4)}, v{E0+7}, s[{SX_}:{SX_+3}], s58 offen offset:{64*p} {OUTF}')
            return
        EPC = EP['C']
        for i in range(8): unpack(a, 2*i, 2*i+1, 16+i)
        for i in range(16): a(f'v_mul_f32 v{32+i}, v{i}, v{EPC+i}')
        for i in range(0, 16, 2): a(f'v_cvt_pk_bf16_f32 v{24+i//2}, v{32+i}, v{33+i}')
        for hh in range(2): a.vmem(f'buffer_store_dwordx4 {vr(24+4*hh,4)}, v{L16}, s[{SO2}:{SO2+3}], s56 offen offset:{1024*hh} {SC}')
        a('v_add_f32 v48, v0, v1'); a('v_mul_f32 v49, v0, v0'); a('v_add_f32 v50, v2, v3'); a('v_mul_f32 v51, v2, v2')
        a('v_fmac_f32 v49, v1, v1'); a('v_fmac_f32 v51, v3, v3')
        for i in range(4, 16, 2):
            a(f'v_add_f32 v48, v48, v{i}'); a(f'v_fmac_f32 v49, v{i}, v{i}'); a(f'v_add_f32 v50, v50, v{i+1}'); a(f'v_fmac_f32 v51, v{i+1}, v{i+1}')
        a('v_add_f32 v48, v48, v50'); a('v_add_f32 v49, v49, v51')
        for sw in ('v_permlane32_swap_b32', 'v_permlane16_swap_b32'):
            a('v_mov_b32 v50, v48'); a('v_mov_b32 v51, v49'); a('s_nop 0'); a(f'{sw} v48, v50'); a(f'{sw} v49, v51'); a('s_nop 0')
            a('v_add_f32 v48, v48, v50'); a('v_add_f32 v49, v49, v51')
        a(f'v_lshlrev_b32 v50, 3, v{E0+5}')
        a(f's_lshl_b32 s57, s{sNT}, 14'); a('s_lshl_b32 s59, s52, 3'); a('s_add_u32 s57, s57, s59')
        self.tlast = a.vmem(f'buffer_store_dwordx2 v[48:49], v50, s[{SO3}:{SO3+3}], s57 offen {SC}')
        for i in range(8): a(f'v_accvgpr_write_b32 a{X1A+i}, v{16+i}')

def uw_phase(a, T):
    if SPF:
        a(f's_sub_u32 s44, s{sIDX}, 28'); a('s_lshl_b32 s44, s44, 2'); a(f's_add_u32 s44, s44, s{sWAVE}'); a('s_mul_i32 s44, s44, 28672')
        srd(a, 16, sWO, 0, 4096*896)
        lane_id(a, 0); a('v_lshlrev_b32 v0, 7, v0')
        for i in range(1, 4): a(f'v_add_u32 v{i}, {8192*i}, v0')
        a('s_and_b32 s45, s2, 7')
        for j in range(8):
            a(f's_mul_i32 s46, s45, {16*28672}'); a('s_add_u32 s46, s46, s44')
            for i in range(4): a(f'buffer_load_dword v{8+i}, v{i}, s[16:19], s46 offen')
            a('s_add_u32 s45, s45, 1'); a('s_and_b32 s45, s45, 7')
            a(f's_waitcnt vmcnt({SPW})')
    a(f's_sub_u32 s13, s{sIDX}, 28'); a('s_lshl_b32 s13, s13, 3'); a('s_and_b32 s12, s2, 7'); a('s_add_u32 s13, s13, s12')
    a('s_cmp_ge_u32 s13, 28'); a(f's_cbranch_scc1 {T}_{"w2" if SP2 else "end"}')
    lane_id(a, 0); a(f's_lshl_b32 s12, s{sWAVE}, 6'); a('v_add_u32 v0, s12, v0')
    if LATE:
        lane_id(a, 1); a('v_lshlrev_b32 v1, 4, v1'); a(f'v_add_u32 v1, {FL_M+448}, v1')
        poll(a, f'{T}_u', 1, 2, 0xffffffff, (1, 3, 56))
    a('v_and_b32 v1, 7, v0'); a('v_lshrrev_b32 v2, 3, v0')
    a('v_mul_u32_u24 v3, 3584, v2'); a('v_lshl_add_u32 v3, v1, 4, v3'); a('v_lshlrev_b32 v4, 2, v2')
    a('s_lshl_b32 s44, s13, 7'); a('s_lshl_b32 s45, s13, 8')
    srd(a, 16, sW1, 0, 448*3584); srd(a, 20, sWS, WS_MOD + 3*1792, 2*1792); srd(a, 24, sWS, WS_U, 0x4000)
    CS, CC, Wr = 8, 24, 40
    for i in range(14):
        a(f'buffer_load_dword v{CS+i}, v4, s[20:23], 0 offen offset:{128*i} {SC}')
        a(f'buffer_load_dword v{CC+i}, v4, s[20:23], 0 offen offset:{1792+128*i} {SC}')
    for i in range(14):
        a(f's_add_u32 s46, s44, {32*3584*i}')
        a(f'buffer_load_dwordx4 {vr(Wr+4*i,4)}, v3, s[16:19], s46 offen')
    AU, AW = 96, 104
    for i in range(14):
        a(f's_waitcnt vmcnt({13-i})')
        for j in range(4):
            unpack(a, 112, 113, Wr+4*i+j)
            op = 'v_mul_f32' if i == 0 else 'v_fmac_f32'
            a(f'{op} v{AU+2*j}, v112, v{CC+i}'); a(f'{op} v{AU+2*j+1}, v113, v{CC+i}')
            a(f'{op} v{AW+2*j}, v112, v{CS+i}'); a(f'{op} v{AW+2*j+1}, v113, v{CS+i}')
    a('v_lshlrev_b32 v5, 8, v2'); a('v_lshl_add_u32 v5, v1, 5, v5')
    a(f'ds_write_b128 v5, {vr(AU,4)}'); a(f'ds_write_b128 v5, {vr(AU+4,4)} offset:16')
    a(f'ds_write_b128 v5, {vr(AW,4)} offset:8192'); a(f'ds_write_b128 v5, {vr(AW+4,4)} offset:8208')
    a('v_and_b32 v6, 63, v0'); a('v_lshlrev_b32 v6, 2, v6'); a('v_bfe_u32 v7, v0, 6, 1'); a('v_lshl_add_u32 v8, v7, 13, v6')
    a('s_waitcnt lgkmcnt(0)'); a('s_barrier')
    for i in range(32): a(f'ds_read_b32 v{40+i}, v8 offset:{256*i}')
    a('s_waitcnt lgkmcnt(0)')
    n = 32
    while n > 1:
        n //= 2
        for i in range(n): a(f'v_add_f32 v{40+i}, v{40+i}, v{40+n+i}')
    a(f'v_mov_b32 v41, {f32(LOG2E)}'); a('v_cmp_eq_u32 vcc, 0, v7'); a('s_nop 1'); a('v_cndmask_b32 v41, v41, 1.0, vcc'); a('v_mul_f32 v40, v40, v41')
    a(f'buffer_store_dword v40, v8, s[24:27], s45 offen {SC}')
    a('s_waitcnt vmcnt(0)'); a('s_barrier')
    a(f's_lshl_b32 s46, s13, 2'); a(f's_add_u32 s46, s46, {FL_U}')
    set_flag(a, f'{T}_u', 46, 1)
    if SP2:
        a.label(f'{T}_w2')
        lane_id(a, 0); a('s_and_b32 s44, s2, 7'); a('s_lshl_b32 s44, s44, 8'); a(f's_add_u32 s44, s44, {FL_B}')
        a('v_lshlrev_b32 v1, 2, v0'); a('v_add_u32 v1, s44, v1')
        poll(a, f'{T}_v', 1, 2, 0x3fff)
        srd(a, 16, sW2, 0, 1792*896)
        a(f's_sub_u32 s44, s{sIDX}, 28'); a('s_lshl_b32 s44, s44, 2'); a(f's_add_u32 s44, s44, s{sWAVE}'); a('s_lshl_b32 s44, s44, 13')
        a('v_lshlrev_b32 v0, 7, v0')
        for i in range(13):
            a(f'buffer_load_dword v{8+(i&3)}, v0, s[16:19], s44 offen'); a(f's_add_u32 s44, s44, {16*8192}')

class Mlp1:
    NS = 14
    ACC = staticmethod(lambda fb, tb: (fb*2+tb)*4)
    BF = staticmethod(lambda ks, tb: 64 + (ks*2+tb)*4)
    U_ = staticmethod(lambda fb: 176 + 4*fb)
    W_ = staticmethod(lambda fb: 208 + 4*fb)
    RA = staticmethod(lambda i: 240 + i)
    WV = staticmethod(lambda m: 248 + m)
    BV = staticmethod(lambda tb: 250 + tb)
    E0 = 252
    AF = staticmethod(lambda fb: 4*fb)
    ST = staticmethod(lambda tb, nt: 32 + (tb*7+nt)*2)
    SW, SY, SU, SS, SH = 24, 28, 16, 20, 36
    sTB4, sFT = 76, 77
    V2 = False
    NPART = 7
    def __init__(self, a): self.a = a
    def w_issue(self):
        a = self.a; WV = self.WV
        l, t0, t1, t2 = 244, 245, 246, 247
        a(f's_cmp_ge_u32 s{sIDX}, 14'); a(f's_cselect_b32 s{self.sTB4}, 1, 0'); a(f's_mul_i32 s{self.sFT}, s{self.sTB4}, 14'); a(f's_sub_u32 s{self.sFT}, s{sIDX}, s{self.sFT}')
        a('s_and_b32 s44, s2, 7'); a('s_lshl_b32 s44, s44, 1'); a(f's_add_u32 s{self.sTB4}, s{self.sTB4}, s44')
        lane_id(a, l)
        a(f'v_and_b32 v{t2}, 15, v{l}')
        a(f's_mul_i32 s45, s{sWAVE}, {8*3584}')
        for m in range(2):
            a(f'v_lshrrev_b32 v{t0}, 4, v{l}')
            if m: a(f'v_add_u32 v{t0}, 4, v{t0}')
            a(f'v_lshlrev_b32 v{t1}, 1, v{t0}'); a(f'v_xor_b32 v{t1}, v{t1}, v{t2}'); a(f'v_lshlrev_b32 v{t1}, 4, v{t1}')
            a(f'v_mul_u32_u24 v{t0}, 3584, v{t0}'); a(f'v_add3_u32 v{WV(m)}, v{t0}, v{t1}, s45')
            if m: a(f'v_subrev_u32 v{WV(m)}, 1024, v{WV(m)}')
        a(f's_lshl_b32 s46, s{self.sFT}, 8'); a(f's_lshl_b32 s48, s{sWAVE}, 11')
        srd(a, self.SW, sW1, 0, 0, 46); a(f's_sub_u32 s{self.SW+2}, {448*3584}, s46')
        self.w_more(0, 2*NPRE)
    def w_more(self, k0, k1):
        a = self.a; WV = self.WV
        for ks in range(k0, k1 if not os.environ.get('NOW1') else k0):
            a(f's_add_u32 m0, s48, {ks*8192}'); a(f's_mov_b32 s50, {ks*32*3584}')
            for m in range(2): a.vmem(f'buffer_load_dwordx4 v{WV(m)}, s[{self.SW}:{self.SW+3}], s50 offen offset:{1024*m} lds')
    def setup(self):
        a = self.a; RA = self.RA; BV = self.BV; E0 = self.E0
        L, t0, t1, t2 = 1, 2, 3, 4
        lane_id(a, L)
        a(f'v_bfe_u32 v{t0}, v{L}, 2, 4'); a(f'v_and_b32 v{t1}, 7, v{t0}'); a(f'v_lshlrev_b32 v{t0}, 8, v{t0}')
        a(f'v_and_b32 v{t2}, 3, v{L}'); a(f'v_lshl_add_u32 v{t0}, v{t2}, 3, v{t0}')
        for i in range(8):
            a(f'v_xor_b32 v{t2}, {i}, v{t1}'); a(f'v_lshl_add_u32 v{RA(i)}, v{t2}, 5, v{t0}')
        a(f's_mul_i32 s44, s{sWAVE}, {2*14336}'); a(f'v_lshlrev_b32 v{t0}, 4, v{L}')
        a(f'v_add_u32 v{BV(0)}, s44, v{t0}'); a(f'v_add_u32 v{BV(1)}, 14336, v{BV(0)}')
        a(f'v_lshrrev_b32 v{t1}, 4, v{L}'); a(f'v_lshlrev_b32 v{E0}, 4, v{t1}')
        a(f's_lshl_b32 s44, s{sWAVE}, 8'); a(f'v_and_b32 v{t2}, 15, v{L}'); a(f'v_lshlrev_b32 v{t2}, 3, v{t2}'); a(f'v_add_u32 v{E0+1}, s44, v{t2}')
        a(f's_mul_i32 s44, s{sWAVE}, {2*56*1024}'); a(f'v_add_u32 v{E0+2}, s44, v{t0}'); a(f'v_add_u32 v{E0+3}, {56*1024}, v{E0+2}')
        a(f's_mul_i32 s45, s{self.sTB4}, {8*14336}')
        srd(a, self.SY, sWS, WS_Y, 8*14336, 45)
        srd(a, self.SU, sWS, WS_U, 0x4000); srd(a, self.SS, sWS, WS_STAT, 8*2048*8)
        a(f's_mul_i32 s52, s{self.sTB4}, {8*56*1024}'); a(f's_lshl_b32 s53, s{self.sFT}, 12'); a('s_add_u32 s52, s52, s53')
        srd(a, self.SH, sWS, WS_H, 0, 52); a(f's_sub_u32 s{self.SH+2}, {128*56*1024}, s52')
        a(f's_lshl_b32 s44, s{self.sFT}, 9'); a('s_add_u32 s45, s44, 0x2000'); a(f's_lshl_b32 s56, s{self.sTB4}, 10')
        a(f's_lshl_b32 s46, s{self.sTB4}, 7'); a(f's_add_u32 s46, s46, {FL_B}')
        if self.V2:
            a(f'v_lshlrev_b32 v{t0}, 2, v{L}'); a(f'v_add_u32 v{t0}, s46, v{t0}')
            return t0
        a(f's_lshl_b32 s47, s{self.sFT}, 3'); a(f's_add_u32 s47, s47, {FL_U - 56}')
        a(f'v_mov_b32 v{t0}, s46'); a(f'v_mov_b32 v{t1}, s47'); a(f'v_cmp_gt_u32 vcc, 14, v{L}'); a('s_nop 1')
        a(f'v_cndmask_b32 v{t0}, v{t1}, v{t0}, vcc'); a(f'v_lshl_add_u32 v{t0}, v{L}, 2, v{t0}')
        return t0
    def main(self, sp, w2pre):
        a = self.a; NS = self.NS
        ACC, BF, U_, W_, RA, BV, E0, AF, ST = self.ACC, self.BF, self.U_, self.W_, self.RA, self.BV, self.E0, self.AF, self.ST
        tk = {}
        LA = LA4
        def ld(ks, m):
            if m == 0: a(f's_mov_b32 s51, {ks*1024}')
            tk[ks] = a.vmem(f'buffer_load_dwordx4 {vr(BF(ks,m),4)}, v{BV(m)}, s[{self.SY}:{self.SY+3}], s51 offen {SC}')
        def aread(ks, fb, h): return f'ds_read_b64_tr_b16 {ar(AF(fb)+2*h,2)}, v{RA(fb)} offset:{(ks % 8)*8192 + h*4096}'
        for ks in range(LA):
            for m in range(2): ld(ks, m)
        if not self.V2 and not getattr(self, 'nobar', False): a('s_barrier')
        for fb in range(8):
            for h in range(2): a(aread(0, fb, h))
        extra = []
        for nt in range(self.NPART):
            for tb in range(2):
                def f(nt=nt, tb=tb):
                    a(f's_add_u32 s57, s56, {nt*16384 + tb*128}')
                    a.vmem(f'buffer_load_dwordx2 {ar(ST(tb,nt),2)}, v{E0+1}, s[{self.SS}:{self.SS+3}], s57 offen {SC}')
                extra.append(f)
        for fb in range(0 if self.V2 else 8):
            extra.append(lambda fb=fb: a.vmem(f'buffer_load_dwordx4 {vr(U_(fb),4)}, v{E0}, s[{self.SU}:{self.SU+3}], s44 offen offset:{64*fb} {SC}'))
            extra.append(lambda fb=fb: a.vmem(f'buffer_load_dwordx4 {vr(W_(fb),4)}, v{E0}, s[{self.SU}:{self.SU+3}], s45 offen offset:{64*fb} {SC}'))
        yq = [(ks, m) for ks in range(LA, NS) for m in range(2)]
        a.wait_vm(tk[0], ' lgkmcnt(0)')
        for ks in range(NS):
            G_ = [[] for _ in range(16)]
            if ks >= 1:
                G_[0].append(aread(ks, 7, 0)); G_[1].append(aread(ks, 7, 1))
            G_[5].insert(0, 's_waitcnt lgkmcnt(4)'); G_[13].insert(0, 's_waitcnt lgkmcnt(4)')
            if ks + 1 < NS:
                G_[15].append(lambda ks=ks: a.wait_vm(tk[ks+1]))
                if ks + 1 == 8:
                    for i in range(7): G_[1].append(f'v_add_u32 v{RA(i)}, 65536, v{RA(i)}')
                for k in range(14): G_[k+2].append(aread(ks+1, k >> 1, k & 1))
            if ks == 7: G_[15].append(f'v_add_u32 v{RA(7)}, 65536, v{RA(7)}')
            slots = [3, 7, 11, 14]
            if Y4:
                for k in list(slots):
                    if yq: G_[slots.pop(0)].append(lambda x=yq.pop(0): ld(*x))
            elif ks + LA < NS:
                for m in range(2): G_[slots.pop(0)].append(lambda ks=ks, m=m: ld(ks + LA, m))
            for k in slots:
                if extra: G_[k].append(extra.pop(0))
            for fb in range(8):
                for tb in range(2):
                    k = fb*2 + tb
                    c = vr(ACC(fb, tb), 4)
                    a(f'{M16} {c}, {ar(AF(fb),4)}, {vr(BF(ks,tb),4)}, {c if ks else 0}')
                    for x in G_[k]: x() if callable(x) else a(x)
        assert not extra
        sp.stamp()
        a('s_waitcnt vmcnt(0)'); a('s_barrier')
        B0 = 64
        MEAN = lambda tb: B0 + 32 + tb
        RS = lambda tb: B0 + 34 + tb
        pre = list(w2pre)
        def fill(n=1):
            for _ in range(n):
                if pre: pre.pop(0)()
        NP = self.NPART
        if self.V2:
            for fb in range(8):
                a(f'ds_read_b128 {vr(U_(fb),4)}, v{E0} offset:{64*fb}'); a(f'ds_read_b128 {vr(W_(fb),4)}, v{E0} offset:{512+64*fb}')
        fill(1)
        for tb in range(2):
            for i in range(2*NP): a(f'v_accvgpr_read_b32 v{B0+tb*16+i}, a{ST(tb,0)+i}')
        fill(2)
        for tb in range(2):
            b = B0 + tb*16
            for nt in range(1, NP):
                a(f'v_add_f32 v{b}, v{b}, v{b+2*nt}'); a(f'v_add_f32 v{b+1}, v{b+1}, v{b+2*nt+1}')
        fill(1)
        for tb in range(2):
            b = B0 + tb*16
            a(f'v_mul_f32 v{b}, {f32(1/448)}, v{b}'); a(f'v_mul_f32 v{b+1}, {f32(1/448)}, v{b+1}')
            a(f'v_fma_f32 v{b+1}, -v{b}, v{b}, v{b+1}'); a(f'v_max_f32 v{b+1}, 0, v{b+1}')
            rbf(a, b+1, b+1); a(f'v_add_f32 v{b+1}, {f32(1e-5)}, v{b+1}'); rbf(a, b+1, b+1)
            a(f'v_sqrt_f32 v{b+1}, v{b+1}'); rbf(a, MEAN(tb), b)
            rbf(a, b+1, b+1); a(f'v_rcp_f32 v{RS(tb)}, v{b+1}')
            a(f'v_sub_f32 v{MEAN(tb)}, 0, v{MEAN(tb)}')
            fill(1)
        TT = B0 + 40; LP = B0 + 38
        a(f'v_mov_b32 v{LP}, {f32(LOG2E)}')
        if self.V2: a('s_waitcnt lgkmcnt(0)')
        for tb in range(2): a(f'v_mul_f32 v{RS(tb)}, {f32(LOG2E)}, v{RS(tb)}')
        if not EPI:
            for sq in range(4):
                for tb in range(2):
                    rg = [(ACC(2*sq+e, tb)+r, U_(2*sq+e)+r, W_(2*sq+e)+r) for e in range(2) for r in range(4)]
                    tm = [TT + ((sq*2+tb) % 2)*8 + i for i in range(8)]
                    for (x, u, w) in rg: a(f'v_fma_f32 v{x}, v{MEAN(tb)}, v{u}, v{x}')
                    if E4F > 0: fill()
                    for (x, u, w) in rg: a(f'v_fma_f32 v{x}, v{RS(tb)}, v{x}, v{w}')
                    for (x, u, w), t in zip(rg, tm): a(f'v_exp_f32 v{t}, -v{x}')
                    if E4F > 1: fill()
                    for t in tm: a(f'v_fma_f32 v{t}, v{t}, v{LP}, v{LP}')
                    for t in tm: a(f'v_rcp_f32 v{t}, v{t}')
                    if E4F > 2: fill()
                    for (x, u, w), t in zip(rg, tm): a(f'v_mul_f32 v{x}, v{x}, v{t}')
                    d = ACC(2*sq, tb); xs = [r[0] for r in rg]
                    for i in range(4): a(f'v_cvt_pk_bf16_f32 v{d+i}, v{xs[2*i]}, v{xs[2*i+1]}')
                    self.tlast = a.vmem(f'buffer_store_dwordx4 {vr(d,4)}, v{E0+2+tb}, s[{self.SH}:{self.SH+3}], 0 offen offset:{1024*sq} {SC}')
        else:
            grp = [(sq, tb) for sq in range(4) for tb in range(2)]
            def st(gi):
                sq, tb = grp[gi]
                rg = [(ACC(2*sq+e, tb)+r, U_(2*sq+e)+r, W_(2*sq+e)+r) for e in range(2) for r in range(4)]
                tm = [TT + (gi % 3)*8 + i for i in range(8)]
                A = [f'v_fma_f32 v{x}, v{MEAN(tb)}, v{u}, v{x}' for (x, u, w) in rg] + [f'v_fma_f32 v{x}, v{RS(tb)}, v{x}, v{w}' for (x, u, w) in rg]
                B = [f'v_exp_f32 v{t}, -v{x}' for (x, u, w), t in zip(rg, tm)]
                C = [f'v_fma_f32 v{t}, v{t}, v{LP}, v{LP}' for t in tm]
                Dd = [f'v_rcp_f32 v{t}, v{t}' for t in tm]
                d = ACC(2*sq, tb); xs = [r[0] for r in rg]
                E = [f'v_mul_f32 v{x}, v{x}, v{t}' for (x, u, w), t in zip(rg, tm)] + [f'v_cvt_pk_bf16_f32 v{d+i}, v{xs[2*i]}, v{xs[2*i+1]}' for i in range(4)]
                S = f'buffer_store_dwordx4 {vr(d,4)}, v{E0+2+tb}, s[{self.SH}:{self.SH+3}], 0 offen offset:{1024*sq} {SC}'
                return A, B, C, Dd, E, S
            G = [st(i) for i in range(8)]
            for x in G[0][0]: a(x)
            for ph in range(10):
                T1_ = G[ph][1] if ph < 8 else []
                T2_ = G[ph-1][3] if 1 <= ph < 9 else []
                V1 = (G[ph-1][2] if 1 <= ph < 9 else []) + (G[ph-2][4] if 2 <= ph else [])
                V2 = (G[ph+1][0] if ph + 1 < 8 else [])
                for Ts, Vs in ((T1_, V1), (T2_, V2)):
                    Ts = list(Ts); Vs = list(Vs); n = max(len(Ts), 1); k = 0
                    per = -(-len(Vs) // n)
                    while Ts or Vs:
                        if Ts: a(Ts.pop(0))
                        for _ in range(per):
                            if Vs: a(Vs.pop(0))
                    if Vs is not None and Ts is not None and (Ts, Vs) == ([], []) and Vs is not V2: pass
                if ph >= 2:
                    self.tlast = a.vmem(G[ph-2][5])
                if E4F > 0: fill()
                if E4F > 1: fill()
        self.rest = pre

    def main2(self, sp, w2pre):
        a = self.a; NS = self.NS
        ACC, BF, U_, W_, RA, BV, E0 = self.ACC, self.BF, self.U_, self.W_, self.RA, self.BV, self.E0
        ST = lambda tb, nt: 64 + (tb*7+nt)*2
        AF = lambda i, fbl: ((i % 3)*4 + fbl)*4
        tk = {}
        def ld(ks, m):
            if m == 0: a(f's_mov_b32 s51, {ks*1024}')
            tk[ks] = a.vmem(f'buffer_load_dwordx4 {vr(BF(ks,m),4)}, v{BV(m)}, s[{self.SY}:{self.SY+3}], s51 offen {SC}')
        def areads(i):
            p, ks = divmod(i, NS)
            return [f'ds_read_b64_tr_b16 {ar(AF(i,fbl)+2*h,2)}, v{RA(4*p+fbl)} offset:{(ks % 8)*8192 + h*4096}' for fbl in range(4) for h in range(2)]
        LA = 6
        for ks in range(LA):
            for m in range(2): ld(ks, m)
        if not getattr(self, 'nobar', False): a('s_barrier')
        for i in range(2):
            for x in areads(i): a(x)
        vq = [lambda ks=ks, m=m: ld(ks, m) for ks in range(LA, NS) for m in range(2)]
        tex = {}
        for nt in range(7):
            for tb in range(2):
                def f(nt=nt, tb=tb):
                    a(f's_add_u32 s57, s56, {nt*16384 + tb*128}')
                    tex['s'] = a.vmem(f'buffer_load_dwordx2 {ar(ST(tb,nt),2)}, v{E0+1}, s[{self.SS}:{self.SS+3}], s57 offen {SC}')
                vq.append(f)
        for fb in range(8):
            vq.append(lambda fb=fb: tex.__setitem__(fb, a.vmem(f'buffer_load_dwordx4 {vr(U_(fb),4)}, v{E0}, s[{self.SU}:{self.SU+3}], s44 offen offset:{64*fb} {SC}')))
            vq.append(lambda fb=fb: tex.__setitem__(fb, a.vmem(f'buffer_load_dwordx4 {vr(W_(fb),4)}, v{E0}, s[{self.SU}:{self.SU+3}], s45 offen offset:{64*fb} {SC}')))
        TA_ = [240, 241, 242, 243, 248, 249]
        MEAN = lambda tb: 240 + tb
        RS = lambda tb: 242 + tb
        LP = 248
        def stats_ops(tmp):
            o = []
            for tb in range(2):
                s1, s2, t1, t2 = MEAN(tb), RS(tb), tmp[0], tmp[1]
                o += [f'v_accvgpr_read_b32 v{s1}, a{ST(tb,0)}', f'v_accvgpr_read_b32 v{s2}, a{ST(tb,0)+1}']
                for nt in range(1, 7):
                    o += [f'v_accvgpr_read_b32 v{t1}, a{ST(tb,nt)}', f'v_accvgpr_read_b32 v{t2}, a{ST(tb,nt)+1}', f'v_add_f32 v{s1}, v{s1}, v{t1}', f'v_add_f32 v{s2}, v{s2}, v{t2}']
                m, v = s1, s2
                rb = lambda r: [f'v_cvt_pk_bf16_f32 v{r}, v{r}, v{r}', f'v_and_b32 v{r}, 0xffff0000, v{r}']
                o += [f'v_mul_f32 v{m}, {f32(1/448)}, v{m}', f'v_mul_f32 v{v}, {f32(1/448)}, v{v}', f'v_fma_f32 v{v}, -v{m}, v{m}, v{v}', f'v_max_f32 v{v}, 0, v{v}']
                o += rb(v) + [f'v_add_f32 v{v}, {f32(1e-5)}, v{v}'] + rb(v) + [f'v_sqrt_f32 v{v}, v{v}'] + rb(m) + rb(v) + [f'v_rcp_f32 v{v}, v{v}', f'v_sub_f32 v{m}, 0, v{m}', f'v_mul_f32 v{v}, {f32(LOG2E)}, v{v}']
            o.append(f'v_mov_b32 v{LP}, {f32(LOG2E)}')
            return o
        def epi(sq, tb, tm):
            rg = [(ACC(2*sq+e, tb)+r, U_(2*sq+e)+r, W_(2*sq+e)+r) for e in range(2) for r in range(4)]
            o = [f'v_fma_f32 v{x}, v{MEAN(tb)}, v{u}, v{x}' for (x, u, w) in rg] + [f'v_fma_f32 v{x}, v{RS(tb)}, v{x}, v{w}' for (x, u, w) in rg]
            o += [f'v_exp_f32 v{t}, -v{x}' for (x, u, w), t in zip(rg, tm)] + [f'v_fma_f32 v{t}, v{t}, v{LP}, v{LP}' for t in tm] + [f'v_rcp_f32 v{t}, v{t}' for t in tm]
            o += [f'v_mul_f32 v{x}, v{x}, v{t}' for (x, u, w), t in zip(rg, tm)]
            d = ACC(2*sq, tb); xs = [r[0] for r in rg]
            o += [f'v_cvt_pk_bf16_f32 v{d+i}, v{xs[2*i]}, v{xs[2*i+1]}' for i in range(4)]
            o.append(('S', f'buffer_store_dwordx4 {vr(d,4)}, v{E0+2+tb}, s[{self.SH}:{self.SH+3}], 0 offen offset:{1024*sq} {SC}'))
            return o
        fl = []
        for i in range(2*NS):
            p, ks = divmod(i, NS)
            w = f' lgkmcnt({8 if i + 1 < 2*NS else 0})'
            if p == 0: a.wait_vm(tk[ks], w)
            elif ks == 0:
                a.wait_vm(max(tex['s'], tex[3]), w)
                fl = stats_ops((249, 248))
                for sq in range(2):
                    for tb in range(2): fl += epi(sq, tb, [U_(0)+k for k in range(8)] if False else [BF(0,0) + 0]*8) if False else []
                self.flA = True
            else: a(f's_waitcnt{w}')
            rd = areads(i + 2) if i + 2 < 2*NS else []
            if i + 2 < 2*NS and (i + 2) % NS == 8:
                for fbl in range(4): a(f'v_add_u32 v{RA(4*((i+2)//NS)+fbl)}, 65536, v{RA(4*((i+2)//NS)+fbl)}')
            if p == 1 and ks == 1:
                for gi, (sq, tb) in enumerate([(0, 0), (0, 1), (1, 0), (1, 1)]): fl += epi(sq, tb, [BF(0,0) + k for k in range(8)])
            g = 0
            for fbl in range(4):
                for tb in range(2):
                    c = vr(ACC(4*p+fbl, tb), 4)
                    a(f'{M16} {c}, {ar(AF(i,fbl),4)}, {vr(BF(ks,tb),4)}, {c if ks else 0}')
                    if rd: a(rd.pop(0))
                    if p == 0 and g % 2 == 1 and vq: vq.pop(0)()
                    elif p == 1 and vq and g % 4 == 1: vq.pop(0)()
                    elif p == 1:
                        for _ in range(2):
                            if fl:
                                x = fl.pop(0)
                                if isinstance(x, tuple): self.tlast = a.vmem(x[1]); break
                                a(x)
                                if x.startswith(TRANS): break
                    g += 1
        assert not vq
        sp.stamp()
        a('s_waitcnt vmcnt(63)'); a('s_barrier')
        pre = list(w2pre)
        def fill(n=1):
            for _ in range(n):
                if pre: pre.pop(0)()
        fill(1)
        for x in fl:
            if isinstance(x, tuple): self.tlast = a.vmem(x[1])
            else: a(x)
        a.wait_vm(tex[7])
        for gi, (sq, tb) in enumerate([(2, 0), (2, 1), (3, 0), (3, 1)]):
            for k, x in enumerate(epi(sq, tb, [BF(1 + (gi & 1), 0) + k for k in range(8)])):
                if isinstance(x, tuple): self.tlast = a.vmem(x[1])
                else: a(x)
                if k % 6 == 5: fill()
        self.rest = pre

def nonce_reset(a, T):
    a(f's_or_b32 s44, s2, s{sWAVE}'); a('s_cmp_lg_u32 s44, 0'); a(f's_cbranch_scc1 {T}_end')
    a('v_mov_b32 v0, 0'); a('s_mov_b32 s10, 256'); a('s_mov_b32 s11, 0x20000')
    a('s_mov_b64 exec, 1')
    a(f'buffer_store_dword v0, v0, s[8:11], 0 offen {SC}')

def post(a, T):
    sp = Stamper(a, 80, 3); sp.stamp(True); sp.stamp()
    g3 = a.g3
    if g3.dyn and EARLY:
        a('s_lshr_b32 s45, s49, 3'); a('s_lshl_b32 s43, 1, s45')
        a(f's_mov_b32 s{sT[1]}, 0x8000')
        a.label(f'{T}_a_pl')
        a(f'v_cmp_eq_u32 vcc, s{sNON}, v137'); a('s_nop 1'); a('s_bcnt1_i32_b64 s46, vcc')
        a(f'v_cmp_eq_u32 vcc, s{sNON}, v{T1}'); a('s_nop 1')
        g3.ready_mask()
        a('s_cmp_ge_u32 s46, 56'); a(f's_cselect_b32 s73, s{sROT}, 0'); a('s_and_b32 s73, s73, s43'); a(f's_cbranch_scc1 {T}_a_pd')
        a(f's_sleep {PSL}')
        a(f'buffer_load_dword v{T1}, v{T0}, s[{SF_}:{SF_+3}], 0 offen {SC}')
        a(f'buffer_load_dword v137, v136, s[{SF_}:{SF_+3}], 0 offen {SC}')
        a('s_waitcnt vmcnt(0)')
        a(f's_sub_u32 s{sT[1]}, s{sT[1]}, 1'); a(f's_cmp_lg_u32 s{sT[1]}, 0'); a(f's_cbranch_scc1 {T}_a_pl')
        a.label(f'{T}_a_pd')
    elif True:
        for ks in range(NPRE, g3.nw0):
            for f in g3.w_pre(ks): f()
        g3.b_setup()
        a(f's_lshr_b32 s44, s{sTB}, 1'); a('s_lshl_b32 s44, s44, 7'); a(f'v_lshlrev_b32 v{T0}, 2, v{LANE}'); a(f'v_add_u32 v{T0}, s44, v{T0}')
        a(f'v_add_u32 v0, {FL_M+448}, v{L16}')
    if g3.dyn and EARLY: pass
    elif g3.dyn:
        a('s_and_b32 s45, s2, 7'); a('s_lshl_b32 s45, s45, 1'); a('s_lshl_b32 s43, 1, s45')
        a(f's_mov_b32 s{sT[1]}, 0x8000')
        a.label(f'{T}_a_pl')
        a(f'buffer_load_dword v{T1}, v{T0}, s[{SF_}:{SF_+3}], 0 offen {SC}')
        a(f'buffer_load_dword v1, v0, s[{SF_}:{SF_+3}], 0 offen {SC}')
        a('s_waitcnt vmcnt(0)')
        a(f'v_cmp_eq_u32 vcc, s{sNON}, v1'); a('s_nop 1'); a('s_bcnt1_i32_b64 s46, vcc')
        a(f'v_cmp_eq_u32 vcc, s{sNON}, v{T1}'); a('s_nop 1')
        g3.ready_mask()
        a('s_cmp_ge_u32 s46, 56'); a(f's_cselect_b32 s73, s{sROT}, 0'); a('s_and_b32 s73, s73, s43'); a(f's_cbranch_scc1 {T}_a_pd')
        a(f's_sleep {PSL}')
        a(f's_sub_u32 s{sT[1]}, s{sT[1]}, 1'); a(f's_cmp_lg_u32 s{sT[1]}, 0'); a(f's_cbranch_scc1 {T}_a_pl')
        a.label(f'{T}_a_pd')
        a.vm = 0
    else:
        poll(a, f'{T}_a', T0, T1, 0xffff, (0, 1, 56) if LATE else None)
    sp.stamp()
    g3.main(sp)
    m = Mlp1(a)
    m.w_issue()
    a.wait_vm(g3.tlast); a('s_barrier')
    a(f's_lshr_b32 s44, s{sTB}, 1'); a('s_lshl_b32 s44, s44, 7'); a(f's_and_b32 s45, s{sTB}, 1'); a('s_mul_i32 s45, s45, 7'); a(f's_add_u32 s45, s45, s{sNT}')
    a('s_lshl_b32 s45, s45, 2'); a('s_add_u32 s44, s44, s45'); a(f's_add_u32 s44, s44, {FL_B}')
    set_flag(a, f'{T}_b', 44, 8)
    sp.stamp(); sp.stamp(True); sp.dump(sWS, sWAVE, 8)
    sp = Stamper(a, 80, 4); sp.stamp(True); sp.stamp()
    m.w_more(2*NPRE, 14)
    pa = m.setup()
    poll(a, f'{T}_b', pa, pa + 1, 0xffff, one=bool(PW0))
    m.nobar = bool(PW0)
    sp.stamp()
    g5 = Gemm(a, 5)
    pre = [g5.w_setup]
    for ks in range(g5.DW if g5.DW != D else PF): pre += g5.w_pre(ks)
    (m.main2 if TWOP else m.main)(sp, pre)
    sp.stamp()
    a.wait_vm(m.tlast); a('s_barrier')
    a(f's_lshl_b32 s44, s{m.sTB4}, 7'); a(f's_lshl_b32 s45, s{m.sFT}, 2'); a('s_add_u32 s44, s44, s45'); a(f's_add_u32 s44, s44, {FL_C}')
    set_flag(a, f'{T}_c', 44, 8)
    sp.stamp(); sp.stamp(True); sp.dump(sWS, sWAVE, 8)
    sp = Stamper(a, 80, 5); sp.stamp(True); sp.stamp()
    for f in m.rest: f()
    g5.b_setup()
    a(f's_lshr_b32 s44, s{sTB}, 1'); a('s_lshl_b32 s44, s44, 7'); a(f's_add_u32 s44, s44, {FL_C}'); a(f'v_lshlrev_b32 v{T0}, 2, v{LANE}'); a(f'v_add_u32 v{T0}, s44, v{T0}')
    poll(a, f'{T}_c', T0, T1, 0x3fff, one=bool(PW0))
    sp.stamp()
    g5.main(sp)
    sp.stamp()
    if STAMP: a('s_waitcnt vmcnt(0)')
    sp.stamp(True); sp.dump(sWS, sWAVE, 60)
    if NONCE: nonce_reset(a, T)
```

```python
from gen_k2 import *
O2 = lambda dbl, c: (dbl*4+c)*4
P2 = lambda buf, c: (144 if buf == 0 else 224) + 4*c
NM2 = lambda c: 240 + 4*c
L2 = lambda c: 160 + c
VB_ = lambda i: 192 + i
PWA, PRA = 200, 201
ST2 = lambda c: (190 + c) if c < 2 else (200 + c)
KF2 = lambda st: 4*st
VF2 = lambda dbl: 64 + 4*dbl
Q2 = lambda st, c: 128 + (st*4+c)*4
DUM = 'a[32:35]'
LQA, LQB = 128*1024, 96*1024
LPX = int(os.environ.get('LPX', 132*1024))
LLX = 148*1024

def kread2(slot, st): return f'ds_read_b128 {ar(KF2(st),4)}, v{KA_(st&3)} offset:{slot*TILE + (st>>2)*256}'
def vread2(slot, dbl, h): return f'ds_read_b64_tr_b16 {ar(VF2(dbl)+2*h,2)}, v{(VB_ if h else VA_)(dbl)} offset:{slot*TILE}'
def qk2(c, st, C=None):
    cc = (C if C is not None else vr(NM2(c), 4)) if st == 0 else vr(S_(c), 4)
    return f'{M16} {vr(S_(c),4)}, {ar(KF2(st),4)}, {ar(Q2(st,c),4)}, {cc}'
def pv2(dbl, c, buf): return f'{M16} {vr(O2(dbl,c),4)}, {ar(VF2(dbl),4)}, {vr(P2(buf,c),4)}, {vr(O2(dbl,c),4)}'
def pwrite(buf, c): return f'ds_write_b64 v{PWA}, {vr(P2(buf,c),2)} offset:{buf*8192 + c*512}'
def pwrite2(buf, c): return f'ds_write2_b64 v{PW2(buf)}, {vr(P2(buf,c),2)}, {vr(P2(buf,c+1),2)} offset0:{c*64} offset1:{(c+1)*64}'
PW2 = lambda buf: PWA if buf == 0 else 165
PWM = os.environ.get('PWM', 'i')
def pread(buf, c): return f'ds_read_b64 {vr(P2(buf,c)+2,2)}, v{PRA} offset:{buf*8192 + (c^2)*512}'

def addr_early(a):
    a('s_and_b32 s73, s14, 1'); a('s_lshl_b32 s74, s73, 13')
    for i in range(4): a(f'v_add_u32 v{KA_(i)}, s74, v{KA_(i)}')
    a('s_lshl_b32 s73, s73, 8'); a('s_add_u32 s74, s74, s73')
    for i in range(8): a(f'v_add_u32 v{VA_(i)}, s74, v{VA_(i)}')
def addr_late(a):
    o = []
    for i in range(8): o.append(f'v_xor_b32 v{VB_(i)}, 0x2000, v{VA_(i)}')
    o += [f'v_mov_b32 v{PFV}, v{ST_(0)}', 's_lshl_b32 s73, s14, 11', f's_add_u32 s73, s73, {LPX}', f'v_and_b32 v{PWA}, 0x3ff, v{ST_(0)}', f'v_lshrrev_b32 v{PWA}, 1, v{PWA}',
          f'v_add_u32 v{PWA}, s73, v{PWA}', f'v_xor_b32 v{PRA}, 0x800, v{PWA}', 's_and_b32 s73, s14, 1', 's_lshl_b32 s73, s73, 12']
    for c in range(2): o += [f'v_add_u32 v{ST2(c)}, s73, v{ST2(c)}', f'v_xor_b32 v{ST2(c+2)}, 0x40000, v{ST2(c)}']
    return o

def xl4(a, op, regs, tmps):
    for sw in ('v_permlane32_swap_b32', 'v_permlane16_swap_b32'):
        for r, t in zip(regs, tmps): a(f'v_mov_b32 v{t}, v{r}')
        for r, t in zip(regs, tmps): a(f'{sw} v{r}, v{t}')
        for r, t in zip(regs, tmps): a(f'{op} v{r}, v{r}, v{t}')

def max_exchange(a, M):
    T = 208
    a(f'v_and_b32 v{T}, 0x3ff, v{PFV}'); a('s_lshl_b32 s73, s14, 10'); a(f's_add_u32 s73, s73, {LLX}')
    a(f'v_add_u32 v{T+1}, s73, v{T}'); a(f'v_xor_b32 v{T}, 0x400, v{T+1}')
    a(f'ds_write_b128 v{T+1}, {vr(M,4)}')
    a('s_waitcnt lgkmcnt(0)'); a('s_barrier')
    a(f'ds_read_b128 {vr(T+4,4)}, v{T}')
    a('s_waitcnt lgkmcnt(0)')
    for c in range(4): a(f'v_max_f32 v{M+c}, v{M+c}, v{T+4+(c^2)}')
    for c in range(4):
        for i in range(4): a(f'v_sub_f32 v{NM2(c)+i}, 0, v{M+c}')

def softmax0_2(a):
    a(f'v_add_u32 v165, 8192, v{PWA}')
    for c in range(4):
        for r in range(4): a(f'v_add_f32 v{S_(c)+r}, v{S_(c)+r}, v{NM2(c)+((r+1)&3)}')
    for c in range(4):
        for r in range(4): a(f'v_exp_f32 v{S_(c)+r}, v{S_(c)+r}')
    for c in range(4): a(f'v_add_f32 v{L2(c)}, v{S_(c)}, v{S_(c)+1}')
    for c in range(4):
        for p in range(2): a(f'v_cvt_pk_bf16_f32 v{P2(0,c)+p}, v{S_(c)+2*p}, v{S_(c)+2*p+1}')
    for c in range(4): a(pwrite(0, c))
    for r in (2, 3):
        for c in range(4): a(f'v_add_f32 v{L2(c)}, v{S_(c)+r}, v{L2(c)}')
def rowmax(a, M):
    for c in range(4):
        a(f'v_max3_f32 v{M+c}, v{S_(c)}, v{S_(c)+1}, v{S_(c)+2}')
    for c in range(4): a(f'v_max_f32 v{M+c}, v{M+c}, v{S_(c)+3}')

def loop_body2(a, u, verbose=False):
    mf = [qk2(c, st) for c in range(4) for st in range(8)]
    mf += [pv2(dbl, c, u & 1) for dbl in range(8) for c in range(4)]
    it = []
    F = lambda text, typ, g: it.append(Item(text, typ, g, g)) or it[-1]
    vs = u; ks = (u + 2) & 3; nb = (u + 1) & 1
    lds = {}
    TG2 = [0,0,1,2,2,4,5,5,6,7,8,9,10,13,15,16,18,21,22,24] if PWM != 'i' else [0,0,1,2,2,4,4,5,6,7,7,8,9,10,13,15,16,18,21,22]
    ops = [pread(u & 1, c) for c in range(4)] + [vread2(vs, dbl, h) for dbl in range(8) for h in range(2)]
    X = []
    for g, o in zip(TG2, ops): X.append(F(o, 't', g)); lds[g] = lds.get(g, 0) + 1
    F(('WAITLG', list(X[:12])), 's', 26); F(('WAITLG', list(X)), 's', 42)
    for st, g in enumerate([25,28,30,33,36,38,41,44] if PWM != 'i' else [24,28,30,33,36,38,41,44]):
        assert g >= 24 + st
        F(kread2(ks, st), 'r', g); lds[g] = 1
    busy = set(EG) | set(DG) | {63}
    WG_ = {'g': (31, 46, 52, 57), 'j': (31, 47, 55, 61), 'i': (25, 39, 47, 57)}.get(PWM, ())
    busy |= set(WG_)
    nv = {}; lastc = {}
    def place_v(tx, av):
        g = av
        while g in busy or nv.get(g, 0) >= (1 if lds.get(g) else 2) or lds.get(g, 0) > 1: g += 1
        nv[g] = nv.get(g, 0) + 1; F(tx, 'v', g); return g
    for c in range(4):
        last = 0
        for r in range(4):
            g = EG[4*c+r]
            F(f'v_exp_f32 v{S_(c)+r}, v{S_(c)+r}', 'e', g)
            if r & 1:
                p = r >> 1
                last = place_v(f'v_cvt_pk_bf16_f32 v{P2(nb,c)+p}, v{S_(c)+2*p}, v{S_(c)+2*p+1}', g + 1)
            place_v(f'v_add_f32 v{L2(c)}, v{S_(c)+r}, v{L2(c)}', g + 1)
        lastc[c] = last
        if PWM == 'a':
            g = last + 1
            while g in busy or lds.get(g) or nv.get(g, 0) > 1: g += 1
            assert g <= 58, g
            F(pwrite(nb, c), 'r', g); lds[g] = 1
        if PWM == 'b' and c & 1:
            g = last + 1
            while g in busy or lds.get(g) or nv.get(g, 0): g += 1
            F(pwrite2(nb, c - 1), 'r', g); lds[g] = 1
    if WG_:
        for c, g in enumerate(WG_):
            assert lastc[c] < g, (c, lastc[c], g)
            F(pwrite(nb, c), 'r', g)
    if PWM == 'g2': pass
    if PWM == 'c':
        for c, g in enumerate((55, 56, 57, 58)): F(pwrite(nb, c), 'r', g)
    if PWM == 'd':
        F(pwrite2(nb, 0), 'r', 56); F(pwrite2(nb, 2), 'r', 58)
    if PWM == 'e':
        F(pwrite2(nb, 0), 'r', 60); F(pwrite2(nb, 2), 'r', 61)
    if PWM == 'f':
        for c, g in enumerate((28, 36, 44, 60)): F(pwrite(nb, c), 'r', g)
    for gi, (kind, slot, gm, ga) in enumerate((('V', (u + 3) & 3, 1, 34), ('K', (u + 1) & 3, 29, 60))):
        base = (LK if kind == 'K' else LV) + slot*TILE
        so = sKO if kind == 'K' else sVO
        F(setm0(base), 's', gm)
        for n in range(4):
            F(dma((KD_ if kind == 'K' else VD_)(n), SK if kind == 'K' else SV, f's{so}', n), 'd', DG[gi*4+n])
        F(f's_add_u32 s{so}, s{so}, {TILE}', 's', ga)
    if u == 3:
        F(f'buffer_load_dwordx4 {DUM}, v{PFV}, s[56:59], s53 offen', 'd', 63); F('s_add_u32 s53, s53, 1024', 's', 63)
    if u == 2: F(f's_cmp_eq_u32 s{sVO}, {hex(66*TILE)}', 's', 62)
    ABL2 = os.environ.get('ABL2', '')
    if 'w' in ABL2: it = [x for x in it if not (isinstance(x.text, str) and x.text.startswith('ds_write'))]
    W_ = [x for x in it if isinstance(x.text, str) and x.text.startswith('ds_write')]
    if '1' in ABL2: it = [x for x in it if x not in W_[1:]]
    if '3' in ABL2: it = [x for x in it if x not in W_[3:]]
    if 'p' in ABL2: it = [x for x in it if not (isinstance(x.text, str) and x.text.startswith('ds_read_b64 '))]; [x.text[1].__delitem__(slice(0, 4)) for x in it if isinstance(x.text, tuple)]
    if 'c' in ABL2:
        for x in W_: x.text = x.text.replace(x.text.split(',')[1].split()[0], 'v[240:241]')
    if 'z' in ABL2:
        import re
        for x in W_:
            m = re.match(r'ds_write_b64 v(\d+), v\[(\d+):(\d+)\] offset:(\d+)', x.text)
            x.text = f'ds_write2_b32 v{m.group(1)}, v{m.group(2)}, v{m.group(3)} offset0:0 offset1:1'
    if 'a' in ABL2:
        import re
        for x in W_:
            m = re.match(r'ds_write_b64 v(\d+), v\[(\d+):(\d+)\] offset:(\d+)', x.text)
            x.text = f'ds_write_b32 v{m.group(1)}, v{m.group(2)} offset:{m.group(4)}'
    if 'd' in ABL2: it = [x for x in it if x.typ != 'd']
    gaps = schedule(64, it, novalu=range(0, 8), verbose=verbose)
    emit(a, mf, gaps)
PFV = 164
```

```python
import sys, importlib
from gen_common import *
import gen_k1
HDR = open('adaLN_cond__mha_block_cached__dense_activation_silu__prompt.s.ref').read().split('; Override launch')[0]
DOC = """;
; Generated by hand-written python generators (one fused persistent kernel, 256 workgroups, one per CU):
"""
def build(parts):
    launches = []; body = []
    for a, l, k in parts:
        pr = check_text(a.L, l[:40])
        for p in pr: print('HAZARD', p, file=sys.stderr)
        launches.append(l); body.append(a.text() + k)
    return HDR + '\n'.join(launches) + '\n' + DOC + '.amdgcn_target "amdgcn-amd-amdhsa--gfx950"\n.text\n' + ''.join(body) + 'CODE_END:\n'
if __name__ == '__main__':
    which = sys.argv[2] if len(sys.argv) > 2 else '12345'
    parts = []
    if which == 'one':
        import gen_one; parts = [gen_one.gen_one()]; which = ''
    for c in which:
        m = importlib.import_module('gen_k' + c)
        parts.append(getattr(m, 'gen_k' + c)())
    open(sys.argv[1], 'w').write(build(parts))
```
